```python
import torch

def _softmax(x, axis=-1):
    return torch.softmax(x, dim=axis)
def _gelu(x):
    return torch.nn.functional.gelu(x, approximate="tanh")
def _silu(x):
    return torch.nn.functional.silu(x)
def _sigmoid(x):
    return torch.sigmoid(x)
def _layernorm(x, axis=-1, eps=1e-5):
    m = x.mean(dim=axis, keepdim=True)
    v = x.var(dim=axis, keepdim=True, unbiased=False)
    return (x - m) / torch.sqrt(v + eps)
def _scatter_add(tgt, idx, src, axis=0):
    return tgt.clone().index_add_(axis, idx, src)
def _segment_sum(src, seg, n):
    out = torch.zeros((n,) + src.shape[1:], dtype=src.dtype)
    return out.index_add_(0, seg, src)
def _pad(x, pw):
    flat = tuple(v for pair in reversed(pw) for v in pair)
    return torch.nn.functional.pad(x, flat)

kernel_name = 'gated_mix__ssm_conv_s4d__linear_kernel_hedgehog__prompt'

def setup_inputs():

    _w = (lambda a: (lambda t: t.to(torch.bfloat16) if t.is_floating_point() else t)(torch.as_tensor(a)))
    def _A_setup():
        Bsz, L, D, N = 1, 2048, 640, 128
        return {
            "u": _w((lambda *s: torch.randn(*s, dtype=torch.bfloat16) * 0.05)(Bsz, L, D)),
            "log_A_real": _w((lambda *s: torch.randn(*s, dtype=torch.bfloat16) * 6.4)(D, N) * 0.5),
            "A_imag": _w((lambda *s: torch.randn(*s, dtype=torch.bfloat16) * 0.05)(D, N) * 3.14),
            "C_real": _w((lambda *s: torch.randn(*s, dtype=torch.bfloat16) * 0.2)(D, N) / N ** 0.5),
            "C_imag": _w((lambda *s: torch.randn(*s, dtype=torch.bfloat16) * 0.2)(D, N) / N ** 0.5),
            "log_dt": _w((lambda *s: torch.randn(*s, dtype=torch.bfloat16) * 0.05)(D) * 0.5 - 4.0),
            "D_skip": _w((lambda *s: torch.randn(*s, dtype=torch.bfloat16) * 0.05)(D)),
        }
    _A_in = _A_setup()

    def _B_setup():
        B, S, D, H = 1, 2048, 640, 32
        Dh = D // H
        return {
            "x": _w((lambda *s: torch.randn(*s, dtype=torch.bfloat16) * 0.05)(B, S, D)),
            "wqkv": _w((lambda *s: torch.randn(*s, dtype=torch.bfloat16) * 0.8)(D, 3 * D)),
            "w_phi": _w((lambda *s: torch.randn(*s, dtype=torch.bfloat16) * 0.8)(H, Dh, Dh) * (Dh ** -0.5)),
            "wo": _w((lambda *s: torch.randn(*s, dtype=torch.bfloat16) * 0.05)(D, D)),
        }
    _B_in = _B_setup()

    return {
        "A_u": _A_in["u"],
        "A_log_A_real": _A_in["log_A_real"],
        "A_A_imag": _A_in["A_imag"],
        "A_C_real": _A_in["C_real"],
        "A_C_imag": _A_in["C_imag"],
        "A_log_dt": _A_in["log_dt"],
        "A_D_skip": _A_in["D_skip"],
        "B_x": _B_in["x"],
        "B_wqkv": _B_in["wqkv"],
        "B_w_phi": _B_in["w_phi"],
        "B_wo": _B_in["wo"],
        "gate_w": _w((lambda *s: torch.randn(*s, dtype=torch.bfloat16) * 0.05)(640) * 16.0),
    }

def reference(A_u, A_log_A_real, A_A_imag, A_C_real, A_C_imag, A_log_dt, A_D_skip, B_x, B_wqkv, B_w_phi, B_wo, gate_w):
    def _A_ref(u, log_A_real, A_imag, C_real, C_imag, log_dt, D_skip):
        L = u.shape[1]
        dt = torch.exp(log_dt)
        A = -torch.exp(log_A_real) + 1j * A_imag
        C = (C_real + 1j * C_imag) * dt[:, None]
        pos = (lambda x, dt: x.to(dt))(torch.arange(L), log_dt.dtype)
        P = torch.exp((A * dt[:, None])[:, :, None] * pos[None, None, :])
        K = 2.0 * torch.einsum("dn,dnl->dl", C, P).real
        L2 = 2 * L
        u_t = (lambda x, *d: x.permute(*d))(u, 0, 2, 1)
        Kf = (lambda x, *a, **k: torch.fft.rfft(x.float(), *a, **k))(K, L2)
        Uf = (lambda x, *a, **k: torch.fft.rfft(x.float(), *a, **k))(u_t, L2)
        y = (lambda x, *a, **k: torch.fft.irfft(x, *a, **k).to(torch.bfloat16))(Uf * Kf[None, :, :], L2)[:, :, :L]
        y = (lambda x, *d: x.permute(*d))(y, 0, 2, 1)
        return y + u * D_skip[None, None, :]

    def _B_ref(x, wqkv, w_phi, wo):
        B, S, D = x.shape
        H = 32; Dh = D // H
        qkv = (lambda x, *d: x.permute(*d))((x @ wqkv).reshape(B, S, 3, H, Dh), 2, 0, 3, 1, 4)
        q, k, v = qkv[0], qkv[1], qkv[2]
        pq = torch.einsum("bhsd,hdf->bhsf", q, w_phi)
        pk = torch.einsum("bhsd,hdf->bhsf", k, w_phi)
        phi_q = torch.concatenate([_softmax(pq, axis=-1), _softmax(-pq, axis=-1)], axis=-1)
        phi_k = torch.concatenate([_softmax(pk, axis=-1), _softmax(-pk, axis=-1)], axis=-1)
        kv = torch.einsum("bhsf,bhsd->bhfd", phi_k, v)
        z  = torch.einsum("bhsf->bhf", phi_k)
        num = torch.einsum("bhqf,bhfd->bhqd", phi_q, kv)
        den = torch.einsum("bhqf,bhf->bhq", phi_q, z)[..., None] + 1e-6
        o = num / den
        return (lambda x, *d: x.permute(*d))(o, 0, 2, 1, 3).reshape(B, S, D) @ wo

    x = A_u
    g = _sigmoid((x * gate_w).sum(-1, keepdims=True))
    a = _A_ref(x, A_log_A_real, A_A_imag, A_C_real, A_C_imag, A_log_dt, A_D_skip)
    b = _B_ref(x, B_wqkv, B_w_phi, B_wo)
    return g * a + (1 - g) * b
```

```python
import re

TRANS = ("v_exp_f32", "v_log_f32", "v_rcp_f32", "v_rsq_f32", "v_sqrt_f32", "v_sin_f32", "v_cos_f32")


def _regs(tok):
    tok = tok.strip()
    tok = tok.lstrip("-")
    m = re.fullmatch(r"abs\((.*)\)|\|(.*)\|", tok)
    if m:
        tok = m.group(1) or m.group(2)
    m = re.fullmatch(r"([vs])(\d+)", tok)
    if m:
        return {(m.group(1), int(m.group(2)))}
    m = re.fullmatch(r"([vs])\[(\d+):(\d+)\]", tok)
    if m:
        return {(m.group(1), i) for i in range(int(m.group(2)), int(m.group(3)) + 1)}
    if tok in ("vcc", "vcc_lo", "vcc_hi"):
        return {("x", "vcc")}
    if tok in ("exec", "exec_lo", "exec_hi"):
        return {("x", "exec")}
    if tok == "m0":
        return {("x", "m0")}
    return set()


def _split(rest):
    out, depth, cur = [], 0, ""
    for ch in rest:
        if ch in "[(":
            depth += 1
        if ch in "])":
            depth -= 1
        if ch == "," and depth == 0:
            out.append(cur.strip())
            cur = ""
        else:
            cur += ch
    if cur.strip():
        out.append(cur.strip())
    return out


class Ins:
    def __init__(self, text):
        self.text = text
        t = text.split(";")[0].strip()
        self.label = None
        self.mn = None
        self.directive = False
        if not t:
            self.directive = True
            return
        if t.endswith(":"):
            self.label = t[:-1]
            return
        if t.startswith("."):
            self.directive = True
            return
        parts = t.split(None, 1)
        mn = parts[0]
        for suf in ("_e32", "_e64"):
            if mn.endswith(suf):
                mn = mn[: -len(suf)]
        self.mn = mn
        ops = _split(parts[1]) if len(parts) > 1 else []
        mods = ""
        if ops:
            last = ops[-1].split(None, 1)
            ops[-1] = last[0]
            mods = last[1] if len(last) > 1 else ""
        self.ops, self.mods = ops, mods
        R = [_regs(o) for o in ops]
        allr = set().union(*R) if R else set()
        self.valu = mn.startswith("v_") and not mn.startswith("v_mfma")
        self.mfma = mn.startswith("v_mfma")
        self.dpp = "_dpp" in mn
        self.trans = mn in TRANS
        self.perml = mn.startswith("v_permlane")
        self.rdlane = mn.startswith("v_readlane") or mn.startswith("v_readfirstlane")
        self.dot = mn.startswith("v_dot")
        self.vmem = mn.startswith("buffer_") or mn.startswith("global_")
        self.ds = mn.startswith("ds_")
        self.salu = mn.startswith("s_")
        self.ldsdma = self.vmem and re.search(r"\blds\b", mods) is not None
        self.w, self.r = set(), set()
        self.srcA = self.srcB = self.srcC = set()
        self.storedata = set()
        if self.mfma:
            self.w = R[0]
            self.srcA, self.srcB, self.srcC = R[1], R[2], R[3]
            self.r = R[1] | R[2] | R[3]
            self.passes = 8 if "32x32" in mn else 4
        elif self.perml:
            self.w = self.r = allr
        elif self.valu:
            if mn == "v_nop":
                pass
            else:
                self.w = set(R[0])
                self.r = set().union(*R[1:]) if len(R) > 1 else set()
                if re.match(r"v_(add|sub|subrev|addc|subb)_co_", mn):
                    self.w |= R[1]
                if mn.startswith(("v_fmac", "v_dot2c", "v_writelane")) or self.dpp:
                    self.r |= R[0]
        elif self.ds:
            if mn.startswith("ds_read"):
                self.w, self.r = R[0], set().union(*R[1:])
            else:
                self.r = allr
        elif self.vmem:
            if "load" in mn and not self.ldsdma:
                self.w, self.r = R[0], set().union(*R[1:])
            else:
                self.r = allr
                if re.search(r"store_dwordx[34]", mn):
                    self.storedata = R[0] if mn.startswith("buffer_") else R[1]
            if self.ldsdma:
                self.r = self.r | {("x", "m0")}
        elif self.salu:
            if mn.startswith(("s_cmp", "s_waitcnt", "s_barrier", "s_nop", "s_cbranch", "s_branch", "s_endpgm", "s_setprio", "s_sleep", "s_bitcmp")):
                self.r = allr
            else:
                self.w = set(R[0]) if R else set()
                self.r = set().union(*R[1:]) if len(R) > 1 else set()
                if "saveexec" in mn:
                    self.w |= {("x", "exec")}
        self.states = 1
        if mn == "s_nop":
            self.states = int(ops[0]) + 1
        self.target = ops[0] if mn.startswith(("s_cbranch", "s_branch")) else None


def isv(s):
    return {x for x in s if x[0] == "v"}


def iss(s):
    return {x for x in s if x[0] == "s" or x == ("x", "vcc")}


def need(p, c):
    n = 0
    if p.valu:
        wv, ws = isv(p.w), iss(p.w)
        if c.mfma and wv & c.r:
            n = max(n, 2)
        if (c.dpp or c.perml) and wv & c.r:
            n = max(n, 2)
        if c.rdlane and wv & c.r:
            n = max(n, 1)
        if p.trans and c.valu and not c.trans and wv & c.r:
            n = max(n, 1)
        if p.trans and (c.vmem or c.ds) and wv & c.r:
            n = max(n, 1)
        if p.dot and (c.valu or c.vmem or c.ds or c.mfma) and wv & (c.r | c.w):
            same_c = c.mn == p.mn and not (wv & set().union(*[_regs(o) for o in c.ops[1:3]]))
            if not same_c:
                n = max(n, 3)
        if ws:
            if c.valu and ws & c.r:
                n = max(n, 4 if c.mn.startswith(("v_readlane", "v_writelane")) else 2)
            if c.vmem and ws & c.r:
                n = max(n, 5)
            if c.salu and (ws & c.r or (("x", "vcc") in ws and "vcc" in c.mn)):
                n = max(n, 1)
    if p.mfma:
        big = {4: 8, 8: 12}[p.passes]
        if c.mfma:
            if p.w & (c.srcA | c.srcB):
                n = max(n, big)
            if p.w & c.srcC and not (c.srcC == p.w and c.mn == p.mn):
                n = max(n, big - 2)
            if p.w & c.w and not (c.w == p.w and c.mn == p.mn):
                n = max(n, big - 2)
        elif (c.valu or c.vmem or c.ds) and p.w & (c.r | c.w):
            n = max(n, big)
        if c.valu and p.srcC & c.w:
            n = max(n, p.passes - 1)
    if p.salu and ("x", "m0") in p.w and c.ldsdma:
        n = max(n, 1)
    if p.storedata and p.storedata & c.w:
        n = max(n, 2)
    return n


def pad_hazards(lines, verbose=False):
    total = 0
    while True:
        ins = [Ins(l) for l in lines]
        labels = {i.label: k for k, i in enumerate(ins) if i.label}
        fix = {}
        for k, p in enumerate(ins):
            if p.mn is None or not (p.valu or p.mfma or p.storedata or (p.salu and ("x", "m0") in p.w)):
                continue
            stack, seen = [(k + 1, 0)], {}
            while stack:
                j, d = stack.pop()
                while j < len(ins) and d < 13:
                    if seen.get(j, 99) <= d:
                        break
                    seen[j] = d
                    c = ins[j]
                    if c.mn is None:
                        j += 1
                        continue
                    n = need(p, c)
                    if n > d:
                        fix[j] = max(fix.get(j, 0), n - d)
                    if c.mn == "s_endpgm":
                        break
                    d += c.states
                    if c.target is not None:
                        stack.append((labels[c.target], d))
                        if c.mn == "s_branch":
                            break
                    j += 1
        if not fix:
            return lines, total
        j = min(fix)
        applied, last = [], -99
        for j in sorted(fix):
            if j - last > 16:
                applied.append(j)
                last = j
        for j in reversed(applied):
            if verbose:
                print("pad", fix[j], "before:", lines[j].strip())
            lines = lines[:j] + [f"    s_nop {fix[j]-1}"] + lines[j:]
            total += fix[j]


class Asm:
    def __init__(self):
        self.lines = []
        self.vm = []
        self.lg = []

    def __call__(self, s):
        for l in s.strip("\n").split("\n"):
            l = l.strip()
            if not l:
                continue
            self.lines.append(l if l.endswith(":") or l.startswith(".") else "    " + l)

    def c(self, s):
        self.lines.append("    ; " + s)

    def v(self, s, tag="_"):
        self(s)
        self.vm.append(tag)
        assert len(self.vm) <= 63, "vmcnt overflow"

    def vwait(self, *tags):
        idx = [i for i, t in enumerate(self.vm) if t in tags]
        if not idx:
            return
        n = len(self.vm) - 1 - max(idx)
        self(f"s_waitcnt vmcnt({n})")
        self.vm = self.vm[max(idx) + 1:]

    def vwait_n(self, tag, count):
        idx = [i for i, t in enumerate(self.vm) if t == tag][:count]
        n = len(self.vm) - 1 - max(idx)
        self(f"s_waitcnt vmcnt({n})")
        self.vm = self.vm[max(idx) + 1:]

    def vwait_all(self):
        self("s_waitcnt vmcnt(0)")
        self.vm = []

    def l(self, s, tag="_"):
        self(s)
        self.lg.append(tag)

    def lwait(self, *tags):
        idx = [i for i, t in enumerate(self.lg) if t in tags]
        if not idx:
            return
        n = min(len(self.lg) - 1 - max(idx), 15)
        self(f"s_waitcnt lgkmcnt({n})")
        self.lg = self.lg[len(self.lg) - n:] if n else []

    def lwait_all(self):
        self("s_waitcnt lgkmcnt(0)")
        self.lg = []


def V(a, n=1):
    return f"v{a}" if n == 1 else f"v[{a}:{a+n-1}]"


def S(a, n=1):
    return f"s{a}" if n == 1 else f"s[{a}:{a+n-1}]"
```

```python
import sys, json
from asmlib import *

KN = "gated_mix__ssm_conv_s4d__linear_kernel_hedgehog__prompt_kernel"
OPT = dict(stamps=0, dump=0, roles="RAB")
for a_ in sys.argv[1:]:
    k_, v_ = a_.split("=")
    OPT[k_] = int(v_) if v_.lstrip("-").isdigit() else v_

WS_UTF = 0
WS_AF = 8192
WS_KVF = 16384
WS_OF = 32768
WS_FLAGS_END = 32768 + 131072
WS_G = 0x40000
WS_WO = 0x100000
WS_KVP = 0x200000
WS_UT = 0x300000
WS_AT = 0x600000
WS_O = 0x900000
WS_STAMP = 0xC00000
WS_DUMP = 0x1000000
WS_SIZE = 0x4000000 if OPT["dump"] else 0x1000000

ID_A, ID_B, ID_END = 64, 224, 480
SPIN = 1 << 17
LOG2E = 0x3FB8AA3B
INV2PI = 0x3E22F983

P_U, P_LOGA, P_AIM, P_CRE, P_CIM, P_LOGDT, P_DSK = 4, 6, 8, 10, 12, 14, 16
P_WQKV, P_WPHI, P_WO, P_GATE, P_OUT, P_DBG, P_WS = 20, 22, 24, 26, 28, 30, 32
R_X, R_W, R_WS, R_DBG, R_M1, R_M2 = 36, 40, 44, 48, 52, 56
SW = 3
ST0 = 76

A = Asm()
stampnames = {}


def srd(r, p, size):
    A(f"s_mov_b32 s{r}, s{p}")
    A(f"s_mov_b32 s{r+1}, s{p+1}")
    A(f"s_mov_b32 s{r+2}, {size}")
    A(f"s_mov_b32 s{r+3}, 0x20000")


def stamp(role, name):
    if not OPT["stamps"]:
        return
    l = stampnames.setdefault(role, [])
    assert len(l) < 12
    A(f"s_memrealtime {S(ST0 + 2*len(l), 2)}")
    l.append(name)


def finish(role):
    if OPT["stamps"]:
        stamp(role, "end")
        A("s_waitcnt lgkmcnt(0)")
        A("s_mov_b64 exec, -1")
        A("v_mov_b32 v1, 0")
        for i in range(len(stampnames[role])):
            A(f"v_writelane_b32 v1, s{ST0+2*i}, {i}")
        A("v_and_b32 v2, 63, v0")
        A("v_lshlrev_b32 v2, 2, v2")
        A("s_lshl_b32 s60, s2, 2")
        A(f"s_add_u32 s60, s60, s{SW}")
        A("s_lshl_b32 s60, s60, 6")
        A(f"s_add_u32 s60, s60, {WS_STAMP}")
        A("s_mov_b64 exec, 0xffff")
        A(f"buffer_store_dword v1, v2, {S(R_WS,4)}, s60 offen")
    A("s_endpgm")
    A.vm, A.lg = [], []


_lab = [0]


def poll_loop(vtmp, vaddr, rsrc, soff, scnt):
    _lab[0] += 1
    n = _lab[0]
    A(f"s_mov_b32 s{scnt}, 0")
    A(f"L_poll{n}:")
    A(f"buffer_load_dword v{vtmp}, v{vaddr}, {S(rsrc,4)}, {soff} offen sc1")
    A(f"s_add_u32 s{scnt}, s{scnt}, 1")
    A("s_waitcnt vmcnt(0)")
    A(f"v_cmp_eq_u32 vcc, 0, v{vtmp}")
    A(f"s_cbranch_vccz L_polled{n}")
    A(f"s_cmp_lt_u32 s{scnt}, {SPIN}")
    A(f"s_cbranch_scc1 L_poll{n}")
    A(f"L_polled{n}:")


def poll_check(vtmp, vaddr, rsrc, soff, scnt):
    _lab[0] += 1
    n = _lab[0]
    A(f"v_cmp_eq_u32 vcc, 0, v{vtmp}")
    A(f"s_cbranch_vccz L_ok{n}")
    poll_loop(vtmp, vaddr, rsrc, soff, scnt)
    A(f"L_ok{n}:")


def set_exec(mask):
    if mask == -1 or mask <= 64:
        A(f"s_mov_b64 exec, {mask}")
    else:
        A(f"s_mov_b32 exec_lo, {mask & 0xffffffff:#x}")
        A(f"s_mov_b32 exec_hi, {mask >> 32:#x}")


def dump(regs, slot, vtmp):
    if not OPT["dump"]:
        return
    A(f"v_lshlrev_b32 v{vtmp}, 2, v0")
    A(f"s_sub_u32 s74, s2, {ID_B}")
    A(f"s_mul_i32 s74, s74, {32*1024}")
    A(f"s_add_u32 s74, s74, {WS_DUMP + slot*0x800000}")
    assert len(regs) <= 32
    for r in regs:
        A.v(f"buffer_store_dword v{r}, v{vtmp}, {S(R_WS,4)}, s74 offen", "dump")
        A("s_add_u32 s74, s74, 1024")
    A.vwait_all()


A(f"""
.amdgcn_target "amdgcn-amd-amdhsa--gfx950"
.text
.globl {KN}
.p2align 12
.type {KN},@function
{KN}:
s_load_dwordx16 s[4:19], s[0:1], 0
s_load_dwordx8 s[20:27], s[0:1], 64
s_load_dwordx4 s[28:31], s[0:1], 96
s_load_dwordx2 s[32:33], s[0:1], 112
""")
if OPT["stamps"]:
    A(f"s_memrealtime {S(ST0,2)}")
    for r_ in ("B", "A", "Rwo", "Rg", "Ri"):
        stampnames[r_] = ["start"]
A(f"""
v_lshrrev_b32 v1, 6, v0
s_cmp_lt_u32 s2, {ID_B}
v_readfirstlane_b32 s{SW}, v1
s_cbranch_scc1 L_AR
s_cmp_ge_u32 s2, {ID_END}
s_cbranch_scc1 L_exit
""")
if "B" not in OPT["roles"]:
    A("s_branch L_exit")

sST, sHP, sB, sCT = 60, 61, 62, 63
sT0, sT1, sT2, sT3 = 64, 65, 66, 67
sEV, sLO = 68, 70
sCNT, sWOFF = 72, 73
XB, ACC, WF = 96, 56, 16
TT = 8
vTR, vXA = 6, 7
LDS_PV, LDS_WQ, LDS_WP, LDS_Z = 0, 36864, 77824, 79424
LDS_AT, LDS_KVT, LDS_RED = 0, 10240, 13824


def Xr(c, sg, j):
    return XB + 32 * c + 16 * sg + 4 * j


XPERM = [0, 2, 1, 3]


def dma_addr(v, i, div, fields, rowbytes_s, extra):
    t0, t1 = TT, TT + 1
    magic = {10: 6554, 5: 13108}[div]
    for q in range(1280):
        assert (q * magic) >> 16 == q // div
    A(f"v_add_u32 v{t0}, {256*i}, v0")
    A(f"v_mul_u32_u24 v{t1}, {magic}, v{t0}")
    A(f"v_lshrrev_b32 v{t1}, 16, v{t1}")
    A(f"v_mul_u32_u24 v{v}, {div}, v{t1}")
    A(f"v_sub_u32 v{t0}, v{t0}, v{v}")
    first = True
    for (sb, w, db) in fields:
        if first:
            assert db == 0
            A(f"v_bfe_u32 v{v}, v{t1}, {sb}, {w}")
            first = False
        else:
            A(f"v_bfe_u32 v{TT+2}, v{t1}, {sb}, {w}")
            A(f"v_lshl_or_b32 v{v}, v{TT+2}, {db}, v{v}")
    A(f"v_mul_u32_u24 v{v}, {rowbytes_s}, v{v}")
    A(f"v_lshl_add_u32 v{v}, v{t0}, 4, v{v}")
    if extra:
        A(f"v_mul_u32_u24 v{t0}, 52, v{t0}")
        A(f"v_lshrrev_b32 v{t0}, 8, v{t0}")
        A(f"v_mul_u32_u24 v{t0}, {extra}, v{t0}")
        A(f"v_add_u32 v{v}, v{v}, v{t0}")


def softmax(P, E, OUT, tm):
    mx, mn, sp, sm = tm, tm + 1, tm + 2, tm + 3
    A(f"v_max3_f32 v{mx}, v{P[0]}, v{P[1]}, v{P[2]}")
    A(f"v_min3_f32 v{mn}, v{P[0]}, v{P[1]}, v{P[2]}")
    for i in range(3, 19, 2):
        A(f"v_max3_f32 v{mx}, v{mx}, v{P[i]}, v{P[i+1]}")
        A(f"v_min3_f32 v{mn}, v{mn}, v{P[i]}, v{P[i+1]}")
    A(f"v_max_f32 v{mx}, v{mx}, v{P[19]}")
    A(f"v_min_f32 v{mn}, v{mn}, v{P[19]}")
    A(f"s_mov_b32 s{sT0}, {LOG2E:#x}")
    A(f"v_mul_f32 v{mx}, s{sT0}, v{mx}")
    A(f"v_mul_f32 v{mn}, s{sT0}, v{mn}")
    for i in range(20):
        A(f"v_fma_f32 v{E+i}, v{P[i]}, s{sT0}, -v{mx}")
        A(f"v_fma_f32 v{P[i]}, -v{P[i]}, s{sT0}, v{mn}")
        A(f"v_exp_f32 v{E+i}, v{E+i}")
        A(f"v_exp_f32 v{P[i]}, v{P[i]}")
        if i == 2:
            A(f"v_add_f32 v{sp}, v{E}, v{E+1}")
            A(f"v_add_f32 v{sm}, v{P[0]}, v{P[1]}")
        elif i > 2:
            A(f"v_add_f32 v{sp}, v{sp}, v{E+i-1}")
            A(f"v_add_f32 v{sm}, v{sm}, v{P[i-1]}")
    A(f"v_add_f32 v{sp}, v{sp}, v{E+19}")
    A(f"v_add_f32 v{sm}, v{sm}, v{P[19]}")
    A(f"v_rcp_f32 v{sp}, v{sp}")
    A(f"v_rcp_f32 v{sm}, v{sm}")
    for i in range(0, 20, 2):
        A(f"v_mul_f32 v{E+i}, v{sp}, v{E+i}")
        A(f"v_mul_f32 v{E+i+1}, v{sp}, v{E+i+1}")
        A(f"v_cvt_pk_bf16_f32 v{OUT+i//2}, v{E+i}, v{E+i+1}")
    for i in range(0, 20, 2):
        A(f"v_mul_f32 v{P[i]}, v{sm}, v{P[i]}")
        A(f"v_mul_f32 v{P[i+1]}, v{sm}, v{P[i+1]}")
        A(f"v_cvt_pk_bf16_f32 v{OUT+10+i//2}, v{P[i]}, v{P[i+1]}")


def phi_frags(PF, vaddr):
    for T in range(2):
        for t in range(3):
            for h in range(2):
                r = PF + 12 * T + 4 * t + 2 * h
                if t == 2 and h == 1:
                    A(f"v_mov_b32 v{r}, 0")
                    A(f"v_mov_b32 v{r+1}, 0")
                else:
                    A.l(f"ds_read_b64_tr_b16 {V(r,2)}, v{vaddr} offset:{320*t+160*h+32*T}", "pf")


def phi_mfma(PK, PF, ops):
    for t in range(3):
        for T in range(2):
            c = "0" if t == 0 else V(PK + 16 * T, 16)
            A(f"v_mfma_f32_32x32x16_bf16 {V(PK+16*T,16)}, {V(PF+12*T+4*t,4)}, {V(ops[t],4)}, {c}")


def role_B():
    A.c("---- B prologue")
    A(f"""
s_sub_u32 s{sT0}, s2, {ID_B}
s_and_b32 s{sB}, s{sT0}, 1
s_bfe_u32 s{sST}, s{sT0}, 0x20001
s_lshl_b32 s{sST}, s{sST}, 2
s_lshr_b32 s{sT1}, s{sT0}, 6
s_add_u32 s{sST}, s{sST}, s{sT1}
s_bfe_u32 s{sCT}, s{sT0}, 0x30003
s_lshl_b32 s{sHP}, s{sB}, 3
s_add_u32 s{sHP}, s{sHP}, s{sCT}
v_bfe_u32 v2, v0, 2, 2
v_lshl_add_u32 v2, v1, 3, v2
v_mul_u32_u24 v{vXA}, 5120, v2
v_and_b32 v2, 0x30, v0
v_lshl_add_u32 v{vXA}, v2, 2, v{vXA}
v_and_b32 v2, 3, v0
v_lshl_add_u32 v{vXA}, v2, 4, v{vXA}
s_mul_i32 s{sT1}, s{sST}, 163840
v_add_u32 v{vXA}, s{sT1}, v{vXA}
""")
    for i in range(5):
        dma_addr(1 + i, i, 10, [(0, 2, 0), (3, 1, 2), (5, 2, 3), (2, 1, 5), (4, 1, 6)], 3840, 1200)
    A(f"""
s_mul_i32 s{sWOFF}, s{sHP}, 80
s_add_u32 s{sWOFF}, s{sWOFF}, 1280
s_lshl_b32 s{sT3}, s{SW}, 10
s_waitcnt lgkmcnt(0)
""")
    srd(R_X, P_U, 2621440)
    srd(R_W, P_WQKV, 2457600)
    stamp("B", "karg")

    def issue_x(c):
        for sg in range(2):
            A(f"s_movk_i32 s{sT0}, {sg*20480+256*c}")
            for j in range(4):
                A.v(f"buffer_load_dwordx4 {V(Xr(c,sg,j),4)}, v{vXA}, {S(R_X,4)}, s{sT0} offen offset:{1280*j}", f"x{c}")

    def issue_w(c):
        for i in range(5):
            A(f"s_add_u32 m0, s{sT3}, {(c%3)*20480+4096*i}")
            if i == 0 and c > 0:
                A(f"s_add_u32 s{sWOFF}, s{sWOFF}, {128*3840}")
            A.v(f"buffer_load_dwordx4 v{1+i}, {S(R_W,4)}, s{sWOFF} offen lds", f"w{c}")

    for c in range(3):
        issue_x(c)
        issue_w(c)
    issue_x(3)
    issue_x(4)
    srd(R_WS, P_WS, WS_SIZE)
    srd(R_DBG, P_DBG, 256)
    srd(R_M1, P_WPHI, 25600)
    srd(R_M2, P_OUT, 2621440)
    A(f"""
s_mov_b32 s{sEV}, 0x55555555
s_mov_b32 s{sEV+1}, 0x55555555
s_mov_b32 s{sLO}, 0x33333333
s_mov_b32 s{sLO+1}, 0x33333333
v_bfe_u32 v8, v0, 5, 1
v_bfe_u32 v9, v0, 2, 3
v_lshl_add_u32 v8, v8, 4, v9
v_mul_u32_u24 v{vTR}, 160, v8
v_and_b32 v8, 1, v0
v_mul_u32_u24 v8, 80, v8
v_bfe_u32 v9, v0, 1, 1
v_mul_u32_u24 v9, 40, v9
v_add3_u32 v{vTR}, v{vTR}, v8, v9
""")
    A(f"""
v_lshlrev_b32 v8, 2, v0
v_min_u32 v8, 700, v8
v_add_u32 v8, {LDS_Z}, v8
v_mov_b32 v9, 0
""")
    A.l("ds_write_b32 v8, v9", "z")
    for i in range(40):
        A(f"v_mov_b32 v{ACC+i}, 0")

    def transpose(c):
        m1, m2 = "quad_perm:[1,0,3,2] row_mask:0xf bank_mask:0xf", "quad_perm:[2,3,0,1] row_mask:0xf bank_mask:0xf"
        for sg in range(2):
            R = [Xr(c, sg, j) for j in range(4)]
            T0, T2 = TT, TT + 4

            def cn(d, s0, s1, m):
                for p in range(4):
                    A(f"v_cndmask_b32_dpp v{d+p}, v{s0+p}, v{s1+p}, vcc {m}")
            A(f"s_mov_b64 vcc, {S(sEV,2)}")
            cn(T0, R[1], R[0], m1)
            cn(T2, R[3], R[2], m1)
            A(f"s_not_b64 vcc, vcc")
            cn(R[1], R[0], R[1], m1)
            cn(R[3], R[2], R[3], m1)
            A(f"s_mov_b64 vcc, {S(sLO,2)}")
            cn(R[0], T2, T0, m2)
            cn(R[2], R[3], R[1], m2)
            A(f"s_not_b64 vcc, vcc")
            cn(R[3], R[1], R[3], m2)
            cn(R[1], T0, T2, m2)

    def gemm_stage(c, nt, acc, wf, rd):
        def reads(j):
            return [(f"ds_read_b64_tr_b16 {V(wf+4*nt*(j&1)+4*t+2*h,2)}, v{vTR} offset:{rd(j,t,h)}", f"f{j}_{t}") for t in range(nt) for h in range(2)]
        for s_, tg in reads(0):
            A.l(s_, tg)
        for j in range(4):
            nxt = reads(j + 1) if j < 3 else []
            for t in range(nt):
                A.lwait(f"f{j}_{t}")
                for sg in range(2):
                    d = V(acc + 8 * t + 4 * sg, 4)
                    A(f"v_mfma_f32_16x16x32_bf16 {d}, {V(wf+4*nt*(j&1)+4*t,4)}, {V(Xr(c,sg,XPERM[j]),4)}, {d}")
                    if nxt:
                        A.l(*nxt.pop(0))

    for c in range(5):
        A.c(f"---- GEMM1a stage {c}")
        if c <= 3:
            A.vwait(f"x{c}")
            transpose(c)
        if c == 3:
            A.vwait("x4")
            transpose(4)
        A.vwait(f"w{c}")
        A.lwait_all()
        A("s_barrier")
        if c == 0:
            stamp("B", "w0")
        if c == 1:
            issue_w(3)
            A(f"""
v_and_b32 v8, 63, v0
v_lshlrev_b32 v8, 4, v8
s_mul_i32 s{sT0}, s{SW}, 400
s_add_u32 m0, s{sT0}, {LDS_WP}
s_mul_i32 s{sT1}, s{sHP}, 1600
s_add_u32 s{sT0}, s{sT0}, s{sT1}
s_mov_b64 exec, 0x1ffffff
""")
            A.v(f"buffer_load_dwordx4 v8, {S(R_M1,4)}, s{sT0} offen lds", "w3")
            A("s_mov_b64 exec, -1")
        if c == 2:
            issue_w(4)
            for i in range(5):
                dma_addr(1 + i, i, 5, [(1, 2, 0), (0, 1, 2), (5, 2, 3), (3, 2, 5), (7, 1, 7)], 3840, 0)
        gemm_stage(c, 5, ACC, WF, lambda j, t, h: (c % 3) * 20480 + j * 5120 + h * 1280 + 8 * t)
    stamp("B", "g1a")

    A.c("---- after GEMM1a: helper status probe, q weights, phi_k")
    KP, VP, PF, PK, E, PHI = 8, 20, 32, 56, 32, 8
    vPA, vPW, vVW, vDB, vDBV = 88, 89, 90, 91, 92
    A("s_barrier")

    def issue_q(grp, base, n):
        A(f"s_mul_i32 s{sWOFF}, s{sHP}, 80")
        if grp:
            A(f"s_add_u32 s{sWOFF}, s{sWOFF}, {grp*256*3840}")
        for i in range(n):
            A(f"s_add_u32 m0, s{sT3}, {base+4096*i}")
            A.v(f"buffer_load_dwordx4 v{1+i}, {S(R_W,4)}, s{sWOFF} offen lds", f"q{grp}")
    A(f"v_and_b32 v{vXA}, 63, v0")
    A(f"v_lshlrev_b32 v{vXA}, 2, v{vXA}")
    A(f"v_min_u32 v{vXA}, 236, v{vXA}")
    A.v(f"buffer_load_dword v{vTR}, v{vXA}, {S(R_DBG,4)}, 0 offen sc1", "dbg")
    issue_q(0, LDS_WQ, 5)
    issue_q(1, LDS_WQ + 20480, 5)
    for sg in range(2):
        for t in range(5):
            for hh in range(2):
                a_ = ACC + 8 * t + 4 * sg + 2 * hh
                A(f"v_cvt_pk_bf16_f32 v{(KP if sg==0 else VP)+2*t+hh}, v{a_}, v{a_+1}")
    A(f"""
v_and_b32 v56, 1, v0
v_bfe_u32 v57, v0, 5, 1
v_cmp_eq_u32 vcc, v56, v57
v_mul_u32_u24 v{vPA}, 800, v56
v_bfe_u32 v57, v0, 2, 2
v_mul_u32_u24 v57, 40, v57
v_bfe_u32 v58, v0, 4, 1
v_lshlrev_b32 v58, 4, v58
v_add3_u32 v{vPA}, v{vPA}, v57, v58
v_bfe_u32 v57, v0, 1, 1
v_lshl_add_u32 v{vPA}, v57, 3, v{vPA}
v_add_u32 v{vPA}, {LDS_WP}, v{vPA}
v_mov_b32 v57, {LDS_Z}
v_cndmask_b32 v{vPA}, v57, v{vPA}, vcc
""")
    phi_frags(PF, vPA)
    for i in range(10):
        A(f"v_permlane16_swap_b32 v{KP+i}, v{VP+i}")
    A(f"""
v_mov_b32 v{KP+10}, 0
v_mov_b32 v{KP+11}, 0
v_mov_b32 v{VP+10}, 0x3f80
v_mov_b32 v{VP+11}, 0
v_and_b32 v93, 31, v0
v_lshrrev_b32 v94, 6, v0
v_lshl_add_u32 v93, v94, 5, v93
v_mul_u32_u24 v93, 272, v93
v_bfe_u32 v94, v0, 5, 1
v_mul_u32_u24 v95, 80, v94
v_add_u32 v{vPW}, v93, v95
v_mul_u32_u24 v95, 48, v94
v_add_u32 v{vVW}, v93, v95
""")
    if OPT["dump"]:
        dump(list(range(KP, KP + 24)), 0, 93)
    A.lwait("pf")
    phi_mfma(PK, PF, [KP, KP + 4, KP + 8])
    for i in range(3):
        A.l(f"ds_write_b128 v{vVW}, {V(VP+4*i,4)} offset:{LDS_PV+160+16*i}", "pv")
    softmax([PK + i for i in range(20)], E, PHI, 52)
    for i in range(5):
        A.l(f"ds_write_b128 v{vPW}, {V(PHI+4*i,4)} offset:{LDS_PV+16*i}", "pv")
    if OPT["dump"]:
        dump(list(range(PHI, PHI + 20)), 1, 93)
    vKA, vKB = 28, 29
    A(f"""
v_bfe_u32 v30, v0, 2, 2
v_bfe_u32 v31, v0, 5, 1
v_lshlrev_b32 v31, 1, v31
v_lshl_add_u32 v30, v30, 2, v31
v_mul_u32_u24 v{vKA}, 272, v30
v_bfe_u32 v30, v0, 4, 1
v_and_b32 v31, 3, v0
v_lshl_add_u32 v30, v30, 2, v31
v_lshl_add_u32 v{vKA}, v30, 3, v{vKA}
s_lshr_b32 s{sT0}, s{SW}, 1
s_mul_i32 s{sT0}, s{sT0}, 48
s_add_u32 s{sT0}, s{sT0}, 160
v_add_u32 v{vKB}, s{sT0}, v{vKA}
s_mul_i32 s{sT0}, s{SW}, 40
v_add_u32 v{vKA}, s{sT0}, v{vKA}
""")
    A.lwait_all()
    A("s_barrier")
    stamp("B", "phik")
    KD = 8
    FR = [32, 40, 48, 56, 64, 72, 80, 32]
    def kvreads(ks):
        for h in range(2):
            A.l(f"ds_read_b64_tr_b16 {V(FR[ks]+2*h,2)}, v{vKA} offset:{LDS_PV+ks*4352+h*272}", f"kv{ks}")
        for h in range(2):
            A.l(f"ds_read_b64_tr_b16 {V(FR[ks]+4+2*h,2)}, v{vKB} offset:{LDS_PV+ks*4352+h*272}", f"kv{ks}")
    for ks in range(3):
        kvreads(ks)
    for ks in range(8):
        A.lwait(f"kv{ks}")
        A(f"v_mfma_f32_32x32x16_bf16 {V(KD,16)}, {V(FR[ks],4)}, {V(FR[ks]+4,4)}, {'0' if ks==0 else V(KD,16)}")
        if ks + 3 < 8:
            kvreads(ks + 3)
    A("s_barrier")
    A(f"""
v_and_b32 v30, 31, v0
v_bfe_u32 v31, v0, 5, 1
v_mul_u32_u24 v31, 22, v31
v_add_u32 v31, v31, v30
v_lshlrev_b32 v31, 4, v31
v_lshlrev_b32 v30, 3, v30
s_lshl_b32 s{sT0}, s{sHP}, 2
s_add_u32 s{sT0}, s{sT0}, s{SW}
s_lshl_b32 s{sT1}, s{sT0}, 4
s_add_u32 s{sT1}, s{sT1}, s{sST}
s_lshl_b32 s{sT1}, s{sT1}, 10
s_add_u32 s{sT1}, s{sT1}, {WS_KVP}
""")
    for i in range(6):
        A(f"v_cvt_pk_bf16_f32 v{24+i}, v{KD+2*i}, v{KD+2*i+1}")
    set_exec(0x003FFFFF003FFFFF)
    A.v(f"buffer_store_dwordx4 {V(24,4)}, v31, {S(R_WS,4)}, s{sT1} offen sc1", "kvst")
    A("s_mov_b32 exec_hi, 0")
    A.v(f"buffer_store_dwordx2 {V(28,2)}, v30, {S(R_WS,4)}, s{sT1} offen offset:704 sc1", "kvst")
    A("s_mov_b64 exec, -1")
    stamp("B", "kvst")
    A(f"s_mul_i32 s{sWOFF}, s{sHP}, 80")
    A(f"s_add_u32 s{sWOFF}, s{sWOFF}, {512*3840}")
    for i in range(3):
        A(f"s_add_u32 m0, s{sT3}, {4096*i}")
        if i == 2:
            A("s_nop 0")
        A.v(f"buffer_load_dwordx4 v{1+i}, {S(R_W,4)}, s{sWOFF} offen lds", "q2")
    A.vwait("dbg", "q0")
    set_exec((1 << 60) - 1)
    poll_check(vTR, vXA, R_DBG, 0, sCNT)
    A("s_mov_b64 exec, -1")
    vWO, vKF = 7, 1
    A(f"""
v_bfe_u32 v30, v0, 5, 1
v_bfe_u32 v31, v0, 2, 3
v_lshl_add_u32 v30, v30, 3, v31
v_mul_u32_u24 v{vTR}, 160, v30
v_bfe_u32 v30, v0, 1, 1
v_mul_u32_u24 v30, 40, v30
v_and_b32 v31, 1, v0
v_lshl_add_u32 v30, v31, 4, v30
v_add_u32 v30, {LDS_WQ}, v30
v_add_u32 v{vTR}, v{vTR}, v30
v_and_b32 v{vWO}, 63, v0
v_lshlrev_b32 v{vKF}, 2, v{vWO}
v_lshlrev_b32 v{vWO}, 4, v{vWO}
""")
    QA = 64
    for i in range(24):
        A(f"v_mov_b32 v{QA+i}, 0")
    WOR = [XB + 4 * i for i in range(24)] + [92]
    sWO, sKF = 74, 75
    A(f"""
s_mul_i32 s{sWO}, s{sCT}, 102400
s_mul_i32 s{sT1}, s{SW}, 25600
s_add_u32 s{sWO}, s{sWO}, s{sT1}
s_add_u32 s{sWO}, s{sWO}, {WS_WO}
s_lshl_b32 s{sKF}, s{sT0}, 7
s_add_u32 s{sKF}, s{sKF}, {WS_KVF}
""")

    def issue_wo(f0, f1):
        for f in range(f0, f1):
            A.v(f"buffer_load_dwordx4 {V(WOR[f],4)}, v{vWO}, {S(R_WS,4)}, s{sWO} offen offset:{1024*(f%4)} sc1", "wo")
            if f % 4 == 3:
                A(f"s_add_u32 s{sWO}, s{sWO}, 4096")

    A.c("---- GEMM1b (q)")
    A("s_barrier")
    for c in range(5):
        if c == 2:
            A.vwait("q1")
            A("s_barrier")
        if c == 4:
            A.vwait("q2")
            A(f"v_subrev_u32 v{vTR}, {LDS_WQ}, v{vTR}")
            A("s_barrier")
            set_exec(0xFFFF)
            A.v(f"buffer_load_dword v2, v{vKF}, {S(R_WS,4)}, s{sKF} offen sc1", "kvf")
            A("s_mov_b64 exec, -1")
        gemm_stage(c, 3, QA, 32, lambda j, t, h: (c % 4) * 10240 + j * 2560 + h * 80 + (0, 8, 32)[t])
        if c == 0:
            A.vwait("kvst")
            A(f"""
s_lshl_b32 s{sT1}, s{sST}, 2
s_add_u32 s{sT1}, s{sT1}, s{sKF}
v_mov_b32 v2, 1
s_mov_b64 exec, 1
""")
            A.v(f"buffer_store_dword v2, v{vKF}, {S(R_WS,4)}, s{sT1} offen sc1", "flag")
            A("s_mov_b64 exec, -1")
        if c <= 2:
            issue_wo(8 * c, 8 * c + 8 + (1 if c == 2 else 0))
    stamp("B", "g1b")

    A.c("---- gather kv partials, phi_q")
    G = 192
    A(f"""
v_and_b32 v3, 31, v0
v_add_u32 v4, 32, v3
v_min_u32 v4, 54, v4
v_bfe_u32 v5, v0, 5, 1
v_lshlrev_b32 v5, 10, v5
v_lshl_add_u32 v3, v3, 4, v5
v_lshl_add_u32 v4, v4, 4, v5
s_lshl_b32 s{sT1}, s{sT0}, 14
s_add_u32 s{sT1}, s{sT1}, {WS_KVP}
""")
    A.vwait("kvf")
    set_exec(0xFFFF)
    poll_check(2, vKF, R_WS, f"s{sKF}", sCNT)
    A("s_mov_b64 exec, -1")
    stamp("B", "kvseen")
    for pp in range(8):
        for g2 in range(2):
            A.v(f"buffer_load_dwordx4 {V(G+8*pp+4*g2,4)}, v{3+g2}, {S(R_WS,4)}, s{sT1} offen offset:{2048*(pp&1)} sc1", f"g{pp}")
        if pp & 1:
            A(f"s_add_u32 s{sT1}, s{sT1}, 4096")
    Q0, Q1 = 8, 16
    for sg in range(2):
        for t in range(3):
            for hh in range(2):
                a_ = QA + 8 * t + 4 * sg + 2 * hh
                A(f"v_cvt_pk_bf16_f32 v{(Q0 if sg==0 else Q1)+2*t+hh}, v{a_}, v{a_+1}")
    phi_frags(PF, vPA)
    for i in range(6):
        A(f"v_permlane16_swap_b32 v{Q0+i}, v{Q1+i}")
    A(f"v_mov_b32 v{Q0+6}, 0")
    A(f"v_mov_b32 v{Q0+7}, 0")
    A.lwait("pf")
    phi_mfma(PK, PF, [Q0, Q1, Q0 + 4])
    softmax([PK + i for i in range(20)], E, PHI, 52)
    if OPT["dump"]:
        dump(list(range(PHI, PHI + 20)), 2, 28)
    stamp("B", "phiq")
    ID, RD = 28, 32
    A(f"""
v_and_b32 v40, 15, v0
v_bfe_u32 v41, v0, 4, 1
v_lshlrev_b32 v41, 3, v41
v_sub_u32 v41, v40, v41
v_and_b32 v42, 1, v41
v_lshlrev_b32 v42, 4, v42
v_mov_b32 v43, 0x3f80
v_lshlrev_b32 v42, v42, v43
v_lshrrev_b32 v41, 1, v41
""")
    for p in range(4):
        A(f"v_cmp_eq_u32 vcc, {p}, v41")
        A(f"v_cndmask_b32 v{ID+p}, 0, v42, vcc")
    A(f"""
v_bfe_u32 v41, v0, 5, 1
v_lshl_add_u32 v40, v41, 4, v40
v_bfe_u32 v41, v0, 4, 1
s_lshr_b32 s{sT1}, s{SW}, 1
s_mul_i32 s{sT1}, s{sT1}, 1760
s_and_b32 s{sT2}, s{SW}, 1
s_mul_i32 s{sT2}, s{sT2}, 40
s_add_u32 s{sT1}, s{sT1}, s{sT2}
s_add_u32 s{sT1}, s{sT1}, {LDS_KVT}
v_cmp_le_u32 vcc, 22, v40
v_mul_u32_u24 v44, 80, v40
v_mov_b32 v42, {8-22*80}
v_cndmask_b32 v42, 0, v42, vcc
v_lshl_add_u32 v44, v41, 4, v44
v_add3_u32 v44, v44, v42, s{sT1}
v_add_u32 v42, 10, v40
v_mul_u32_u24 v45, 80, v42
v_lshl_add_u32 v45, v41, 4, v45
v_add_u32 v45, 8, v45
v_subrev_u32 v42, 12, v40
v_lshl_add_u32 v42, v42, 1, v41
v_mul_u32_u24 v42, 80, v42
v_add_u32 v42, 32, v42
v_cmp_le_u32 vcc, 12, v40
v_cndmask_b32 v45, v45, v42, vcc
v_add_u32 v45, s{sT1}, v45
v_bfe_u32 v46, v0, 2, 1
v_bfe_u32 v47, v0, 5, 1
v_cmp_eq_u32 vcc, v46, v47
v_bfe_u32 v47, v0, 3, 2
v_and_b32 v42, 3, v0
v_lshl_add_u32 v47, v47, 2, v42
v_mul_u32_u24 v47, 80, v47
v_mul_u32_u24 v46, 1760, v46
v_add_u32 v46, v46, v47
v_add_u32 v46, {LDS_KVT}, v46
v_add_u32 v47, 1280, v46
v_mov_b32 v42, {LDS_Z}
v_cndmask_b32 v46, v42, v46, vcc
v_cndmask_b32 v47, v42, v47, vcc
""")
    for pp in range(8):
        A.vwait(f"g{pp}")
        for g2 in range(2):
            d = V(RD + 4 * g2, 4)
            A(f"v_mfma_f32_16x16x32_bf16 {d}, {V(ID,4)}, {V(G+8*pp+4*g2,4)}, {'0' if pp==0 else d}")
    for i in range(4):
        A(f"v_cvt_pk_bf16_f32 v{48+i}, v{RD+2*i}, v{RD+2*i+1}")
    A.l(f"ds_write_b64 v44, {V(48,2)}", "kt")
    set_exec(0x007F007FFFFFFFFF)
    A.l(f"ds_write_b64 v45, {V(50,2)}", "kt")
    A("s_mov_b64 exec, -1")
    A.lwait_all()
    A("s_barrier")
    OF_, OD = 192, 56
    for t in range(5):
        for T in range(2):
            A.l(f"ds_read_b128 {V(OF_+8*t+4*T,4)}, v{46+T} offset:{16*t}", f"o{t}")
    for t in range(5):
        A.lwait(f"o{t}")
        for T in range(2):
            d = V(OD + 16 * T, 16)
            A(f"v_mfma_f32_32x32x16_bf16 {d}, {V(OF_+8*t+4*T,4)}, {V(PHI+4*t,4)}, {'0' if t==0 else d}")
    A(f"""
s_lshl_b32 s{sT1}, s{sST}, 2
s_add_u32 s{sT1}, s{sT1}, s{SW}
s_lshl_b32 s{sT1}, s{sT1}, 4
s_add_u32 s{sT1}, s{sT1}, s{sHP}
s_lshl_b32 s{sT2}, s{sT1}, 7
s_add_u32 s{sT2}, s{sT2}, {WS_OF}
s_mul_i32 s{sT1}, s{sT1}, 2560
s_add_u32 s{sT1}, s{sT1}, {WS_O}
v_and_b32 v40, 31, v0
v_bfe_u32 v41, v0, 5, 1
v_lshlrev_b32 v41, 3, v41
v_lshl_add_u32 v40, v40, 4, v41
v_add_f32 v41, 0x358637bd, v{OD+20}
v_rcp_f32 v41, v41
""")
    OP = 28
    for i in range(10):
        A(f"v_mul_f32 v{OD+2*i}, v41, v{OD+2*i}")
        A(f"v_mul_f32 v{OD+2*i+1}, v41, v{OD+2*i+1}")
        A(f"v_cvt_pk_bf16_f32 v{OP+i}, v{OD+2*i}, v{OD+2*i+1}")
        if i == 3:
            A.v(f"buffer_store_dwordx4 {V(OP,4)}, v{vWO}, {S(R_WS,4)}, s{sT1} offen sc1", "ost")
        if i == 7:
            A.v(f"buffer_store_dwordx4 {V(OP+4,4)}, v{vWO}, {S(R_WS,4)}, s{sT1} offen offset:1024 sc1", "ost")
    A.v(f"buffer_store_dwordx2 {V(OP+8,2)}, v40, {S(R_WS,4)}, s{sT1} offen offset:2048 sc1", "ost")
    stamp("B", "ost")

    A.c("---- final projection")
    vOM, vOR, vOFL, vAD = 2, 3, 4, 5
    sOB = [64, 65, 66, 67]
    sAF, sAT = 74, 75
    GT, OMG, GA, AC0, AC1, OX = 8, 12, 16, 36, 56, 76
    OFR = [192 + 4 * i for i in range(16)] + [OX + 4 * i for i in range(4)]
    A(f"""
s_lshl_b32 s{sAF}, s{sCT}, 2
s_add_u32 s{sAF}, s{sAF}, s{SW}
s_mul_i32 s{sAT}, s{sAF}, {20*4096}
s_lshl_b32 s{sAF}, s{sAF}, 7
s_add_u32 s{sAF}, s{sAF}, {WS_AF}
s_mov_b64 exec, 0xfffff
""")
    A.v(f"buffer_load_dword v6, v{vKF}, {S(R_WS,4)}, s{sAF} offen sc1", "af")
    A(f"""
s_mov_b64 exec, -1
s_lshl_b32 s{sWOFF}, s{sST}, 1
s_add_u32 s{sWOFF}, s{sWOFF}, s{sB}
s_lshl_b32 s{sCNT}, s{sWOFF}, 7
s_add_u32 s{sAT}, s{sAT}, s{sCNT}
s_add_u32 s{sAT}, s{sAT}, {WS_AT}
s_lshl_b32 s{sCNT}, s{sWOFF}, 8
s_add_u32 s{sCNT}, s{sCNT}, {WS_G}
v_and_b32 v40, 0xf0, v0
""")
    A.v(f"buffer_load_dwordx4 {V(GT,4)}, v40, {S(R_WS,4)}, s{sCNT} offen sc1", "gt")
    A(f"""
v_and_b32 v40, 15, v0
v_bfe_u32 v41, v0, 4, 2
v_lshlrev_b32 v{vOM}, 9, v41
v_lshl_add_u32 v{vOM}, v40, 4, v{vOM}
v_mul_u32_u24 v{vOR}, 2560, v41
v_lshl_add_u32 v{vOR}, v40, 4, v{vOR}
v_and_b32 v41, 3, v0
v_bfe_u32 v42, v0, 2, 1
v_lshl_add_u32 v41, v42, 4, v41
v_lshlrev_b32 v{vOFL}, 7, v41
""")
    A.vwait("ost")
    A(f"""
v_mov_b32 v41, 1
s_mov_b64 exec, 1
""")
    A.v(f"buffer_store_dword v41, v{vKF}, {S(R_WS,4)}, s{sT2} offen sc1", "flag")
    A("s_mov_b64 exec, 0xfffff")
    A.vwait("af")
    poll_check(6, vKF, R_WS, f"s{sAF}", sCNT)
    A("s_mov_b64 exec, -1")
    A(f"""
v_and_b32 v40, 63, v0
v_lshrrev_b32 v41, 3, v40
v_and_b32 v40, 7, v40
s_mul_i32 s{sCNT}, s{SW}, 20
s_mul_i32 s{sAF}, s{SW}, 2560
""")
    for i in range(3):
        A(f"""
v_add_u32 v42, {8*i}, v41
v_add_u32 v43, s{sCNT}, v42
v_bfe_u32 v43, v43, 2, 3
v_xor_b32 v43, v43, v40
v_lshlrev_b32 v42, 12, v42
v_lshl_add_u32 v42, v43, 4, v42
s_add_u32 m0, s{sAF}, {LDS_AT+1024*i}
""")
        if i == 2:
            A("s_mov_b32 exec_hi, 0")
        A.v(f"buffer_load_dwordx4 v42, {S(R_WS,4)}, s{sAT} offen sc1 lds", "at")
    A("s_mov_b64 exec, -1")
    for p in range(4):
        A(f"""
s_add_u32 s{sCNT}, s{SW}, {p+1}
s_bfe_u32 s{sAF}, s{sCNT}, 0x10001
s_mul_i32 s{sOB[p]}, s{sAF}, 40960
s_and_b32 s{sAF}, s{sCNT}, 1
s_lshl_b32 s{sAF}, s{sAF}, 8
s_add_u32 s{sOB[p]}, s{sOB[p]}, s{sAF}
""")
    A(f"""
s_mul_i32 s{sCNT}, s{sWOFF}, 81920
s_mul_i32 s{sAF}, s{SW}, 10240
s_add_u32 s{sCNT}, s{sCNT}, s{sAF}
s_add_u32 s{sCNT}, s{sCNT}, {WS_O}
v_add_u32 v{vOM}, s{sCNT}, v{vOM}
v_add_u32 v{vOR}, s{sCNT}, v{vOR}
v_add_u32 v6, 5120, v{vOM}
s_lshl_b32 s{sAF}, s{sWOFF}, 12
s_lshl_b32 s{sCNT}, s{SW}, 9
s_add_u32 s{sAF}, s{sAF}, s{sCNT}
s_add_u32 s{sAF}, s{sAF}, {WS_OF}
s_mov_b64 exec, 0xff
""")
    poll_loop(40, vOFL, R_WS, f"s{sAF}", sCNT)
    A.vm = []
    A("s_mov_b64 exec, -1")
    stamp("B", "oseen")
    for p in range(4):
        for ii in range(5):
            r = V(OFR[5 * p + ii], 4)
            if ii < 4:
                A.v(f"buffer_load_dwordx4 {r}, v{vOM if ii<2 else 6}, {S(R_WS,4)}, s{sOB[p]} offen offset:{2560*(ii&1)} sc1", f"of{p}_{ii}")
            else:
                A.v(f"buffer_load_dwordx4 {r}, v{vOR}, {S(R_WS,4)}, s{sOB[p]} offen offset:2048 sc1", f"of{p}_{ii}")
    vRW, vRR, vAR, vAR4, vOUT = 1, 4, 5, 2, 3
    A("s_barrier")
    A(f"""
v_and_b32 v40, 15, v0
v_lshrrev_b32 v41, 5, v0
v_and_b32 v42, 7, v40
v_xor_b32 v42, v42, v41
v_lshlrev_b32 v42, 4, v42
v_bfe_u32 v43, v0, 4, 1
v_lshlrev_b32 v43, 3, v43
v_lshlrev_b32 v{vAR}, 9, v40
v_add3_u32 v{vAR}, v{vAR}, v42, v43
v_lshrrev_b32 v42, 2, v40
v_xor_b32 v42, v42, v41
v_lshlrev_b32 v42, 4, v42
v_lshlrev_b32 v44, 7, v40
v_add3_u32 v44, v44, v42, v43
""")
    AR = 46
    for jn in range(4):
        A.l(f"ds_read_b64 {V(AR+2*jn,2)}, v{vAR} offset:{LDS_AT+128*jn}", "ar")
    A.l(f"ds_read_b64 {V(AR+8,2)}, v44 offset:{LDS_AT+8192}", "ar")
    for e in range(4):
        A(f"v_sub_f32 v{OMG+e}, 1.0, v{GT+e}")
    A(f"""
s_mul_i32 s{sCNT}, s{SW}, 15360
s_add_u32 s{sCNT}, s{sCNT}, {LDS_RED}
v_add_u32 v{vRR}, s{sCNT}, v{vWO}
""")
    A.lwait("ar")
    for jn in range(5):
        for e in range(4):
            src = AR + 2 * jn + (e >> 1)
            if e & 1:
                A(f"v_and_b32 v{GA+4*jn+e}, 0xffff0000, v{src}")
            else:
                A(f"v_lshlrev_b32 v{GA+4*jn+e}, 16, v{src}")
            A(f"v_mul_f32 v{GA+4*jn+e}, v{GT+e}, v{GA+4*jn+e}")
    pend = []
    for p in range(4):
        ac = AC0 if p % 2 == 0 else AC1
        k = 0
        for ii in range(5):
            A.vwait(f"of{p}_{ii}")
            for jn in range(5):
                d = V(ac + 4 * jn, 4)
                A(f"v_mfma_f32_16x16x32_bf16 {d}, {V(OFR[5*p+ii],4)}, {V(WOR[5*ii+jn],4)}, {'0' if ii==0 else d}")
                k += 1
                if pend and k >= 4:
                    pend.pop(0)()
        if p < 3:
            def mk(p=p, ac=ac):
                out = []
                def addr():
                    A(f"s_add_u32 s{sCNT}, s{SW}, {p+1}")
                    A(f"s_and_b32 s{sCNT}, s{sCNT}, 3")
                    A(f"s_mul_i32 s{sCNT}, s{sCNT}, 15360")
                    A(f"v_add_u32 v{vRW}, s{sCNT}, v{vWO}")
                out.append(addr)
                for jn in range(5):
                    out.append(lambda jn=jn: A.l(f"ds_write_b128 v{vRW}, {V(ac+4*jn,4)} offset:{LDS_RED+5120*p+1024*jn}", "rw"))
                if p == 2:
                    def bar():
                        A.lwait_all()
                        A("s_barrier")
                    out.append(bar)
                    for q in range(15):
                        out.append(lambda q=q: A.l(f"ds_read_b128 {V(OFR[q],4)}, v{vRR} offset:{1024*q}", f"rr{q%5}"))
                return out
            pend = mk()
    while pend:
        pend.pop(0)()
    A(f"""
v_lshrrev_b32 v40, 4, v0
v_mul_u32_u24 v40, 5120, v40
v_and_b32 v41, 15, v0
v_lshl_add_u32 v{vOUT}, v41, 3, v40
v_lshl_add_u32 v{vAR4}, v41, 1, v40
s_mul_i32 s{sCNT}, s{sWOFF}, 81920
s_mul_i32 s{sAF}, s{sCT}, 160
s_add_u32 s{sCNT}, s{sCNT}, s{sAF}
""")
    A.lwait_all()
    for jn in range(5):
        for e in range(4):
            r0, r1, r2 = OFR[jn] + e, OFR[5 + jn] + e, OFR[10 + jn] + e
            A(f"v_add_f32 v{r0}, v{r0}, v{r1}")
            A(f"v_add_f32 v{r2}, v{r2}, v{AC1+4*jn+e}")
            A(f"v_add_f32 v{r0}, v{r0}, v{r2}")
            A(f"v_fma_f32 v{GA+4*jn+e}, v{OMG+e}, v{r0}, v{GA+4*jn+e}")
    for e in range(4):
        A(f"v_cvt_pk_bf16_f32 v{AC0+4*e}, v{GA+e}, v{GA+4+e}")
        A(f"v_cvt_pk_bf16_f32 v{AC0+4*e+1}, v{GA+8+e}, v{GA+12+e}")
        A(f"v_cvt_pk_bf16_f32 v{AC0+4*e+2}, v{GA+16+e}, v{GA+16+e}")
        A.v(f"buffer_store_dwordx2 {V(AC0+4*e,2)}, v{vOUT}, {S(R_M2,4)}, s{sCNT} offen offset:{1280*e}")
        A.v(f"buffer_store_short v{AC0+4*e+2}, v{vAR4}, {S(R_M2,4)}, s{sCNT} offen offset:{1280*e+128}")
    finish("B")


def role_A():
    sAJ, sTB, sCB, sCH, sLB = 60, 61, 62, 63, 68
    A.c("---- A prologue")
    A(f"""
s_sub_u32 s{sAJ}, s2, {ID_A}
s_lshr_b32 s{sT0}, s{sAJ}, 3
s_lshl_b32 s{sT0}, s{sT0}, 1
s_and_b32 s{sT1}, s{sAJ}, 1
s_add_u32 s{sT0}, s{sT0}, s{sT1}
s_mul_i32 s{sTB}, s{sT0}, 52
s_lshr_b32 s{sTB}, s{sTB}, 9
s_mul_i32 s{sT1}, s{sTB}, 10
s_sub_u32 s{sCB}, s{sT0}, s{sT1}
s_bfe_u32 s{sT1}, s{sAJ}, 0x20001
s_lshl_b32 s{sT1}, s{sT1}, 2
s_add_u32 s{sTB}, s{sTB}, s{sT1}
s_lshl_b32 s{sCH}, s{sAJ}, 2
s_add_u32 s{sCH}, s{sCH}, s{SW}
s_mul_i32 s{sLB}, s{SW}, 20480
v_lshrrev_b32 v2, 3, v0
v_bfe_u32 v3, v2, 1, 1
v_bfe_u32 v4, v2, 3, 1
v_lshl_or_b32 v3, v4, 1, v3
v_lshlrev_b32 v3, 1, v3
v_and_b32 v4, 7, v0
v_xor_b32 v3, v3, v4
v_mul_u32_u24 v2, 1280, v2
v_lshl_add_u32 v2, v3, 4, v2
v_and_b32 v1, 63, v0
v_lshlrev_b32 v5, 2, v1
s_lshl_b32 s{sT0}, s{sCH}, 8
v_add_u32 v3, s{sT0}, v5
s_mul_i32 s{sT1}, s{sTB}, 163840
s_lshl_b32 s{sT2}, s{sCB}, 7
s_add_u32 s{sT1}, s{sT1}, s{sT2}
s_lshl_b32 s{sT2}, s{SW}, 10
s_and_b32 s{sT3}, s{sCH}, 0xfffffffe
s_lshl_b32 s{sT3}, s{sT3}, 1
s_waitcnt lgkmcnt(0)
""")
    for q in range(40):
        assert (q * 52) >> 9 == q // 10
    srd(R_X, P_U, 2621440)
    for i in range(4):
        A(f"s_add_u32 m0, s{sT2}, {4096*i}")
        if i:
            A(f"s_add_u32 s{sT1}, s{sT1}, 40960")
        else:
            A(f"s_load_dword s70, {S(P_LOGDT,2)}, s{sT3}")
        A.v(f"buffer_load_dwordx4 v2, {S(R_X,4)}, s{sT1} offen lds", "ut")
    A(f"s_load_dword s71, {S(P_DSK,2)}, s{sT3}")
    for i, p in enumerate((P_LOGA, P_AIM, P_CRE, P_CIM)):
        A.v(f"global_load_dword v{8+i}, v3, {S(p,2)}", "par")
    srd(R_WS, P_WS, WS_SIZE)
    srd(R_DBG, P_DBG, 256)
    A(f"""
s_lshl_b32 s{sT0}, s{sAJ}, 14
s_add_u32 s{sT0}, s{sT0}, {WS_UT}
s_add_u32 s{R_M1}, s{P_WS}, s{sT0}
s_addc_u32 s{R_M1+1}, s{P_WS+1}, 0
s_mov_b32 s{R_M1+2}, 16384
s_mov_b32 s{R_M1+3}, 0x20000
""")
    A(f"""
v_not_b32 v6, v1
v_bfe_u32 v7, v6, 4, 2
v_bfe_u32 v6, v6, 2, 2
v_lshl_add_u32 v7, v7, 3, v6
v_bfe_u32 v12, v7, 1, 1
v_bfe_u32 v13, v7, 3, 1
v_lshl_or_b32 v12, v13, 1, v12
v_xor_b32 v12, s{SW}, v12
v_lshlrev_b32 v12, 5, v12
v_lshl_add_u32 v7, v7, 7, v12
v_and_b32 v12, 3, v1
v_lshl_add_u32 v7, v12, 3, v7
v_bfe_u32 v13, v1, 2, 2
v_lshlrev_b32 v13, 14, v13
v_lshl_add_u32 v13, v12, 4, v13
v_and_b32 v12, 0x30, v1
v_lshl_add_u32 v13, v12, 2, v13
s_lshl_b32 s{sT0}, s{sCB}, 2
s_add_u32 s{sT0}, s{sT0}, s{SW}
s_lshl_b32 s{sT1}, s{sT0}, 16
s_sub_u32 s{sT2}, 15, s{sTB}
s_lshl_b32 s{sT2}, s{sT2}, 10
s_add_u32 s{sT1}, s{sT1}, s{sT2}
s_add_u32 s{sT1}, s{sT1}, {WS_UT}
s_lshl_b32 s{sT0}, s{sT0}, 7
s_lshl_b32 s{sT2}, s{sTB}, 2
s_add_u32 s69, s{sT0}, s{sT2}
""")
    A.vwait("ut")
    A("s_barrier")
    stamp("A", "tile")
    for it in range(4):
        for h in range(2):
            A.l(f"ds_read_b64_tr_b16 {V(16+4*it+2*h,2)}, v7 offset:{4096*(3-it)+512*(1-h)}", f"t{it}")
    A.lwait_all()
    for it in range(4):
        A.v(f"buffer_store_dwordx4 {V(16+4*it,4)}, v13, {S(R_WS,4)}, s{sT1} offen offset:{256*it} sc1", "utst")
    A("s_mov_b64 exec, 15")
    A.v(f"buffer_load_dword v14, v5, {S(R_DBG,4)}, 0 offen offset:224 sc1", "s0")
    A("s_mov_b64 exec, -1")
    A("s_barrier")
    A.c("---- per-mode constants (two modes per lane)")
    A(f"""
s_bitcmp1_b32 s{sCH}, 0
s_cselect_b32 s{sT0}, 0, 16
s_lshl_b32 s70, s70, s{sT0}
s_and_b32 s70, s70, 0xffff0000
s_lshl_b32 s71, s71, s{sT0}
s_and_b32 s71, s71, 0xffff0000
v_mov_b32 v32, {LOG2E:#x}
v_mul_f32 v33, s70, v32
v_exp_f32 v33, v33
""")
    A.vwait("par")
    LA, AI, XR, XI = 34, 36, 38, 40
    for (src, dst) in ((8, LA), (9, AI), (10, XR), (11, XI)):
        A(f"v_lshlrev_b32 v{dst}, 16, v{src}")
        A(f"v_and_b32 v{dst+1}, 0xffff0000, v{src}")
    A(f"""
v_cvt_pk_bf16_f32 v33, v33, v33
v_and_b32 v33, 0xffff0000, v33
v_mul_f32 v{LA}, v32, v{LA}
v_mul_f32 v{LA+1}, v32, v{LA+1}
v_exp_f32 v{LA}, v{LA}
v_exp_f32 v{LA+1}, v{LA+1}
v_mul_f32 v{AI}, v33, v{AI}
v_mul_f32 v{AI+1}, v33, v{AI+1}
v_cvt_pk_bf16_f32 v{LA+1}, v{LA}, v{LA+1}
v_lshlrev_b32 v{LA}, 16, v{LA+1}
v_and_b32 v{LA+1}, 0xffff0000, v{LA+1}
v_mul_f32 v{LA}, v33, v{LA}
v_mul_f32 v{LA+1}, v33, v{LA+1}
v_mul_f32 v{LA}, v32, v{LA}
v_mul_f32 v{LA+1}, v32, v{LA+1}
v_mul_f32 v{AI}, {INV2PI:#x}, v{AI}
v_mul_f32 v{AI+1}, {INV2PI:#x}, v{AI+1}
v_add_f32 v33, v33, v33
v_mul_f32 v{XR}, v33, v{XR}
v_mul_f32 v{XR+1}, v33, v{XR+1}
v_mul_f32 v{XI}, v33, -v{XI}
v_mul_f32 v{XI+1}, v33, -v{XI+1}
""")
    W = {1: 44, 8: 48, 256: 52}
    for p, w in W.items():
        lit = {1: "1.0", 8: "0x41000000", 256: "0x43800000"}[p]
        for n in range(2):
            A(f"v_mul_f32 v{56+n}, {lit}, v{LA+n}")
            A(f"v_mul_f32 v{58+n}, {lit}, v{AI+n}")
        for n in range(2):
            A(f"v_exp_f32 v{56+n}, -v{56+n}")
            A(f"v_fract_f32 v{58+n}, v{58+n}")
        for n in range(2):
            A(f"v_cos_f32 v{w+n}, v{58+n}")
            A(f"v_sin_f32 v{w+2+n}, v{58+n}")
        A(f"v_pk_mul_f32 {V(w,2)}, {V(w,2)}, {V(56,2)}")
        A(f"v_pk_mul_f32 {V(w+2,2)}, {V(w+2,2)}, {V(56,2)}")
    A.vwait("utst", "s0")
    A("s_mov_b64 exec, 15")
    A(f"v_add_u32 v15, 224, v5")
    poll_check(14, 15, R_DBG, 0, sCNT)
    A(f"""
s_mov_b64 exec, 1
v_mov_b32 v14, 1
""")
    A.v(f"buffer_store_dword v14, v5, {S(R_WS,4)}, s69 offen offset:{WS_UTF} sc1", "flag")
    A("s_mov_b64 exec, -1")
    stamp("A", "utflag")
    vSW, vSR = 6, 7
    A(f"""
v_lshlrev_b32 v{vSW}, 3, v1
v_add_u32 v{vSW}, s{sLB}, v{vSW}
v_and_b32 v{vSR}, 31, v1
v_mul_u32_u24 v{vSR}, 528, v{vSR}
v_lshrrev_b32 v12, 5, v1
v_lshlrev_b32 v12, 4, v12
v_add3_u32 v{vSR}, v{vSR}, v12, s{sLB}
""")
    pk = [0]

    def put(reg, rows):
        t = 16 + 2 * (pk[0] % 4)
        pk[0] += 1
        A(f"v_cvt_pk_bf16_f32 v{t}, v{reg}, v{reg+1}")
        A(f"v_cvt_pk_bf16_f32 v{t+1}, v{reg+2}, v{reg+3}")
        for r in rows:
            A.l(f"ds_write_b64 v{vSW}, {V(t,2)} offset:{528*r}", "st")

    def cmul(d, s, w, conj):
        n1, n2 = ("", " neg_lo:[1,0,0] neg_hi:[1,0,0]") if conj else (" neg_lo:[0,0,1] neg_hi:[0,0,1]", "")
        A(f"v_pk_mul_f32 {V(56,2)}, {V(s+2,2)}, {V(w+2,2)}")
        A(f"v_pk_mul_f32 {V(58,2)}, {V(s+2,2)}, {V(w,2)}")
        A(f"v_pk_fma_f32 {V(d+2,2)}, {V(s,2)}, {V(w+2,2)}, {V(58,2)}{n2}")
        A(f"v_pk_fma_f32 {V(d,2)}, {V(s,2)}, {V(w,2)}, {V(56,2)}{n1}")

    A.c("---- X rows")
    g0 = [0, 1, 2, 3, 4, 5, 6, 7, 512, 516, 520, 1024, 1032, 1536, 1544]
    g1 = [256, 256, 258, 260, 260, 260, 262, 264, 768, 772, 776, 1280, 1288, 1792, 1800]
    rows = {}
    for g, lst in enumerate((g0, g1)):
        for i, p in enumerate(lst):
            rows.setdefault(p, []).append(8 * (i >> 2) + 4 * g + (i & 3))
    keep = {0: XR, 2: 60, 4: 64, 6: 68, 8: 72}
    put(XR, rows[0])
    cur = XR
    for p in range(1, 9):
        d = keep.get(p, 76)
        cmul(d, cur, W[1], True)
        if p in rows:
            put(d, rows[p])
        cur = d
    for step in range(1, 8):
        for off in (0, 8, 4, 2, 6):
            p = 256 * step + off
            if p in rows:
                cmul(keep[off], keep[off], W[256], True)
                put(keep[off], rows[p])
    XF = 96
    A.lwait_all()
    for ks in range(16):
        A.l(f"ds_read_b128 {V(XF+4*ks,4)}, v{vSR} offset:{32*ks}", "xf")
    A.c("---- Y rows")
    YA, YB = 60, 64
    cmul(YA, W[8], W[8], False)
    A(f"""
v_mov_b32 v24, 0x3f803f80
v_mov_b32 v25, 0
""")
    A.lwait_all()
    stamp("A", "xrows")
    A.l(f"ds_write_b64 v{vSW}, {V(24,2)}", "st")
    put(W[8], [1])
    put(YA, [2])
    A(f"""
s_lshr_b32 s69, s{sAJ}, 2
s_lshl_b32 s69, s69, 7
s_add_u32 s69, s69, {WS_UTF}
""")
    for c in range(3, 32):
        cmul(YA, YA, W[8], False)
        put(YA, [c])
        if c == 20:
            A("s_mov_b64 exec, 0xffff")
            A.v(f"buffer_load_dword v14, v5, {S(R_WS,4)}, s69 offen sc1", "utf")
            A("s_mov_b64 exec, -1")
    A.vwait("utf")
    A("s_mov_b64 exec, 0xffff")
    poll_check(14, 5, R_WS, "s69", sCNT)
    A("s_mov_b64 exec, -1")
    stamp("A", "utseen")
    UL, UN = 32, 48
    A("v_lshlrev_b32 v2, 4, v0")
    for i in range(4):
        A(f"s_movk_i32 s{sT0}, {4096*i}")
        A.v(f"buffer_load_dwordx4 {V(UL+4*i,4)}, v2, {S(R_M1,4)}, s{sT0} offen sc1", "u")
        A.v(f"buffer_load_dword v{UN+i}, v2, {S(R_M1,4)}, s{sT0} offen offset:64 sc1", "u")
    A.lwait_all()
    YF, KD = 160, 68
    for ks in range(16):
        A.l(f"ds_read_b128 {V(YF+4*ks,4)}, v{vSR} offset:{32*ks}", f"y{ks}")
        if ks >= 6:
            k2 = ks - 6
            A.lwait(f"y{k2}")
            A(f"v_mfma_f32_32x32x16_bf16 {V(KD,16)}, {V(XF+4*k2,4)}, {V(YF+4*k2,4)}, {'0' if k2==0 else V(KD,16)}")
    for k2 in range(10, 16):
        A.lwait(f"y{k2}")
        A(f"v_mfma_f32_32x32x16_bf16 {V(KD,16)}, {V(XF+4*k2,4)}, {V(YF+4*k2,4)}, {V(KD,16)}")
    A("s_barrier")
    vKW, vUW, vKB, vUA = 3, 4, 8, 9
    A(f"""
v_lshlrev_b32 v{vKW}, 4, v1
v_add_u32 v{vKW}, s{sLB}, v{vKW}
v_and_b32 v13, 3, v0
v_mul_u32_u24 v13, 20512, v13
v_lshrrev_b32 v{vUW}, 2, v0
v_lshl_add_u32 v{vUW}, v{vUW}, 4, v13
v_and_b32 v13, 15, v1
v_and_b32 v14, 0x30, v1
v_lshl_add_u32 v{vKB}, v13, 5, v14
v_add_u32 v{vKB}, s{sLB}, v{vKB}
v_add_u32 v{vKB}, 480, v{vKB}
v_lshrrev_b32 v15, 1, v13
v_lshlrev_b32 v15, 2, v15
v_sub_u32 v14, v14, v15
v_and_b32 v13, 1, v13
v_mul_u32_u24 v13, 4160, v13
v_sub_u32 v14, v14, v13
s_mul_i32 s{sT0}, s{SW}, 20512
s_add_u32 s{sT0}, s{sT0}, {4608+4160+4060-512}
v_add_u32 v{vUA}, s{sT0}, v14
v_subrev_u32 v{vUA+1}, 1024, v{vUA}
v_subrev_u32 v{vUA+2}, 2048, v{vUA}
v_subrev_u32 v{vUA+3}, 3072, v{vUA}
v_mov_b32 v16, 0
v_mov_b32 v17, 0
v_lshrrev_b32 v13, 5, v1
v_mul_u32_u24 v13, 4160, v13
v_and_b32 v14, 3, v1
v_lshl_add_u32 v13, v14, 3, v13
s_sub_u32 s{sT0}, s{sT0}, {4160+4060-512-4096}
v_add_u32 v13, s{sT0}, v13
""")
    A.l(f"ds_write_b64 v{vSW}, {V(16,2)}", "cv")
    A.l(f"ds_write_b64 v13, {V(16,2)}", "cv")
    A(f"""
s_mov_b64 exec, 1
v_add_f32 v{KD}, s71, v{KD}
s_mov_b64 exec, -1
s_mov_b32 vcc_lo, 0x55555555
s_mov_b32 vcc_hi, 0x55555555
""")
    KP = 84
    for i in range(4):
        A(f"v_cvt_pk_bf16_f32 v{KP+i}, v{KD+2*i}, v{KD+2*i+1}")
    A.l(f"ds_write_b128 v{vKW}, {V(KP,4)} offset:512", "cv")
    a_, b_, c_ = KD + 8, KD + 9, KD + 10
    for i, (x_, y_) in enumerate(((a_, a_), (a_, b_), (b_, b_), (c_, c_))):
        A(f"v_cvt_pk_bf16_f32 v{KP+4+i}, v{x_}, v{y_}")
    A.l(f"ds_write_b128 v{vKW}, {V(KP+4,4)} offset:{512+1024}", "cv")
    for blk, d in ((0, KP + 8), (1, 20)):
        a_, b_ = KD + 11 + 2 * blk, KD + 12 + 2 * blk
        A(f"v_cndmask_b32 v18, v{b_}, v{a_}, vcc")
        A(f"v_cvt_pk_bf16_f32 v{d}, v{a_}, v{a_}")
        A(f"v_cvt_pk_bf16_f32 v{d+1}, v{a_}, v{a_}")
        A(f"v_cvt_pk_bf16_f32 v{d+2}, v18, v{b_}")
        A(f"v_cvt_pk_bf16_f32 v{d+3}, v{b_}, v{b_}")
        A.l(f"ds_write_b128 v{vKW}, {V(d,4)} offset:{512+2048+1024*blk}", "cv")
    A.vwait("u")
    for i in range(4):
        A.l(f"ds_write_b128 v{vUW}, {V(UL+4*i,4)} offset:{4608+1024*i}", "cv")
        t = 52 + 4 * i
        for p in range(4):
            hi = UL + 4 * i + p + 1 if p < 3 else UN + i
            A(f"v_alignbit_b32 v{t+p}, v{hi}, v{UL+4*i+p}, 16")
        A.l(f"ds_write_b128 v{vUW}, {V(t,4)} offset:{4608+4160+1024*i}", "cv")
    CA = 16
    A.lwait_all()
    for i in range(32):
        A(f"v_mov_b32 v{CA+i}, 0")
    A("s_barrier")
    stamp("A", "cstart")
    A.c("---- convolution: 8 residues x 36 tile products")
    UA = [64, 128]
    KB = [96, 160]

    def creads(s):
        out = []
        for m in range(8):
            out.append((f"ds_read_b128 {V(KB[s]+4*m,4)}, v{vKB} offset:{512*m}", f"b{s}_{m}"))
            o = 128 if m % 2 == 0 else 0
            for hh in range(2):
                out.append((f"ds_read2_b32 {V(UA[s]+4*m+2*hh,2)}, v{vUA+m//2} offset0:{o+2*hh} offset1:{o+2*hh+1}", f"a{s}_{m}"))
        return out

    def cstep():
        for q in range(5):
            A(f"v_subrev_u32 v{vKB+q}, 64, v{vKB+q}")

    pairs = sorted([(mu, n) for mu in range(8) for n in range(8 - mu)], key=lambda p: (max(p), p[0] + p[1]))
    for s_, tg in creads(0):
        A.l(s_, tg)
    A(f"s_mov_b32 s{sCNT}, 0")
    A("L_conv:")
    for s in range(2):
        cstep()
        nxt = creads(1 - s)
        A.lwait_all()
        for (mu, n) in pairs:
            d = V(CA + 4 * (mu + n), 4)
            A(f"v_mfma_f32_16x16x32_bf16 {d}, {V(UA[s]+4*mu,4)}, {V(KB[s]+4*n,4)}, {d}")
            if nxt:
                A.l(*nxt.pop(0))
    A(f"""
s_add_u32 s{sCNT}, s{sCNT}, 1
s_cmp_lt_u32 s{sCNT}, 4
s_cbranch_scc1 L_conv
""")
    stamp("A", "cend")
    A(f"""
v_and_b32 v2, 15, v1
v_lshlrev_b32 v2, 5, v2
v_bfe_u32 v3, v1, 4, 1
v_lshl_add_u32 v2, v3, 9, v2
v_lshrrev_b32 v3, 5, v1
v_lshl_add_u32 v2, v3, 4, v2
s_lshl_b32 s{sT0}, s{sCH}, 12
s_add_u32 s{sT0}, s{sT0}, {WS_AT}
s_mul_i32 s{sT1}, s{sCH}, 3277
s_lshr_b32 s{sT1}, s{sT1}, 16
s_mul_i32 s{sT1}, s{sT1}, 48
s_lshl_b32 s{sT2}, s{sCH}, 2
s_add_u32 s{sT1}, s{sT1}, s{sT2}
s_add_u32 s{sT1}, s{sT1}, {WS_AF}
""")
    for q in range(640):
        assert (q * 3277) >> 16 == q // 20
    A.lwait_all()
    for n in range(0, 8, 2):
        d = 48 + 2 * n
        for i in range(4):
            A(f"v_cvt_pk_bf16_f32 v{d+i}, v{CA+4*n+2*i}, v{CA+4*n+2*i+1}")
    for n in range(0, 8, 2):
        d = 48 + 2 * n
        A(f"v_permlane16_swap_b32 v{d}, v{d+2}")
        A(f"v_permlane16_swap_b32 v{d+1}, v{d+3}")
        A.v(f"buffer_store_dwordx4 {V(d,4)}, v2, {S(R_WS,4)}, s{sT0} offen offset:{512*n} sc1", "ast")
    A("v_mov_b32 v14, 1")
    A.vwait("ast")
    A("s_mov_b64 exec, 1")
    A.v(f"buffer_store_dword v14, v5, {S(R_WS,4)}, s{sT1} offen sc1", "flag")
    finish("A")


def r_done(role):
    A.vwait_all()
    A(f"""
s_barrier
s_cmp_lg_u32 s{SW}, 0
s_cbranch_scc1 L_rdone_{role}
s_lshl_b32 s{sT0}, s2, 2
v_mov_b32 v1, 0
v_mov_b32 v2, 1
s_mov_b64 exec, 1
buffer_store_dword v2, v1, {S(R_DBG,4)}, s{sT0} offen sc1
L_rdone_{role}:
""")
    finish(role)


def role_R():
    A(f"""
s_waitcnt lgkmcnt(0)
""")
    srd(R_WS, P_WS, WS_SIZE)
    srd(R_DBG, P_DBG, 256)
    A(f"""
s_cmp_ge_u32 s2, 56
s_cbranch_scc1 L_Ri
s_cmp_ge_u32 s2, 40
s_cbranch_scc1 L_Rg
""")
    A.c("---- wo repack: workgroup = (k-step, column half), wave = column tile")
    srd(R_W, P_WO, 819200)
    sKS, sU, sI, sCTL = 60, 61, 62, 63
    A(f"""
s_lshr_b32 s{sKS}, s2, 1
s_mul_i32 s{sU}, s{sKS}, 52
s_lshr_b32 s{sU}, s{sU}, 8
s_mul_i32 s{sI}, s{sU}, 5
s_sub_u32 s{sI}, s{sKS}, s{sI}
s_and_b32 s{sCTL}, s2, 1
s_lshl_b32 s{sCTL}, s{sCTL}, 2
s_add_u32 s{sCTL}, s{sCTL}, s{SW}
s_cmp_eq_u32 s{sI}, 4
s_cselect_b32 s{sT0}, 40, 20
s_cselect_b32 s{sT1}, 80, 8
s_cselect_b32 s{sT2}, 20, 4
s_mul_i32 s{sT2}, s{sT2}, 1280
s_mul_i32 s{sT3}, s{sI}, 40
s_cselect_b32 s{sT3}, 16, s{sT3}
s_mul_i32 s68, s{sU}, 160
s_add_u32 s{sT3}, s{sT3}, s68
s_mul_i32 s{sT3}, s{sT3}, 1280
s_mul_i32 s68, s{sCTL}, 160
s_add_u32 s{sT3}, s{sT3}, s68
s_add_u32 s{sT2}, s{sT2}, s{sT3}
v_bfe_u32 v2, v0, 4, 1
v_mul_u32_u24 v2, s{sT0}, v2
v_bfe_u32 v3, v0, 5, 1
v_mul_u32_u24 v3, s{sT1}, v3
v_add_u32 v2, v2, v3
v_mul_u32_u24 v2, 1280, v2
v_and_b32 v3, 15, v0
v_lshl_add_u32 v4, v3, 1, v2
v_lshl_add_u32 v2, v3, 3, v2
""")
    for q in range(20):
        assert (q * 52) >> 8 == q // 5
    for e in range(8):
        so = sT3 if e < 4 else sT2
        A.v(f"buffer_load_dwordx2 {V(8+2*e,2)}, v2, {S(R_W,4)}, s{so} offen offset:{1280*(e&3)}")
    for e in range(8):
        so = sT3 if e < 4 else sT2
        A.v(f"buffer_load_ushort v{24+e}, v4, {S(R_W,4)}, s{so} offen offset:{1280*(e&3)+128}")
    A(f"""
s_mul_i32 s{sT0}, s{sCTL}, 102400
s_mul_i32 s{sT1}, s{sKS}, 5120
s_add_u32 s{sT0}, s{sT0}, s{sT1}
s_add_u32 s{sT0}, s{sT0}, {WS_WO}
s_add_u32 s{sT1}, s{sT0}, 4096
s_mov_b32 s68, 0x05040100
s_mov_b32 s69, 0x07060302
v_and_b32 v5, 63, v0
v_lshlrev_b32 v5, 4, v5
""")
    A.vwait_all()
    for jn in range(4):
        for p in range(4):
            A(f"v_perm_b32 v{32+4*jn+p}, v{8+2*(2*p+1)+(jn>>1)}, v{8+2*(2*p)+(jn>>1)}, s{68+(jn&1)}")
        A.v(f"buffer_store_dwordx4 {V(32+4*jn,4)}, v5, {S(R_WS,4)}, s{sT0} offen offset:{1024*jn} sc1")
    for p in range(4):
        A(f"v_lshl_or_b32 v{48+p}, v{24+2*p+1}, 16, v{24+2*p}")
    A.v(f"buffer_store_dwordx4 {V(48,4)}, v5, {S(R_WS,4)}, s{sT1} offen sc1")
    r_done("Rwo")

    A("L_Rg:")
    A.c("---- gate: 128 rows per workgroup")
    srd(R_X, P_U, 2621440)
    srd(R_W, P_GATE, 1280)
    A(f"""
s_and_b32 s60, s2, 7
s_lshl_b32 s60, s60, 1
s_sub_u32 s61, s2, 40
s_lshr_b32 s61, s61, 3
s_add_u32 s60, s60, s61
s_lshl_b32 s60, s60, 2
s_add_u32 s60, s60, s{SW}
s_mul_i32 s61, s60, 40960
v_and_b32 v2, 15, v0
v_lshlrev_b32 v3, 4, v2
v_bfe_u32 v4, v0, 4, 2
v_mul_u32_u24 v5, 1280, v4
v_add_u32 v5, v5, v3
""")
    for i in range(5):
        A.v(f"buffer_load_dwordx4 {V(8+4*i,4)}, v3, {S(R_W,4)}, 0 offen offset:{256*i}", "gw")
    for st_ in range(8):
        for i in range(5):
            A.v(f"buffer_load_dwordx4 {V(40+20*st_+4*i,4)}, v5, {S(R_X,4)}, s61 offen offset:{256*i}", f"r{st_}")
        A("s_add_u32 s61, s61, 5120")
    for st_ in range(8):
        A(f"v_mov_b32 v{28+st_}, 0")
    for st_ in range(8):
        A.vwait(f"r{st_}")
        for i in range(20):
            A(f"v_dot2c_f32_bf16 v{28+st_}, v{40+20*st_+i}, v{8+i}")
    for sh in (8, 4, 2, 1):
        for st_ in range(8):
            A(f"v_add_f32_dpp v{28+st_}, v{28+st_}, v{28+st_} row_ror:{sh} row_mask:0xf bank_mask:0xf")
    for st_ in range(1, 8):
        A(f"v_cmp_eq_u32 vcc, {st_}, v2")
        A(f"v_cndmask_b32 v28, v28, v{28+st_}, vcc")
    A(f"""
v_mul_f32 v28, {LOG2E:#x}, v28
v_exp_f32 v28, -v28
v_lshl_add_u32 v3, v4, 2, v3
v_add_f32 v28, 1.0, v28
v_rcp_f32 v28, v28
s_lshl_b32 s60, s60, 7
s_add_u32 s60, s60, {WS_G}
s_mov_b32 exec_lo, 0x00ff00ff
s_mov_b32 exec_hi, 0x00ff00ff
""")
    A.v(f"buffer_store_dword v28, v3, {S(R_WS,4)}, s60 offen sc1")
    A("s_mov_b64 exec, -1")
    r_done("Rg")

    A("L_Ri:")
    A.c("---- code prefetch into L2 (one workgroup per die), flag words cleared")
    A(f"""
s_getpc_b64 s[60:61]
L_pc:
s_sub_u32 s60, s60, L_pc-{KN}
s_subb_u32 s61, s61, 0
v_lshlrev_b32 v2, 7, v0
v_min_u32 v2, L_codeend-{KN}-4, v2
global_load_dword v3, v2, s[60:61]
s_cmp_ge_u32 s2, 60
s_cbranch_scc1 L_exit
s_sub_u32 s62, s2, 56
s_mul_i32 s62, s62, {WS_FLAGS_END//4}
v_lshlrev_b32 v2, 4, v0
v_mov_b32 v4, 0
v_mov_b32 v5, 0
v_mov_b32 v6, 0
v_mov_b32 v7, 0
""")
    assert WS_FLAGS_END % (4 * 4096) == 0
    for i in range(WS_FLAGS_END // 4 // 4096):
        A.v(f"buffer_store_dwordx4 {V(4,4)}, v2, {S(R_WS,4)}, s62 offen sc1")
        A("s_add_u32 s62, s62, 4096")
    r_done("Ri")


if "B" in OPT["roles"]:
    role_B()
A("L_AR:")
A(f"""
s_cmp_lt_u32 s2, {ID_A}
s_cbranch_scc1 L_R
""")
if "A" in OPT["roles"]:
    role_A()
else:
    A("s_endpgm")
A("L_R:")
role_R()
A("""
L_exit:
s_endpgm
L_codeend:
""")
lines, nn = pad_hazards(A.lines, verbose=False)
hdr = open("gated_mix__ssm_conv_s4d__linear_kernel_hedgehog__prompt.s.ref").read().split("; Override launch")[0]
print(hdr + f"; @launch grid=({ID_END},1,1) block=(256,1,1) lds=81920")
print("\n".join(lines))
print(f""".section .rodata,"a"
.p2align 6
.amdhsa_kernel {KN}
  .amdhsa_next_free_vgpr 256
  .amdhsa_next_free_sgpr 102
  .amdhsa_accum_offset 256
  .amdhsa_group_segment_fixed_size 0
  .amdhsa_kernarg_size 120
  .amdhsa_user_sgpr_count 2
  .amdhsa_user_sgpr_kernarg_segment_ptr 1
  .amdhsa_system_sgpr_workgroup_id_x 1
.end_amdhsa_kernel""")
json.dump(stampnames, open("stamps.json", "w"))
print(f"pad states inserted: {nn}", file=sys.stderr)
```

```python
import re

TRANS = ("v_exp_f32", "v_log_f32", "v_rcp_f32", "v_rsq_f32", "v_sqrt_f32", "v_sin_f32", "v_cos_f32")


def _regs(tok):
    tok = tok.strip()
    tok = tok.lstrip("-")
    m = re.fullmatch(r"abs\((.*)\)|\|(.*)\|", tok)
    if m:
        tok = m.group(1) or m.group(2)
    m = re.fullmatch(r"([vs])(\d+)", tok)
    if m:
        return {(m.group(1), int(m.group(2)))}
    m = re.fullmatch(r"([vs])\[(\d+):(\d+)\]", tok)
    if m:
        return {(m.group(1), i) for i in range(int(m.group(2)), int(m.group(3)) + 1)}
    if tok in ("vcc", "vcc_lo", "vcc_hi"):
        return {("x", "vcc")}
    if tok in ("exec", "exec_lo", "exec_hi"):
        return {("x", "exec")}
    if tok == "m0":
        return {("x", "m0")}
    return set()


def _split(rest):
    out, depth, cur = [], 0, ""
    for ch in rest:
        if ch in "[(":
            depth += 1
        if ch in "])":
            depth -= 1
        if ch == "," and depth == 0:
            out.append(cur.strip())
            cur = ""
        else:
            cur += ch
    if cur.strip():
        out.append(cur.strip())
    return out


class Ins:
    def __init__(self, text):
        self.text = text
        t = text.split(";")[0].strip()
        self.label = None
        self.mn = None
        self.directive = False
        if not t:
            self.directive = True
            return
        if t.endswith(":"):
            self.label = t[:-1]
            return
        if t.startswith("."):
            self.directive = True
            return
        parts = t.split(None, 1)
        mn = parts[0]
        for suf in ("_e32", "_e64"):
            if mn.endswith(suf):
                mn = mn[: -len(suf)]
        self.mn = mn
        ops = _split(parts[1]) if len(parts) > 1 else []
        mods = ""
        if ops:
            last = ops[-1].split(None, 1)
            ops[-1] = last[0]
            mods = last[1] if len(last) > 1 else ""
        self.ops, self.mods = ops, mods
        R = [_regs(o) for o in ops]
        allr = set().union(*R) if R else set()
        self.valu = mn.startswith("v_") and not mn.startswith("v_mfma")
        self.mfma = mn.startswith("v_mfma")
        self.dpp = "_dpp" in mn
        self.trans = mn in TRANS
        self.perml = mn.startswith("v_permlane")
        self.rdlane = mn.startswith("v_readlane") or mn.startswith("v_readfirstlane")
        self.dot = mn.startswith("v_dot")
        self.vmem = mn.startswith("buffer_") or mn.startswith("global_")
        self.ds = mn.startswith("ds_")
        self.salu = mn.startswith("s_")
        self.ldsdma = self.vmem and re.search(r"\blds\b", mods) is not None
        self.w, self.r = set(), set()
        self.srcA = self.srcB = self.srcC = set()
        self.storedata = set()
        if self.mfma:
            self.w = R[0]
            self.srcA, self.srcB, self.srcC = R[1], R[2], R[3]
            self.r = R[1] | R[2] | R[3]
            self.passes = 8 if "32x32" in mn else 4
        elif self.perml:
            self.w = self.r = allr
        elif self.valu:
            if mn == "v_nop":
                pass
            else:
                self.w = set(R[0])
                self.r = set().union(*R[1:]) if len(R) > 1 else set()
                if re.match(r"v_(add|sub|subrev|addc|subb)_co_", mn):
                    self.w |= R[1]
                if mn.startswith(("v_fmac", "v_dot2c", "v_writelane")) or self.dpp:
                    self.r |= R[0]
        elif self.ds:
            if mn.startswith("ds_read"):
                self.w, self.r = R[0], set().union(*R[1:])
            else:
                self.r = allr
        elif self.vmem:
            if "load" in mn and not self.ldsdma:
                self.w, self.r = R[0], set().union(*R[1:])
            else:
                self.r = allr
                if re.search(r"store_dwordx[34]", mn):
                    self.storedata = R[0] if mn.startswith("buffer_") else R[1]
            if self.ldsdma:
                self.r = self.r | {("x", "m0")}
        elif self.salu:
            if mn.startswith(("s_cmp", "s_waitcnt", "s_barrier", "s_nop", "s_cbranch", "s_branch", "s_endpgm", "s_setprio", "s_sleep", "s_bitcmp")):
                self.r = allr
            else:
                self.w = set(R[0]) if R else set()
                self.r = set().union(*R[1:]) if len(R) > 1 else set()
                if "saveexec" in mn:
                    self.w |= {("x", "exec")}
        self.states = 1
        if mn == "s_nop":
            self.states = int(ops[0]) + 1
        self.target = ops[0] if mn.startswith(("s_cbranch", "s_branch")) else None


def isv(s):
    return {x for x in s if x[0] == "v"}


def iss(s):
    return {x for x in s if x[0] == "s" or x == ("x", "vcc")}


def need(p, c):
    n = 0
    if p.valu:
        wv, ws = isv(p.w), iss(p.w)
        if c.mfma and wv & c.r:
            n = max(n, 2)
        if (c.dpp or c.perml) and wv & c.r:
            n = max(n, 2)
        if c.rdlane and wv & c.r:
            n = max(n, 1)
        if p.trans and c.valu and not c.trans and wv & c.r:
            n = max(n, 1)
        if p.trans and (c.vmem or c.ds) and wv & c.r:
            n = max(n, 1)
        if p.dot and (c.valu or c.vmem or c.ds or c.mfma) and wv & (c.r | c.w):
            same_c = c.mn == p.mn and not (wv & set().union(*[_regs(o) for o in c.ops[1:3]]))
            if not same_c:
                n = max(n, 3)
        if ws:
            if c.valu and ws & c.r:
                n = max(n, 4 if c.mn.startswith(("v_readlane", "v_writelane")) else 2)
            if c.vmem and ws & c.r:
                n = max(n, 5)
            if c.salu and (ws & c.r or (("x", "vcc") in ws and "vcc" in c.mn)):
                n = max(n, 1)
    if p.mfma:
        big = {4: 8, 8: 12}[p.passes]
        if c.mfma:
            if p.w & (c.srcA | c.srcB):
                n = max(n, big)
            if p.w & c.srcC and not (c.srcC == p.w and c.mn == p.mn):
                n = max(n, big - 2)
            if p.w & c.w and not (c.w == p.w and c.mn == p.mn):
                n = max(n, big - 2)
        elif (c.valu or c.vmem or c.ds) and p.w & (c.r | c.w):
            n = max(n, big)
        if c.valu and p.srcC & c.w:
            n = max(n, p.passes - 1)
    if p.salu and ("x", "m0") in p.w and c.ldsdma:
        n = max(n, 1)
    if p.storedata and p.storedata & c.w:
        n = max(n, 2)
    return n


def pad_hazards(lines, verbose=False):
    total = 0
    while True:
        ins = [Ins(l) for l in lines]
        labels = {i.label: k for k, i in enumerate(ins) if i.label}
        fix = {}
        for k, p in enumerate(ins):
            if p.mn is None or not (p.valu or p.mfma or p.storedata or (p.salu and ("x", "m0") in p.w)):
                continue
            stack, seen = [(k + 1, 0)], {}
            while stack:
                j, d = stack.pop()
                while j < len(ins) and d < 13:
                    if seen.get(j, 99) <= d:
                        break
                    seen[j] = d
                    c = ins[j]
                    if c.mn is None:
                        j += 1
                        continue
                    n = need(p, c)
                    if n > d:
                        fix[j] = max(fix.get(j, 0), n - d)
                    if c.mn == "s_endpgm":
                        break
                    d += c.states
                    if c.target is not None:
                        stack.append((labels[c.target], d))
                        if c.mn == "s_branch":
                            break
                    j += 1
        if not fix:
            return lines, total
        j = min(fix)
        applied, last = [], -99
        for j in sorted(fix):
            if j - last > 16:
                applied.append(j)
                last = j
        for j in reversed(applied):
            if verbose:
                print("pad", fix[j], "before:", lines[j].strip())
            lines = lines[:j] + [f"    s_nop {fix[j]-1}"] + lines[j:]
            total += fix[j]


class Asm:
    def __init__(self):
        self.lines = []
        self.vm = []
        self.lg = []

    def __call__(self, s):
        for l in s.strip("\n").split("\n"):
            l = l.strip()
            if not l:
                continue
            self.lines.append(l if l.endswith(":") or l.startswith(".") else "    " + l)

    def c(self, s):
        self.lines.append("    ; " + s)

    def v(self, s, tag="_"):
        self(s)
        self.vm.append(tag)
        assert len(self.vm) <= 63, "vmcnt overflow"

    def vwait(self, *tags):
        idx = [i for i, t in enumerate(self.vm) if t in tags]
        if not idx:
            return
        n = len(self.vm) - 1 - max(idx)
        self(f"s_waitcnt vmcnt({n})")
        self.vm = self.vm[max(idx) + 1:]

    def vwait_n(self, tag, count):
        idx = [i for i, t in enumerate(self.vm) if t == tag][:count]
        n = len(self.vm) - 1 - max(idx)
        self(f"s_waitcnt vmcnt({n})")
        self.vm = self.vm[max(idx) + 1:]

    def vwait_all(self):
        self("s_waitcnt vmcnt(0)")
        self.vm = []

    def l(self, s, tag="_"):
        self(s)
        self.lg.append(tag)

    def lwait(self, *tags):
        idx = [i for i, t in enumerate(self.lg) if t in tags]
        if not idx:
            return
        n = min(len(self.lg) - 1 - max(idx), 15)
        self(f"s_waitcnt lgkmcnt({n})")
        self.lg = self.lg[len(self.lg) - n:] if n else []

    def lwait_all(self):
        self("s_waitcnt lgkmcnt(0)")
        self.lg = []


def V(a, n=1):
    return f"v{a}" if n == 1 else f"v[{a}:{a+n-1}]"


def S(a, n=1):
    return f"s{a}" if n == 1 else f"s[{a}:{a+n-1}]"


import subprocess, tempfile, os

_PROMOTE = re.compile(r"v_(mov_b32|add_f32|sub_f32|mul_f32|max_f32|min_f32|add_u32|sub_u32|subrev_u32|and_b32|or_b32|xor_b32|lshlrev_b32|lshrrev_b32|exp_f32|rcp_f32|sin_f32|cos_f32|fract_f32|mul_u32_u24|min_u32|not_b32|cndmask_b32|cmp_\w+)$")


def sizes(lines):
    d = tempfile.mkdtemp()
    src, obj = os.path.join(d, "a.s"), os.path.join(d, "a.o")
    open(src, "w").write("\n".join(lines) + "\n")
    subprocess.run(["clang", "-x", "assembler", "-target", "amdgcn-amd-amdhsa", "-mcpu=gfx950", "-c", src, "-o", obj], check=True)
    dis = subprocess.run(["llvm-objdump", "-d", "--mcpu=gfx950", obj], capture_output=True, text=True, check=True).stdout
    out = []
    for l in dis.split("\n"):
        m = re.search(r"// [0-9A-F]+: ((?:[0-9A-F]{8} ?)+)", l)
        if m:
            out.append(4 * len(m.group(1).split()))
    return out


def align8(lines, nop_cost=4):
    ins = [Ins(l) for l in lines]
    idx = [k for k, i in enumerate(ins) if i.mn is not None]
    sz = sizes(lines)
    assert len(sz) == len(idx), (len(sz), len(idx))
    n = len(idx)
    INF = 10 ** 9
    best = [[INF, INF] for _ in range(n + 1)]
    back = [[None, None] for _ in range(n + 1)]
    best[0][0] = 0
    for p in range(n):
        i = ins[idx[p]]
        four = sz[p] % 8 == 4
        for par in range(2):
            c0 = best[p][par]
            if c0 >= INF:
                continue
            opts = []
            if sz[p] == 4:
                opts.append(("keep", par ^ 1, 0))
                if _PROMOTE.match(i.mn) and "_e64" not in i.text:
                    opts.append(("wide", par, par * 10 + 1))
                if i.mn == "s_nop" and i.states >= 2:
                    opts.append(("split", par, 1))
                if not i.mn.startswith(("s_endpgm", "s_branch")):
                    opts.append(("nop", par, 10 * nop_cost))
                else:
                    opts.append(("nop", par, 0))
            else:
                opts.append(("keep", par ^ (1 if four else 0), par * 10))
            for name, np_, c in opts:
                if c0 + c < best[p + 1][np_]:
                    best[p + 1][np_] = c0 + c
                    back[p + 1][np_] = (par, name)
    par = 0 if best[n][0] <= best[n][1] else 1
    total = best[n][par]
    choice = [None] * n
    for p in range(n, 0, -1):
        par, choice[p - 1] = back[p][par]
    out = list(lines)
    cnt = {}
    for p in range(n):
        k, ch = idx[p], choice[p]
        cnt[ch] = cnt.get(ch, 0) + 1
        if ch == "wide":
            t = out[k].strip().split(None, 1)
            out[k] = f"    {t[0].replace('_e32','')}_e64 {t[1]}"
        elif ch == "split":
            out[k] = f"    s_nop {ins[k].states-2}\n    s_nop 0"
        elif ch == "nop":
            out[k] = out[k] + "\n    s_nop 0"
    return "\n".join(out).split("\n"), cnt, total / 10
```

```python
import sys, json
from asmlib import *

KN = "gated_mix__ssm_conv_s4d__linear_kernel_hedgehog__prompt_kernel"
OPT = dict(stamps=0, dump=0, roles="RAB")
for a_ in sys.argv[1:]:
    k_, v_ = a_.split("=")
    OPT[k_] = int(v_) if v_.lstrip("-").isdigit() else v_

C_KW, C_QW, C_WO, C_UT, C_AF, C_KV, C_O = [256 * n for n in (0, 16, 32, 40, 80, 112, 176)]
WS_EPOCH = 0x20000
WS_WKV = 0xD00000
WS_WQ = 0xF00000
WS_WO = 0x100000
WS_KVP = 0x200000
WS_UT = 0x300000
WS_AT = 0x600000
WS_O = 0x900000
WS_STAMP = 0xC00000
WS_DUMP = 0x1000000
WS_SIZE = 0x4000000 if OPT["dump"] else 0x1000000

ID_PF, ID_A, ID_B, ID_END = 80, 88, 248, 504
SPIN = 1 << 17
LOG2E = 0x3FB8AA3B
INV2PI = 0x3E22F983

P_U, P_LOGA, P_AIM, P_CRE, P_CIM, P_LOGDT, P_DSK = 4, 6, 8, 10, 12, 14, 16
P_WQKV, P_WPHI, P_WO, P_GATE, P_OUT, P_DBG, P_WS = 20, 22, 24, 26, 28, 30, 32
R_X, R_W, R_WS, R_DBG, R_M1, R_M2 = 36, 40, 44, 48, 52, 56
SW = 3
TAG = 34
ST0 = 76

A = Asm()
stampnames = {}
_lab = [0]


def srd(r, p, size):
    A(f"s_mov_b32 s{r}, s{p}")
    A(f"s_mov_b32 s{r+1}, s{p+1}")
    A(f"s_mov_b32 s{r+2}, {size}")
    A(f"s_mov_b32 s{r+3}, 0x20000")


def load_epoch():
    A(f"s_load_dwordx2 {S(TAG,2)}, {S(P_WS,2)}, {WS_EPOCH}")


def make_tag():
    A(f"s_add_u32 s{TAG}, s{TAG}, 0x7f4a7c15")
    A(f"s_addc_u32 s{TAG+1}, s{TAG+1}, 0x9e3779b9")


def cnt_read(r, soff):
    A(f"s_mov_b64 {S(r,2)}, 0")
    A(f"s_atomic_add_x2 {S(r,2)}, {S(P_WS,2)}, {soff if isinstance(soff, str) else 's%d' % soff} glc")


def cnt_claim(q, soff):
    A(f"""
s_sub_u32 s{q}, s{q+2}, s{TAG}
s_subb_u32 s{q+1}, s{q+3}, s{TAG+1}
s_lshr_b32 s{q}, s{q}, 8
s_or_b32 s{q}, s{q}, s{q+1}
s_cselect_b64 {S(q,2)}, {S(TAG,2)}, {S(q+2,2)}
s_atomic_cmpswap_x2 {S(q,4)}, {S(P_WS,2)}, s{soff} glc
""")


def cnt_add(one, soff):
    A(f"s_atomic_add_x2 {S(one,2)}, {S(P_WS,2)}, s{soff}")


def cnt_test(r, n):
    A(f"""
s_sub_u32 s{r}, s{r}, s{TAG}
s_subb_u32 s{r+1}, s{r+1}, s{TAG+1}
s_xor_b32 s{r}, s{r}, {n}
s_or_b32 s{r}, s{r}, s{r+1}
""")


def cnt_wait(r, soff, n, scnt, probed=True):
    _lab[0] += 1
    k = _lab[0]
    if probed:
        cnt_test(r, n)
        A(f"s_cbranch_scc0 L_got{k}")
    A(f"s_mov_b32 s{scnt}, 0")
    A(f"L_spin{k}:")
    cnt_read(r, soff)
    A(f"""
s_add_u32 s{scnt}, s{scnt}, 1
s_cmp_ge_u32 s{scnt}, {SPIN}
s_waitcnt lgkmcnt(0)
s_cbranch_scc1 L_got{k}
""")
    cnt_test(r, n)
    A(f"s_cbranch_scc1 L_spin{k}")
    A(f"L_got{k}:")


def only_wave(w, f):
    _lab[0] += 1
    k = _lab[0]
    A(f"s_cmp_lg_u32 s{SW}, {w}")
    A(f"s_cbranch_scc1 L_ow{k}")
    f()
    A(f"L_ow{k}:")


def stamp(role, name):
    if not OPT["stamps"]:
        return
    if OPT.get("only") and name not in ("end",) and name not in OPT["only"].split("+"):
        return
    l = stampnames.setdefault(role, [])
    assert len(l) < 12
    A(f"{'s_memtime' if OPT.get('cyc') else 's_memrealtime'} {S(ST0 + 2*len(l), 2)}")
    l.append(name)


def finish(role):
    if OPT["stamps"]:
        stamp(role, "end")
        A("s_waitcnt lgkmcnt(0)")
        A("s_mov_b64 exec, -1")
        A("v_mov_b32 v1, 0")
        for i in range(len(stampnames[role])):
            A(f"v_writelane_b32 v1, s{ST0+2*i}, {i}")
        A("v_and_b32 v2, 63, v0")
        A("v_lshlrev_b32 v2, 2, v2")
        A("s_lshl_b32 s60, s2, 2")
        A(f"s_add_u32 s60, s60, s{SW}")
        A("s_lshl_b32 s60, s60, 6")
        A(f"s_add_u32 s60, s60, {WS_STAMP}")
        A("s_mov_b64 exec, 0xffff")
        A(f"buffer_store_dword v1, v2, {S(R_WS,4)}, s60 offen")
    A("s_endpgm")
    A.vm, A.lg = [], []


def set_exec(mask):
    if mask == -1 or mask < (1 << 31):
        A(f"s_mov_b64 exec, {mask}")
    else:
        A(f"s_mov_b32 exec_lo, {mask & 0xffffffff:#x}")
        A(f"s_mov_b32 exec_hi, {mask >> 32:#x}")


def dump(regs, slot, vtmp):
    if not OPT["dump"]:
        return
    A(f"v_lshlrev_b32 v{vtmp}, 2, v0")
    A(f"s_sub_u32 s74, s2, {ID_B}")
    A(f"s_mul_i32 s74, s74, {32*1024}")
    A(f"s_add_u32 s74, s74, {WS_DUMP + slot*0x800000}")
    assert len(regs) <= 32
    for r in regs:
        A.v(f"buffer_store_dword v{r}, v{vtmp}, {S(R_WS,4)}, s74 offen", "dump")
        A("s_add_u32 s74, s74, 1024")
    A.vwait_all()


A(f"""
.amdgcn_target "amdgcn-amd-amdhsa--gfx950"
.text
.globl {KN}
.p2align 12
.type {KN},@function
{KN}:
s_load_dwordx16 s[4:19], s[0:1], 0
s_load_dwordx8 s[20:27], s[0:1], 64
s_load_dwordx4 s[28:31], s[0:1], 96
s_load_dwordx2 s[32:33], s[0:1], 112
""")
if OPT["stamps"]:
    A(f"{'s_memtime' if OPT.get('cyc') else 's_memrealtime'} {S(ST0,2)}")
    for r_ in ("B", "A", "R"):
        stampnames[r_] = ["start"]
A(f"""
v_lshrrev_b32 v1, 6, v0
s_cmp_ge_u32 s2, {ID_B}
v_readfirstlane_b32 s{SW}, v1
s_cbranch_scc1 L_B
s_setprio {OPT.get('prioR', 3)}
s_cmp_ge_u32 s2, {ID_A}
s_cbranch_scc1 L_A
s_cmp_lt_u32 s2, {ID_PF}
s_cbranch_scc1 L_R
""")
A.c("---- code prefetch into L2 (one workgroup per die)")
A(f"""
s_getpc_b64 s[60:61]
L_pc:
v_lshlrev_b32 v2, 7, v0
v_min_u32 v2, L_codeend-L_pc-4, v2
global_load_dword v3, v2, s[60:61]
L_exit:
s_endpgm
""")

sST, sHP, sB, sCT = 60, 61, 62, 63
sT0, sT1, sT2, sT3 = 64, 65, 66, 67
sEV, sLO = 68, 70
sCNT, sWOFF = 72, 73
sL2E = 48
sJ, sOWN, sXL = 50, 51, 68
XB, ACC, WF, NWF = 96, 56, 16, 7
vXA, vXR = 8, 10
ONE, CQ0, CQ1, CQ2 = 6, 8, 12, 16
vGA, vKT, vOT, vOA, ID, vGW = 1, 3, 5, 6, 44, 48
vPA, vPA1, vPW, vVW, vKA, vL16, vL8 = 49, 50, 51, 52, 53, 54, 55
LDS_X = 40960
LDS_PV, LDS_WP, LDS_Z, LDS_GATE = 0, 77824, 79424, 80384
LDS_QA, LDS_QB = 40960, 16384
LDS_AT, LDS_KVT, LDS_RED = 0, 10240, 13824


def Xr(c, sg, j):
    return XB + 32 * c + 8 * j + 4 * sg


def L(text):
    return [(lambda l=l: A(l)) for l in (x.strip() for x in text.strip().split("\n")) if l]


def run(lst):
    while lst:
        lst.pop(0)()


class Stream:
    def __init__(self, budget=3):
        self.ev, self.now, self.q, self.budget = {}, {}, [], budget

    def at(self, k, fs):
        self.ev.setdefault(k, []).extend(fs if isinstance(fs, list) else [fs])

    def exact(self, k, f):
        self.now.setdefault(k, []).append(f)

    def run(self, mm, reserve=lambda k: k & 1):
        for k, m in enumerate(mm):
            m()
            j = max(i for i in range(len(A.lines)) if "v_mfma" in A.lines[i] and i >= len(A.lines) - 12)
            self.q += self.ev.pop(k, [])
            while self.q and len(A.lines) - 1 - j < self.budget - reserve(k):
                self.q.pop(0)()
            if k in self.now:
                run(self.q)
                run(self.now.pop(k))
        run(self.q)
        assert not self.ev and not self.now


def flat(items):
    o = []
    for pre, ld in items:
        o += L(pre) + [ld]
    return o


def dma_addr(v, i, div, fields, extra, t0, vl):
    t1, t2 = t0 + 1, t0 + 2
    magic = {10: 6554, 5: 13108}[div]
    for q in range(1280):
        assert (q * magic) >> 16 == q // div
    o = []
    if i:
        o.append(f"v_add_u32 v{t0}, {64*i}, v{vl}")
    q_ = t0 if i else vl
    o.append(f"v_mul_u32_u24 v{t1}, {magic}, v{q_}")
    o.append(f"v_lshrrev_b32 v{t1}, 16, v{t1}")
    o.append(f"v_mad_i32_i24 v{t0}, v{t1}, -{div}, v{q_}")
    for n, (sb, w, db) in enumerate(fields):
        if n == 0:
            assert db == 0
            o.append(f"v_bfe_u32 v{v}, v{t1}, {sb}, {w}")
        else:
            o.append(f"v_bfe_u32 v{t2}, v{t1}, {sb}, {w}")
            o.append(f"v_lshl_or_b32 v{v}, v{t2}, {db}, v{v}")
    o.append(f"v_mul_u32_u24 v{v}, 240, v{v}")
    if extra:
        o.append(f"v_add_u32 v{t2}, 3, v{t0}")
        o.append(f"v_lshrrev_b32 v{t2}, 3, v{t2}")
        o.append(f"v_mul_u32_u24 v{t2}, {extra//16}, v{t2}")
        o.append(f"v_add3_u32 v{v}, v{v}, v{t0}, v{t2}")
        o.append(f"v_lshlrev_b32 v{v}, 4, v{v}")
    else:
        o.append(f"v_add_lshl_u32 v{v}, v{v}, v{t0}, 4")
    return "\n".join(o)


def softmax(P, E, OUT, tm, pk, after_plus=None, fill=[]):
    mx, mn, acc = tm, tm + 2, tm + 4
    A(f"v_max3_f32 v{mx}, v{P}, v{P+1}, v{P+2}")
    A(f"v_min3_f32 v{mn}, v{P}, v{P+1}, v{P+2}")
    for i in range(3, 19, 2):
        A(f"v_max3_f32 v{mx}, v{mx}, v{P+i}, v{P+i+1}")
        A(f"v_min3_f32 v{mn}, v{mn}, v{P+i}, v{P+i+1}")
    A(f"v_max_f32 v{mx}, v{mx}, v{P+19}")
    A(f"v_min_f32 v{mn}, v{mn}, v{P+19}")
    if pk:
        A(f"v_mul_f32 v{mx+1}, s{sL2E}, v{mx}")
        A(f"v_mul_f32 v{mn+1}, s{sL2E}, v{mn}")
    A(f"v_mul_f32 v{mx}, s{sL2E}, v{mx}")
    A(f"v_mul_f32 v{mn}, s{sL2E}, v{mn}")
    for half in range(2):
        D = E if half == 0 else [P + 2 * i for i in range(10)]
        for i in range(10):
            if pk:
                if half == 0:
                    A(f"v_pk_fma_f32 {V(D[i],2)}, {V(P+2*i,2)}, {S(sL2E,2)}, {V(mx,2)} neg_lo:[0,0,1] neg_hi:[0,0,1]")
                else:
                    A(f"v_pk_fma_f32 {V(D[i],2)}, {V(P+2*i,2)}, {S(sL2E,2)}, {V(mn,2)} neg_lo:[1,0,0] neg_hi:[1,0,0]")
                if i >= 2:
                    A(f"v_pk_add_f32 {V(acc,2)}, {V(D[0] if i==2 else acc,2)}, {V(D[i-1],2)}")
            else:
                for n in range(2):
                    if half == 0:
                        A(f"v_fma_f32 v{D[i]+n}, v{P+2*i+n}, s{sL2E}, -v{mx}")
                    else:
                        A(f"v_fma_f32 v{D[i]+n}, -v{P+2*i+n}, s{sL2E}, v{mn}")
                if i >= 2:
                    for n in range(2):
                        A(f"v_add_f32 v{acc+n}, v{(D[0] if i==2 else acc)+n}, v{D[i-1]+n}")
            for n in range(2):
                A(f"v_exp_f32 v{D[i]+n}, v{D[i]+n}")
                if fill:
                    fill.pop(0)()
        A(f"v_add_f32 v{acc}, v{acc}, v{acc+1}")
        A(f"v_add_f32 v{acc}, v{acc}, v{D[9]}")
        A(f"v_add_f32 v{acc}, v{acc}, v{D[9]+1}")
        if pk:
            A(f"v_rcp_f32 v{acc+1}, v{acc}")
        A(f"v_rcp_f32 v{acc}, v{acc}")
        for i in range(10):
            scale(D[i], acc, pk)
            if i:
                A(f"v_cvt_pk_bf16_f32 v{OUT+10*half+i-1}, v{D[i-1]}, v{D[i-1]+1}")
        A(f"v_cvt_pk_bf16_f32 v{OUT+10*half+9}, v{D[9]}, v{D[9]+1}")
        if half == 0 and after_plus:
            after_plus()
    run(fill)


def scale(d, r, pk):
    if pk:
        A(f"v_pk_mul_f32 {V(d,2)}, {V(d,2)}, {V(r,2)}")
    else:
        A(f"v_mul_f32 v{d}, v{r}, v{d}")
        A(f"v_mul_f32 v{d+1}, v{r}, v{d+1}")


PF0, PF1, PK, PHI = 32, 76, 56, 8
EE = [76 + 2 * i for i in range(8)] + [28, 30]


def phi_frags(pf, vaddr):
    for t in range(3):
        for h in range(2):
            r = pf + 4 * t + 2 * h
            if t == 2 and h == 1:
                A(f"v_mov_b32 v{r}, 0")
                A(f"v_mov_b32 v{r+1}, 0")
            else:
                A.l(f"ds_read_b64_tr_b16 {V(r,2)}, v{vaddr} offset:{320*t+160*h}", "pf")


def phi_mfma(ops):
    for t in range(3):
        A(f"v_mfma_f32_32x32x16_bf16 {V(PK,16)}, {V(PF0+4*t,4)}, {V(ops[t],4)}, {'0' if t==0 else V(PK,16)}")
    for t in range(3):
        A(f"v_mfma_f32_16x16x32_bf16 {V(PK+16,4)}, {V(PF1+4*t,4)}, {V(ops[t],4)}, {'0' if t==0 else V(PK+16,4)}")


class FragPipe:
    def __init__(self, vaddr, look=5):
        self.vaddr, self.look = vaddr, look

    def stream(self, frags, acc):
        reads = [(lambda i=i, o=o: A.l(f"ds_read_b128 {V(WF+4*(i%NWF),4)}, v{self.vaddr} offset:{o}", f"f{i}")) for i, (ks, t, o) in enumerate(frags)]
        out = []
        for i, (ks, t, o) in enumerate(frags):
            for sg in range(2):
                def m(i=i, ks=ks, t=t, sg=sg):
                    if i == 0 and sg == 0:
                        for _ in range(self.look):
                            reads.pop(0)()
                    if sg == 0:
                        A.lwait(f"f{i}")
                    d = V(acc + 8 * t + 4 * sg, 4)
                    A(f"v_mfma_f32_16x16x32_bf16 {d}, {V(WF+4*(i%NWF),4)}, {V(Xr(ks//4,sg,ks%4),4)}, {'0' if ks==0 else d}")
                    if reads and sg == 0:
                        reads.pop(0)()
                out.append(m)
        return out


def role_B():
    A.c("---- B prologue")
    sXO, sWO2, sQO, sKW, sKF, sOF = 69, 70, 71, 74, 20, 21
    A(f"""
L_B:
s_cmp_ge_u32 s2, {ID_END}
s_cbranch_scc1 L_exit
s_setprio {OPT.get('prioB', 2)}
s_sub_u32 s{sT0}, s2, {ID_B}
s_and_b32 s{sB}, s{sT0}, 1
s_bfe_u32 s{sT2}, s{sT0}, 0x20001
s_lshl_b32 s{sST}, s{sT2}, 2
s_lshr_b32 s{sT1}, s{sT0}, 6
s_add_u32 s{sST}, s{sST}, s{sT1}
s_bfe_u32 s{sCT}, s{sT0}, 0x30003
s_lshl_b32 s{sHP}, s{sB}, 3
s_add_u32 s{sHP}, s{sHP}, s{sCT}
s_mul_i32 s{sJ}, s{sT1}, {OPT.get('rot', 3)}
s_add_u32 s{sJ}, s{sJ}, s{sCT}
s_sub_u32 s{sT1}, s{sJ}, 10
s_min_u32 s{sJ}, s{sJ}, s{sT1}
v_bfe_u32 v2, v0, 3, 3
v_lshl_add_u32 v2, v1, 5, v2
v_mul_u32_u24 v{vXA}, 1280, v2
v_bfe_u32 v2, v0, 4, 2
v_and_b32 v3, 7, v0
v_xor_b32 v2, v2, v3
s_mul_i32 s{sT1}, s{sST}, 163840
v_lshl_add_u32 v{vXA}, v2, 4, v{vXA}
v_add_u32 v{vXA}, s{sT1}, v{vXA}
v_xor_b32 v{vXA+1}, 64, v{vXA}
v_add_u32 v{vXA+1}, {10240-1024}, v{vXA+1}
s_lshl_b32 s{sT3}, s{SW}, 10
s_lshl_b32 s{sXL}, s{SW}, 13
s_lshl_b32 s{sXO}, s{sJ}, 7
s_mul_i32 s{sWO2}, s{sJ}, 10240
s_add_u32 s{sWO2}, s{sWO2}, s{sT3}
s_mul_i32 s{sQO}, s{sJ}, 6144
s_add_u32 s{sQO}, s{sQO}, s{sT3}
s_mov_b32 s{sL2E}, {LOG2E:#x}
s_mov_b32 s{sL2E+1}, {LOG2E:#x}
""")
    t0, t1, t2, t3 = 56, 57, 58, 59
    a0, a1, a2, a3 = 56, 57, 58, 59
    m0_, m1_ = S(40, 2), S(42, 2)
    setup = L(f"""
v_and_b32 v{vL8}, 63, v0
v_lshlrev_b32 v{vL16}, 4, v{vL8}
v_lshlrev_b32 v{vL8}, 3, v{vL8}
v_and_b32 v{t0}, 15, v0
v_lshrrev_b32 v{t1}, 1, v{t0}
v_bfe_u32 v{t2}, v0, 4, 2
v_xor_b32 v{t1}, v{t1}, v{t2}
v_lshlrev_b32 v{t1}, 4, v{t1}
v_lshl_add_u32 v{vXR}, v{t0}, 7, v{t1}
v_add_u32 v{vXR}, s{sXL}, v{vXR}
v_xor_b32 v{vXR+1}, 64, v{vXR}
v_lshrrev_b32 v{t1}, 5, v0
v_lshl_add_u32 v{vGW}, v{t1}, 4, v{t0}
v_lshlrev_b32 v{vGW}, 2, v{vGW}
v_add_u32 v{vGW}, {LDS_GATE}, v{vGW}
v_bfe_u32 v{t0}, v0, 5, 1
v_and_b32 v{t1}, 1, v0
v_bfe_u32 v{t2}, v0, 1, 1
v_cmp_eq_u32 {m0_}, v{t1}, v{t0}
v_mul_u32_u24 v{vPA1}, 800, v{t0}
v_bfe_u32 v{t1}, v0, 2, 2
v_mad_u32_u24 v{vPA1}, v{t1}, 40, v{vPA1}
v_add_u32 v{vPA1}, {LDS_WP}, v{vPA1}
v_lshl_add_u32 v{vPA}, v{t2}, 3, v{vPA1}
v_bfe_u32 v{t2}, v0, 4, 1
v_lshl_add_u32 v{vPA}, v{t2}, 4, v{vPA}
v_mov_b32 v{t3}, {LDS_Z}
v_cndmask_b32 v{vPA}, v{t3}, v{vPA}, {m0_}
v_lshlrev_b32 v{vKA}, 1, v{t0}
v_lshl_add_u32 v{vKA}, v{t1}, 2, v{vKA}
v_mul_u32_u24 v{vKA}, 272, v{vKA}
v_and_b32 v{t1}, 3, v0
v_lshl_add_u32 v{t2}, v{t2}, 2, v{t1}
v_lshl_add_u32 v{vKA}, v{t2}, 3, v{vKA}
v_bfe_u32 v{t2}, v0, 4, 2
v_cmp_eq_u32 {m0_}, v{t1}, v{t2}
v_add_u32 v{vPA1}, 32, v{vPA1}
v_and_b32 v{t1}, 31, v0
v_lshrrev_b32 v{t2}, 6, v0
v_cndmask_b32 v{vPA1}, v{t3}, v{vPA1}, {m0_}
v_lshl_add_u32 v{t1}, v{t2}, 5, v{t1}
v_mul_u32_u24 v{t1}, 272, v{t1}
v_mul_u32_u24 v{t3}, 80, v{t0}
v_add_u32 v{vPW}, v{t1}, v{t3}
v_mad_u32_u24 v{vVW}, v{t0}, 48, v{t1}
v_mad_u32_u24 v{vKA}, v{t2}, 40, v{vKA}
v_and_b32 v{vGA}, 31, v0
v_add_u32 v{vGA+1}, 32, v{vGA}
v_min_u32 v{vGA+1}, 54, v{vGA+1}
v_bfe_u32 v{a3}, v0, 5, 1
v_lshlrev_b32 v{a0}, 3, v{a3}
v_lshl_add_u32 v{vOT}, v{vGA}, 4, v{a0}
v_lshlrev_b32 v{a0}, 10, v{a3}
v_lshl_add_u32 v{vGA}, v{vGA}, 4, v{a0}
v_lshl_add_u32 v{vGA+1}, v{vGA+1}, 4, v{a0}
v_and_b32 v{a0}, 15, v0
v_bfe_u32 v{a1}, v0, 4, 1
v_mad_i32_i24 v{a2}, v{a1}, -8, v{a0}
v_lshl_add_u32 v{a0}, v{a3}, 4, v{a0}
v_and_b32 v{vKT}, 1, v{a2}
v_lshlrev_b32 v{vKT}, 4, v{vKT}
v_mov_b32 v{vKT+1}, 0x3f80
v_lshlrev_b32 v{vKT}, v{vKT}, v{vKT+1}
v_lshrrev_b32 v{a2}, 1, v{a2}
v_cmp_eq_u32 {m0_}, 0, v{a2}
v_cmp_eq_u32 {m1_}, 1, v{a2}
s_lshr_b32 s73, s{SW}, 1
v_cndmask_b32 v{ID}, 0, v{vKT}, {m0_}
v_cndmask_b32 v{ID+1}, 0, v{vKT}, {m1_}
v_cmp_eq_u32 {m0_}, 2, v{a2}
v_cmp_eq_u32 {m1_}, 3, v{a2}
s_mul_i32 s73, s73, 1680
v_cndmask_b32 v{ID+2}, 0, v{vKT}, {m0_}
v_cndmask_b32 v{ID+3}, 0, v{vKT}, {m1_}
s_mul_i32 s75, s{SW}, 40
s_add_u32 s73, s73, s75
s_add_u32 s73, s73, {LDS_KVT}
v_cmp_le_u32 {m0_}, 22, v{a0}
v_cmp_le_u32 {m1_}, 12, v{a0}
v_mul_u32_u24 v{vKT}, 80, v{a0}
v_mov_b32 v{a2}, {8-22*80}
v_cndmask_b32 v{a2}, 0, v{a2}, {m0_}
v_lshl_add_u32 v{vKT}, v{a1}, 4, v{vKT}
v_add_u32 v{vKT+1}, 808, v{vKT}
v_add3_u32 v{vKT}, v{vKT}, v{a2}, s73
v_lshl_add_u32 v{a2}, v{a0}, 1, v{a1}
v_mul_u32_u24 v{a2}, 80, v{a2}
v_subrev_u32 v{a2}, {24*80-32}, v{a2}
v_cndmask_b32 v{vKT+1}, v{vKT+1}, v{a2}, {m1_}
v_add_u32 v{vKT+1}, s73, v{vKT+1}
v_bfe_u32 v{a0}, v0, 2, 1
v_cmp_eq_u32 {m0_}, v{a0}, v{a3}
v_bfe_u32 v{a1}, v0, 3, 2
v_and_b32 v{a2}, 3, v0
v_lshl_add_u32 v{a1}, v{a1}, 2, v{a2}
v_mad_u32_u24 v{a1}, v{a0}, 22, v{a1}
v_mul_u32_u24 v{a1}, 80, v{a1}
v_add_u32 v{vOA}, {LDS_KVT}, v{a1}
v_add_u32 v{vOA+1}, {LDS_KVT+1280}, v{a1}
v_mov_b32 v{a2}, {LDS_Z}
v_cndmask_b32 v{vOA}, v{a2}, v{vOA}, {m0_}
v_cndmask_b32 v{vOA+1}, v{a2}, v{vOA+1}, {m0_}
v_lshlrev_b32 v{t1}, 2, v0
v_min_u32 v{t1}, 700, v{t1}
v_add_u32 v{t1}, {LDS_Z}, v{t1}
v_mov_b32 v{t2}, 0
""")
    setup.append(lambda: A.l(f"ds_write_b32 v{t1}, v{t2}", "z"))
    for _ in range(OPT.get("npre", 56)):
        setup.pop(0)()
    A("s_waitcnt lgkmcnt(0)")
    load_epoch()
    srd(R_M1, P_WPHI, 25600)
    A(f"""
s_lshl_b32 s{sKW}, s{sHP}, 8
s_lshl_b32 s{sKF}, s{sHP}, 2
s_add_u32 s{sKF}, s{sKF}, s{SW}
s_lshl_b32 s{sKF}, s{sKF}, 8
s_add_u32 s{sKF}, s{sKF}, {C_KV}
s_lshl_b32 s{sOF}, s{sST}, 1
s_lshr_b32 s{sT1}, s{SW}, 1
s_add_u32 s{sOF}, s{sOF}, s{sT1}
s_lshl_b32 s{sOF}, s{sOF}, 2
s_lshr_b32 s{sT1}, s{sHP}, 2
s_add_u32 s{sOF}, s{sOF}, s{sT1}
s_lshl_b32 s{sOF}, s{sOF}, 8
s_add_u32 s{sOF}, s{sOF}, {C_O}
s_mov_b64 {S(ONE,2)}, 1
""")
    cnt_read(CQ0 + 2, sKF)
    cnt_read(CQ1 + 2, sOF)
    stamp("B", "karg")

    def wrap(sreg, step, size):
        return f"s_add_u32 s{sreg}, s{sreg}, {step}\ns_sub_u32 s{sT2}, s{sreg}, {size}\ns_min_u32 s{sreg}, s{sreg}, s{sT2}\n"

    def xslot(u):
        return 2048 * (u & 3) + (0 if 4 <= u < 8 else LDS_X)

    def issue_x(u):
        if u >= 20:
            return []
        pre = f"s_add_u32 m0, s{sXL}, {xslot(u)}\n"
        if u & 1:
            pre += f"s_add_u32 s{sT0}, s{sXO}, 20480\n" + wrap(sXO, 128, 1280)
        so = sT0 if u & 1 else sXO
        return [(pre if i == 0 else "", lambda i=i: A.v(f"buffer_load_dwordx4 v{vXA+i}, {S(R_X,4)}, s{so} offen offset:{1024*i} lds", f"x{u}")) for i in range(2)]

    def read_x(u):
        A.vwait(f"x{u}")
        for jj in range(2):
            A.l(f"ds_read_b128 {V(Xr(u//4,u&1,(u&2)+jj),4)}, v{vXR+jj} offset:{xslot(u)}", f"xr{u}")

    wround, qround = [0], [0]

    def issue_w(upto):
        o = []
        for i in range(wround[0], min(upto, 25)):
            pre = f"s_add_u32 m0, s{sT3}, {4096*(i%10)}\n" + (wrap(sWO2, 4096, 102400) if i else "")
            o.append((pre, lambda i=i: A.v(f"buffer_load_dwordx4 v{vL16}, {S(R_W,4)}, s{sWO2} offen sc1 lds", f"w{i}")))
        wround[0] = max(wround[0], min(upto, 25))
        return o

    def issue_q(upto):
        o = []
        for i in range(qround[0], upto):
            pre = f"s_add_u32 m0, s{sT3}, {LDS_QA+4096*i if i < 9 else LDS_QB+4096*(i-9)}\n" + (wrap(sQO, 4096, 61440) if i else "")
            o.append((pre, lambda i=i: A.v(f"buffer_load_dwordx4 v{vL16}, {S(R_M1,4)}, s{sQO} offen sc1 lds", f"q{i}")))
        qround[0] = upto
        return o
    NEED = lambda h: (10 * h + 9) // 4 + 1
    FREED = lambda h: (10 * h + 6) // 4 + 1

    for _ in range(OPT.get("nmid", 20)):
        setup.pop(0)()
    A(f"""
s_mul_i32 s{sT1}, s{SW}, 400
s_add_u32 m0, s{sT1}, {LDS_WP}
s_mul_i32 s{sT2}, s{sHP}, 1600
s_add_u32 s{sT1}, s{sT1}, s{sT2}
s_mov_b64 exec, 0x1ffffff
""")
    A.v(f"buffer_load_dwordx4 v{vL16}, {S(R_M1,4)}, s{sT1} offen lds", "wp")
    A("s_mov_b64 exec, -1")
    srd(R_X, P_U, 2621440)
    NX0 = OPT.get("nx0", 0)
    for u in range(NX0):
        run(flat(issue_x(u)))
    A("s_waitcnt lgkmcnt(0)")
    make_tag()
    cnt_claim(CQ0, sKF)
    cnt_claim(CQ1, sOF)
    if OPT.get("hold", 1):
        A.vwait("wp")
    stamp("B", "iss0")
    run(setup)
    srd(R_WS, P_WS, WS_SIZE)
    srd(R_M2, P_OUT, 2621440)
    A(f"""
s_mul_i32 s{sT1}, s{sHP}, 102400
s_add_u32 s{sT1}, s{sT1}, {WS_WKV}
s_add_u32 s{R_W}, s{P_WS}, s{sT1}
s_addc_u32 s{R_W+1}, s{P_WS+1}, 0
s_mov_b32 s{R_W+2}, 102400
s_mov_b32 s{R_W+3}, 0x20000
s_mul_i32 s{sT1}, s{sHP}, 61440
s_add_u32 s{sT1}, s{sT1}, {WS_WQ}
s_add_u32 s{R_M1}, s{P_WS}, s{sT1}
s_addc_u32 s{R_M1+1}, s{P_WS+1}, 0
s_mov_b32 s{R_M1+2}, 61440
""")
    for u in range(NX0, 8):
        run(flat(issue_x(u)))
    A.lwait_all()
    stamp("B", "iss1")

    def refill(u):
        return u + 8 if u < 4 else (u + 4 if u >= 8 else 99)

    U2, U3 = OPT.get("u2", 8), OPT.get("u3", 11)
    assert U2 >= 8
    A.c("---- x tile -> registers")
    for u in range(U3 + 1):
        read_x(u)
        ld = []
        if u:
            A.lwait(f"xr{u-1}")
            ld += issue_x(refill(u - 1))
        if u == U2:
            run(flat(ld))
            ld = []
            only_wave(0, lambda: cnt_wait(CQ0, sKW, 20, sCNT, probed=False))
            A("s_barrier")
            stamp("B", "kwseen")
        if u >= U2:
            ld = issue_w(min(10, wround[0] + OPT.get("wper", 3))) + ld
        run(flat(ld))

    def ready(h):
        A.vwait(f"w{NEED(h)-1}")
        A("s_barrier")
        stamp("B", f"w{h}")

    A.c("---- GEMM1a: k and v for two heads, 20 k-steps in one stream")
    run(flat(issue_w(NEED(1))))
    ready(0)
    pipe = FragPipe(vL16)
    mm = pipe.stream([(n // 5, n % 5, 1024 * (n % 40)) for n in range(100)], ACC)
    st_ = Stream()
    st_.at(0, flat(issue_w(10)))
    u = U3 + 1
    for h in range(10):
        k0 = 20 * h
        for kk in (0, 5, 14):
            if u < 20:
                st_.at(k0 + kk, [lambda u=u: read_x(u), lambda u=u: A.lwait(f"xr{u-1}")] + flat(issue_x(refill(u - 1))))
                u += 1
        if h < 9:
            st_.exact(k0 + 19 - 2 * pipe.look, lambda h=h: ready(h + 1))
            mm[k0 + 20] = (lambda f=mm[k0 + 20], h=h: (need_x(h + 1), f()))
        if h:
            st_.at(k0 + 20 - 2 * pipe.look, flat(issue_w(10 + FREED(h - 1))))

    def need_x(h):
        assert f"x{2*h+1}" not in A.vm
        A.lwait(f"xr{2*h}", f"xr{2*h+1}")

    def probe_q():
        A(f"s_add_u32 s{sKW}, s{sKW}, {C_QW}")
        A(f"s_lshl_b32 s{sT1}, s{sCT}, 8")
        A(f"s_add_u32 s{sT1}, s{sT1}, {C_WO}")
        only_wave(0, lambda: (cnt_read(CQ0, sKW), cnt_read(CQ0 + 2, sT1)))
    st_.at(OPT.get("qp", 150), probe_q)
    need_x(0)
    st_.run(mm)
    assert wround[0] == 25
    stamp("B", "g1a")
    if OPT.get("fine"):
        finish("B")
        return

    A.c("---- phi_k, kv partial")
    KP, VP = 8, 20
    phi_frags(PF0, vPA)
    for t in range(5):
        for sg in range(2):
            for hh in range(2):
                a_ = ACC + 8 * t + 4 * sg + 2 * hh
                A(f"v_cvt_pk_bf16_f32 v{(KP if sg==0 else VP)+2*t+hh}, v{a_}, v{a_+1}")
    phi_frags(PF1, vPA1)
    A(f"""
v_mov_b32 v{KP+10}, 0
v_mov_b32 v{KP+11}, 0
""")
    for i in range(10):
        A(f"v_permlane16_swap_b32 v{KP+i}, v{VP+i}")
    A(f"""
v_mov_b32 v{VP+10}, 0x3f80
v_mov_b32 v{VP+11}, 0
""")
    A.lwait_all()
    only_wave(0, lambda: (cnt_wait(CQ0, sKW, 20, sCNT), cnt_wait(CQ0 + 2, sT1, 20, sCNT)))
    A("s_barrier")
    phi_mfma([KP, KP + 4, KP + 8])
    for i in range(3):
        A.l(f"ds_write_b128 v{vVW}, {V(VP+4*i,4)} offset:{LDS_PV+160+16*i}", "pv")
    stamp("B", "pmf")

    def wr_plus():
        for i in range(2):
            A.l(f"ds_write_b128 v{vPW}, {V(PHI+4*i,4)} offset:{LDS_PV+16*i}", "pv")
    softmax(PK, EE, PHI, 32, OPT.get('pk1', 0), wr_plus, flat(issue_q(9)))
    for i in range(2, 5):
        A.l(f"ds_write_b128 v{vPW}, {V(PHI+4*i,4)} offset:{LDS_PV+16*i}", "pv")
    stamp("B", "smx")
    vKB, vQR = vVW, vPW
    A(f"""
s_lshr_b32 s{sT0}, s{SW}, 1
s_mul_i32 s{sT0}, s{sT0}, 48
s_mul_i32 s{sT1}, s{SW}, 40
s_sub_u32 s{sT0}, s{sT0}, s{sT1}
s_add_u32 s{sT0}, s{sT0}, 160
v_add_u32 v{vKB}, s{sT0}, v{vKA}
""")
    A.lwait_all()
    A("s_barrier")
    stamp("B", "phik")
    KD = 28
    FR = [56, 64, 72, 80]

    def kvreads(ks):
        for h in range(2):
            A.l(f"ds_read_b64_tr_b16 {V(FR[ks%4]+2*h,2)}, v{vKA} offset:{LDS_PV+ks*4352+h*272}", f"kv{ks}")
        for h in range(2):
            A.l(f"ds_read_b64_tr_b16 {V(FR[ks%4]+4+2*h,2)}, v{vKB} offset:{LDS_PV+ks*4352+h*272}", f"kv{ks}")
    for ks in range(3):
        kvreads(ks)
    sWO = 75
    fl = L(f"""
v_and_b32 v14, 31, v0
v_bfe_u32 v15, v0, 5, 1
v_mad_u32_u24 v15, v15, 22, v14
v_lshlrev_b32 v15, 4, v15
s_lshl_b32 s{sT0}, s{sHP}, 2
s_add_u32 s{sT0}, s{sT0}, s{SW}
s_lshl_b32 s{sT1}, s{sT0}, 4
s_add_u32 s{sT1}, s{sT1}, s{sST}
s_lshl_b32 s{sT1}, s{sT1}, 10
s_add_u32 s{sT1}, s{sT1}, {WS_KVP}
v_add_u32 v{vQR}, {LDS_QB}, v{vL16}
""")
    for ks in range(8):
        A.lwait(f"kv{ks}")
        A(f"v_mfma_f32_32x32x16_bf16 {V(KD,16)}, {V(FR[ks%4],4)}, {V(FR[ks%4]+4,4)}, {'0' if ks==0 else V(KD,16)}")
        if ks + 3 < 8:
            kvreads(ks + 3)
        else:
            for _ in range(5):
                if fl:
                    fl.pop(0)()
    run(fl)
    A.vwait("q8")
    A("s_barrier")
    for i in range(6):
        A(f"v_cvt_pk_bf16_f32 v{8+i}, v{KD+2*i}, v{KD+2*i+1}")
    set_exec(0x003FFFFF003FFFFF)
    A.v(f"buffer_store_dwordx4 {V(8,4)}, v15, {S(R_WS,4)}, s{sT1} offen sc1", "kvst")
    A("s_mov_b32 exec_hi, 0")
    A.v(f"buffer_store_dwordx2 {V(12,2)}, v{vL8}, {S(R_WS,4)}, s{sT1} offen offset:704 sc1", "kvst")
    A("s_mov_b64 exec, -1")
    stamp("B", "kvst")

    A.c("---- GEMM1b (q); wo fragments stream into the x registers as they die")
    QA = 56
    WOR = [XB + 4 * i for i in range(24)] + [92]
    G = Xr(3, 0, 0)
    pipe = FragPipe(vQR)
    mm = pipe.stream([(n // 3, n % 3, LDS_QA - LDS_QB + 1024 * n if n < 36 else 1024 * (n - 36)) for n in range(60)], QA)

    def issue_wo(f0, f1):
        o = []
        for f in range(f0, f1):
            ii, jn = divmod(f, 5)
            pre = ""
            if jn == 0 and ii < 4:
                pre = f"s_add_u32 s{sT1}, s{sST}, {ii}\ns_and_b32 s{sT1}, s{sT1}, 3\ns_mul_i32 s{sT1}, s{sT1}, 5120\ns_add_u32 s{sT1}, s{sT1}, s{sWO}\n"
            elif jn == 0:
                pre = f"s_add_u32 s{sT1}, s{sWO}, 20480\n"
            elif jn == 4:
                pre = f"s_add_u32 s{sT1}, s{sT1}, 4096\n"
            o.append((pre, lambda f=f, jn=jn: A.v(f"buffer_load_dwordx4 {V(WOR[f],4)}, v{vL16}, {S(R_WS,4)}, s{sT1} offen offset:{1024*(jn%4)} sc1", "wo")))
        return o

    def kv_flag():
        A.vwait("kvst")
        cnt_add(ONE, sKF)

    def q2_ready():
        A.vwait("q14")
        A("s_barrier")

    st_ = Stream()
    st_.at(0, flat(issue_q(15)) + L(f"""
s_mul_i32 s{sWO}, s{sCT}, 102400
s_mul_i32 s{sT1}, s{SW}, 25600
s_add_u32 s{sWO}, s{sWO}, s{sT1}
s_add_u32 s{sWO}, s{sWO}, {WS_WO}
"""))
    st_.exact(OPT.get("kvf", 30), kv_flag)
    for f_, g_ in enumerate(issue_wo(0, 25)):
        st_.at(max(8 + 3 * f_, OPT.get("wo0", 8) + OPT.get("wostep", 3) * f_), flat([g_]))
    st_.exact(72 - 2 * pipe.look - 1, q2_ready)
    st_.at(OPT.get("kvp", 84), lambda: cnt_read(CQ0, sKF))
    st_.run(mm)
    stamp("B", "g1b")

    A.c("---- gather kv partials, phi_q")
    phi_frags(PF0, vPA)
    A(f"""
s_lshl_b32 s{sT0}, s{sT0}, 14
s_add_u32 s{sT0}, s{sT0}, {WS_KVP}
""")
    A.lwait_all()
    cnt_wait(CQ0, sKF, 16, sCNT)
    stamp("B", "kvseen")
    gl = []
    for pp in range(8):
        for g2 in range(2):
            def f(pp=pp, g2=g2):
                if g2 == 0 and pp % 2 == 0:
                    A(f"s_add_u32 s{sT1}, s{sST}, {pp//2}")
                    A(f"s_and_b32 s{sT1}, s{sT1}, 3")
                    A(f"s_lshl_b32 s{sT1}, s{sT1}, 12")
                    A(f"s_add_u32 s{sT1}, s{sT1}, s{sT0}")
                A.v(f"buffer_load_dwordx4 {V(G+8*pp+4*g2,4)}, v{vGA+g2}, {S(R_WS,4)}, s{sT1} offen offset:{2048*(pp&1)} sc1", f"g{pp}")
            gl.append(f)
    for _ in range(8):
        gl.pop(0)()
    Q0, Q1 = 8, 16
    for t in range(3):
        for sg in range(2):
            for hh in range(2):
                a_ = QA + 8 * t + 4 * sg + 2 * hh
                A(f"v_cvt_pk_bf16_f32 v{(Q0 if sg==0 else Q1)+2*t+hh}, v{a_}, v{a_+1}")
    A(f"""
s_mov_b32 exec_lo, 0
v_mov_b32 v{QA+16}, v{QA+20}
s_mov_b32 exec_lo, 0xffff0000
s_mov_b32 exec_hi, 0xffff0000
""")
    A.l(f"ds_write_b32 v{vGW}, v{QA+16}", "gw")
    A("s_mov_b64 exec, -1")
    phi_frags(PF1, vPA1)
    A(f"v_mov_b32 v{Q0+6}, 0")
    A(f"v_mov_b32 v{Q0+7}, 0")
    for i in range(6):
        A(f"v_permlane16_swap_b32 v{Q0+i}, v{Q1+i}")
    A.lwait("pf")
    phi_mfma([Q0, Q1, Q0 + 4])
    run(gl)
    softmax(PK, EE, PHI, 32, OPT.get('pk3', 0))
    stamp("B", "phiq")
    RD = 32
    for pp in range(8):
        A.vwait(f"g{pp}")
        for g2 in range(2):
            d = V(RD + 4 * g2, 4)
            A(f"v_mfma_f32_16x16x32_bf16 {d}, {V(ID,4)}, {V(G+8*pp+4*g2,4)}, {'0' if pp==0 else d}")
    A(f"""
s_lshl_b32 s{sT1}, s{sST}, 2
s_add_u32 s{sT1}, s{sT1}, s{SW}
s_lshl_b32 s{sT1}, s{sT1}, 4
s_add_u32 s{sT1}, s{sT1}, s{sHP}
s_mul_i32 s{sT1}, s{sT1}, 2560
s_add_u32 s{sT1}, s{sT1}, {WS_O}
""")
    for i in range(4):
        A(f"v_cvt_pk_bf16_f32 v{40+i}, v{RD+2*i}, v{RD+2*i+1}")
    A.l(f"ds_write_b64 v{vKT}, {V(40,2)}", "kt")
    A("s_mov_b32 exec_hi, 0x007f007f")
    A.l(f"ds_write_b64 v{vKT+1}, {V(42,2)}", "kt")
    A("s_mov_b64 exec, -1")
    A.lwait_all()
    A("s_barrier")
    stamp("B", "kvt")
    OF_, OD = G, 56
    for T in (1, 0):
        for t in range(5):
            A.l(f"ds_read_b128 {V(OF_+8*t+4*T,4)}, v{vOA+T} offset:{16*t}", f"o{t}_{T}")
    for T in (1, 0):
        for t in range(5):
            A.lwait(f"o{t}_{T}")
            d = V(OD + 16 * T, 16)
            A(f"v_mfma_f32_32x32x16_bf16 {d}, {V(OF_+8*t+4*T,4)}, {V(PHI+4*t,4)}, {'0' if t==0 else d}")
    OP = 28
    A(f"""
v_add_f32 v40, 0x358637bd, v{OD+20}
""")
    if OPT.get("pk3", 0):
        A("v_rcp_f32 v41, v40")
    A("v_rcp_f32 v40, v40")
    for i in (8, 9, 0, 1, 2, 3, 4, 5, 6, 7):
        scale(OD + 2 * i, 40, OPT.get("pk3", 0))
        A(f"v_cvt_pk_bf16_f32 v{OP+i}, v{OD+2*i}, v{OD+2*i+1}")
        if i == 9:
            A.v(f"buffer_store_dwordx2 {V(OP+8,2)}, v{vOT}, {S(R_WS,4)}, s{sT1} offen offset:2048 sc1", "ost")
        if i == 3:
            A.v(f"buffer_store_dwordx4 {V(OP,4)}, v{vL16}, {S(R_WS,4)}, s{sT1} offen sc1", "ost")
        if i == 7:
            A.v(f"buffer_store_dwordx4 {V(OP+4,4)}, v{vL16}, {S(R_WS,4)}, s{sT1} offen offset:1024 sc1", "ost")
    stamp("B", "ost")

    A.c("---- final projection: the wave sums its K quarter for four row tiles and owns tile (wave + ct) & 3")
    vOM, vOR, vW16 = 2, 3, 7
    vOMS = [72, 73, 74, 75]
    vRW, vRR, vAR, vAR2, vOUT2, vOUT = 1, 4, 5, 6, 2, 3
    sOB = [64, 65, 66, 67]
    sAF, sAT, sOC = 74, 75, 20
    GT, OMG, GA, AC0, AC1, OX = 8, 12, 16, 36, 56, 76
    OFR = [G + 4 * i for i in range(16)] + [OX + 4 * i for i in range(4)]
    A(f"""
s_add_u32 s{sOWN}, s{SW}, s{sCT}
s_and_b32 s{sOWN}, s{sOWN}, 3
s_lshl_b32 s{sCNT}, s{sB}, 2
s_add_u32 s{sCNT}, s{sCNT}, s{sOWN}
s_lshl_b32 s{sCNT}, s{sCNT}, 6
s_add_u32 s{sCNT}, s{sCNT}, {LDS_GATE}
v_and_b32 v42, 0x30, v0
v_add_u32 v42, s{sCNT}, v42
""")
    A.l(f"ds_read_b128 {V(GT,4)}, v42", "gt")
    A(f"""
s_lshl_b32 s{sAF}, s{sCT}, 2
s_add_u32 s{sAF}, s{sAF}, s{SW}
s_mul_i32 s{sAT}, s{sAF}, {20*4096}
s_lshl_b32 s{sAF}, s{sAF}, 8
s_add_u32 s{sAF}, s{sAF}, {C_AF}
s_lshl_b32 s{sWOFF}, s{sST}, 1
s_add_u32 s{sWOFF}, s{sWOFF}, s{sB}
s_lshl_b32 s{sCNT}, s{sWOFF}, 7
s_add_u32 s{sAT}, s{sAT}, s{sCNT}
s_add_u32 s{sAT}, s{sAT}, {WS_AT}
s_lshl_b32 s{sOC}, s{sWOFF}, 2
s_add_u32 s{sOC}, s{sOC}, s{SW}
s_lshl_b32 s{sOC}, s{sOC}, 8
s_add_u32 s{sOC}, s{sOC}, {C_O}
""")
    A.lwait("gt")
    cnt_read(CQ0, sAF)
    A(f"""
v_mov_b32 v{vW16}, v{vL16}
v_and_b32 v40, 15, v0
v_bfe_u32 v43, v0, 4, 2
v_lshlrev_b32 v{vOM}, 9, v43
v_lshl_add_u32 v{vOM}, v40, 4, v{vOM}
v_mul_u32_u24 v{vOR}, 2560, v43
v_lshl_add_u32 v{vOR}, v40, 4, v{vOR}
v_bfe_u32 v49, v0, 3, 3
v_and_b32 v48, 7, v0
s_mul_i32 s{sCNT}, s{SW}, 20
""")
    for i in range(3):
        A(f"""
v_add_u32 v42, {8*i}, v49
v_add_u32 v43, s{sCNT}, v42
v_bfe_u32 v43, v43, 2, 3
v_xor_b32 v43, v43, v48
v_lshlrev_b32 v42, 12, v42
v_lshl_add_u32 v{50+i}, v43, 4, v42
""")
    for e in range(4):
        A(f"v_mul_f32 v{GT+e}, s{sL2E}, v{GT+e}")
    for e in range(4):
        A(f"v_exp_f32 v{GT+e}, -v{GT+e}")
    for e in range(4):
        A(f"v_add_f32 v{GT+e}, 1.0, v{GT+e}")
    for e in range(4):
        A(f"v_rcp_f32 v{GT+e}, v{GT+e}")
    for p in range(4):
        A(f"""
s_add_u32 s{sCNT}, s{sOWN}, {p+1}
s_bfe_u32 s{sJ}, s{sCNT}, 0x10001
s_mul_i32 s{sOB[p]}, s{sJ}, 40960
s_and_b32 s{sJ}, s{sCNT}, 1
s_lshl_b32 s{sJ}, s{sJ}, 8
s_add_u32 s{sOB[p]}, s{sOB[p]}, s{sJ}
""")
    A(f"""
s_mul_i32 s{sCNT}, s{sWOFF}, 81920
s_mul_i32 s{sJ}, s{SW}, 10240
s_add_u32 s{sCNT}, s{sCNT}, s{sJ}
s_add_u32 s{sCNT}, s{sCNT}, {WS_O}
v_add_u32 v{vOM}, s{sCNT}, v{vOM}
v_add_u32 v{vOR}, s{sCNT}, v{vOR}
""")
    for e in range(4):
        A(f"v_sub_f32 v{OMG+e}, 1.0, v{GT+e}")
    A.vwait("ost")
    cnt_add(ONE, sOF)
    stamp("B", "oflag")
    cnt_read(CQ0 + 2, sOC)
    for ii in range(4):
        A(f"""
s_add_u32 s{sCNT}, s{sST}, {ii}
s_and_b32 s{sCNT}, s{sCNT}, 3
s_mul_i32 s{sCNT}, s{sCNT}, 2560
v_add_u32 v{vOMS[ii]}, s{sCNT}, v{vOM}
""")
    A(f"""
v_bfe_u32 v41, v0, 5, 1
v_lshl_add_u32 v41, s{sOWN}, 1, v41
v_and_b32 v42, 7, v40
v_xor_b32 v42, v42, v41
v_lshlrev_b32 v42, 4, v42
v_bfe_u32 v43, v0, 4, 1
v_lshlrev_b32 v43, 3, v43
v_lshlrev_b32 v{vAR}, 9, v40
v_add3_u32 v{vAR}, v{vAR}, v42, v43
v_lshrrev_b32 v42, 2, v40
v_xor_b32 v42, v42, v41
v_lshlrev_b32 v42, 4, v42
v_lshlrev_b32 v{vAR2}, 7, v40
v_add3_u32 v{vAR2}, v{vAR2}, v42, v43
s_mul_i32 s{sCNT}, s{SW}, 15360
s_add_u32 s{sCNT}, s{sCNT}, {LDS_RED}
v_add_u32 v{vRR}, s{sCNT}, v{vW16}
s_lshl_b32 s{sJ}, s2, 2
s_add_u32 s{sJ}, s{sJ}, s{SW}
s_cmp_lg_u32 s{sJ}, {4*ID_B}
s_cbranch_scc1 L_noep1
""")
    EPR = [12, 14, 16, 18, 22, 24, 26, 28, 30, 70]
    for cb in range(10):
        cnt_read(EPR[cb], str(C_UT + 1024 * cb))
    A("s_waitcnt lgkmcnt(0)")
    for cb in range(10):
        cnt_wait(EPR[cb], str(C_UT + 1024 * cb), 16, sCNT)
    A("L_noep1:")
    A("s_waitcnt lgkmcnt(0)")
    cnt_wait(CQ0, sAF, 20, sCNT)
    A(f"s_mul_i32 s{sAF}, s{SW}, 2560")
    for i in range(3):
        A(f"s_add_u32 m0, s{sAF}, {LDS_AT+1024*i}")
        if i == 2:
            A("s_mov_b32 exec_hi, 0")
        A.v(f"buffer_load_dwordx4 v{50+i}, {S(R_WS,4)}, s{sAT} offen sc1 lds", "at")
    A("s_mov_b64 exec, -1")
    stamp("B", "aseen")
    cnt_wait(CQ0 + 2, sOC, 8, sCNT)
    stamp("B", "oseen")
    old = []
    for p in range(4):
        for ii in range(5):
            def f(p=p, ii=ii):
                r = V(OFR[5 * p + ii], 4)
                if ii < 4:
                    A.v(f"buffer_load_dwordx4 {r}, v{vOMS[ii]}, {S(R_WS,4)}, s{sOB[p]} offen sc1", f"of{p}_{ii}")
                else:
                    A.v(f"buffer_load_dwordx4 {r}, v{vOR}, {S(R_WS,4)}, s{sOB[p]} offen offset:2048 sc1", f"of{p}_{ii}")
            old.append(f)
    for _ in range(OPT.get("npo", 10)):
        old.pop(0)()
    A.vwait("at")
    A("s_barrier")
    AR = 56
    for jn in range(4):
        A.l(f"ds_read_b64 {V(AR+2*jn,2)}, v{vAR} offset:{LDS_AT+128*jn}", "ar")
    A.l(f"ds_read_b64 {V(AR+8,2)}, v{vAR2} offset:{LDS_AT+8192}", "ar")
    mix = [lambda: A.lwait("ar")]
    for jn in range(5):
        for e in range(4):
            src = AR + 2 * jn + (e >> 1)
            mix += L(f"v_and_b32 v{GA+4*jn+e}, 0xffff0000, v{src}" if e & 1 else f"v_lshlrev_b32 v{GA+4*jn+e}, 16, v{src}")
    mix2 = [(lambda jn=jn, e=e: A(f"v_mul_f32 v{GA+4*jn+e}, v{GT+e}, v{GA+4*jn+e}")) for jn in range(5) for e in range(4)]
    mm = []
    for p in range(4):
        ac = AC0 if p % 2 == 0 else AC1
        for ii in range(5):
            for jn in range(5):
                def m(p=p, ac=ac, ii=ii, jn=jn):
                    if jn == 0:
                        A.vwait(f"of{p}_{ii}")
                        if p == 0 and ii == 0:
                            stamp("B", "o0")
                    d = V(ac + 4 * jn, 4)
                    A(f"v_mfma_f32_16x16x32_bf16 {d}, {V(OFR[5*p+ii],4)}, {V(WOR[5*ii+jn],4)}, {'0' if ii==0 else d}")
                mm.append(m)
    st_ = Stream(budget=2)
    for i, f in enumerate(old):
        st_.at(2 * i, f)
    for i, f in enumerate(mix):
        st_.at(i, f)
    st_.exact(24, lambda: None)
    for p in range(3):
        ac = AC0 if p % 2 == 0 else AC1
        k0 = 25 * (p + 1)
        st_.at(k0 - 3, L(f"""
s_add_u32 s{sCNT}, s{SW}, {p+1}
s_and_b32 s{sCNT}, s{sCNT}, 3
s_mul_i32 s{sCNT}, s{sCNT}, 15360
v_add_u32 v{vRW}, s{sCNT}, v{vW16}
"""))
        for jn in range(5):
            st_.at(k0 + 1 + jn, lambda jn=jn, p=p, ac=ac: A.l(f"ds_write_b128 v{vRW}, {V(ac+4*jn,4)} offset:{LDS_RED+5120*p+1024*jn}", "rw"))
    st_.at(32, mix2)
    st_.at(57, L(f"""
v_bfe_u32 v{vOUT}, v0, 4, 2
v_mul_u32_u24 v{vOUT}, 5120, v{vOUT}
v_and_b32 v{vAR}, 15, v0
v_lshl_add_u32 v{vOUT2}, v{vAR}, 1, v{vOUT}
v_lshl_add_u32 v{vOUT}, v{vAR}, 3, v{vOUT}
s_lshl_b32 s{sAT}, s{sWOFF}, 2
s_add_u32 s{sAT}, s{sAT}, s{sOWN}
s_mul_i32 s{sAT}, s{sAT}, 20480
s_mul_i32 s{sAF}, s{sCT}, 160
s_add_u32 s{sAT}, s{sAT}, s{sAF}
"""))
    KB_ = OPT.get("redbar", 84)
    st_.exact(KB_, lambda: (A.lwait_all(), A("s_barrier")))
    red = []
    for jn in range(5):
        for q in (jn, 5 + jn, 10 + jn):
            red.append(lambda q=q, jn=jn: A.l(f"ds_read_b128 {V(OFR[q],4)}, v{vRR} offset:{1024*q}", f"rr{jn}"))
    st_.at(KB_ + 1, red)
    st_.run(mm, reserve=lambda k: 0)
    stamp("B", "fin")
    PK4 = OPT.get("pk4", 1)

    def add2(d, a_, b_):
        if PK4:
            A(f"v_pk_add_f32 {V(d,2)}, {V(a_,2)}, {V(b_,2)}")
        else:
            for n in range(2):
                A(f"v_add_f32 v{d+n}, v{a_+n}, v{b_+n}")
    for jn in range(5):
        A.lwait(f"rr{jn}")
        for h in range(2):
            r0, r1, r2 = OFR[jn] + 2 * h, OFR[5 + jn] + 2 * h, OFR[10 + jn] + 2 * h
            add2(r0, r0, r1)
            add2(r0, r0, r2)
    OSF = OPT.get("osf", "").replace("_", " ")
    for h in range(2):
        for jn in range(5):
            r0, g_ = OFR[jn] + 2 * h, GA + 4 * jn + 2 * h
            add2(r0, r0, AC1 + 4 * jn + 2 * h)
            if PK4:
                A(f"v_pk_fma_f32 {V(g_,2)}, {V(OMG+2*h,2)}, {V(r0,2)}, {V(g_,2)}")
            else:
                for n in range(2):
                    A(f"v_fma_f32 v{g_+n}, v{OMG+2*h+n}, v{r0+n}, v{g_+n}")
        for e in (2 * h, 2 * h + 1):
            A(f"v_cvt_pk_bf16_f32 v{AC0+4*e}, v{GA+e}, v{GA+4+e}")
            A(f"v_cvt_pk_bf16_f32 v{AC0+4*e+1}, v{GA+8+e}, v{GA+12+e}")
            A.v(f"buffer_store_dwordx2 {V(AC0+4*e,2)}, v{vOUT}, {S(R_M2,4)}, s{sAT} offen offset:{1280*e} {OSF}")
        A(f"v_cvt_pk_bf16_f32 v{AC0+8*h+2}, v{GA+16+2*h}, v{GA+17+2*h}")
        A.v(f"buffer_store_short v{AC0+8*h+2}, v{vOUT2}, {S(R_M2,4)}, s{sAT} offen offset:{2560*h+128} {OSF}")
        A.v(f"buffer_store_short_d16_hi v{AC0+8*h+2}, v{vOUT2}, {S(R_M2,4)}, s{sAT} offen offset:{2560*h+1280+128} {OSF}")
    A(f"""
s_cmp_lg_u32 s{sJ}, {4*ID_B}
s_cbranch_scc1 L_noep2
s_atomic_swap_x2 {S(TAG,2)}, {S(P_WS,2)}, {WS_EPOCH}
L_noep2:
""")
    finish("B")


def role_A():
    sAJ, sTB, sCB, sCH, sLB = 60, 61, 62, 63, 68
    ONE, CQ0, CQ1, sUP, sUC, sAC, sGOT = 18, 20, 24, 69, 48, 49, 50
    A.c("---- A prologue")
    A(f"""
s_sub_u32 s{sAJ}, s2, {ID_A}
s_lshr_b32 s{sT0}, s{sAJ}, 3
s_lshl_b32 s{sT0}, s{sT0}, 1
s_and_b32 s{sT1}, s{sAJ}, 1
s_add_u32 s{sT0}, s{sT0}, s{sT1}
s_mul_i32 s{sTB}, s{sT0}, 52
s_lshr_b32 s{sTB}, s{sTB}, 9
s_mul_i32 s{sT1}, s{sTB}, 10
s_sub_u32 s{sCB}, s{sT0}, s{sT1}
s_bfe_u32 s{sT1}, s{sAJ}, 0x20001
s_lshl_b32 s{sT1}, s{sT1}, 2
s_add_u32 s{sTB}, s{sTB}, s{sT1}
s_lshl_b32 s{sCH}, s{sAJ}, 2
s_add_u32 s{sCH}, s{sCH}, s{SW}
s_mul_i32 s{sLB}, s{SW}, 20480
v_lshrrev_b32 v2, 3, v0
v_bfe_u32 v3, v2, 1, 1
v_bfe_u32 v4, v2, 3, 1
v_lshl_or_b32 v3, v4, 1, v3
v_lshlrev_b32 v3, 1, v3
v_and_b32 v4, 7, v0
v_xor_b32 v3, v3, v4
v_mul_u32_u24 v2, 1280, v2
v_lshl_add_u32 v2, v3, 4, v2
v_and_b32 v1, 63, v0
v_lshlrev_b32 v5, 2, v1
s_lshl_b32 s{sT0}, s{sCH}, 8
v_add_u32 v3, s{sT0}, v5
s_mul_i32 s{sT1}, s{sTB}, 163840
s_lshl_b32 s{sT2}, s{sCB}, 7
s_add_u32 s{sT1}, s{sT1}, s{sT2}
s_lshl_b32 s{sT2}, s{SW}, 10
s_and_b32 s{sT3}, s{sCH}, 0xfffffffe
s_lshl_b32 s{sT3}, s{sT3}, 1
s_waitcnt lgkmcnt(0)
""")
    for q in range(40):
        assert (q * 52) >> 9 == q // 10
    srd(R_X, P_U, 2621440)
    for i in range(4):
        A(f"s_add_u32 m0, s{sT2}, {4096*i}")
        if i:
            A(f"s_add_u32 s{sT1}, s{sT1}, 40960")
        else:
            A(f"s_load_dword s70, {S(P_LOGDT,2)}, s{sT3}")
        A.v(f"buffer_load_dwordx4 v2, {S(R_X,4)}, s{sT1} offen lds", "ut")
    A(f"s_load_dword s71, {S(P_DSK,2)}, s{sT3}")
    load_epoch()
    for i, p in enumerate((P_LOGA, P_AIM, P_CRE, P_CIM)):
        A.v(f"global_load_dword v{8+i}, v3, {S(p,2)}", "par")
    A(f"""
s_lshl_b32 s{sUP}, s{sCB}, 2
s_add_u32 s{sUP}, s{sUP}, s{SW}
s_lshl_b32 s{sUP}, s{sUP}, 8
s_add_u32 s{sUP}, s{sUP}, {C_UT}
s_mul_i32 s{sAC}, s{sCH}, 3277
s_lshr_b32 s{sAC}, s{sAC}, 16
s_lshl_b32 s{sAC}, s{sAC}, 8
s_add_u32 s{sAC}, s{sAC}, {C_AF}
s_lshr_b32 s{sUC}, s{sAJ}, 2
s_lshl_b32 s{sUC}, s{sUC}, 8
s_add_u32 s{sUC}, s{sUC}, {C_UT}
s_mov_b64 {S(ONE,2)}, 1
""")
    cnt_read(CQ0 + 2, sUP)
    cnt_read(CQ1 + 2, sAC)
    srd(R_WS, P_WS, WS_SIZE)
    A(f"""
s_lshl_b32 s{sT0}, s{sAJ}, 14
s_add_u32 s{sT0}, s{sT0}, {WS_UT}
s_add_u32 s{R_M1}, s{P_WS}, s{sT0}
s_addc_u32 s{R_M1+1}, s{P_WS+1}, 0
s_mov_b32 s{R_M1+2}, 16384
s_mov_b32 s{R_M1+3}, 0x20000
""")
    A(f"""
v_not_b32 v6, v1
v_bfe_u32 v7, v6, 4, 2
v_bfe_u32 v6, v6, 2, 2
v_lshl_add_u32 v7, v7, 3, v6
v_bfe_u32 v12, v7, 1, 1
v_bfe_u32 v13, v7, 3, 1
v_lshl_or_b32 v12, v13, 1, v12
v_xor_b32 v12, s{SW}, v12
v_lshlrev_b32 v12, 5, v12
v_lshl_add_u32 v7, v7, 7, v12
v_and_b32 v12, 3, v1
v_lshl_add_u32 v7, v12, 3, v7
v_bfe_u32 v13, v1, 2, 2
v_lshlrev_b32 v13, 14, v13
v_lshl_add_u32 v13, v12, 4, v13
v_and_b32 v12, 0x30, v1
v_lshl_add_u32 v13, v12, 2, v13
s_lshl_b32 s{sT0}, s{sCB}, 2
s_add_u32 s{sT0}, s{sT0}, s{SW}
s_lshl_b32 s{sT1}, s{sT0}, 16
s_sub_u32 s{sT2}, 15, s{sTB}
s_lshl_b32 s{sT2}, s{sT2}, 10
s_add_u32 s{sT1}, s{sT1}, s{sT2}
s_add_u32 s{sT1}, s{sT1}, {WS_UT}
s_waitcnt lgkmcnt(0)
""")
    make_tag()
    cnt_claim(CQ0, sUP)
    cnt_claim(CQ1, sAC)
    A.vwait("ut")
    A("s_barrier")
    stamp("A", "tile")
    for it in range(4):
        for h in range(2):
            A.l(f"ds_read_b64_tr_b16 {V(16+4*it+2*h,2)}, v7 offset:{4096*(3-it)+512*(1-h)}", f"t{it}")
    A.lwait_all()
    for it in range(4):
        A.v(f"buffer_store_dwordx4 {V(16+4*it,4)}, v13, {S(R_WS,4)}, s{sT1} offen offset:{256*it} sc1", "utst")
    A("s_barrier")
    A(f"s_setprio {OPT.get('prioK', 0)}")
    A.c("---- per-mode constants (two modes per lane)")
    A(f"""
s_bitcmp1_b32 s{sCH}, 0
s_cselect_b32 s{sT0}, 0, 16
s_lshl_b32 s70, s70, s{sT0}
s_and_b32 s70, s70, 0xffff0000
s_lshl_b32 s71, s71, s{sT0}
s_and_b32 s71, s71, 0xffff0000
v_mov_b32 v32, {LOG2E:#x}
v_mul_f32 v33, s70, v32
v_exp_f32 v33, v33
""")
    A.vwait("par")
    LA, AI, XR, XI = 34, 36, 38, 40
    for (src, dst) in ((8, LA), (9, AI), (10, XR), (11, XI)):
        A(f"v_lshlrev_b32 v{dst}, 16, v{src}")
        A(f"v_and_b32 v{dst+1}, 0xffff0000, v{src}")
    A(f"""
v_cvt_pk_bf16_f32 v33, v33, v33
v_and_b32 v33, 0xffff0000, v33
v_mul_f32 v{LA}, v32, v{LA}
v_mul_f32 v{LA+1}, v32, v{LA+1}
v_exp_f32 v{LA}, v{LA}
v_exp_f32 v{LA+1}, v{LA+1}
v_mul_f32 v{AI}, v33, v{AI}
v_mul_f32 v{AI+1}, v33, v{AI+1}
v_cvt_pk_bf16_f32 v{LA+1}, v{LA}, v{LA+1}
v_lshlrev_b32 v{LA}, 16, v{LA+1}
v_and_b32 v{LA+1}, 0xffff0000, v{LA+1}
v_mul_f32 v{LA}, v33, v{LA}
v_mul_f32 v{LA+1}, v33, v{LA+1}
v_mul_f32 v{LA}, v32, v{LA}
v_mul_f32 v{LA+1}, v32, v{LA+1}
v_mul_f32 v{AI}, {INV2PI:#x}, v{AI}
v_mul_f32 v{AI+1}, {INV2PI:#x}, v{AI+1}
v_add_f32 v33, v33, v33
v_mul_f32 v{XR}, v33, v{XR}
v_mul_f32 v{XR+1}, v33, v{XR+1}
v_mul_f32 v{XI}, v33, -v{XI}
v_mul_f32 v{XI+1}, v33, -v{XI+1}
""")
    W = {1: 44, 8: 48, 256: 52}
    for p, w in W.items():
        lit = {1: "1.0", 8: "0x41000000", 256: "0x43800000"}[p]
        for n in range(2):
            A(f"v_mul_f32 v{56+n}, {lit}, v{LA+n}")
            A(f"v_mul_f32 v{58+n}, {lit}, v{AI+n}")
        for n in range(2):
            A(f"v_exp_f32 v{56+n}, -v{56+n}")
            A(f"v_fract_f32 v{58+n}, v{58+n}")
        for n in range(2):
            A(f"v_cos_f32 v{w+n}, v{58+n}")
            A(f"v_sin_f32 v{w+2+n}, v{58+n}")
        A(f"v_pk_mul_f32 {V(w,2)}, {V(w,2)}, {V(56,2)}")
        A(f"v_pk_mul_f32 {V(w+2,2)}, {V(w+2,2)}, {V(56,2)}")
    vSW, vSR = 6, 7
    A(f"""
v_lshlrev_b32 v{vSW}, 3, v1
v_add_u32 v{vSW}, s{sLB}, v{vSW}
v_and_b32 v{vSR}, 31, v1
v_mul_u32_u24 v{vSR}, 528, v{vSR}
v_lshrrev_b32 v12, 5, v1
v_lshlrev_b32 v12, 4, v12
v_add3_u32 v{vSR}, v{vSR}, v12, s{sLB}
""")
    pk = [0]

    def put(reg, rows):
        t = 80 + 2 * (pk[0] % 4)
        pk[0] += 1
        A(f"v_cvt_pk_bf16_f32 v{t}, v{reg}, v{reg+1}")
        A(f"v_cvt_pk_bf16_f32 v{t+1}, v{reg+2}, v{reg+3}")
        for r in rows:
            A.l(f"ds_write_b64 v{vSW}, {V(t,2)} offset:{528*r}", "st")

    def cmul(d, s, w, conj):
        n1, n2 = ("", " neg_lo:[1,0,0] neg_hi:[1,0,0]") if conj else (" neg_lo:[0,0,1] neg_hi:[0,0,1]", "")
        A(f"v_pk_mul_f32 {V(56,2)}, {V(s+2,2)}, {V(w+2,2)}")
        A(f"v_pk_mul_f32 {V(58,2)}, {V(s+2,2)}, {V(w,2)}")
        A(f"v_pk_fma_f32 {V(d+2,2)}, {V(s,2)}, {V(w+2,2)}, {V(58,2)}{n2}")
        A(f"v_pk_fma_f32 {V(d,2)}, {V(s,2)}, {V(w,2)}, {V(56,2)}{n1}")

    A.c("---- X rows")
    g0 = [0, 1, 2, 3, 4, 5, 6, 7, 512, 516, 520, 1024, 1032, 1536, 1544]
    g1 = [256, 256, 258, 260, 260, 260, 262, 264, 768, 772, 776, 1280, 1288, 1792, 1800]
    rows = {}
    for g, lst in enumerate((g0, g1)):
        for i, p in enumerate(lst):
            rows.setdefault(p, []).append(8 * (i >> 2) + 4 * g + (i & 3))
    keep = {0: XR, 2: 60, 4: 64, 6: 68, 8: 72}
    put(XR, rows[0])
    cur = XR
    for p in range(1, 9):
        d = keep.get(p, 76)
        cmul(d, cur, W[1], True)
        if p in rows:
            put(d, rows[p])
        cur = d
        if p == OPT.get("utp", 6):
            A.vwait("utst")
            cnt_add(ONE, sUP)
            stamp("A", "utflag")
    for step in range(1, 8):
        for off in (0, 8, 4, 2, 6):
            p = 256 * step + off
            if p in rows:
                cmul(keep[off], keep[off], W[256], True)
                put(keep[off], rows[p])
    XF = 96
    A.lwait_all()
    for ks in range(16):
        A.l(f"ds_read_b128 {V(XF+4*ks,4)}, v{vSR} offset:{32*ks}", "xf")
    A.c("---- Y rows")
    YA, YB = 60, 64
    cmul(YA, W[8], W[8], False)
    A(f"""
v_mov_b32 v24, 0x3f803f80
v_mov_b32 v25, 0
""")
    A.lwait_all()
    stamp("A", "xrows")
    A.l(f"ds_write_b64 v{vSW}, {V(24,2)}", "st")
    put(W[8], [1])
    put(YA, [2])
    UL, UN = 224, 240

    def load_u():
        A(f"s_setprio {OPT.get('prioR', 3)}")
        for i in range(4):
            A(f"s_movk_i32 s{sT0}, {4096*i}")
            A(f"buffer_load_dwordx4 {V(UL+4*i,4)}, v2, {S(R_M1,4)}, s{sT0} offen sc1")
            A(f"buffer_load_dword v{UN+i}, v2, {S(R_M1,4)}, s{sT0} offen offset:64 sc1")
        A(f"s_setprio {OPT.get('prioK', 0)}")
    A("v_lshlrev_b32 v2, 4, v0")
    for c in range(3, 32):
        cmul(YA, YA, W[8], False)
        put(YA, [c])
        if c == OPT.get("uq", 4):
            cnt_read(CQ0, sUC)
        if c == OPT.get("uq", 4) + 14:
            A.lwait_all()
            cnt_test(CQ0, 16)
            A(f"s_cselect_b32 s{sGOT}, 0, 1")
            A("s_cbranch_scc1 L_unotyet")
            load_u()
            A("L_unotyet:")
    A(f"s_cmp_eq_u32 s{sGOT}, 1")
    A("s_cbranch_scc1 L_uhave")
    cnt_wait(CQ0, sUC, 16, sCNT, probed=False)
    load_u()
    A("L_uhave:")
    A.vm.append("u")
    stamp("A", "utseen")
    A.lwait_all()
    YF, KD = 160, 68
    for ks in range(16):
        A.l(f"ds_read_b128 {V(YF+4*ks,4)}, v{vSR} offset:{32*ks}", f"y{ks}")
        if ks >= 6:
            k2 = ks - 6
            A.lwait(f"y{k2}")
            A(f"v_mfma_f32_32x32x16_bf16 {V(KD,16)}, {V(XF+4*k2,4)}, {V(YF+4*k2,4)}, {'0' if k2==0 else V(KD,16)}")
    for k2 in range(10, 16):
        A.lwait(f"y{k2}")
        A(f"v_mfma_f32_32x32x16_bf16 {V(KD,16)}, {V(XF+4*k2,4)}, {V(YF+4*k2,4)}, {V(KD,16)}")
    A("s_barrier")
    vKW, vUW, vKB, vUA = 3, 4, 8, 9
    A(f"""
v_lshlrev_b32 v{vKW}, 4, v1
v_add_u32 v{vKW}, s{sLB}, v{vKW}
v_and_b32 v13, 3, v0
v_mul_u32_u24 v13, 20512, v13
v_lshrrev_b32 v{vUW}, 2, v0
v_lshl_add_u32 v{vUW}, v{vUW}, 4, v13
v_and_b32 v13, 15, v1
v_and_b32 v14, 0x30, v1
v_lshl_add_u32 v{vKB}, v13, 5, v14
v_add_u32 v{vKB}, s{sLB}, v{vKB}
v_add_u32 v{vKB}, 32, v{vKB}
v_lshrrev_b32 v15, 1, v13
v_lshlrev_b32 v15, 2, v15
v_sub_u32 v14, v14, v15
v_and_b32 v13, 1, v13
v_mul_u32_u24 v13, 4160, v13
v_sub_u32 v14, v14, v13
s_mul_i32 s{sT0}, s{SW}, 20512
s_add_u32 s{sT0}, s{sT0}, {4608+4160+4060-512-448}
v_add_u32 v{vUA}, s{sT0}, v14
v_subrev_u32 v{vUA+1}, 1024, v{vUA}
v_subrev_u32 v{vUA+2}, 2048, v{vUA}
v_subrev_u32 v{vUA+3}, 3072, v{vUA}
v_mov_b32 v16, 0
v_mov_b32 v17, 0
v_lshrrev_b32 v13, 5, v1
v_mul_u32_u24 v13, 4160, v13
v_and_b32 v14, 3, v1
v_lshl_add_u32 v13, v14, 3, v13
s_sub_u32 s{sT0}, s{sT0}, {4160+4060-512-448-4096}
v_add_u32 v13, s{sT0}, v13
""")
    A.l(f"ds_write_b64 v{vSW}, {V(16,2)}", "cv")
    A.l(f"ds_write_b64 v13, {V(16,2)}", "cv")
    A(f"""
s_mov_b64 exec, 1
v_add_f32 v{KD}, s71, v{KD}
s_mov_b64 exec, -1
s_mov_b32 vcc_lo, 0x55555555
s_mov_b32 vcc_hi, 0x55555555
""")
    KP = 84
    for i in range(4):
        A(f"v_cvt_pk_bf16_f32 v{KP+i}, v{KD+2*i}, v{KD+2*i+1}")
    A.l(f"ds_write_b128 v{vKW}, {V(KP,4)} offset:512", "cv")
    a_, b_, c_ = KD + 8, KD + 9, KD + 10
    for i, (x_, y_) in enumerate(((a_, a_), (a_, b_), (b_, b_), (c_, c_))):
        A(f"v_cvt_pk_bf16_f32 v{KP+4+i}, v{x_}, v{y_}")
    A.l(f"ds_write_b128 v{vKW}, {V(KP+4,4)} offset:{512+1024}", "cv")
    for blk, d in ((0, KP + 8), (1, 20)):
        a_, b_ = KD + 11 + 2 * blk, KD + 12 + 2 * blk
        A(f"v_cndmask_b32 v18, v{b_}, v{a_}, vcc")
        A(f"v_cvt_pk_bf16_f32 v{d}, v{a_}, v{a_}")
        A(f"v_cvt_pk_bf16_f32 v{d+1}, v{a_}, v{a_}")
        A(f"v_cvt_pk_bf16_f32 v{d+2}, v18, v{b_}")
        A(f"v_cvt_pk_bf16_f32 v{d+3}, v{b_}, v{b_}")
        A.l(f"ds_write_b128 v{vKW}, {V(d,4)} offset:{512+2048+1024*blk}", "cv")
    A.vwait("u")
    for i in range(4):
        A.l(f"ds_write_b128 v{vUW}, {V(UL+4*i,4)} offset:{4608+1024*i}", "cv")
        t = 52 + 4 * i
        for p in range(4):
            hi = UL + 4 * i + p + 1 if p < 3 else UN + i
            A(f"v_alignbit_b32 v{t+p}, v{hi}, v{UL+4*i+p}, 16")
        A.l(f"ds_write_b128 v{vUW}, {V(t,4)} offset:{4608+4160+1024*i}", "cv")
    CA = 16
    A.lwait_all()
    A("s_barrier")
    A(f"s_setprio {OPT.get('prioA', 0)}")
    stamp("A", "cstart")
    A.c("---- convolution: 8 residues x 36 tile products")
    UA = [64, 128]
    KB = [96, 160]

    def creads(r):
        s, out = r & 1, []
        for m in range(8):
            out.append(lambda m=m: A.l(f"ds_read_b128 {V(KB[s]+4*m,4)}, v{vKB} offset:{512*m+64*(7-r)}", f"c{r}_{m}"))
            o = (128 if m % 2 == 0 else 0) + 16 * (7 - r)
            for hh in range(2):
                out.append(lambda m=m, o=o, hh=hh: A.l(f"ds_read2_b32 {V(UA[s]+4*m+2*hh,2)}, v{vUA+m//2} offset0:{o+2*hh} offset1:{o+2*hh+1}", f"c{r}_{m}"))
        return out

    pairs = sorted([(mu, n) for mu in range(8) for n in range(8 - mu)], key=lambda p: (max(p), p[0] + p[1]))
    nxt = creads(0)
    for _ in range(12):
        nxt.pop(0)()
    started = set()
    for r in range(8):
        if r < 7:
            nxt += creads(r + 1)
        for k, (mu, n) in enumerate(pairs):
            A.lwait(f"c{r}_{max(mu, n)}")
            d = V(CA + 4 * (mu + n), 4)
            A(f"v_mfma_f32_16x16x32_bf16 {d}, {V(UA[r&1]+4*mu,4)}, {V(KB[r&1]+4*n,4)}, {d if mu+n in started else '0'}")
            started.add(mu + n)
            if nxt and (r == 0 or k % 3 != 2):
                nxt.pop(0)()
        assert len(nxt) == 0
    A(f"s_setprio {OPT.get('prioR', 3)}")
    stamp("A", "cend")
    A(f"""
v_and_b32 v2, 15, v1
v_lshlrev_b32 v2, 5, v2
v_bfe_u32 v3, v1, 4, 1
v_lshl_add_u32 v2, v3, 9, v2
v_lshrrev_b32 v3, 5, v1
v_lshl_add_u32 v2, v3, 4, v2
s_lshl_b32 s{sT0}, s{sCH}, 12
s_add_u32 s{sT0}, s{sT0}, {WS_AT}
""")
    for q in range(640):
        assert (q * 3277) >> 16 == q // 20
    A.lwait_all()
    for n in range(0, 8, 2):
        d = 48 + 2 * n
        for i in range(4):
            A(f"v_cvt_pk_bf16_f32 v{d+i}, v{CA+4*n+2*i}, v{CA+4*n+2*i+1}")
    for n in range(0, 8, 2):
        d = 48 + 2 * n
        A(f"v_permlane16_swap_b32 v{d}, v{d+2}")
        A(f"v_permlane16_swap_b32 v{d+1}, v{d+3}")
        A.v(f"buffer_store_dwordx4 {V(d,4)}, v2, {S(R_WS,4)}, s{sT0} offen offset:{512*n} sc1", "ast")
    A.vwait("ast")
    cnt_add(ONE, sAC)
    finish("A")


def role_R():
    A.c("---- weight repack: workgroup = (k-step, four head pairs), wave = head pair")
    sKS, sU, sI, sCTL, sLB, sRH = 60, 61, 62, 63, 68, 69
    A(f"""
L_R:
v_and_b32 v7, 63, v0
s_lshr_b32 s{sKS}, s2, 2
s_and_b32 s{sCTL}, s2, 3
s_lshl_b32 s{sRH}, s{sCTL}, 2
s_add_u32 s{sRH}, s{sRH}, s{SW}
s_mul_i32 s{sT0}, s{sKS}, {32*3840}
s_mul_i32 s{sT1}, s{sRH}, 80
s_add_u32 s{sT0}, s{sT0}, s{sT1}
s_add_u32 s{sT1}, s{sT0}, 1280
s_mov_b32 s48, s{sT0}
s_lshl_b32 s{sLB}, s{SW}, 13
""")
    for i in range(5):
        A(dma_addr(1 + i, i, 10, [(0, 2, 0), (3, 1, 2), (2, 1, 3), (4, 1, 4)], 1200, 8, 7))
    A("s_waitcnt lgkmcnt(0)")
    srd(R_W, P_WQKV, 2457600)
    for i in range(5):
        A(f"s_add_u32 m0, s{sLB}, {1024*i}")
        if i == 0:
            load_epoch()
        A.v(f"buffer_load_dwordx4 v{1+i}, {S(R_W,4)}, s{sT1} offen lds", "kv")
    stamp("R", "riss")
    A(f"""
s_lshl_b32 s73, s{sRH}, 8
s_add_u32 s22, s73, {C_QW}
s_lshl_b32 s23, s{sCTL}, 1
s_and_b32 s{sT2}, s{SW}, 1
s_add_u32 s23, s23, s{sT2}
s_lshl_b32 s23, s23, 8
s_add_u32 s23, s23, {C_WO}
s_mov_b64 {S(ONE,2)}, 1
""")
    cnt_read(CQ0 + 2, 73)
    cnt_read(CQ1 + 2, 22)
    cnt_read(CQ2 + 2, 23)
    for i in range(3):
        A(dma_addr(1 + i, i, 5, [(1, 2, 0), (0, 1, 2), (3, 2, 3)], 0, 8, 7))
    srd(R_WS, P_WS, WS_SIZE)
    srd(R_M1, P_GATE, 1280)
    srd(R_M2, P_WO, 819200)
    vT, vTq, v16, v8 = 12, 13, 14, 15
    A(f"""
v_bfe_u32 v8, v0, 5, 1
v_bfe_u32 v9, v0, 2, 3
v_lshl_add_u32 v10, v8, 4, v9
v_mul_u32_u24 v{vT}, 160, v10
v_lshl_add_u32 v10, v8, 3, v9
v_mul_u32_u24 v{vTq}, 160, v10
v_and_b32 v9, 1, v0
v_bfe_u32 v10, v0, 1, 1
v_mad_u32_u24 v10, v10, 40, s{sLB}
v_add_u32 v{vTq}, v{vTq}, v10
v_lshl_add_u32 v{vTq}, v9, 4, v{vTq}
v_mul_u32_u24 v9, 80, v9
v_add3_u32 v{vT}, v{vT}, v10, v9
v_lshlrev_b32 v{v16}, 4, v7
v_lshlrev_b32 v{v8}, 3, v7
v_and_b32 v11, 0x30, v0
s_mul_i32 s70, s{sRH}, 20
s_add_u32 s70, s70, s{sKS}
s_mul_i32 s71, s70, 3072
s_add_u32 s71, s71, {WS_WQ}
s_mul_i32 s70, s70, 5120
s_add_u32 s70, s70, {WS_WKV}
s_add_u32 s72, s70, 4096
s_lshl_b32 s74, s{sKS}, 6
""")

    def issue_qg():
        for i in range(3):
            A(f"s_add_u32 m0, s{sLB}, {5120+1024*i}")
            A("s_mov_b32 exec_hi, 0" if i == 2 else "s_nop 0")
            A.v(f"buffer_load_dwordx4 v{1+i}, {S(R_W,4)}, s48 offen lds", "q")
        A("s_mov_b64 exec, -1")
        A.v(f"buffer_load_dwordx4 {V(52,4)}, v11, {S(R_M1,4)}, s74 offen", "q")
    A(f"""
s_mul_i32 s{sU}, s{sKS}, 52
s_lshr_b32 s{sU}, s{sU}, 8
s_mul_i32 s{sI}, s{sU}, 5
s_sub_u32 s{sI}, s{sKS}, s{sI}
s_lshl_b32 s{sCTL}, s{sCTL}, 1
s_add_u32 s{sCTL}, s{sCTL}, s{SW}
s_cmp_eq_u32 s{sI}, 4
s_cselect_b32 s{sT0}, 40, 20
s_cselect_b32 s{sT1}, 80, 8
s_cselect_b32 s{sT2}, 20, 4
s_mul_i32 s{sT2}, s{sT2}, 1280
s_mul_i32 s{sT3}, s{sI}, 40
s_cselect_b32 s{sT3}, 16, s{sT3}
s_mul_i32 s75, s{sU}, 160
s_add_u32 s{sT3}, s{sT3}, s75
s_mul_i32 s{sT3}, s{sT3}, 1280
s_mul_i32 s75, s{sCTL}, 160
s_add_u32 s{sT3}, s{sT3}, s75
s_add_u32 s{sT2}, s{sT2}, s{sT3}
v_bfe_u32 v8, v0, 4, 1
v_mul_u32_u24 v8, s{sT0}, v8
v_bfe_u32 v9, v0, 5, 1
v_mul_u32_u24 v9, s{sT1}, v9
v_add_u32 v8, v8, v9
v_mul_u32_u24 v8, 1280, v8
v_and_b32 v9, 15, v0
v_lshl_add_u32 v10, v9, 1, v8
v_lshl_add_u32 v8, v9, 3, v8
""")
    for q in range(20):
        assert (q * 52) >> 8 == q // 5
    A.lwait_all()
    make_tag()
    cnt_claim(CQ0, 73)
    cnt_claim(CQ1, 22)
    cnt_claim(CQ2, 23)
    A.vwait("kv")
    stamp("R", "rkv")
    for t in range(5):
        for h in range(2):
            A.l(f"ds_read_b64_tr_b16 {V(16+4*t+2*h,2)}, v{vT} offset:{1280*h+8*t}", f"t{t}")
    A.lwait_all()
    for t in range(5):
        A.v(f"buffer_store_dwordx4 {V(16+4*t,4)}, v{v16}, {S(R_WS,4)}, s{70 if t<4 else 72} offen offset:{1024*(t%4)} sc1", "kst")
    issue_qg()
    A(f"""
s_mov_b32 s74, 0xf0f0f0f0
s_mov_b32 s75, 0xf0f0f0f0
s_cmp_lt_u32 s{SW}, 2
s_cbranch_scc1 L_Rwo
""")
    keep = list(A.vm)
    names = list(stampnames.get("R", []))

    def q_part():
        A.vwait("kst")
        cnt_add(ONE, 73)
        stamp("R", "rflag")
        A.vwait("q")
        for t in range(3):
            for h in range(2):
                A.l(f"ds_read_b64_tr_b16 {V(36+4*t+2*h,2)}, v{vTq} offset:{5120+80*h+(0,8,32)[t]}", f"t{t}")
        A.lwait_all()
        for p in range(4):
            A(f"v_cndmask_b32 v{44+p}, v{44+p}, v{52+p}, {S(74,2)}")
        for t in range(3):
            A.v(f"buffer_store_dwordx4 {V(36+4*t,4)}, v{v16}, {S(R_WS,4)}, s71 offen offset:{1024*t} sc1", "qst")
    q_part()
    A.vwait("qst")
    cnt_add(ONE, 22)
    finish("R")
    if OPT["stamps"]:
        stampnames["R"] = names
    A.vm = keep
    A("L_Rwo:")
    for e in range(8):
        so = sT3 if e < 4 else sT2
        A.v(f"buffer_load_dwordx2 {V(56+2*e,2)}, v8, {S(R_M2,4)}, s{so} offen offset:{1280*(e&3)}", "wo")
    for e in range(8):
        so = sT3 if e < 4 else sT2
        A.v(f"buffer_load_ushort v{72+e}, v10, {S(R_M2,4)}, s{so} offen offset:{1280*(e&3)+128}", "wo")
    q_part()
    A(f"""
s_mul_i32 s{sT0}, s{sCTL}, 102400
s_mul_i32 s{sT1}, s{sKS}, 5120
s_add_u32 s{sT0}, s{sT0}, s{sT1}
s_add_u32 s{sT0}, s{sT0}, {WS_WO}
s_add_u32 s{sT1}, s{sT0}, 4096
s_mov_b32 s70, 0x05040100
s_mov_b32 s71, 0x07060302
""")
    A.vwait("wo")
    for jn in range(4):
        for p in range(4):
            A(f"v_perm_b32 v{80+4*jn+p}, v{56+2*(2*p+1)+(jn>>1)}, v{56+2*(2*p)+(jn>>1)}, s{70+(jn&1)}")
        A.v(f"buffer_store_dwordx4 {V(80+4*jn,4)}, v{v16}, {S(R_WS,4)}, s{sT0} offen offset:{1024*jn} sc1", "wst")
    for p in range(4):
        A(f"v_lshl_or_b32 v{96+p}, v{72+2*p+1}, 16, v{72+2*p}")
    A.v(f"buffer_store_dwordx4 {V(96,4)}, v{v16}, {S(R_WS,4)}, s{sT1} offen sc1", "wst")
    A.vwait("qst")
    cnt_add(ONE, 22)
    A.vwait("wst")
    cnt_add(ONE, 23)
    finish("R")


role_R()
if "B" in OPT["roles"]:
    role_B()
else:
    A("L_B:\ns_endpgm")
A("L_A:")
if "A" in OPT["roles"]:
    role_A()
else:
    A("s_endpgm")
A("L_codeend:")
lines, nn = pad_hazards(A.lines, verbose=False)
if OPT.get("align", 1):
    lines, cnt_, cost_ = align8(lines)
    print("align:", cnt_, cost_, file=sys.stderr)
hdr = open("gated_mix__ssm_conv_s4d__linear_kernel_hedgehog__prompt.s.ref").read().split("; Override launch")[0]
print(hdr + f"; @launch grid=({ID_END},1,1) block=(256,1,1) lds=81920")
print("\n".join(lines))
print(f""".section .rodata,"a"
.p2align 6
.amdhsa_kernel {KN}
  .amdhsa_next_free_vgpr 256
  .amdhsa_next_free_sgpr 102
  .amdhsa_accum_offset 256
  .amdhsa_group_segment_fixed_size 0
  .amdhsa_kernarg_size 120
  .amdhsa_user_sgpr_count 2
  .amdhsa_user_sgpr_kernarg_segment_ptr 1
  .amdhsa_system_sgpr_workgroup_id_x 1
.end_amdhsa_kernel""")
json.dump(stampnames, open("stamps.json", "w"))
print(f"pad states inserted: {nn}", file=sys.stderr)
```

```python
import sys, json
from asmlib import *

KN = "gated_mix__ssm_conv_s4d__linear_kernel_hedgehog__prompt_kernel"
OPT = dict(stamps=0, dump=0, roles="RAB")
for a_ in sys.argv[1:]:
    k_, v_ = a_.split("=")
    OPT[k_] = int(v_) if v_.lstrip("-").isdigit() else v_

C_KW, C_WO, C_UT, C_AF, C_KV, C_O = [256 * n for n in (0, 48, 56, 80, 112, 176)]
WS_EPOCH = 0x20000
WS_WKV = 0xD00000
WS_WQ = 0xF00000
WS_WO = 0x100000
WS_KVP = 0x200000
WS_UT = 0x300000
WS_AT = 0x600000
WS_O = 0x900000
WS_STAMP = 0xC00000
WS_DUMP = 0x1000000
WS_SIZE = 0x4000000 if OPT["dump"] else 0x1000000

ID_A, ID_B, ID_END = 8, 168, 424
SPIN = 1 << 17
LOG2E = 0x3FB8AA3B
INV2PI = 0x3E22F983

P_U, P_LOGA, P_AIM, P_CRE, P_CIM, P_LOGDT, P_DSK = 4, 6, 8, 10, 12, 14, 16
P_WQKV, P_WPHI, P_WO, P_GATE, P_OUT, P_DBG, P_WS = 20, 22, 24, 26, 28, 30, 32
R_X, R_W, R_WS, R_DBG, R_M1, R_M2 = 36, 40, 44, 48, 52, 56
SW = 3
TAG = 34
ST0 = 76

A = Asm()
stampnames = {}
_lab = [0]


def srd(r, p, size):
    A(f"s_mov_b32 s{r}, s{p}")
    A(f"s_mov_b32 s{r+1}, s{p+1}")
    A(f"s_mov_b32 s{r+2}, {size}")
    A(f"s_mov_b32 s{r+3}, 0x20000")


def load_epoch():
    A(f"s_load_dwordx2 {S(TAG,2)}, {S(P_WS,2)}, {WS_EPOCH}")


def make_tag():
    A(f"s_add_u32 s{TAG}, s{TAG}, 0x7f4a7c15")
    A(f"s_addc_u32 s{TAG+1}, s{TAG+1}, 0x9e3779b9")


def cnt_read(r, soff):
    A(f"s_mov_b64 {S(r,2)}, 0")
    A(f"s_atomic_add_x2 {S(r,2)}, {S(P_WS,2)}, {soff if isinstance(soff, str) else 's%d' % soff} glc")


def cnt_peek(r, soff):
    A(f"s_load_dwordx2 {S(r,2)}, {S(P_WS,2)}, s{soff} glc")


def cnt_claim(q, soff):
    A(f"""
s_sub_u32 s{q}, s{q+2}, s{TAG}
s_subb_u32 s{q+1}, s{q+3}, s{TAG+1}
s_lshr_b32 s{q}, s{q}, 16
s_or_b32 s{q}, s{q}, s{q+1}
s_cselect_b64 {S(q,2)}, {S(TAG,2)}, {S(q+2,2)}
s_atomic_cmpswap_x2 {S(q,4)}, {S(P_WS,2)}, s{soff} glc
""")


def cnt_add(one, soff):
    A(f"s_atomic_add_x2 {S(one,2)}, {S(P_WS,2)}, s{soff}")


def cnt_init(soff):
    A(f"s_atomic_swap_x2 {S(TAG,2)}, {S(P_WS,2)}, s{soff}")


def cnt_test(r, n, low=False):
    A(f"s_sub_u32 s{r}, s{r}, s{TAG}")
    A(f"s_subb_u32 s{r+1}, s{r+1}, s{TAG+1}")
    if low:
        A(f"s_and_b32 s{r}, s{r}, 0xffff00ff")
    A(f"s_xor_b32 s{r}, s{r}, {n}")
    A(f"s_or_b32 s{r}, s{r}, s{r+1}")


def cnt_wait(r, soff, n, scnt, probed=True, low=False, nap=0):
    _lab[0] += 1
    k = _lab[0]
    if probed:
        cnt_test(r, n, low)
        A(f"s_cbranch_scc0 L_got{k}")
    A(f"s_mov_b32 s{scnt}, 0")
    A(f"L_spin{k}:")
    cnt_read(r, soff)
    A(f"""
s_add_u32 s{scnt}, s{scnt}, 1
s_cmp_ge_u32 s{scnt}, {SPIN}
s_waitcnt lgkmcnt(0)
s_cbranch_scc1 L_got{k}
""")
    cnt_test(r, n, low)
    if nap:
        A(f"s_cbranch_scc0 L_got{k}")
        A(f"s_sleep {nap}")
    A(f"s_cbranch_scc1 L_spin{k}")
    A(f"L_got{k}:")


def cnt_async(r, t, soff, n, scnt, **kw):
    _lab[0] += 1
    k = _lab[0]
    A(f"s_mov_b64 {S(t,2)}, {S(r,2)}")
    cnt_test(t, n)
    A(f"s_cbranch_scc0 L_as{k}")
    A("s_waitcnt lgkmcnt(0)")
    cnt_wait(r, soff, n, scnt, **kw)
    A(f"L_as{k}:")


def lwait_lds(vt, va, n=6):
    for _ in range(n):
        A(f"ds_read_b32 v{vt}, v{va}")
    A(f"s_waitcnt lgkmcnt({n})")
    A.lg = ["_"] * n


def only_wave(w, f):
    _lab[0] += 1
    k = _lab[0]
    A(f"s_cmp_lg_u32 s{SW}, {w}")
    A(f"s_cbranch_scc1 L_ow{k}")
    f()
    A(f"L_ow{k}:")


def stamp(role, name):
    if not OPT["stamps"]:
        return
    if OPT.get("only") and name not in ("end",) and name not in OPT["only"].split("+"):
        return
    l = stampnames.setdefault(role, [])
    assert len(l) < 12
    A(f"{'s_memtime' if OPT.get('cyc') else 's_memrealtime'} {S(ST0 + 2*len(l), 2)}")
    l.append(name)


def finish(role):
    if OPT["stamps"]:
        stamp(role, "end")
        A("s_waitcnt lgkmcnt(0)")
        A("s_mov_b64 exec, -1")
        A("v_mov_b32 v1, 0")
        for i in range(len(stampnames[role])):
            A(f"v_writelane_b32 v1, s{ST0+2*i}, {i}")
        A("v_and_b32 v2, 63, v0")
        A("v_lshlrev_b32 v2, 2, v2")
        A("s_lshl_b32 s60, s2, 2")
        A(f"s_add_u32 s60, s60, s{SW}")
        A("s_lshl_b32 s60, s60, 6")
        A(f"s_add_u32 s60, s60, {WS_STAMP}")
        A("s_mov_b64 exec, 0xffff")
        A(f"buffer_store_dword v1, v2, {S(R_WS,4)}, s60 offen")
    A("s_endpgm")
    A.vm, A.lg = [], []


def set_exec(mask):
    if mask == -1 or mask < (1 << 31):
        A(f"s_mov_b64 exec, {mask}")
    else:
        A(f"s_mov_b32 exec_lo, {mask & 0xffffffff:#x}")
        A(f"s_mov_b32 exec_hi, {mask >> 32:#x}")


def dump(regs, slot, vtmp):
    if not OPT["dump"]:
        return
    A(f"v_lshlrev_b32 v{vtmp}, 2, v0")
    A(f"s_sub_u32 s74, s2, {ID_B}")
    A(f"s_mul_i32 s74, s74, {32*1024}")
    A(f"s_add_u32 s74, s74, {WS_DUMP + slot*0x800000}")
    assert len(regs) <= 32
    for r in regs:
        A.v(f"buffer_store_dword v{r}, v{vtmp}, {S(R_WS,4)}, s74 offen", "dump")
        A("s_add_u32 s74, s74, 1024")
    A.vwait_all()


A(f"""
.amdgcn_target "amdgcn-amd-amdhsa--gfx950"
.text
.globl {KN}
.p2align 12
.type {KN},@function
{KN}:
s_load_dwordx16 s[4:19], s[0:1], 0
s_load_dwordx8 s[20:27], s[0:1], 64
s_load_dwordx4 s[28:31], s[0:1], 96
s_load_dwordx2 s[32:33], s[0:1], 112
""")
if OPT["stamps"]:
    A(f"{'s_memtime' if OPT.get('cyc') else 's_memrealtime'} {S(ST0,2)}")
    for r_ in ("B", "A"):
        stampnames[r_] = ["start"]
A(f"""
v_lshrrev_b32 v1, 6, v0
s_cmp_ge_u32 s2, {ID_B}
v_readfirstlane_b32 s{SW}, v1
s_cbranch_scc1 L_B
s_setprio {OPT.get('prioR', 3)}
s_cmp_ge_u32 s2, {ID_A}
s_cbranch_scc1 L_A
""")
A.c("---- code prefetch into L2 (one workgroup per die)")
A(f"""
s_getpc_b64 s[60:61]
L_pc:
v_lshlrev_b32 v2, 7, v0
v_min_u32 v2, L_codeend-L_pc-4, v2
""")
if OPT.get("pfc", 1):
    A("global_load_dword v3, v2, s[60:61]")
A("""
L_exit:
s_endpgm
""")

sST, sHP, sB, sCT = 60, 61, 62, 63
sT0, sT1, sT2, sT3 = 64, 65, 66, 67
sEV, sLO = 68, 70
sCNT, sWOFF = 72, 73
sL2E = 48
sJ, sOWN, sXL = 50, 51, 68
XB, ACC, WF, NWF = 96, 56, 16, 7
vXA, vXR = 8, 10
ONE, CQ0, CQ1, CQ2 = 6, 8, 12, 16
vGA, vKT, vOT, vOA, ID, vGW = 1, 3, 5, 6, 44, 48
vPA, vPA1, vPW, vVW, vKA, vL16, vL8 = 49, 50, 51, 52, 53, 54, 55
LDS_X = 40960
LDS_PV, LDS_WP, LDS_Z, LDS_GATE = 0, 77824, 79424, 80384
LDS_QA, LDS_QB = 40960, 16384
LDS_AT, LDS_KVT, LDS_RED = 0, 10240, 13824


def Xr(c, sg, j):
    return XB + 32 * c + 8 * j + 4 * sg


def L(text):
    return [(lambda l=l: A(l)) for l in (x.strip() for x in text.strip().split("\n")) if l]


def run(lst):
    while lst:
        lst.pop(0)()


class Stream:
    def __init__(self, budget=3):
        self.ev, self.now, self.q, self.budget = {}, {}, [], budget

    def at(self, k, fs):
        self.ev.setdefault(k, []).extend(fs if isinstance(fs, list) else [fs])

    def exact(self, k, f):
        self.now.setdefault(k, []).append(f)

    def run(self, mm, reserve=lambda k: k & 1):
        for k, m in enumerate(mm):
            m()
            j = max(i for i in range(len(A.lines)) if "v_mfma" in A.lines[i] and i >= len(A.lines) - 12)
            self.q += self.ev.pop(k, [])
            while self.q and len(A.lines) - 1 - j < self.budget - reserve(k):
                self.q.pop(0)()
            if k in self.now:
                run(self.q)
                run(self.now.pop(k))
        run(self.q)
        assert not self.ev and not self.now


def flat(items):
    o = []
    for pre, ld in items:
        o += L(pre) + [ld]
    return o


def dma_addr(v, i, div, fields, extra, t0, vl):
    t1, t2 = t0 + 1, t0 + 2
    magic = {10: 6554, 5: 13108}[div]
    for q in range(1280):
        assert (q * magic) >> 16 == q // div
    o = []
    if i:
        o.append(f"v_add_u32 v{t0}, {64*i}, v{vl}")
    q_ = t0 if i else vl
    o.append(f"v_mul_u32_u24 v{t1}, {magic}, v{q_}")
    o.append(f"v_lshrrev_b32 v{t1}, 16, v{t1}")
    o.append(f"v_mad_i32_i24 v{t0}, v{t1}, -{div}, v{q_}")
    for n, (sb, w, db) in enumerate(fields):
        if n == 0:
            assert db == 0
            o.append(f"v_bfe_u32 v{v}, v{t1}, {sb}, {w}")
        else:
            o.append(f"v_bfe_u32 v{t2}, v{t1}, {sb}, {w}")
            o.append(f"v_lshl_or_b32 v{v}, v{t2}, {db}, v{v}")
    o.append(f"v_mul_u32_u24 v{v}, 240, v{v}")
    if extra:
        o.append(f"v_add_u32 v{t2}, 3, v{t0}")
        o.append(f"v_lshrrev_b32 v{t2}, 3, v{t2}")
        o.append(f"v_mul_u32_u24 v{t2}, {extra//16}, v{t2}")
        o.append(f"v_add3_u32 v{v}, v{v}, v{t0}, v{t2}")
        o.append(f"v_lshlrev_b32 v{v}, 4, v{v}")
    else:
        o.append(f"v_add_lshl_u32 v{v}, v{v}, v{t0}, 4")
    return "\n".join(o)


def softmax(P, E, OUT, tm, pk, after_plus=None, fill=[]):
    mx, mn, acc = tm, tm + 2, tm + 4
    A(f"v_max3_f32 v{mx}, v{P}, v{P+1}, v{P+2}")
    A(f"v_min3_f32 v{mn}, v{P}, v{P+1}, v{P+2}")
    for i in range(3, 19, 2):
        A(f"v_max3_f32 v{mx}, v{mx}, v{P+i}, v{P+i+1}")
        A(f"v_min3_f32 v{mn}, v{mn}, v{P+i}, v{P+i+1}")
    A(f"v_max_f32 v{mx}, v{mx}, v{P+19}")
    A(f"v_min_f32 v{mn}, v{mn}, v{P+19}")
    if pk:
        A(f"v_mul_f32 v{mx+1}, s{sL2E}, v{mx}")
        A(f"v_mul_f32 v{mn+1}, s{sL2E}, v{mn}")
    A(f"v_mul_f32 v{mx}, s{sL2E}, v{mx}")
    A(f"v_mul_f32 v{mn}, s{sL2E}, v{mn}")
    for half in range(2):
        D = E if half == 0 else [P + 2 * i for i in range(10)]
        for i in range(10):
            if pk:
                if half == 0:
                    A(f"v_pk_fma_f32 {V(D[i],2)}, {V(P+2*i,2)}, {S(sL2E,2)}, {V(mx,2)} neg_lo:[0,0,1] neg_hi:[0,0,1]")
                else:
                    A(f"v_pk_fma_f32 {V(D[i],2)}, {V(P+2*i,2)}, {S(sL2E,2)}, {V(mn,2)} neg_lo:[1,0,0] neg_hi:[1,0,0]")
                if i >= 2:
                    A(f"v_pk_add_f32 {V(acc,2)}, {V(D[0] if i==2 else acc,2)}, {V(D[i-1],2)}")
            else:
                for n in range(2):
                    if half == 0:
                        A(f"v_fma_f32 v{D[i]+n}, v{P+2*i+n}, s{sL2E}, -v{mx}")
                    else:
                        A(f"v_fma_f32 v{D[i]+n}, -v{P+2*i+n}, s{sL2E}, v{mn}")
                if i >= 2:
                    for n in range(2):
                        A(f"v_add_f32 v{acc+n}, v{(D[0] if i==2 else acc)+n}, v{D[i-1]+n}")
            for n in range(2):
                A(f"v_exp_f32 v{D[i]+n}, v{D[i]+n}")
                if fill:
                    fill.pop(0)()
        A(f"v_add_f32 v{acc}, v{acc}, v{acc+1}")
        A(f"v_add_f32 v{acc}, v{acc}, v{D[9]}")
        A(f"v_add_f32 v{acc}, v{acc}, v{D[9]+1}")
        if pk:
            A(f"v_rcp_f32 v{acc+1}, v{acc}")
        A(f"v_rcp_f32 v{acc}, v{acc}")
        for i in range(10):
            scale(D[i], acc, pk)
            if i:
                A(f"v_cvt_pk_bf16_f32 v{OUT+10*half+i-1}, v{D[i-1]}, v{D[i-1]+1}")
        A(f"v_cvt_pk_bf16_f32 v{OUT+10*half+9}, v{D[9]}, v{D[9]+1}")
        if half == 0 and after_plus:
            after_plus()
    run(fill)


def scale(d, r, pk):
    if pk:
        A(f"v_pk_mul_f32 {V(d,2)}, {V(d,2)}, {V(r,2)}")
    else:
        A(f"v_mul_f32 v{d}, v{r}, v{d}")
        A(f"v_mul_f32 v{d+1}, v{r}, v{d+1}")


PF0, PF1, PK, PHI = 32, 76, 56, 8
EE = [76 + 2 * i for i in range(8)] + [28, 30]


def phi_frags(pf, vaddr):
    for t in range(3):
        for h in range(2):
            r = pf + 4 * t + 2 * h
            if t == 2 and h == 1:
                A(f"v_mov_b32 v{r}, 0")
                A(f"v_mov_b32 v{r+1}, 0")
            else:
                A.l(f"ds_read_b64_tr_b16 {V(r,2)}, v{vaddr} offset:{320*t+160*h}", "pf")


def phi_mfma(ops):
    for t in range(3):
        A(f"v_mfma_f32_32x32x16_bf16 {V(PK,16)}, {V(PF0+4*t,4)}, {V(ops[t],4)}, {'0' if t==0 else V(PK,16)}")
    for t in range(3):
        A(f"v_mfma_f32_16x16x32_bf16 {V(PK+16,4)}, {V(PF1+4*t,4)}, {V(ops[t],4)}, {'0' if t==0 else V(PK+16,4)}")


class FragPipe:
    def __init__(self, vaddr, look=5):
        self.vaddr, self.look = vaddr, look

    def stream(self, frags, acc):
        reads = [(lambda i=i, o=o: A.l(f"ds_read_b128 {V(WF+4*(i%NWF),4)}, v{self.vaddr} offset:{o}", f"f{i}")) for i, (ks, t, o) in enumerate(frags)]
        out = []
        for i, (ks, t, o) in enumerate(frags):
            for sg in range(2):
                def m(i=i, ks=ks, t=t, sg=sg):
                    if i == 0 and sg == 0:
                        for _ in range(self.look):
                            reads.pop(0)()
                    if sg == 0:
                        A.lwait(f"f{i}")
                    d = V(acc + 8 * t + 4 * sg, 4)
                    A(f"v_mfma_f32_16x16x32_bf16 {d}, {V(WF+4*(i%NWF),4)}, {V(Xr(ks//4,sg,ks%4),4)}, {'0' if ks==0 else d}")
                    if reads and sg == 0:
                        reads.pop(0)()
                out.append(m)
        return out


def role_B():
    A.c("---- B prologue")
    sXO, sWO2, sQO, sKW, sKF, sOF, sWC, sUT = 69, 70, 71, 74, 30, 31, 24, 25
    sRG, sCG, sUS, sKA, sUO, vU = 100, 101, 72, 18, 100, 80
    LDS_UK, LDS_UQ = 32768, 73728
    A(f"""
L_B:
s_cmp_ge_u32 s2, {ID_END}
s_cbranch_scc1 L_exit
s_setprio {OPT.get('prioB', 2)}
s_sub_u32 s{sT0}, s2, {ID_B}
s_and_b32 s{sB}, s{sT0}, 1
s_bfe_u32 s{sST}, s{sT0}, 0x20001
s_sub_u32 s{sRG}, s{sT0}, 240
s_min_u32 s{sCG}, s{sT0}, s{sRG}
s_mul_i32 s{sRG}, s{sCG}, 171
s_lshr_b32 s{sRG}, s{sRG}, 9
s_mul_i32 s{sT1}, s{sRG}, 3
s_sub_u32 s{sCG}, s{sCG}, s{sT1}
s_mul_i32 s{sUS}, s{sRG}, {8*3840}
s_mul_i32 s{sT1}, s{sCG}, 400
s_add_u32 s{sUS}, s{sUS}, s{sT1}
v_lshrrev_b32 v{vU+2}, 5, v0
v_bfe_u32 v{vU+3}, v0, 5, 2
v_mad_i32_i24 v{vU+3}, v{vU+3}, -4, v0
v_mul_u32_u24 v{vU+2}, 240, v{vU+2}
v_and_b32 v{vU}, 31, v{vU+3}
v_min_u32 v{vU}, 29, v{vU}
v_add_lshl_u32 v{vU}, v{vU}, v{vU+2}, 4
v_add_u32 v{vU+3}, -1, v{vU+3}
v_and_b32 v{vU+1}, 31, v{vU+3}
v_min_u32 v{vU+1}, 29, v{vU+1}
v_add_lshl_u32 v{vU+1}, v{vU+1}, v{vU+2}, 4
s_lshr_b32 s{sT0}, s{sT0}, 3
s_sub_u32 s{sT0}, 31, s{sT0}
s_mul_i32 s{sT1}, s{sT0}, 86
s_lshr_b32 s{sT1}, s{sT1}, 8
s_mul_i32 s{sCT}, s{sT1}, 3
s_sub_u32 s{sCT}, s{sT0}, s{sCT}
s_add_u32 s{sCT}, s{sCT}, 5
s_sub_u32 s{sT3}, s{sT0}, 12
s_mul_i32 s{sT2}, s{sT3}, 52
s_lshr_b32 s{sT2}, s{sT2}, 8
s_mul_i32 s{sJ}, s{sT2}, 5
s_sub_u32 s{sT3}, s{sT3}, s{sJ}
s_cmp_ge_u32 s{sT0}, 12
s_cselect_b32 s{sCT}, s{sT3}, s{sCT}
s_cselect_b32 s{sT1}, s{sT2}, s{sT1}
s_lshl_b32 s{sST}, s{sST}, 2
s_add_u32 s{sST}, s{sST}, s{sT1}
s_lshl_b32 s{sHP}, s{sB}, 3
s_add_u32 s{sHP}, s{sHP}, s{sCT}
s_add_u32 s{sJ}, s{sT1}, s{sCT}
s_sub_u32 s{sT1}, s{sJ}, 5
s_min_u32 s{sJ}, s{sJ}, s{sT1}
s_sub_u32 s{sT1}, s{sJ}, 5
s_min_u32 s{sJ}, s{sJ}, s{sT1}
s_lshl_b32 s{sJ}, s{sJ}, 1
s_add_u32 s{sJ}, s{sJ}, s{sB}
v_bfe_u32 v2, v0, 3, 3
v_lshl_add_u32 v2, v1, 5, v2
v_mul_u32_u24 v{vXA}, 1280, v2
v_bfe_u32 v2, v0, 4, 2
v_and_b32 v3, 7, v0
v_xor_b32 v2, v2, v3
s_mul_i32 s{sT1}, s{sST}, 163840
v_lshl_add_u32 v{vXA}, v2, 4, v{vXA}
v_add_u32 v{vXA}, s{sT1}, v{vXA}
v_xor_b32 v{vXA+1}, 64, v{vXA}
v_add_u32 v{vXA+1}, {10240-1024}, v{vXA+1}
s_lshl_b32 s{sT3}, s{SW}, 10
s_lshl_b32 s{sXL}, s{SW}, 13
s_lshl_b32 s{sXO}, s{sJ}, 7
s_mul_i32 s{sWO2}, s{sJ}, 10240
s_add_u32 s{sWO2}, s{sWO2}, s{sT3}
s_mul_i32 s{sQO}, s{sJ}, 6144
s_add_u32 s{sQO}, s{sQO}, s{sT3}
s_mov_b32 s{sL2E}, {LOG2E:#x}
s_mov_b32 s{sL2E+1}, {LOG2E:#x}
""")
    t0, t1, t2, t3 = 56, 57, 58, 59
    a0, a1, a2, a3 = 56, 57, 58, 59
    m0_, m1_ = S(56, 2), S(58, 2)
    setup = L(f"""
v_and_b32 v{vL8}, 63, v0
v_lshlrev_b32 v{vL16}, 4, v{vL8}
v_lshlrev_b32 v{vL8}, 3, v{vL8}
v_and_b32 v{t0}, 15, v0
v_lshrrev_b32 v{t1}, 1, v{t0}
v_bfe_u32 v{t2}, v0, 4, 2
v_xor_b32 v{t1}, v{t1}, v{t2}
v_lshlrev_b32 v{t1}, 4, v{t1}
v_lshl_add_u32 v{vXR}, v{t0}, 7, v{t1}
v_add_u32 v{vXR}, s{sXL}, v{vXR}
v_xor_b32 v{vXR+1}, 64, v{vXR}
v_lshrrev_b32 v{t1}, 5, v0
v_lshl_add_u32 v{vGW}, v{t1}, 4, v{t0}
v_lshlrev_b32 v{vGW}, 2, v{vGW}
v_add_u32 v{vGW}, {LDS_GATE}, v{vGW}
v_bfe_u32 v{t0}, v0, 5, 1
v_and_b32 v{t1}, 1, v0
v_bfe_u32 v{t2}, v0, 1, 1
v_cmp_eq_u32 {m0_}, v{t1}, v{t0}
v_mul_u32_u24 v{vPA1}, 800, v{t0}
v_bfe_u32 v{t1}, v0, 2, 2
v_mad_u32_u24 v{vPA1}, v{t1}, 40, v{vPA1}
v_add_u32 v{vPA1}, {LDS_WP}, v{vPA1}
v_lshl_add_u32 v{vPA}, v{t2}, 3, v{vPA1}
v_bfe_u32 v{t2}, v0, 4, 1
v_lshl_add_u32 v{vPA}, v{t2}, 4, v{vPA}
v_mov_b32 v{t3}, {LDS_Z}
v_cndmask_b32 v{vPA}, v{t3}, v{vPA}, {m0_}
v_lshlrev_b32 v{vKA}, 1, v{t0}
v_lshl_add_u32 v{vKA}, v{t1}, 2, v{vKA}
v_mul_u32_u24 v{vKA}, 272, v{vKA}
v_and_b32 v{t1}, 3, v0
v_lshl_add_u32 v{t2}, v{t2}, 2, v{t1}
v_lshl_add_u32 v{vKA}, v{t2}, 3, v{vKA}
v_bfe_u32 v{t2}, v0, 4, 2
v_cmp_eq_u32 {m0_}, v{t1}, v{t2}
v_add_u32 v{vPA1}, 32, v{vPA1}
v_and_b32 v{t1}, 31, v0
v_lshrrev_b32 v{t2}, 6, v0
v_cndmask_b32 v{vPA1}, v{t3}, v{vPA1}, {m0_}
v_lshl_add_u32 v{t1}, v{t2}, 5, v{t1}
v_mul_u32_u24 v{t1}, 272, v{t1}
v_mul_u32_u24 v{t3}, 80, v{t0}
v_add_u32 v{vPW}, v{t1}, v{t3}
v_mad_u32_u24 v{vVW}, v{t0}, 48, v{t1}
v_mad_u32_u24 v{vKA}, v{t2}, 40, v{vKA}
v_and_b32 v{vGA}, 31, v0
v_add_u32 v{vGA+1}, 32, v{vGA}
v_min_u32 v{vGA+1}, 54, v{vGA+1}
v_bfe_u32 v{a3}, v0, 5, 1
v_lshlrev_b32 v{a0}, 3, v{a3}
v_lshl_add_u32 v{vOT}, v{vGA}, 4, v{a0}
v_lshlrev_b32 v{a0}, 10, v{a3}
v_lshl_add_u32 v{vGA}, v{vGA}, 4, v{a0}
v_lshl_add_u32 v{vGA+1}, v{vGA+1}, 4, v{a0}
v_and_b32 v{a0}, 15, v0
v_bfe_u32 v{a1}, v0, 4, 1
v_mad_i32_i24 v{a2}, v{a1}, -8, v{a0}
v_lshl_add_u32 v{a0}, v{a3}, 4, v{a0}
v_and_b32 v{vKT}, 1, v{a2}
v_lshlrev_b32 v{vKT}, 4, v{vKT}
v_mov_b32 v{vKT+1}, 0x3f80
v_lshlrev_b32 v{vKT}, v{vKT}, v{vKT+1}
v_lshrrev_b32 v{a2}, 1, v{a2}
v_cmp_eq_u32 {m0_}, 0, v{a2}
v_cmp_eq_u32 {m1_}, 1, v{a2}
s_lshr_b32 s73, s{SW}, 1
v_cndmask_b32 v{ID}, 0, v{vKT}, {m0_}
v_cndmask_b32 v{ID+1}, 0, v{vKT}, {m1_}
v_cmp_eq_u32 {m0_}, 2, v{a2}
v_cmp_eq_u32 {m1_}, 3, v{a2}
s_mul_i32 s73, s73, 1680
v_cndmask_b32 v{ID+2}, 0, v{vKT}, {m0_}
v_cndmask_b32 v{ID+3}, 0, v{vKT}, {m1_}
s_mul_i32 s75, s{SW}, 40
s_add_u32 s73, s73, s75
s_add_u32 s73, s73, {LDS_KVT}
v_cmp_le_u32 {m0_}, 22, v{a0}
v_cmp_le_u32 {m1_}, 12, v{a0}
v_mul_u32_u24 v{vKT}, 80, v{a0}
v_mov_b32 v{a2}, {8-22*80}
v_cndmask_b32 v{a2}, 0, v{a2}, {m0_}
v_lshl_add_u32 v{vKT}, v{a1}, 4, v{vKT}
v_add_u32 v{vKT+1}, 808, v{vKT}
v_add3_u32 v{vKT}, v{vKT}, v{a2}, s73
v_lshl_add_u32 v{a2}, v{a0}, 1, v{a1}
v_mul_u32_u24 v{a2}, 80, v{a2}
v_subrev_u32 v{a2}, {24*80-32}, v{a2}
v_cndmask_b32 v{vKT+1}, v{vKT+1}, v{a2}, {m1_}
v_add_u32 v{vKT+1}, s73, v{vKT+1}
v_bfe_u32 v{a0}, v0, 2, 1
v_cmp_eq_u32 {m0_}, v{a0}, v{a3}
v_bfe_u32 v{a1}, v0, 3, 2
v_and_b32 v{a2}, 3, v0
v_lshl_add_u32 v{a1}, v{a1}, 2, v{a2}
v_mad_u32_u24 v{a1}, v{a0}, 22, v{a1}
v_mul_u32_u24 v{a1}, 80, v{a1}
v_add_u32 v{vOA}, {LDS_KVT}, v{a1}
v_add_u32 v{vOA+1}, {LDS_KVT+1280}, v{a1}
v_mov_b32 v{a2}, {LDS_Z}
v_cndmask_b32 v{vOA}, v{a2}, v{vOA}, {m0_}
v_cndmask_b32 v{vOA+1}, v{a2}, v{vOA+1}, {m0_}
v_lshlrev_b32 v{t1}, 2, v0
v_min_u32 v{t1}, 700, v{t1}
v_add_u32 v{t1}, {LDS_Z}, v{t1}
v_mov_b32 v{t2}, 0
""")
    setup.append(lambda: A.l(f"ds_write_b32 v{t1}, v{t2}", "z"))
    def wrap(sreg, step, size):
        return f"s_add_u32 s{sreg}, s{sreg}, {step}\ns_sub_u32 s{sT2}, s{sreg}, {size}\ns_min_u32 s{sreg}, s{sreg}, s{sT2}\n"

    def xslot(u):
        return 2048 * (u & 3) + (0 if BORROW and 4 <= u < 8 else LDS_X)

    def issue_x(u):
        if u >= 20:
            return []
        pre = f"s_add_u32 m0, s{sXL}, {xslot(u)}\n"
        if u & 1:
            pre += f"s_add_u32 s{sT0}, s{sXO}, 20480\n" + wrap(sXO, 128, 1280)
        so = sT0 if u & 1 else sXO
        return [(pre if i == 0 else "", lambda i=i: A.v(f"buffer_load_dwordx4 v{vXA+i}, {S(R_X,4)}, s{so} offen offset:{1024*i} lds", f"x{u}")) for i in range(2)]

    def read_x(u):
        A.vwait(f"x{u}")
        for jj in range(2):
            A.l(f"ds_read_b128 {V(Xr(u//4,u&1,(u&2)+jj),4)}, v{vXR+jj} offset:{xslot(u)}", f"xr{u}")

    wround, qround = [0], [0]

    def issue_w(upto):
        o = []
        for i in range(wround[0], min(upto, 25)):
            pre = f"s_add_u32 m0, s{sT3}, {4096*(i%10)}\n" + (wrap(sWO2, 4096, 102400) if i else "")
            o.append((pre, lambda i=i: A.v(f"buffer_load_dwordx4 v{vL16}, {S(R_W,4)}, s{sWO2} offen sc1 lds", f"w{i}")))
        wround[0] = max(wround[0], min(upto, 25))
        return o

    def issue_q(upto):
        o = []
        for i in range(qround[0], upto):
            pre = f"s_add_u32 m0, s{sT3}, {LDS_QA+4096*i if i < 9 else LDS_QB+4096*(i-9)}\n" + (wrap(sQO, 4096, 61440) if i else "")
            o.append((pre, lambda i=i: A.v(f"buffer_load_dwordx4 v{vL16}, {S(R_M1,4)}, s{sQO} offen sc1 lds", f"q{i}")))
        qround[0] = upto
        return o
    NEED = lambda h: (10 * h + 9) // 4 + 1
    FREED = lambda h: (10 * h + 6) // 4 + 1

    U2, U3 = OPT.get("u2", 8), OPT.get("u3", 11)
    BORROW = U2 >= 8
    NX0, NX1, NXR = OPT.get("nx0", 1), OPT.get("nx1", 3), 8 if BORROW else 4
    for q in range(240):
        assert (q * 171) >> 9 == q // 3
    for _ in range(OPT.get("npre", 30)):
        setup.pop(0)()
    A("s_waitcnt lgkmcnt(0)")
    A.c("---- this workgroup's share of the weight repack: 8 rows x 6 head pairs of wqkv -> MFMA fragment order")
    srd(R_W, P_WQKV, 2457600)
    for i in range(2):
        A(f"s_add_u32 m0, s{sT3}, {LDS_UK+4096*i}")
        A(f"s_add_u32 s{sT0}, s{sUS}, {1280*(i+1)}")
        A.v(f"buffer_load_dwordx4 v{vU+i}, {S(R_W,4)}, s{sT0} offen lds", "uk")

    def load_uq():
        A(f"s_add_u32 m0, s{sT3}, {LDS_UQ}")
        A("s_nop 0")
        A.v(f"buffer_load_dwordx4 v{vU}, {S(R_W,4)}, s{sUS} offen lds", "uq")
    if OPT.get("qe", 1):
        load_uq()
    load_epoch()
    srd(R_X, P_U, 2621440)
    for u in range(NX0):
        run(flat(issue_x(u)))
    A(f"""
s_lshl_b32 s{sKA}, s{sCG}, 2
s_add_u32 s{sKA}, s{sKA}, s{SW}
s_lshl_b32 s{sKA}, s{sKA}, 2
s_and_b32 s{sT1}, s{sRG}, 3
s_add_u32 s{sKA}, s{sKA}, s{sT1}
s_lshl_b32 s{sKA}, s{sKA}, 8
s_lshl_b32 s{sUT}, s{sJ}, 8
s_add_u32 s{sUT}, s{sUT}, {C_UT}
s_mov_b64 {S(ONE,2)}, 1
s_lshl_b32 s{sOWN}, s{SW}, 3
s_add_u32 s{sOWN}, s{sOWN}, s{sCT}
""")

    def guarded(cmp_, f):
        _lab[0] += 1
        k = _lab[0]
        A(cmp_)
        A(f"s_cbranch_scc1 L_rp{k}")
        f()
        A(f"L_rp{k}:")
    reporter = lambda f: guarded(f"s_cmp_ge_u32 s{sOWN}, 5", f)
    producer = lambda f: guarded(f"s_cmp_ge_u32 s2, {ID_B+240}", f)
    cnt_read(CQ0 + 2, sKA)
    reporter(lambda: cnt_read(CQ1 + 2, sUT))
    stamp("B", "iss0")
    srd(R_M1, P_WPHI, 25600)
    srd(R_WS, P_WS, WS_SIZE)
    A(f"""
s_lshl_b32 s{sT1}, s{sRG}, 4
s_load_dwordx4 {S(20,4)}, {S(P_GATE,2)}, s{sT1}
s_lshl_b32 s{sKF}, s{sHP}, 2
s_add_u32 s{sKF}, s{sKF}, s{SW}
s_lshl_b32 s{sKF}, s{sKF}, 8
s_add_u32 s{sKF}, s{sKF}, {C_KV}
s_lshl_b32 s{sOF}, s{sST}, 1
s_lshr_b32 s{sT1}, s{SW}, 1
s_add_u32 s{sOF}, s{sOF}, s{sT1}
s_lshl_b32 s{sOF}, s{sOF}, 2
s_lshr_b32 s{sT1}, s{sHP}, 2
s_add_u32 s{sOF}, s{sOF}, s{sT1}
s_lshl_b32 s{sOF}, s{sOF}, 8
s_add_u32 s{sOF}, s{sOF}, {C_O}
s_mul_i32 s{sKW}, s{sHP}, 52
s_lshr_b32 s{sKW}, s{sKW}, 8
s_min_u32 s{sKW}, s{sKW}, 2
s_lshl_b32 s{sKW}, s{sKW}, 2
s_and_b32 s{sT1}, s{sST}, 3
s_add_u32 s{sKW}, s{sKW}, s{sT1}
s_lshl_b32 s{sKW}, s{sKW}, 2
s_add_u32 s{sKW}, s{sKW}, s{SW}
s_lshl_b32 s{sKW}, s{sKW}, 8
""")
    vR, vS, c0, c1, c2, c3 = 84, 88, 92, 93, 94, 95
    A(f"""
v_bfe_u32 v{c0}, v0, 2, 2
v_bfe_u32 v{c1}, v0, 1, 1
v_mul_u32_u24 v{c1}, 40, v{c1}
v_lshl_add_u32 v{c1}, v{c0}, 6, v{c1}
v_and_b32 v{c2}, 1, v0
v_lshl_add_u32 v{c1}, v{c2}, 4, v{c1}
v_lshlrev_b32 v{c0}, 9, v{c0}
v_lshl_add_u32 v{c2}, v{c2}, 12, v{c0}
v_bfe_u32 v{vU+2}, v0, 4, 2
v_and_b32 v{vU+3}, 15, v0
""")
    for n in range(2):
        A(f"""
v_lshrrev_b32 v{c3}, 6, v0
v_lshl_add_u32 v{c3}, v{c3}, 3, v{vU+2}
v_add_u32 v{c3}, {4*n}, v{c3}
v_min_u32 v{c3}, 29, v{c3}
v_mul_u32_u24 v{vS+n}, 52, v{c3}
v_lshrrev_b32 v{vS+n}, 8, v{vS+n}
v_mad_u32_u24 v{vR+n}, v{vS+n}, 5, v{c3}
v_lshl_add_u32 v{vR+n}, v{vR+n}, 3, v{c1}
v_and_b32 v{vR+n}, 511, v{vR+n}
v_add_u32 v{vR+n}, v{vR+n}, v{c2}
v_mul_u32_u24 v{vS+n}, 95, v{vS+n}
v_add_lshl_u32 v{vS+n}, v{vS+n}, v{c3}, 10
v_lshl_add_u32 v{vS+n}, v{vU+3}, 4, v{vS+n}
""")
    A(f"""
v_lshrrev_b32 v{c3}, 4, v0
v_add_u32 v{c3}, s{sCG}, v{c3}
v_mul_u32_u24 v{vS+2}, 86, v{c3}
v_lshrrev_b32 v{vS+2}, 8, v{vS+2}
v_mad_i32_i24 v{c3}, v{vS+2}, -3, v{c3}
v_and_b32 v{c2}, 2, v{c3}
v_add_u32 v{vR+2}, v{c3}, v{c2}
v_mad_u32_u24 v{vR+2}, v{vS+2}, 10, v{vR+2}
v_lshl_add_u32 v{vR+2}, v{vR+2}, 3, v{c1}
v_and_b32 v{vR+2}, 511, v{vR+2}
v_add_u32 v{vR+2}, v{vR+2}, v{c0}
v_add_u32 v{vR+2}, {LDS_UQ}, v{vR+2}
v_mad_u32_u24 v{vS+2}, v{vS+2}, 60, v{c3}
v_lshlrev_b32 v{vS+2}, 10, v{vS+2}
v_lshl_add_u32 v{vS+2}, v{vU+3}, 4, v{vS+2}
v_lshlrev_b32 v{c2}, 1, v{c2}
v_and_b32 v{vS+3}, v{c2}, v0
""")
    for q in range(18):
        assert (q * 86) >> 8 == q // 3
    run(setup)
    srd(R_M2, P_OUT, 2621440)
    A(f"""
s_lshr_b32 s{sT1}, s{sRG}, 2
s_and_b32 s{sT2}, s{sRG}, 3
s_lshl_b32 s{sT2}, s{sT2}, 8
s_mul_i32 s73, s{sCG}, 100
s_add_u32 s{sT1}, s{sT1}, s73
s_mul_i32 s73, s{sT1}, 5120
s_add_u32 s73, s73, s{sT2}
s_add_u32 s73, s73, {WS_WKV}
s_mul_i32 s75, s{sT1}, 3072
s_add_u32 s75, s75, s{sT2}
s_add_u32 s75, s75, {WS_WQ}
s_sub_u32 s19, s2, {ID_B}
s_lshl_b32 s{sT1}, s{SW}, 8
s_add_u32 s{sT1}, s{sT1}, s19
s_lshl_b32 s19, s19, 8
s_add_u32 s19, s19, {C_KV}
""")
    A.lwait_all()
    make_tag()
    cnt_claim(CQ0, sKA)
    reporter(lambda: cnt_claim(CQ1, sUT))
    guarded(f"s_cmp_ge_u32 s{sT1}, 192", lambda: cnt_init(19))
    QE = OPT.get("qe", 1)

    def q_share():
        for h in range(2):
            A.l(f"ds_read_b64_tr_b16 {V(76+2*h,2)}, v{vR+2} offset:{2048*h}", "_")
        lwait_lds(c0, vL8, 8)
        A("s_mov_b64 exec, vcc")
        for p in range(4):
            A(f"v_mov_b32 v{76+p}, s{20+p}")
        A("s_mov_b64 exec, -1")
        A.v(f"buffer_store_dwordx4 {V(76,4)}, v{vS+2}, {S(R_WS,4)}, s75 offen sc1", "qst")
    TA_ = [81, 93, 94, 95]

    def hand_over():
        for it in range(4):
            for h in range(2):
                A(f"ds_read_b64_tr_b16 {V(16+4*it+2*h,2)}, v{TA_[it ^ (1-h)]} offset:{LDS_X+512*(1-h)}")
        lwait_lds(c0, vL8, 8)
        for it in range(0 if OPT.get('nout') else 4):
            A(f"buffer_store_dwordx4 {V(16+4*it,4)}, v82, {S(R_WS,4)}, s{sUO} offen sc1")
            if it < 3:
                A(f"s_add_u32 s{sUO}, s{sUO}, 65536")
    A(f"v_cmp_ne_u32 vcc, 0, v{vS+3}")
    A.vwait("uk", "uq")
    A("s_barrier")
    stamp("B", "ukv")
    for n in range(2):
        for h in range(2):
            A.l(f"ds_read_b64_tr_b16 {V(56+4*n+2*h,2)}, v{vR+n} offset:{LDS_UK+2048*h}", "_")
    lwait_lds(c0, vL8, 8)
    for n in range(2):
        A.v(f"buffer_store_dwordx4 {V(56+4*n,4)}, v{vS+n}, {S(R_WS,4)}, s73 offen sc1", "kst")
    if QE:
        q_share()
    else:
        load_uq()
    for u in range(NX0, NX1):
        run(flat(issue_x(u)))
    A(f"""
s_mul_i32 s{sT1}, s{SW}, 400
s_add_u32 m0, s{sT1}, {LDS_WP}
s_mul_i32 s{sT2}, s{sHP}, 1600
s_add_u32 s{sT1}, s{sT1}, s{sT2}
s_mov_b64 exec, 0x1ffffff
""")
    A.v(f"buffer_load_dwordx4 v{vL16}, {S(R_M1,4)}, s{sT1} offen lds", "wp")
    A("s_mov_b64 exec, -1")
    A(f"""
s_mul_i32 s{sT1}, s{sHP}, 102400
s_add_u32 s{sT1}, s{sT1}, {WS_WKV}
s_add_u32 s{R_W}, s{P_WS}, s{sT1}
s_addc_u32 s{R_W+1}, s{P_WS+1}, 0
s_mov_b32 s{R_W+2}, 102400
s_mul_i32 s{sT1}, s{sHP}, 61440
s_add_u32 s{sT1}, s{sT1}, {WS_WQ}
s_add_u32 s{R_M1}, s{P_WS}, s{sT1}
s_addc_u32 s{R_M1+1}, s{P_WS+1}, 0
s_mov_b32 s{R_M1+2}, 61440
v_not_b32 v80, v0
v_bfe_u32 v81, v80, 4, 2
v_bfe_u32 v80, v80, 2, 2
v_lshl_add_u32 v81, v81, 3, v80
v_bfe_u32 v82, v81, 1, 3
v_bfe_u32 v83, v0, 1, 1
v_xor_b32 v82, v82, v83
v_lshlrev_b32 v82, 4, v82
v_lshl_add_u32 v81, v81, 7, v82
v_and_b32 v82, 1, v0
v_lshl_add_u32 v81, v82, 3, v81
v_add_u32 v81, s{sXL}, v81
v_bfe_u32 v82, v0, 2, 2
v_lshlrev_b32 v82, 14, v82
v_and_b32 v83, 3, v0
v_lshl_add_u32 v82, v83, 4, v82
v_and_b32 v83, 0x30, v0
v_lshl_add_u32 v82, v83, 2, v82
v_xor_b32 v93, 32, v81
v_xor_b32 v94, 64, v81
v_xor_b32 v95, 96, v81
s_lshl_b32 s{sT1}, s{sST}, 2
s_add_u32 s{sT1}, s{sT1}, s{SW}
s_sub_u32 s{sT1}, 63, s{sT1}
s_lshl_b32 s{sT1}, s{sT1}, 8
s_lshl_b32 s73, s{sJ}, 18
s_add_u32 s{sT1}, s{sT1}, s73
s_add_u32 s{sUO}, s{sT1}, {WS_UT}
""")
    A.vwait("kst", "qst")
    A.lwait_all()
    A(f"s_mov_b64 {S(CQ1,2)}, {257 if QE else 256}")
    A("s_barrier")
    producer(lambda: cnt_add(CQ1 if QE else ONE, sKA))
    stamp("B", "kflag")
    if not QE:
        A.vwait("uq")
        A("s_barrier")
        q_share()
    A.vwait("x1")
    guarded(f"s_cmp_ge_u32 s{sCT}, 5", hand_over)
    stamp("B", "utst")
    assert 2 <= NX1 < NXR
    for u in range(NX1, NXR):
        run(flat(issue_x(u)))
    stamp("B", "iss1")

    def refill(u):
        return u + 4 if not BORROW or u >= 8 else (u + 8 if u < 4 else 99)

    A.c("---- x tile -> registers")
    for u in range(U3 + 1):
        read_x(u)
        ld = []
        if u:
            A.lwait(f"xr{u-1}")
            ld += issue_x(refill(u - 1))
        if u == NX1:
            A("s_barrier")
            if not QE:
                producer(lambda: cnt_add(CQ1, sKA))
            reporter(lambda: cnt_add(ONE, sUT))
            stamp("B", "utflag")
        if u == U2:
            run(flat(ld))
            ld = []
            cnt_wait(CQ0, sKW, 20, sCNT, probed=False, low=True, nap=OPT.get('napw', 0))
            A("s_barrier")
            stamp("B", "kwseen")
        if u >= U2:
            ld = issue_w(min(10, wround[0] + OPT.get("wper", 3))) + ld
        run(flat(ld))
    assert U2 >= NX1

    def ready(h):
        A.vwait(f"w{NEED(h)-1}")
        A("s_barrier")
        stamp("B", f"w{h}")

    A.c("---- GEMM1a: k and v for two heads, 20 k-steps in one stream")
    run(flat(issue_w(NEED(1))))
    ready(0)
    pipe = FragPipe(vL16)
    mm = pipe.stream([(n // 5, n % 5, 1024 * (n % 40)) for n in range(100)], ACC)
    st_ = Stream()
    st_.at(0, flat(issue_w(10)))
    u = U3 + 1
    lastx = [0]
    for h in range(10):
        k0 = 20 * h
        for kk in (0, 5, 14):
            if u < 20:
                st_.at(k0 + kk, [lambda u=u: read_x(u), lambda u=u: A.lwait(f"xr{u-1}")] + flat(issue_x(refill(u - 1))))
                u += 1
                lastx[0] = k0 + kk
        if h < 9:
            st_.exact(k0 + 19 - 2 * pipe.look, lambda h=h: ready(h + 1))
            mm[k0 + 20] = (lambda f=mm[k0 + 20], h=h: (need_x(h + 1), f()))
        if h:
            st_.at(k0 + 20 - 2 * pipe.look, flat(issue_w(10 + FREED(h - 1))))

    def need_x(h):
        assert f"x{2*h+1}" not in A.vm
        A.lwait(f"xr{2*h}", f"xr{2*h+1}")

    HQ = OPT.get("hq", 6)
    assert u == 20 and lastx[0] < 20 * HQ
    st_.at(20 * HQ - 50, L(f"""
s_and_b32 s{sWC}, s{sCT}, 4
s_add_u32 s{sWC}, s{sWC}, s{SW}
s_lshl_b32 s{sWC}, s{sWC}, 8
s_add_u32 s{sWC}, s{sWC}, {C_WO}
s_and_b32 s20, s{sKW}, 0xfff
s_add_u32 s21, s20, 0x1000
s_add_u32 s22, s20, 0x2000
""") + [(lambda i=i: cnt_read(CQ0 + 2 * i, 20 + i)) for i in range(3)])
    st_.at(20 * HQ + 2, [lambda: A.lwait("xr19")] + [(lambda i=i: cnt_async(CQ0 + 2 * i, 14, 20 + i, 20 * 257, sCNT, nap=2)) for i in range(3)])
    for h in range(HQ, 10):
        st_.at(20 * h + 21 - 2 * pipe.look, flat(issue_q(9 if h == 9 else min(9, qround[0] + OPT.get("qper", 3)))))
    need_x(0)
    st_.run(mm)
    assert wround[0] == 25
    stamp("B", "g1a")
    if OPT.get("fine"):
        finish("B")
        return

    A.c("---- phi_k, kv partial")
    KP, VP = 8, 20
    phi_frags(PF0, vPA)
    for t in range(5):
        for sg in range(2):
            for hh in range(2):
                a_ = ACC + 8 * t + 4 * sg + 2 * hh
                A(f"v_cvt_pk_bf16_f32 v{(KP if sg==0 else VP)+2*t+hh}, v{a_}, v{a_+1}")
    phi_frags(PF1, vPA1)
    A(f"""
v_mov_b32 v{KP+10}, 0
v_mov_b32 v{KP+11}, 0
""")
    for i in range(10):
        A(f"v_permlane16_swap_b32 v{KP+i}, v{VP+i}")
    A(f"""
v_mov_b32 v{VP+10}, 0x3f80
v_mov_b32 v{VP+11}, 0
""")
    A.lwait_all()
    phi_mfma([KP, KP + 4, KP + 8])
    cnt_read(CQ0 + 2, sWC)
    A("s_barrier")
    for i in range(3):
        A.l(f"ds_write_b128 v{vVW}, {V(VP+4*i,4)} offset:{LDS_PV+160+16*i}", "pv")
    stamp("B", "pmf")

    def wr_plus():
        for i in range(2):
            A.l(f"ds_write_b128 v{vPW}, {V(PHI+4*i,4)} offset:{LDS_PV+16*i}", "pv")
    softmax(PK, EE, PHI, 32, OPT.get('pk1', 0), wr_plus)
    for i in range(2, 5):
        A.l(f"ds_write_b128 v{vPW}, {V(PHI+4*i,4)} offset:{LDS_PV+16*i}", "pv")
    stamp("B", "smx")
    vKB, vQR = vVW, vPW
    A(f"""
s_lshr_b32 s{sT0}, s{SW}, 1
s_mul_i32 s{sT0}, s{sT0}, 48
s_mul_i32 s{sT1}, s{SW}, 40
s_sub_u32 s{sT0}, s{sT0}, s{sT1}
s_add_u32 s{sT0}, s{sT0}, 160
v_add_u32 v{vKB}, s{sT0}, v{vKA}
""")
    A.lwait_all()
    A("s_barrier")
    stamp("B", "phik")
    KD = 28
    FR = [56, 64, 72, 80]

    def kvreads(ks):
        for h in range(2):
            A.l(f"ds_read_b64_tr_b16 {V(FR[ks%4]+2*h,2)}, v{vKA} offset:{LDS_PV+ks*4352+h*272}", f"kv{ks}")
        for h in range(2):
            A.l(f"ds_read_b64_tr_b16 {V(FR[ks%4]+4+2*h,2)}, v{vKB} offset:{LDS_PV+ks*4352+h*272}", f"kv{ks}")
    for ks in range(3):
        kvreads(ks)
    sWO = 75
    fl = L(f"""
v_and_b32 v14, 31, v0
v_bfe_u32 v15, v0, 5, 1
v_mad_u32_u24 v15, v15, 22, v14
v_lshlrev_b32 v15, 4, v15
s_lshl_b32 s{sT0}, s{sHP}, 2
s_add_u32 s{sT0}, s{sT0}, s{SW}
s_lshl_b32 s{sT1}, s{sT0}, 4
s_add_u32 s{sT1}, s{sT1}, s{sST}
s_lshl_b32 s{sT1}, s{sT1}, 10
s_add_u32 s{sT1}, s{sT1}, {WS_KVP}
v_add_u32 v{vQR}, {LDS_QB}, v{vL16}
""")
    for ks in range(8):
        A.lwait(f"kv{ks}")
        A(f"v_mfma_f32_32x32x16_bf16 {V(KD,16)}, {V(FR[ks%4],4)}, {V(FR[ks%4]+4,4)}, {'0' if ks==0 else V(KD,16)}")
        if ks + 3 < 8:
            kvreads(ks + 3)
        else:
            for _ in range(5):
                if fl:
                    fl.pop(0)()
    run(fl)
    A.vwait("q8")
    A("s_barrier")
    for i in range(6):
        A(f"v_cvt_pk_bf16_f32 v{8+i}, v{KD+2*i}, v{KD+2*i+1}")
    set_exec(0x003FFFFF003FFFFF)
    A.v(f"buffer_store_dwordx4 {V(8,4)}, v15, {S(R_WS,4)}, s{sT1} offen sc1", "kvst")
    A("s_mov_b32 exec_hi, 0")
    A.v(f"buffer_store_dwordx2 {V(12,2)}, v{vL8}, {S(R_WS,4)}, s{sT1} offen offset:704 sc1", "kvst")
    A("s_mov_b64 exec, -1")
    stamp("B", "kvst")
    if not OPT.get('abl'):
        cnt_wait(CQ0 + 2, sWC, 20, sCNT, nap=8)

    A.c("---- GEMM1b (q); wo fragments stream into the x registers as they die")
    QA = 56
    WOR = [XB + 4 * i for i in range(24)] + [92]
    G = Xr(3, 0, 0)
    pipe = FragPipe(vQR)
    mm = pipe.stream([(n // 3, n % 3, LDS_QA - LDS_QB + 1024 * n if n < 36 else 1024 * (n - 36)) for n in range(60)], QA)

    def issue_wo(f0, f1):
        o = []
        for f in range(f0, f1):
            ii, jn = divmod(f, 5)
            pre = ""
            if jn == 0 and ii < 4:
                pre = f"s_add_u32 s{sWC}, s{sST}, {ii}\ns_and_b32 s{sWC}, s{sWC}, 3\ns_mul_i32 s{sWC}, s{sWC}, 5120\ns_add_u32 s{sWC}, s{sWC}, s{sWO}\n"
            elif jn == 0:
                pre = f"s_add_u32 s{sWC}, s{sWO}, 20480\n"
            elif jn == 4:
                pre = f"s_add_u32 s{sWC}, s{sWC}, 4096\n"
            o.append((pre, lambda f=f, jn=jn: A.v(f"buffer_load_dwordx4 {V(WOR[f],4)}, v{vL16}, {S(R_WS,4)}, s{sWC} offen offset:{1024*(jn%4)} sc1", "wo")))
        return o

    def kv_flag():
        A.vwait("kvst")
        cnt_add(ONE, sKF)

    def q2_ready():
        A.vwait("q14")
        A("s_barrier")

    st_ = Stream()
    st_.at(0, flat(issue_q(15)) + L(f"""
s_mul_i32 s{sWO}, s{sCT}, 102400
s_mul_i32 s{sT1}, s{SW}, 25600
s_add_u32 s{sWO}, s{sWO}, s{sT1}
s_add_u32 s{sWO}, s{sWO}, {WS_WO}
"""))
    st_.exact(OPT.get("kvf", 30), kv_flag)
    wol = issue_wo(0, 25)
    NW1, NW2 = OPT.get("nw1", 10), OPT.get("nw2", 20)
    for f_, g_ in enumerate(wol[:NW1]):
        st_.at(max(8 + 3 * f_, OPT.get("wo0", 16) + OPT.get("wostep", 5) * f_), flat([g_]))
    st_.exact(72 - 2 * pipe.look - 1, q2_ready)
    st_.at(OPT.get("kvp", 84), lambda: cnt_read(CQ0, sKF))
    st_.run(mm)
    stamp("B", "g1b")

    A.c("---- gather kv partials, phi_q")
    phi_frags(PF0, vPA)
    A(f"""
s_lshl_b32 s{sT0}, s{sT0}, 14
s_add_u32 s{sT0}, s{sT0}, {WS_KVP}
""")
    A.lwait_all()
    cnt_wait(CQ0, sKF, 16, sCNT)
    stamp("B", "kvseen")
    gl = []
    for pp in range(8):
        for g2 in range(2):
            def f(pp=pp, g2=g2):
                if g2 == 0 and pp % 2 == 0:
                    A(f"s_add_u32 s{sT1}, s{sST}, {pp//2}")
                    A(f"s_and_b32 s{sT1}, s{sT1}, 3")
                    A(f"s_lshl_b32 s{sT1}, s{sT1}, 12")
                    A(f"s_add_u32 s{sT1}, s{sT1}, s{sT0}")
                A.v(f"buffer_load_dwordx4 {V(G+8*pp+4*g2,4)}, v{vGA+g2}, {S(R_WS,4)}, s{sT1} offen offset:{2048*(pp&1)} sc1", f"g{pp}")
            gl.append(f)
    for _ in range(8):
        gl.pop(0)()
    Q0, Q1 = 8, 16
    for t in range(3):
        for sg in range(2):
            for hh in range(2):
                a_ = QA + 8 * t + 4 * sg + 2 * hh
                A(f"v_cvt_pk_bf16_f32 v{(Q0 if sg==0 else Q1)+2*t+hh}, v{a_}, v{a_+1}")
    A(f"""
s_mov_b32 exec_lo, 0
v_mov_b32 v{QA+16}, v{QA+20}
s_mov_b32 exec_lo, 0xffff0000
s_mov_b32 exec_hi, 0xffff0000
""")
    A.l(f"ds_write_b32 v{vGW}, v{QA+16}", "gw")
    A("s_mov_b64 exec, -1")
    phi_frags(PF1, vPA1)
    A(f"v_mov_b32 v{Q0+6}, 0")
    A(f"v_mov_b32 v{Q0+7}, 0")
    for i in range(6):
        A(f"v_permlane16_swap_b32 v{Q0+i}, v{Q1+i}")
    A.lwait("pf")
    phi_mfma([Q0, Q1, Q0 + 4])
    run(gl)
    softmax(PK, EE, PHI, 32, OPT.get('pk3', 0), None, flat(wol[NW1:NW2]))
    stamp("B", "phiq")
    RD = 32
    for pp in range(8):
        A.vwait(f"g{pp}")
        for g2 in range(2):
            d = V(RD + 4 * g2, 4)
            A(f"v_mfma_f32_16x16x32_bf16 {d}, {V(ID,4)}, {V(G+8*pp+4*g2,4)}, {'0' if pp==0 else d}")
    A(f"""
s_lshl_b32 s{sT1}, s{sST}, 2
s_add_u32 s{sT1}, s{sT1}, s{SW}
s_lshl_b32 s{sT1}, s{sT1}, 4
s_add_u32 s{sT1}, s{sT1}, s{sHP}
s_mul_i32 s{sT1}, s{sT1}, 2560
s_add_u32 s{sT1}, s{sT1}, {WS_O}
""")
    for i in range(4):
        A(f"v_cvt_pk_bf16_f32 v{40+i}, v{RD+2*i}, v{RD+2*i+1}")
    A.l(f"ds_write_b64 v{vKT}, {V(40,2)}", "kt")
    A("s_mov_b32 exec_hi, 0x007f007f")
    A.l(f"ds_write_b64 v{vKT+1}, {V(42,2)}", "kt")
    A("s_mov_b64 exec, -1")
    A.lwait_all()
    A("s_barrier")
    stamp("B", "kvt")
    OF_, OD = G, 56
    for T in (1, 0):
        for t in range(5):
            A.l(f"ds_read_b128 {V(OF_+8*t+4*T,4)}, v{vOA+T} offset:{16*t}", f"o{t}_{T}")
    for T in (1, 0):
        for t in range(5):
            A.lwait(f"o{t}_{T}")
            d = V(OD + 16 * T, 16)
            A(f"v_mfma_f32_32x32x16_bf16 {d}, {V(OF_+8*t+4*T,4)}, {V(PHI+4*t,4)}, {'0' if t==0 else d}")
    OP = 28
    A(f"""
v_add_f32 v40, 0x358637bd, v{OD+20}
""")
    if OPT.get("pk3", 0):
        A("v_rcp_f32 v41, v40")
    A("v_rcp_f32 v40, v40")
    for i in (8, 9, 0, 1, 2, 3, 4, 5, 6, 7):
        scale(OD + 2 * i, 40, OPT.get("pk3", 0))
        A(f"v_cvt_pk_bf16_f32 v{OP+i}, v{OD+2*i}, v{OD+2*i+1}")
        if i == 9:
            A.v(f"buffer_store_dwordx2 {V(OP+8,2)}, v{vOT}, {S(R_WS,4)}, s{sT1} offen offset:2048 sc1", "ost")
        if i == 3:
            A.v(f"buffer_store_dwordx4 {V(OP,4)}, v{vL16}, {S(R_WS,4)}, s{sT1} offen sc1", "ost")
        if i == 7:
            A.v(f"buffer_store_dwordx4 {V(OP+4,4)}, v{vL16}, {S(R_WS,4)}, s{sT1} offen offset:1024 sc1", "ost")
    stamp("B", "ost")
    run(flat(wol[NW2:]))

    A.c("---- final projection: the wave sums its K quarter for four row tiles and owns tile (wave + ct) & 3")
    vOM, vOR, vW16 = 2, 3, 7
    vOMS = [72, 73, 74, 75]
    vRW, vRR, vAR, vAR2, vOUT2, vOUT = 1, 4, 5, 6, 2, 3
    sOB = [64, 65, 66, 67]
    sAF, sAT, sOC = 74, 75, 30
    GT, OMG, GA, AC0, AC1, OX = 8, 12, 16, 36, 56, 76
    OFR = [G + 4 * i for i in range(16)] + [OX + 4 * i for i in range(4)]
    A(f"""
s_add_u32 s{sOWN}, s{SW}, s{sCT}
s_and_b32 s{sOWN}, s{sOWN}, 3
s_lshl_b32 s{sCNT}, s{sB}, 2
s_add_u32 s{sCNT}, s{sCNT}, s{sOWN}
s_lshl_b32 s{sCNT}, s{sCNT}, 6
s_add_u32 s{sCNT}, s{sCNT}, {LDS_GATE}
v_and_b32 v42, 0x30, v0
v_add_u32 v42, s{sCNT}, v42
""")
    A.l(f"ds_read_b128 {V(GT,4)}, v42", "gt")
    A(f"""
s_lshl_b32 s{sAF}, s{sCT}, 2
s_add_u32 s{sAF}, s{sAF}, s{SW}
s_mul_i32 s{sAT}, s{sAF}, {20*4096}
s_lshl_b32 s{sAF}, s{sAF}, 8
s_add_u32 s{sAF}, s{sAF}, {C_AF}
s_lshl_b32 s{sWOFF}, s{sST}, 1
s_add_u32 s{sWOFF}, s{sWOFF}, s{sB}
s_lshl_b32 s{sCNT}, s{sWOFF}, 7
s_add_u32 s{sAT}, s{sAT}, s{sCNT}
s_add_u32 s{sAT}, s{sAT}, {WS_AT}
s_lshl_b32 s{sOC}, s{sWOFF}, 2
s_add_u32 s{sOC}, s{sOC}, s{SW}
s_lshl_b32 s{sOC}, s{sOC}, 8
s_add_u32 s{sOC}, s{sOC}, {C_O}
""")
    A.lwait("gt")
    cnt_read(CQ0, sAF)
    A(f"""
v_mov_b32 v{vW16}, v{vL16}
v_and_b32 v40, 15, v0
v_bfe_u32 v43, v0, 4, 2
v_lshlrev_b32 v{vOM}, 9, v43
v_lshl_add_u32 v{vOM}, v40, 4, v{vOM}
v_mul_u32_u24 v{vOR}, 2560, v43
v_lshl_add_u32 v{vOR}, v40, 4, v{vOR}
v_bfe_u32 v49, v0, 3, 3
v_and_b32 v48, 7, v0
s_mul_i32 s{sCNT}, s{SW}, 20
""")
    for i in range(3):
        A(f"""
v_add_u32 v42, {8*i}, v49
v_add_u32 v43, s{sCNT}, v42
v_bfe_u32 v43, v43, 2, 3
v_xor_b32 v43, v43, v48
v_lshlrev_b32 v42, 12, v42
v_lshl_add_u32 v{50+i}, v43, 4, v42
""")
    for e in range(4):
        A(f"v_mul_f32 v{GT+e}, s{sL2E}, v{GT+e}")
    for e in range(4):
        A(f"v_exp_f32 v{GT+e}, -v{GT+e}")
    for e in range(4):
        A(f"v_add_f32 v{GT+e}, 1.0, v{GT+e}")
    for e in range(4):
        A(f"v_rcp_f32 v{GT+e}, v{GT+e}")
    for p in range(4):
        A(f"""
s_add_u32 s{sCNT}, s{sOWN}, {p+1}
s_bfe_u32 s{sJ}, s{sCNT}, 0x10001
s_mul_i32 s{sOB[p]}, s{sJ}, 40960
s_and_b32 s{sJ}, s{sCNT}, 1
s_lshl_b32 s{sJ}, s{sJ}, 8
s_add_u32 s{sOB[p]}, s{sOB[p]}, s{sJ}
""")
    A(f"""
s_mul_i32 s{sCNT}, s{sWOFF}, 81920
s_mul_i32 s{sJ}, s{SW}, 10240
s_add_u32 s{sCNT}, s{sCNT}, s{sJ}
s_add_u32 s{sCNT}, s{sCNT}, {WS_O}
v_add_u32 v{vOM}, s{sCNT}, v{vOM}
v_add_u32 v{vOR}, s{sCNT}, v{vOR}
""")
    for e in range(4):
        A(f"v_sub_f32 v{OMG+e}, 1.0, v{GT+e}")
    A.vwait("ost")
    cnt_add(ONE, sOF)
    stamp("B", "oflag")
    cnt_read(CQ0 + 2, sOC)
    for ii in range(4):
        A(f"""
s_add_u32 s{sCNT}, s{sST}, {ii}
s_and_b32 s{sCNT}, s{sCNT}, 3
s_mul_i32 s{sCNT}, s{sCNT}, 2560
v_add_u32 v{vOMS[ii]}, s{sCNT}, v{vOM}
""")
    A(f"""
v_bfe_u32 v41, v0, 5, 1
v_lshl_add_u32 v41, s{sOWN}, 1, v41
v_and_b32 v42, 7, v40
v_xor_b32 v42, v42, v41
v_lshlrev_b32 v42, 4, v42
v_bfe_u32 v43, v0, 4, 1
v_lshlrev_b32 v43, 3, v43
v_lshlrev_b32 v{vAR}, 9, v40
v_add3_u32 v{vAR}, v{vAR}, v42, v43
v_lshrrev_b32 v42, 2, v40
v_xor_b32 v42, v42, v41
v_lshlrev_b32 v42, 4, v42
v_lshlrev_b32 v{vAR2}, 7, v40
v_add3_u32 v{vAR2}, v{vAR2}, v42, v43
s_mul_i32 s{sCNT}, s{SW}, 15360
s_add_u32 s{sCNT}, s{sCNT}, {LDS_RED}
v_add_u32 v{vRR}, s{sCNT}, v{vW16}
s_lshl_b32 s{sJ}, s2, 2
s_add_u32 s{sJ}, s{sJ}, s{SW}
s_cmp_lg_u32 s{sJ}, {4*ID_B}
s_cbranch_scc1 L_noep1
""")
    EPR = [12, 14, 16, 18, 20, 22, 26, 28]
    for cb in range(8):
        cnt_read(EPR[cb], str(C_WO + 256 * cb))
    A("s_waitcnt lgkmcnt(0)")
    for cb in range(0 if OPT.get('abl') else 8):
        cnt_wait(EPR[cb], str(C_WO + 256 * cb), 20, sCNT)
    A("L_noep1:")
    A("s_waitcnt lgkmcnt(0)")
    if not OPT.get('abl'):
        cnt_wait(CQ0, sAF, 20, sCNT, nap=OPT.get('napa', 2))
    A(f"s_mul_i32 s{sAF}, s{SW}, 2560")
    for i in range(3):
        A(f"s_add_u32 m0, s{sAF}, {LDS_AT+1024*i}")
        if i == 2:
            A("s_mov_b32 exec_hi, 0")
        A.v(f"buffer_load_dwordx4 v{50+i}, {S(R_WS,4)}, s{sAT} offen sc1 lds", "at")
    A("s_mov_b64 exec, -1")
    stamp("B", "aseen")
    cnt_wait(CQ0 + 2, sOC, 8, sCNT)
    stamp("B", "oseen")
    old = []
    for p in range(4):
        for ii in range(5):
            def f(p=p, ii=ii):
                r = V(OFR[5 * p + ii], 4)
                if ii < 4:
                    A.v(f"buffer_load_dwordx4 {r}, v{vOMS[ii]}, {S(R_WS,4)}, s{sOB[p]} offen sc1", f"of{p}_{ii}")
                else:
                    A.v(f"buffer_load_dwordx4 {r}, v{vOR}, {S(R_WS,4)}, s{sOB[p]} offen offset:2048 sc1", f"of{p}_{ii}")
            old.append(f)
    for _ in range(OPT.get("npo", 10)):
        old.pop(0)()
    A.vwait("at")
    A("s_barrier")
    AR = 56
    for jn in range(4):
        A.l(f"ds_read_b64 {V(AR+2*jn,2)}, v{vAR} offset:{LDS_AT+128*jn}", "ar")
    A.l(f"ds_read_b64 {V(AR+8,2)}, v{vAR2} offset:{LDS_AT+8192}", "ar")
    mix = [lambda: A.lwait("ar")]
    for jn in range(5):
        for e in range(4):
            src = AR + 2 * jn + (e >> 1)
            mix += L(f"v_and_b32 v{GA+4*jn+e}, 0xffff0000, v{src}" if e & 1 else f"v_lshlrev_b32 v{GA+4*jn+e}, 16, v{src}")
    mix2 = [(lambda jn=jn, e=e: A(f"v_mul_f32 v{GA+4*jn+e}, v{GT+e}, v{GA+4*jn+e}")) for jn in range(5) for e in range(4)]
    mm = []
    for p in range(4):
        ac = AC0 if p % 2 == 0 else AC1
        for ii in range(5):
            for jn in range(5):
                def m(p=p, ac=ac, ii=ii, jn=jn):
                    if jn == 0:
                        A.vwait(f"of{p}_{ii}")
                        if p == 0 and ii == 0:
                            stamp("B", "o0")
                    d = V(ac + 4 * jn, 4)
                    A(f"v_mfma_f32_16x16x32_bf16 {d}, {V(OFR[5*p+ii],4)}, {V(WOR[5*ii+jn],4)}, {'0' if ii==0 else d}")
                mm.append(m)
    st_ = Stream(budget=2)
    for i, f in enumerate(old):
        st_.at(2 * i, f)
    for i, f in enumerate(mix):
        st_.at(i, f)
    st_.exact(24, lambda: None)
    for p in range(3):
        ac = AC0 if p % 2 == 0 else AC1
        k0 = 25 * (p + 1)
        st_.at(k0 - 3, L(f"""
s_add_u32 s{sCNT}, s{SW}, {p+1}
s_and_b32 s{sCNT}, s{sCNT}, 3
s_mul_i32 s{sCNT}, s{sCNT}, 15360
v_add_u32 v{vRW}, s{sCNT}, v{vW16}
"""))
        for jn in range(5):
            st_.at(k0 + 1 + jn, lambda jn=jn, p=p, ac=ac: A.l(f"ds_write_b128 v{vRW}, {V(ac+4*jn,4)} offset:{LDS_RED+5120*p+1024*jn}", "rw"))
    st_.at(32, mix2)
    st_.at(57, L(f"""
v_bfe_u32 v{vOUT}, v0, 4, 2
v_mul_u32_u24 v{vOUT}, 5120, v{vOUT}
v_and_b32 v{vAR}, 15, v0
v_lshl_add_u32 v{vOUT2}, v{vAR}, 1, v{vOUT}
v_lshl_add_u32 v{vOUT}, v{vAR}, 3, v{vOUT}
s_lshl_b32 s{sAT}, s{sWOFF}, 2
s_add_u32 s{sAT}, s{sAT}, s{sOWN}
s_mul_i32 s{sAT}, s{sAT}, 20480
s_mul_i32 s{sAF}, s{sCT}, 160
s_add_u32 s{sAT}, s{sAT}, s{sAF}
"""))
    KB_ = OPT.get("redbar", 84)
    st_.exact(KB_, lambda: (A.lwait_all(), A("s_barrier")))
    red = []
    for jn in range(5):
        for q in (jn, 5 + jn, 10 + jn):
            red.append(lambda q=q, jn=jn: A.l(f"ds_read_b128 {V(OFR[q],4)}, v{vRR} offset:{1024*q}", f"rr{jn}"))
    st_.at(KB_ + 1, red)
    st_.run(mm, reserve=lambda k: 0)
    stamp("B", "fin")
    PK4 = OPT.get("pk4", 1)

    def add2(d, a_, b_):
        if PK4:
            A(f"v_pk_add_f32 {V(d,2)}, {V(a_,2)}, {V(b_,2)}")
        else:
            for n in range(2):
                A(f"v_add_f32 v{d+n}, v{a_+n}, v{b_+n}")
    for jn in range(5):
        A.lwait(f"rr{jn}")
        for h in range(2):
            r0, r1, r2 = OFR[jn] + 2 * h, OFR[5 + jn] + 2 * h, OFR[10 + jn] + 2 * h
            add2(r0, r0, r1)
            add2(r0, r0, r2)
    OSF = OPT.get("osf", "").replace("_", " ")
    for h in range(2):
        for jn in range(5):
            r0, g_ = OFR[jn] + 2 * h, GA + 4 * jn + 2 * h
            add2(r0, r0, AC1 + 4 * jn + 2 * h)
            if PK4:
                A(f"v_pk_fma_f32 {V(g_,2)}, {V(OMG+2*h,2)}, {V(r0,2)}, {V(g_,2)}")
            else:
                for n in range(2):
                    A(f"v_fma_f32 v{g_+n}, v{OMG+2*h+n}, v{r0+n}, v{g_+n}")
        for e in (2 * h, 2 * h + 1):
            A(f"v_cvt_pk_bf16_f32 v{AC0+4*e}, v{GA+e}, v{GA+4+e}")
            A(f"v_cvt_pk_bf16_f32 v{AC0+4*e+1}, v{GA+8+e}, v{GA+12+e}")
            A.v(f"buffer_store_dwordx2 {V(AC0+4*e,2)}, v{vOUT}, {S(R_M2,4)}, s{sAT} offen offset:{1280*e} {OSF}")
        A(f"v_cvt_pk_bf16_f32 v{AC0+8*h+2}, v{GA+16+2*h}, v{GA+17+2*h}")
        A.v(f"buffer_store_short v{AC0+8*h+2}, v{vOUT2}, {S(R_M2,4)}, s{sAT} offen offset:{2560*h+128} {OSF}")
        A.v(f"buffer_store_short_d16_hi v{AC0+8*h+2}, v{vOUT2}, {S(R_M2,4)}, s{sAT} offen offset:{2560*h+1280+128} {OSF}")
    A(f"""
s_cmp_lg_u32 s{sJ}, {4*ID_B}
s_cbranch_scc1 L_noep2
s_atomic_swap_x2 {S(TAG,2)}, {S(P_WS,2)}, {WS_EPOCH}
L_noep2:
""")
    finish("B")


def role_A():
    sAJ, sTB, sCB, sCH, sLB = 60, 61, 62, 63, 68
    ONE, CQ0, CQ1, CQ2, sUP, sUC, sAC, sGOT, sWC = 18, 20, 28, 40, 69, 48, 49, 50, 51
    sW0, sW1, sW2 = 73, 74, 75
    A.c("---- A prologue")
    A(f"""
s_sub_u32 s{sAJ}, s2, {ID_A}
s_lshl_b32 s{sCH}, s{sAJ}, 2
s_add_u32 s{sCH}, s{sCH}, s{SW}
s_mul_i32 s{sLB}, s{SW}, 20480
v_and_b32 v1, 63, v0
v_lshlrev_b32 v5, 2, v1
s_lshl_b32 s{sT0}, s{sCH}, 8
v_add_u32 v3, s{sT0}, v5
s_and_b32 s{sT3}, s{sCH}, 0xfffffffe
s_lshl_b32 s{sT3}, s{sT3}, 1
s_waitcnt lgkmcnt(0)
""")
    A(f"s_load_dword s70, {S(P_LOGDT,2)}, s{sT3}")
    A(f"s_load_dword s71, {S(P_DSK,2)}, s{sT3}")
    load_epoch()
    for i, p in enumerate((P_LOGA, P_AIM, P_CRE, P_CIM)):
        A.v(f"global_load_dword v{8+i}, v3, {S(p,2)}", "par")
    A(f"""
s_mul_i32 s{sAC}, s{sCH}, 3277
s_lshr_b32 s{sAC}, s{sAC}, 16
s_lshl_b32 s{sAC}, s{sAC}, 8
s_add_u32 s{sAC}, s{sAC}, {C_AF}
s_lshr_b32 s{sUC}, s{sAJ}, 4
s_lshl_b32 s{sUC}, s{sUC}, 8
s_add_u32 s{sUC}, s{sUC}, {C_UT}
s_mov_b64 {S(ONE,2)}, 1
""")
    srd(R_M2, P_WO, 819200)
    A(f"""
s_lshr_b32 s{sT0}, s{sAJ}, 3
s_mul_i32 s{sT1}, s{sT0}, 52
s_lshr_b32 s{sT1}, s{sT1}, 8
s_and_b32 s{sWC}, s{sAJ}, 4
s_mul_i32 s{sW2}, s{sWC}, 102400
s_mul_i32 s{sT3}, s{sWC}, 160
s_add_u32 s{sWC}, s{sWC}, s{sT1}
s_lshl_b32 s{sWC}, s{sWC}, 8
s_add_u32 s{sWC}, s{sWC}, {C_WO}
s_mul_i32 s{sT2}, s{sT0}, 5120
s_add_u32 s{sW2}, s{sW2}, s{sT2}
s_and_b32 s{sT2}, s{sAJ}, 3
s_lshl_b32 s{sW0}, s{sT2}, 8
s_add_u32 s{sW2}, s{sW2}, s{sW0}
s_add_u32 s{sW2}, s{sW2}, {WS_WO}
s_mul_i32 s{sW0}, s{sT1}, 5
s_sub_u32 s{sT0}, s{sT0}, s{sW0}
s_and_b32 s{sW0}, s{sT2}, 1
s_mul_i32 s{sW0}, s{sW0}, 20
s_lshr_b32 s{sW1}, s{sT2}, 1
s_lshl_b32 s{sW1}, s{sW1}, 3
s_add_u32 s{sW0}, s{sW0}, s{sW1}
s_mul_i32 s{sW1}, s{sT0}, 40
s_add_u32 s{sW0}, s{sW0}, s{sW1}
s_mul_i32 s{sT2}, s{sT2}, 40
s_add_u32 s{sT2}, s{sT2}, 16
s_cmp_eq_u32 s{sT0}, 4
s_cselect_b32 s{sW0}, s{sT2}, s{sW0}
s_cselect_b32 s{sW1}, 20, 4
s_mul_i32 s{sT1}, s{sT1}, 160
s_add_u32 s{sW0}, s{sW0}, s{sT1}
s_add_u32 s{sW1}, s{sW1}, s{sW0}
s_mul_i32 s{sW0}, s{sW0}, 1280
s_mul_i32 s{sW1}, s{sW1}, 1280
s_add_u32 s{sW0}, s{sW0}, s{sT3}
s_add_u32 s{sW1}, s{sW1}, s{sT3}
v_lshrrev_b32 v14, 4, v1
v_and_b32 v15, 15, v1
v_mul_u32_u24 v4, 160, v14
v_lshl_add_u32 v245, v15, 1, v4
v_lshl_add_u32 v244, v15, 3, v4
v_mul_u32_u24 v14, 102400, v14
v_lshl_add_u32 v246, v15, 4, v14
""")
    srd(R_WS, P_WS, WS_SIZE)
    A(f"""
s_lshl_b32 s{sT0}, s{sAJ}, 14
s_add_u32 s{sT0}, s{sT0}, {WS_UT}
s_add_u32 s{R_M1}, s{P_WS}, s{sT0}
s_addc_u32 s{R_M1+1}, s{P_WS+1}, 0
s_mov_b32 s{R_M1+2}, 16384
s_mov_b32 s{R_M1+3}, 0x20000
""")
    A("s_waitcnt lgkmcnt(0)")
    make_tag()
    A("s_barrier")
    WL, WU, WD = (176, 192, 200) if OPT.get('wot', 1) == 0 else (192, 208, 216)
    vW4, vW5, vW14 = 244, 245, 246

    def wo_load():
        for e in range(8):
            A(f"buffer_load_dwordx2 {V(WL+2*e,2)}, v{vW4}, {S(R_M2,4)}, s{sW0 if e<4 else sW1} offen offset:{1280*(e&3)}")
        for e in range(8):
            A(f"buffer_load_ushort v{WU+e}, v{vW5}, {S(R_M2,4)}, s{sW0 if e<4 else sW1} offen offset:{1280*(e&3)+128}")

    def wo_store():
        A(f"""
s_setprio {OPT.get('prioR', 3)}
s_mov_b32 s{sW0}, 0x05040100
s_mov_b32 s{sW1}, 0x07060302
s_waitcnt vmcnt(0)
""")
        for jn in range(4):
            for p in range(4):
                A(f"v_perm_b32 v{WD+4*jn+p}, v{WL+2*(2*p+1)+(jn>>1)}, v{WL+2*(2*p)+(jn>>1)}, s{sW0+(jn&1)}")
            A(f"buffer_store_dwordx4 {V(WD+4*jn,4)}, v{vW14}, {S(R_WS,4)}, s{sW2} offen offset:{1024*jn} sc1")
        for p in range(4):
            A(f"v_lshl_or_b32 v{WD+16+p}, v{WU+2*p+1}, 16, v{WU+2*p}")
        A(f"s_add_u32 s{sW2}, s{sW2}, 4096")
        A(f"buffer_store_dwordx4 {V(WD+16,4)}, v{vW14}, {S(R_WS,4)}, s{sW2} offen sc1")
        A(f"s_setprio {OPT.get('prioK' if OPT.get('wot', 1) == 0 else 'prioA', 0)}")
    A.vwait("par")
    stamp("A", "par")
    WOT = OPT.get("wot", 1)
    if WOT == 0:
        only_wave(3, wo_load)
    A(f"s_setprio {OPT.get('prioK', 0)}")
    if OPT.get("fakea"):
        cnt_read(CQ1 + 2, sAC)
        only_wave(3, lambda: cnt_read(CQ2 + 2, sWC))
        A("s_waitcnt lgkmcnt(0)")
        cnt_claim(CQ1, sAC)
        only_wave(3, lambda: cnt_claim(CQ2, sWC))
        only_wave(3, wo_store)
        for _ in range(OPT["fakea"]):
            A("s_sleep 100")
        A("s_waitcnt vmcnt(0) lgkmcnt(0)")
        only_wave(3, lambda: cnt_add(ONE, sWC))
        A("s_branch L_cend")
    A.c("---- per-mode constants (two modes per lane)")
    A(f"""
s_bitcmp1_b32 s{sCH}, 0
s_cselect_b32 s{sT0}, 0, 16
s_lshl_b32 s70, s70, s{sT0}
s_and_b32 s70, s70, 0xffff0000
s_lshl_b32 s71, s71, s{sT0}
s_and_b32 s71, s71, 0xffff0000
v_mov_b32 v32, {LOG2E:#x}
v_mul_f32 v33, s70, v32
v_exp_f32 v33, v33
""")
    A.vwait("par")
    LA, AI, XR, XI = 34, 36, 38, 40
    for (src, dst) in ((8, LA), (9, AI), (10, XR), (11, XI)):
        A(f"v_lshlrev_b32 v{dst}, 16, v{src}")
        A(f"v_and_b32 v{dst+1}, 0xffff0000, v{src}")
    A(f"""
v_cvt_pk_bf16_f32 v33, v33, v33
v_and_b32 v33, 0xffff0000, v33
v_mul_f32 v{LA}, v32, v{LA}
v_mul_f32 v{LA+1}, v32, v{LA+1}
v_exp_f32 v{LA}, v{LA}
v_exp_f32 v{LA+1}, v{LA+1}
v_mul_f32 v{AI}, v33, v{AI}
v_mul_f32 v{AI+1}, v33, v{AI+1}
v_cvt_pk_bf16_f32 v{LA+1}, v{LA}, v{LA+1}
v_lshlrev_b32 v{LA}, 16, v{LA+1}
v_and_b32 v{LA+1}, 0xffff0000, v{LA+1}
v_mul_f32 v{LA}, v33, v{LA}
v_mul_f32 v{LA+1}, v33, v{LA+1}
v_mul_f32 v{LA}, v32, v{LA}
v_mul_f32 v{LA+1}, v32, v{LA+1}
v_mul_f32 v{AI}, {INV2PI:#x}, v{AI}
v_mul_f32 v{AI+1}, {INV2PI:#x}, v{AI+1}
v_add_f32 v33, v33, v33
v_mul_f32 v{XR}, v33, v{XR}
v_mul_f32 v{XR+1}, v33, v{XR+1}
v_mul_f32 v{XI}, v33, -v{XI}
v_mul_f32 v{XI+1}, v33, -v{XI+1}
""")
    W = {1: 44, 8: 48, 256: 52}
    for p, w in W.items():
        lit = {1: "1.0", 8: "0x41000000", 256: "0x43800000"}[p]
        for n in range(2):
            A(f"v_mul_f32 v{56+n}, {lit}, v{LA+n}")
            A(f"v_mul_f32 v{58+n}, {lit}, v{AI+n}")
        for n in range(2):
            A(f"v_exp_f32 v{56+n}, -v{56+n}")
            A(f"v_fract_f32 v{58+n}, v{58+n}")
        for n in range(2):
            A(f"v_cos_f32 v{w+n}, v{58+n}")
            A(f"v_sin_f32 v{w+2+n}, v{58+n}")
        A(f"v_pk_mul_f32 {V(w,2)}, {V(w,2)}, {V(56,2)}")
        A(f"v_pk_mul_f32 {V(w+2,2)}, {V(w+2,2)}, {V(56,2)}")
    vSW, vSR = 6, 7
    A(f"""
v_lshlrev_b32 v{vSW}, 3, v1
v_add_u32 v{vSW}, s{sLB}, v{vSW}
v_and_b32 v{vSR}, 31, v1
v_mul_u32_u24 v{vSR}, 528, v{vSR}
v_lshrrev_b32 v12, 5, v1
v_lshlrev_b32 v12, 4, v12
v_add3_u32 v{vSR}, v{vSR}, v12, s{sLB}
""")
    pk = [0]

    def put(reg, rows):
        t = 80 + 2 * (pk[0] % 4)
        pk[0] += 1
        A(f"v_cvt_pk_bf16_f32 v{t}, v{reg}, v{reg+1}")
        A(f"v_cvt_pk_bf16_f32 v{t+1}, v{reg+2}, v{reg+3}")
        for r in rows:
            A.l(f"ds_write_b64 v{vSW}, {V(t,2)} offset:{528*r}", "st")

    def cmul(d, s, w, conj):
        n1, n2 = ("", " neg_lo:[1,0,0] neg_hi:[1,0,0]") if conj else (" neg_lo:[0,0,1] neg_hi:[0,0,1]", "")
        A(f"v_pk_mul_f32 {V(56,2)}, {V(s+2,2)}, {V(w+2,2)}")
        A(f"v_pk_mul_f32 {V(58,2)}, {V(s+2,2)}, {V(w,2)}")
        A(f"v_pk_fma_f32 {V(d+2,2)}, {V(s,2)}, {V(w+2,2)}, {V(58,2)}{n2}")
        A(f"v_pk_fma_f32 {V(d,2)}, {V(s,2)}, {V(w,2)}, {V(56,2)}{n1}")

    A.c("---- X rows")
    g0 = [0, 1, 2, 3, 4, 5, 6, 7, 512, 516, 520, 1024, 1032, 1536, 1544]
    g1 = [256, 256, 258, 260, 260, 260, 262, 264, 768, 772, 776, 1280, 1288, 1792, 1800]
    rows = {}
    for g, lst in enumerate((g0, g1)):
        for i, p in enumerate(lst):
            rows.setdefault(p, []).append(8 * (i >> 2) + 4 * g + (i & 3))
    keep = {0: XR, 2: 60, 4: 64, 6: 68, 8: 72}
    put(XR, rows[0])
    cur = XR
    for p in range(1, 9):
        d = keep.get(p, 76)
        cmul(d, cur, W[1], True)
        if p in rows:
            put(d, rows[p])
        cur = d
    cnt_read(CQ1 + 2, sAC)
    only_wave(3, lambda: cnt_read(CQ2 + 2, sWC))
    for step in range(1, 8):
        for off in (0, 8, 4, 2, 6):
            p = 256 * step + off
            if p in rows:
                cmul(keep[off], keep[off], W[256], True)
                put(keep[off], rows[p])
    XF = 96
    if WOT == 0:
        only_wave(3, wo_store)
    A.lwait_all()
    for ks in range(16):
        A.l(f"ds_read_b128 {V(XF+4*ks,4)}, v{vSR} offset:{32*ks}", "xf")
    A.c("---- Y rows")
    YA, YB = 60, 64
    cmul(YA, W[8], W[8], False)
    A(f"""
v_mov_b32 v24, 0x3f803f80
v_mov_b32 v25, 0
""")
    A.lwait_all()
    stamp("A", "xrows")
    cnt_claim(CQ1, sAC)
    only_wave(3, lambda: cnt_claim(CQ2, sWC))
    A.l(f"ds_write_b64 v{vSW}, {V(24,2)}", "st")
    put(W[8], [1])
    put(YA, [2])
    UL, UN = 224, 240
    USC = ' sc1' if OPT.get('usc', 1) else ''

    def load_u():
        A(f"s_setprio {OPT.get('prioR', 3)}")
        for i in range(4):
            A(f"s_movk_i32 s{sT0}, {4096*i}")
            A(f"buffer_load_dwordx4 {V(UL+4*i,4)}, v2, {S(R_M1,4)}, s{sT0} offen{USC}")
            A(f"buffer_load_dword v{UN+i}, v2, {S(R_M1,4)}, s{sT0} offen offset:64{USC}")
        A(f"s_setprio {OPT.get('prioK', 0)}")
    A("v_lshlrev_b32 v2, 4, v0")
    for c in range(3, 32):
        cmul(YA, YA, W[8], False)
        put(YA, [c])
        if c == OPT.get("uq", 18):
            only_wave(0, lambda: cnt_read(CQ0, sUC))
    A.lwait_all()
    if WOT == 0:
        only_wave(3, lambda: (A("s_waitcnt vmcnt(0)"), cnt_add(ONE, sWC)))
    only_wave(0, lambda: cnt_wait(CQ0, sUC, 16, sCNT, nap=2))
    A("s_barrier")
    load_u()
    A.vm.append("u")
    stamp("A", "utseen")
    YF, KD = 160, 68
    for ks in range(16):
        A.l(f"ds_read_b128 {V(YF+4*ks,4)}, v{vSR} offset:{32*ks}", f"y{ks}")
        if ks >= 6:
            k2 = ks - 6
            A.lwait(f"y{k2}")
            A(f"v_mfma_f32_32x32x16_bf16 {V(KD,16)}, {V(XF+4*k2,4)}, {V(YF+4*k2,4)}, {'0' if k2==0 else V(KD,16)}")
    for k2 in range(10, 16):
        A.lwait(f"y{k2}")
        A(f"v_mfma_f32_32x32x16_bf16 {V(KD,16)}, {V(XF+4*k2,4)}, {V(YF+4*k2,4)}, {V(KD,16)}")
    A("s_barrier")
    vKW, vUW, vKB, vUA = 3, 4, 8, 9
    A(f"""
v_lshlrev_b32 v{vKW}, 4, v1
v_add_u32 v{vKW}, s{sLB}, v{vKW}
v_and_b32 v13, 3, v0
v_mul_u32_u24 v13, 20512, v13
v_lshrrev_b32 v{vUW}, 2, v0
v_lshl_add_u32 v{vUW}, v{vUW}, 4, v13
v_and_b32 v13, 15, v1
v_and_b32 v14, 0x30, v1
v_lshl_add_u32 v{vKB}, v13, 5, v14
v_add_u32 v{vKB}, s{sLB}, v{vKB}
v_add_u32 v{vKB}, 32, v{vKB}
v_lshrrev_b32 v15, 1, v13
v_lshlrev_b32 v15, 2, v15
v_sub_u32 v14, v14, v15
v_and_b32 v13, 1, v13
v_mul_u32_u24 v13, 4160, v13
v_sub_u32 v14, v14, v13
s_mul_i32 s{sT0}, s{SW}, 20512
s_add_u32 s{sT0}, s{sT0}, {4608+4160+4060-512-448}
v_add_u32 v{vUA}, s{sT0}, v14
v_subrev_u32 v{vUA+1}, 1024, v{vUA}
v_subrev_u32 v{vUA+2}, 2048, v{vUA}
v_subrev_u32 v{vUA+3}, 3072, v{vUA}
v_mov_b32 v16, 0
v_mov_b32 v17, 0
v_lshrrev_b32 v13, 5, v1
v_mul_u32_u24 v13, 4160, v13
v_and_b32 v14, 3, v1
v_lshl_add_u32 v13, v14, 3, v13
s_sub_u32 s{sT0}, s{sT0}, {4160+4060-512-448-4096}
v_add_u32 v13, s{sT0}, v13
""")
    A.l(f"ds_write_b64 v{vSW}, {V(16,2)}", "cv")
    A.l(f"ds_write_b64 v13, {V(16,2)}", "cv")
    A(f"""
s_mov_b64 exec, 1
v_add_f32 v{KD}, s71, v{KD}
s_mov_b64 exec, -1
s_mov_b32 vcc_lo, 0x55555555
s_mov_b32 vcc_hi, 0x55555555
""")
    KP = 84
    for i in range(4):
        A(f"v_cvt_pk_bf16_f32 v{KP+i}, v{KD+2*i}, v{KD+2*i+1}")
    A.l(f"ds_write_b128 v{vKW}, {V(KP,4)} offset:512", "cv")
    a_, b_, c_ = KD + 8, KD + 9, KD + 10
    for i, (x_, y_) in enumerate(((a_, a_), (a_, b_), (b_, b_), (c_, c_))):
        A(f"v_cvt_pk_bf16_f32 v{KP+4+i}, v{x_}, v{y_}")
    A.l(f"ds_write_b128 v{vKW}, {V(KP+4,4)} offset:{512+1024}", "cv")
    for blk, d in ((0, KP + 8), (1, 20)):
        a_, b_ = KD + 11 + 2 * blk, KD + 12 + 2 * blk
        A(f"v_cndmask_b32 v18, v{b_}, v{a_}, vcc")
        A(f"v_cvt_pk_bf16_f32 v{d}, v{a_}, v{a_}")
        A(f"v_cvt_pk_bf16_f32 v{d+1}, v{a_}, v{a_}")
        A(f"v_cvt_pk_bf16_f32 v{d+2}, v18, v{b_}")
        A(f"v_cvt_pk_bf16_f32 v{d+3}, v{b_}, v{b_}")
        A.l(f"ds_write_b128 v{vKW}, {V(d,4)} offset:{512+2048+1024*blk}", "cv")
    A.vwait("u")
    for i in range(4):
        A.l(f"ds_write_b128 v{vUW}, {V(UL+4*i,4)} offset:{4608+1024*i}", "cv")
        t = 52 + 4 * i
        for p in range(4):
            hi = UL + 4 * i + p + 1 if p < 3 else UN + i
            A(f"v_alignbit_b32 v{t+p}, v{hi}, v{UL+4*i+p}, 16")
        A.l(f"ds_write_b128 v{vUW}, {V(t,4)} offset:{4608+4160+1024*i}", "cv")
    CA = 16
    A.lwait_all()
    A("s_barrier")
    if WOT == 1:
        A(f"s_setprio {OPT.get('prioR', 3)}")
        only_wave(3, wo_load)
    A(f"s_setprio {OPT.get('prioA', 0)}")
    stamp("A", "cstart")
    if OPT.get("noconv"):
        finish("A")
        return
    A.c("---- convolution: 8 residues x 36 tile products")
    UA = [64, 128]
    KB = [96, 160]

    def creads(r):
        s, out = r & 1, []
        for m in range(8):
            out.append(lambda m=m: A.l(f"ds_read_b128 {V(KB[s]+4*m,4)}, v{vKB} offset:{512*m+64*(7-r)}", f"c{r}_{m}"))
            o = (128 if m % 2 == 0 else 0) + 16 * (7 - r)
            for hh in range(2):
                out.append(lambda m=m, o=o, hh=hh: A.l(f"ds_read2_b32 {V(UA[s]+4*m+2*hh,2)}, v{vUA+m//2} offset0:{o+2*hh} offset1:{o+2*hh+1}", f"c{r}_{m}"))
        return out

    pairs = sorted([(mu, n) for mu in range(8) for n in range(8 - mu)], key=lambda p: (max(p), p[0] + p[1]))
    nxt = creads(0)
    for _ in range(12):
        nxt.pop(0)()
    started = set()
    for r in range(8):
        if r < 7:
            nxt += creads(r + 1)
        for k, (mu, n) in enumerate(pairs):
            A.lwait(f"c{r}_{max(mu, n)}")
            d = V(CA + 4 * (mu + n), 4)
            A(f"v_mfma_f32_16x16x32_bf16 {d}, {V(UA[r&1]+4*mu,4)}, {V(KB[r&1]+4*n,4)}, {d if mu+n in started else '0'}")
            started.add(mu + n)
            if nxt and (r == 0 or k % 3 != 2):
                nxt.pop(0)()
        assert len(nxt) == 0
        if WOT == 1 and r == OPT.get("wor", 0):
            only_wave(3, wo_store)
        if WOT == 1 and r == OPT.get("wor", 0) + 1:
            only_wave(3, lambda: (A("s_waitcnt vmcnt(0)"), cnt_add(ONE, sWC)))
    A("L_cend:")
    A(f"s_setprio {OPT.get('prioR', 3)}")
    stamp("A", "cend")
    A(f"""
v_and_b32 v2, 15, v1
v_lshlrev_b32 v2, 5, v2
v_bfe_u32 v3, v1, 4, 1
v_lshl_add_u32 v2, v3, 9, v2
v_lshrrev_b32 v3, 5, v1
v_lshl_add_u32 v2, v3, 4, v2
s_lshl_b32 s{sT0}, s{sCH}, 12
s_add_u32 s{sT0}, s{sT0}, {WS_AT}
""")
    for q in range(640):
        assert (q * 3277) >> 16 == q // 20
    A.lwait_all()
    for n in range(0, 8, 2):
        d = 48 + 2 * n
        for i in range(4):
            A(f"v_cvt_pk_bf16_f32 v{d+i}, v{CA+4*n+2*i}, v{CA+4*n+2*i+1}")
    for n in range(0, 8, 2):
        d = 48 + 2 * n
        A(f"v_permlane16_swap_b32 v{d}, v{d+2}")
        A(f"v_permlane16_swap_b32 v{d+1}, v{d+3}")
        A.v(f"buffer_store_dwordx4 {V(d,4)}, v2, {S(R_WS,4)}, s{sT0} offen offset:{512*n} sc1", "ast")
    A.vwait("ast")
    cnt_add(ONE, sAC)
    finish("A")


if "B" in OPT["roles"]:
    role_B()
else:
    A("L_B:\ns_endpgm")
A("L_A:")
if "A" in OPT["roles"]:
    role_A()
else:
    A("s_endpgm")
A("L_codeend:")
lines, nn = pad_hazards(A.lines, verbose=False)
if OPT.get("align", 1):
    lines, cnt_, cost_ = align8(lines)
    print("align:", cnt_, cost_, file=sys.stderr)
hdr = open("gated_mix__ssm_conv_s4d__linear_kernel_hedgehog__prompt.s.ref").read().split("; Override launch")[0]
print(hdr + f"; @launch grid=({ID_END},1,1) block=(256,1,1) lds=81920")
print("\n".join(lines))
print(f""".section .rodata,"a"
.p2align 6
.amdhsa_kernel {KN}
  .amdhsa_next_free_vgpr 256
  .amdhsa_next_free_sgpr 102
  .amdhsa_accum_offset 256
  .amdhsa_group_segment_fixed_size 0
  .amdhsa_kernarg_size 120
  .amdhsa_user_sgpr_count 2
  .amdhsa_user_sgpr_kernarg_segment_ptr 1
  .amdhsa_system_sgpr_workgroup_id_x 1
.end_amdhsa_kernel""")
json.dump(stampnames, open("stamps.json", "w"))
print(f"pad states inserted: {nn}", file=sys.stderr)
```

```python
import sys, json
from asmlib import *

KN = "gated_mix__ssm_conv_s4d__linear_kernel_hedgehog__prompt_kernel"
OPT = dict(stamps=0, dump=0, roles="RAB")
for a_ in sys.argv[1:]:
    k_, v_ = a_.split("=")
    OPT[k_] = int(v_) if v_.lstrip("-").isdigit() else v_

C_KW, C_WO, C_UT, C_AF, C_KV, C_O = [256 * n for n in (0, 48, 56, 80, 112, 176)]
WS_EPOCH = 0x20000
WS_WKV = 0xD00000
WS_WQ = 0xF00000
WS_WO = 0x100000
WS_KVP = 0x200000
WS_UT = 0x300000
WS_AT = 0x600000
WS_O = 0x900000
WS_STAMP = 0xC00000
WS_DUMP = 0x1000000
WS_SIZE = 0x4000000 if OPT["dump"] else 0x1000000

ID_A, ID_B, ID_END = 8, 168, 424
SPIN = 1 << 17
LOG2E = 0x3FB8AA3B
INV2PI = 0x3E22F983

P_U, P_LOGA, P_AIM, P_CRE, P_CIM, P_LOGDT, P_DSK = 4, 6, 8, 10, 12, 14, 16
P_WQKV, P_WPHI, P_WO, P_GATE, P_OUT, P_DBG, P_WS = 20, 22, 24, 26, 28, 30, 32
R_X, R_W, R_WS, R_DBG, R_M1, R_M2 = 36, 40, 44, 48, 52, 56
SW = 3
TAG = 34
ST0 = 76

A = Asm()
stampnames = {}
_lab = [0]


def srd(r, p, size):
    A(f"s_mov_b32 s{r}, s{p}")
    A(f"s_mov_b32 s{r+1}, s{p+1}")
    A(f"s_mov_b32 s{r+2}, {size}")
    A(f"s_mov_b32 s{r+3}, 0x20000")


def load_epoch():
    A(f"s_load_dwordx2 {S(TAG,2)}, {S(P_WS,2)}, {WS_EPOCH}")


def make_tag():
    A(f"s_add_u32 s{TAG}, s{TAG}, 0x7f4a7c15")
    A(f"s_addc_u32 s{TAG+1}, s{TAG+1}, 0x9e3779b9")


def cnt_read(r, soff):
    A(f"s_mov_b64 {S(r,2)}, 0")
    A(f"s_atomic_add_x2 {S(r,2)}, {S(P_WS,2)}, {soff if isinstance(soff, str) else 's%d' % soff} glc")


def cnt_peek(r, soff):
    A(f"s_load_dwordx2 {S(r,2)}, {S(P_WS,2)}, s{soff} glc")


def cnt_claim(q, soff):
    A(f"""
s_sub_u32 s{q}, s{q+2}, s{TAG}
s_subb_u32 s{q+1}, s{q+3}, s{TAG+1}
s_lshr_b32 s{q}, s{q}, 16
s_or_b32 s{q}, s{q}, s{q+1}
s_cselect_b64 {S(q,2)}, {S(TAG,2)}, {S(q+2,2)}
s_atomic_cmpswap_x2 {S(q,4)}, {S(P_WS,2)}, s{soff} glc
""")


def cnt_add(one, soff):
    A(f"s_atomic_add_x2 {S(one,2)}, {S(P_WS,2)}, s{soff}")


def cnt_init(soff):
    A(f"s_atomic_swap_x2 {S(TAG,2)}, {S(P_WS,2)}, s{soff}")


def cnt_test(r, n, low=False):
    A(f"s_sub_u32 s{r}, s{r}, s{TAG}")
    A(f"s_subb_u32 s{r+1}, s{r+1}, s{TAG+1}")
    if low:
        A(f"s_and_b32 s{r}, s{r}, 0xffff00ff")
    A(f"s_xor_b32 s{r}, s{r}, {n}")
    A(f"s_or_b32 s{r}, s{r}, s{r+1}")


def cnt_wait(r, soff, n, scnt, probed=True, low=False, nap=0):
    _lab[0] += 1
    k = _lab[0]
    if probed:
        cnt_test(r, n, low)
        A(f"s_cbranch_scc0 L_got{k}")
    A(f"s_mov_b32 s{scnt}, 0")
    A(f"L_spin{k}:")
    cnt_read(r, soff)
    A(f"""
s_add_u32 s{scnt}, s{scnt}, 1
s_cmp_ge_u32 s{scnt}, {SPIN}
s_waitcnt lgkmcnt(0)
s_cbranch_scc1 L_got{k}
""")
    cnt_test(r, n, low)
    if nap:
        A(f"s_cbranch_scc0 L_got{k}")
        A(f"s_sleep {nap}")
    A(f"s_cbranch_scc1 L_spin{k}")
    A(f"L_got{k}:")


def cnt_async(r, t, soff, n, scnt, **kw):
    _lab[0] += 1
    k = _lab[0]
    A(f"s_mov_b64 {S(t,2)}, {S(r,2)}")
    cnt_test(t, n)
    A(f"s_cbranch_scc0 L_as{k}")
    A("s_waitcnt lgkmcnt(0)")
    cnt_wait(r, soff, n, scnt, **kw)
    A(f"L_as{k}:")


def lwait_lds(vt, va, n=6):
    for _ in range(n):
        A(f"ds_read_b32 v{vt}, v{va}")
    A(f"s_waitcnt lgkmcnt({n})")
    A.lg = ["_"] * n


def only_wave(w, f):
    _lab[0] += 1
    k = _lab[0]
    A(f"s_cmp_lg_u32 s{SW}, {w}")
    A(f"s_cbranch_scc1 L_ow{k}")
    f()
    A(f"L_ow{k}:")


def stamp(role, name):
    if not OPT["stamps"]:
        return
    if OPT.get("only") and name not in ("end",) and name not in OPT["only"].split("+"):
        return
    l = stampnames.setdefault(role, [])
    assert len(l) < 12
    A(f"{'s_memtime' if OPT.get('cyc') else 's_memrealtime'} {S(ST0 + 2*len(l), 2)}")
    l.append(name)


def finish(role):
    if OPT["stamps"]:
        stamp(role, "end")
        A("s_waitcnt lgkmcnt(0)")
        A("s_mov_b64 exec, -1")
        A("v_mov_b32 v1, 0")
        for i in range(len(stampnames[role])):
            A(f"v_writelane_b32 v1, s{ST0+2*i}, {i}")
        A("v_and_b32 v2, 63, v0")
        A("v_lshlrev_b32 v2, 2, v2")
        A("s_lshl_b32 s60, s2, 2")
        A(f"s_add_u32 s60, s60, s{SW}")
        A("s_lshl_b32 s60, s60, 6")
        A(f"s_add_u32 s60, s60, {WS_STAMP}")
        A("s_mov_b64 exec, 0xffff")
        A(f"buffer_store_dword v1, v2, {S(R_WS,4)}, s60 offen")
        if OPT.get("dbg") and role == "B":
            A(f"""
s_cmp_lg_u32 s{SW}, 0
s_cbranch_scc1 L_nodbg
s_load_dwordx2 s[60:61], s[0:1], 104
s_not_b32 s62, s{ST0}
v_writelane_b32 v1, s62, 15
s_waitcnt lgkmcnt(0)
global_atomic_umax v2, v1, s[60:61]
L_nodbg:
""")
    A("s_endpgm")
    A.vm, A.lg = [], []


def set_exec(mask):
    if mask == -1 or mask < (1 << 31):
        A(f"s_mov_b64 exec, {mask}")
    else:
        A(f"s_mov_b32 exec_lo, {mask & 0xffffffff:#x}")
        A(f"s_mov_b32 exec_hi, {mask >> 32:#x}")


def dump(regs, slot, vtmp):
    if not OPT["dump"]:
        return
    A(f"v_lshlrev_b32 v{vtmp}, 2, v0")
    A(f"s_sub_u32 s74, s2, {ID_B}")
    A(f"s_mul_i32 s74, s74, {32*1024}")
    A(f"s_add_u32 s74, s74, {WS_DUMP + slot*0x800000}")
    assert len(regs) <= 32
    for r in regs:
        A.v(f"buffer_store_dword v{r}, v{vtmp}, {S(R_WS,4)}, s74 offen", "dump")
        A("s_add_u32 s74, s74, 1024")
    A.vwait_all()


A(f"""
.amdgcn_target "amdgcn-amd-amdhsa--gfx950"
.text
.globl {KN}
.p2align 12
.type {KN},@function
{KN}:
s_load_dwordx16 s[4:19], s[0:1], 0
s_load_dwordx8 s[20:27], s[0:1], 64
s_load_dwordx4 s[28:31], s[0:1], 96
s_load_dwordx2 s[32:33], s[0:1], 112
""")
if OPT["stamps"]:
    A(f"{'s_memtime' if OPT.get('cyc') else 's_memrealtime'} {S(ST0,2)}")
    for r_ in ("B", "A"):
        stampnames[r_] = ["start"]
A(f"""
v_lshrrev_b32 v1, 6, v0
s_cmp_ge_u32 s2, {ID_B}
v_readfirstlane_b32 s{SW}, v1
s_cbranch_scc1 L_B
s_setprio {OPT.get('prioR', 3)}
s_cmp_ge_u32 s2, {ID_A}
s_cbranch_scc1 L_A
""")
A.c("---- code prefetch into L2 (one workgroup per die)")
A(f"""
s_getpc_b64 s[60:61]
L_pc:
v_lshlrev_b32 v2, 7, v0
v_min_u32 v2, L_codeend-L_pc-4, v2
""")
if OPT.get("pfc", 1):
    A("global_load_dword v3, v2, s[60:61]")
A("""
L_exit:
s_endpgm
""")

sST, sHP, sB, sCT = 60, 61, 62, 63
sT0, sT1, sT2, sT3 = 64, 65, 66, 67
sEV, sLO = 68, 70
sCNT, sWOFF = 72, 73
sL2E = 48
sJ, sOWN, sXL = 50, 51, 68
XB, ACC, WF, NWF = 96, 56, 16, 7
vXA, vXR = 8, 10
ONE, CQ0, CQ1, CQ2 = 6, 8, 12, 16
vGA, vKT, vOT, vOA, ID, vGW = 1, 3, 5, 6, 44, 48
vPA, vPA1, vPW, vVW, vKA, vL16, vL8 = 49, 50, 51, 52, 53, 54, 55
LDS_X = 40960
LDS_PV, LDS_WP, LDS_Z, LDS_GATE = 0, 77824, 79424, 80384
LDS_QA, LDS_QB = 40960, 16384
LDS_AT, LDS_KVT, LDS_RED = 0, 10240, 13824


def Xr(c, sg, j):
    return XB + 32 * c + 8 * j + 4 * sg


def L(text):
    return [(lambda l=l: A(l)) for l in (x.strip() for x in text.strip().split("\n")) if l]


def run(lst):
    while lst:
        lst.pop(0)()


class Stream:
    def __init__(self, budget=3):
        self.ev, self.now, self.q, self.budget = {}, {}, [], budget

    def at(self, k, fs):
        self.ev.setdefault(k, []).extend(fs if isinstance(fs, list) else [fs])

    def exact(self, k, f):
        self.now.setdefault(k, []).append(f)

    def run(self, mm, reserve=lambda k: k & 1):
        for k, m in enumerate(mm):
            m()
            j = max(i for i in range(len(A.lines)) if "v_mfma" in A.lines[i] and i >= len(A.lines) - 12)
            self.q += self.ev.pop(k, [])
            while self.q and len(A.lines) - 1 - j < self.budget - reserve(k):
                self.q.pop(0)()
            if k in self.now:
                run(self.q)
                run(self.now.pop(k))
        run(self.q)
        assert not self.ev and not self.now


def flat(items):
    o = []
    for pre, ld in items:
        o += L(pre) + [ld]
    return o


def dma_addr(v, i, div, fields, extra, t0, vl):
    t1, t2 = t0 + 1, t0 + 2
    magic = {10: 6554, 5: 13108}[div]
    for q in range(1280):
        assert (q * magic) >> 16 == q // div
    o = []
    if i:
        o.append(f"v_add_u32 v{t0}, {64*i}, v{vl}")
    q_ = t0 if i else vl
    o.append(f"v_mul_u32_u24 v{t1}, {magic}, v{q_}")
    o.append(f"v_lshrrev_b32 v{t1}, 16, v{t1}")
    o.append(f"v_mad_i32_i24 v{t0}, v{t1}, -{div}, v{q_}")
    for n, (sb, w, db) in enumerate(fields):
        if n == 0:
            assert db == 0
            o.append(f"v_bfe_u32 v{v}, v{t1}, {sb}, {w}")
        else:
            o.append(f"v_bfe_u32 v{t2}, v{t1}, {sb}, {w}")
            o.append(f"v_lshl_or_b32 v{v}, v{t2}, {db}, v{v}")
    o.append(f"v_mul_u32_u24 v{v}, 240, v{v}")
    if extra:
        o.append(f"v_add_u32 v{t2}, 3, v{t0}")
        o.append(f"v_lshrrev_b32 v{t2}, 3, v{t2}")
        o.append(f"v_mul_u32_u24 v{t2}, {extra//16}, v{t2}")
        o.append(f"v_add3_u32 v{v}, v{v}, v{t0}, v{t2}")
        o.append(f"v_lshlrev_b32 v{v}, 4, v{v}")
    else:
        o.append(f"v_add_lshl_u32 v{v}, v{v}, v{t0}, 4")
    return "\n".join(o)


def softmax(P, E, OUT, tm, pk, after_plus=None, fill=[]):
    mx, mn, acc = tm, tm + 2, tm + 4
    A(f"v_max3_f32 v{mx}, v{P}, v{P+1}, v{P+2}")
    A(f"v_min3_f32 v{mn}, v{P}, v{P+1}, v{P+2}")
    for i in range(3, 19, 2):
        A(f"v_max3_f32 v{mx}, v{mx}, v{P+i}, v{P+i+1}")
        A(f"v_min3_f32 v{mn}, v{mn}, v{P+i}, v{P+i+1}")
    A(f"v_max_f32 v{mx}, v{mx}, v{P+19}")
    A(f"v_min_f32 v{mn}, v{mn}, v{P+19}")
    if pk:
        A(f"v_mul_f32 v{mx+1}, s{sL2E}, v{mx}")
        A(f"v_mul_f32 v{mn+1}, s{sL2E}, v{mn}")
    A(f"v_mul_f32 v{mx}, s{sL2E}, v{mx}")
    A(f"v_mul_f32 v{mn}, s{sL2E}, v{mn}")
    for half in range(2):
        D = E if half == 0 else [P + 2 * i for i in range(10)]
        for i in range(10):
            if pk:
                if half == 0:
                    A(f"v_pk_fma_f32 {V(D[i],2)}, {V(P+2*i,2)}, {S(sL2E,2)}, {V(mx,2)} neg_lo:[0,0,1] neg_hi:[0,0,1]")
                else:
                    A(f"v_pk_fma_f32 {V(D[i],2)}, {V(P+2*i,2)}, {S(sL2E,2)}, {V(mn,2)} neg_lo:[1,0,0] neg_hi:[1,0,0]")
                if i >= 2:
                    A(f"v_pk_add_f32 {V(acc,2)}, {V(D[0] if i==2 else acc,2)}, {V(D[i-1],2)}")
            else:
                for n in range(2):
                    if half == 0:
                        A(f"v_fma_f32 v{D[i]+n}, v{P+2*i+n}, s{sL2E}, -v{mx}")
                    else:
                        A(f"v_fma_f32 v{D[i]+n}, -v{P+2*i+n}, s{sL2E}, v{mn}")
                if i >= 2:
                    for n in range(2):
                        A(f"v_add_f32 v{acc+n}, v{(D[0] if i==2 else acc)+n}, v{D[i-1]+n}")
            for n in range(2):
                A(f"v_exp_f32 v{D[i]+n}, v{D[i]+n}")
                if fill:
                    fill.pop(0)()
        A(f"v_add_f32 v{acc}, v{acc}, v{acc+1}")
        A(f"v_add_f32 v{acc}, v{acc}, v{D[9]}")
        A(f"v_add_f32 v{acc}, v{acc}, v{D[9]+1}")
        if pk:
            A(f"v_rcp_f32 v{acc+1}, v{acc}")
        A(f"v_rcp_f32 v{acc}, v{acc}")
        for i in range(10):
            scale(D[i], acc, pk)
            if i:
                A(f"v_cvt_pk_bf16_f32 v{OUT+10*half+i-1}, v{D[i-1]}, v{D[i-1]+1}")
        A(f"v_cvt_pk_bf16_f32 v{OUT+10*half+9}, v{D[9]}, v{D[9]+1}")
        if half == 0 and after_plus:
            after_plus()
    run(fill)


def scale(d, r, pk):
    if pk:
        A(f"v_pk_mul_f32 {V(d,2)}, {V(d,2)}, {V(r,2)}")
    else:
        A(f"v_mul_f32 v{d}, v{r}, v{d}")
        A(f"v_mul_f32 v{d+1}, v{r}, v{d+1}")


PF0, PF1, PK, PHI = 32, 76, 56, 8
EE = [76 + 2 * i for i in range(8)] + [28, 30]


def phi_frags(pf, vaddr):
    for t in range(3):
        for h in range(2):
            r = pf + 4 * t + 2 * h
            if t == 2 and h == 1:
                A(f"v_mov_b32 v{r}, 0")
                A(f"v_mov_b32 v{r+1}, 0")
            else:
                A.l(f"ds_read_b64_tr_b16 {V(r,2)}, v{vaddr} offset:{320*t+160*h}", "pf")


def phi_mfma(ops):
    for t in range(3):
        A(f"v_mfma_f32_32x32x16_bf16 {V(PK,16)}, {V(PF0+4*t,4)}, {V(ops[t],4)}, {'0' if t==0 else V(PK,16)}")
    for t in range(3):
        A(f"v_mfma_f32_16x16x32_bf16 {V(PK+16,4)}, {V(PF1+4*t,4)}, {V(ops[t],4)}, {'0' if t==0 else V(PK+16,4)}")


class FragPipe:
    def __init__(self, vaddr, look=5):
        self.vaddr, self.look = vaddr, look

    def stream(self, frags, acc):
        reads = [(lambda i=i, o=o: A.l(f"ds_read_b128 {V(WF+4*(i%NWF),4)}, v{self.vaddr} offset:{o}", f"f{i}")) for i, (ks, t, o) in enumerate(frags)]
        out = []
        for i, (ks, t, o) in enumerate(frags):
            for sg in range(2):
                def m(i=i, ks=ks, t=t, sg=sg):
                    if i == 0 and sg == 0:
                        for _ in range(self.look):
                            reads.pop(0)()
                    if sg == 0:
                        A.lwait(f"f{i}")
                    d = V(acc + 8 * t + 4 * sg, 4)
                    A(f"v_mfma_f32_16x16x32_bf16 {d}, {V(WF+4*(i%NWF),4)}, {V(Xr(ks//4,sg,ks%4),4)}, {'0' if ks==0 else d}")
                    if reads and sg == 0:
                        reads.pop(0)()
                out.append(m)
        return out


def role_B():
    A.c("---- B prologue")
    sXO, sWO2, sQO, sKW, sKF, sOF, sWC, sUT = 69, 70, 71, 74, 30, 31, 24, 25
    sRG, sCG, sUS, sKA, sUO, vU = 100, 101, 72, 18, 100, 80
    LDS_UK, LDS_UQ = 32768, 73728
    A(f"""
L_B:
s_cmp_ge_u32 s2, {ID_END}
s_cbranch_scc1 L_exit
s_setprio {OPT.get('prioB', 2)}
s_sub_u32 s{sT0}, s2, {ID_B}
s_and_b32 s{sB}, s{sT0}, 1
s_bfe_u32 s{sST}, s{sT0}, 0x20001
s_sub_u32 s{sRG}, s{sT0}, 240
s_min_u32 s{sCG}, s{sT0}, s{sRG}
s_mul_i32 s{sRG}, s{sCG}, 171
s_lshr_b32 s{sRG}, s{sRG}, 9
s_mul_i32 s{sT1}, s{sRG}, 3
s_sub_u32 s{sCG}, s{sCG}, s{sT1}
s_mul_i32 s{sUS}, s{sRG}, {8*3840}
s_mul_i32 s{sT1}, s{sCG}, 400
s_add_u32 s{sUS}, s{sUS}, s{sT1}
v_lshrrev_b32 v{vU+2}, 5, v0
v_bfe_u32 v{vU+3}, v0, 5, 2
v_mad_i32_i24 v{vU+3}, v{vU+3}, -4, v0
v_mul_u32_u24 v{vU+2}, 240, v{vU+2}
v_and_b32 v{vU}, 31, v{vU+3}
v_min_u32 v{vU}, 29, v{vU}
v_add_lshl_u32 v{vU}, v{vU}, v{vU+2}, 4
v_add_u32 v{vU+3}, -1, v{vU+3}
v_and_b32 v{vU+1}, 31, v{vU+3}
v_min_u32 v{vU+1}, 29, v{vU+1}
v_add_lshl_u32 v{vU+1}, v{vU+1}, v{vU+2}, 4
s_lshr_b32 s{sT0}, s{sT0}, 3
s_sub_u32 s{sT0}, 31, s{sT0}
s_mul_i32 s{sT1}, s{sT0}, 86
s_lshr_b32 s{sT1}, s{sT1}, 8
s_mul_i32 s{sCT}, s{sT1}, 3
s_sub_u32 s{sCT}, s{sT0}, s{sCT}
s_add_u32 s{sCT}, s{sCT}, 5
s_sub_u32 s{sT3}, s{sT0}, 12
s_mul_i32 s{sT2}, s{sT3}, 52
s_lshr_b32 s{sT2}, s{sT2}, 8
s_mul_i32 s{sJ}, s{sT2}, 5
s_sub_u32 s{sT3}, s{sT3}, s{sJ}
s_cmp_ge_u32 s{sT0}, 12
s_cselect_b32 s{sCT}, s{sT3}, s{sCT}
s_cselect_b32 s{sT1}, s{sT2}, s{sT1}
s_lshl_b32 s{sST}, s{sST}, 2
s_add_u32 s{sST}, s{sST}, s{sT1}
s_lshl_b32 s{sHP}, s{sB}, 3
s_add_u32 s{sHP}, s{sHP}, s{sCT}
s_add_u32 s{sJ}, s{sT1}, s{sCT}
s_sub_u32 s{sT1}, s{sJ}, 5
s_min_u32 s{sJ}, s{sJ}, s{sT1}
s_sub_u32 s{sT1}, s{sJ}, 5
s_min_u32 s{sJ}, s{sJ}, s{sT1}
s_lshl_b32 s{sJ}, s{sJ}, 1
s_add_u32 s{sJ}, s{sJ}, s{sB}
v_bfe_u32 v2, v0, 3, 3
v_lshl_add_u32 v2, v1, 5, v2
v_mul_u32_u24 v{vXA}, 1280, v2
v_bfe_u32 v2, v0, 4, 2
v_and_b32 v3, 7, v0
v_xor_b32 v2, v2, v3
s_mul_i32 s{sT1}, s{sST}, 163840
v_lshl_add_u32 v{vXA}, v2, 4, v{vXA}
v_add_u32 v{vXA}, s{sT1}, v{vXA}
v_xor_b32 v{vXA+1}, 64, v{vXA}
v_add_u32 v{vXA+1}, {10240-1024}, v{vXA+1}
s_lshl_b32 s{sT3}, s{SW}, 10
s_lshl_b32 s{sXL}, s{SW}, 13
s_lshl_b32 s{sXO}, s{sJ}, 7
s_mul_i32 s{sWO2}, s{sJ}, 10240
s_add_u32 s{sWO2}, s{sWO2}, s{sT3}
s_mul_i32 s{sQO}, s{sJ}, 6144
s_add_u32 s{sQO}, s{sQO}, s{sT3}
s_mov_b32 s{sL2E}, {LOG2E:#x}
s_mov_b32 s{sL2E+1}, {LOG2E:#x}
""")
    t0, t1, t2, t3 = 56, 57, 58, 59
    a0, a1, a2, a3 = 56, 57, 58, 59
    m0_, m1_ = S(56, 2), S(58, 2)
    setup = L(f"""
v_and_b32 v{vL8}, 63, v0
v_lshlrev_b32 v{vL16}, 4, v{vL8}
v_lshlrev_b32 v{vL8}, 3, v{vL8}
v_and_b32 v{t0}, 15, v0
v_lshrrev_b32 v{t1}, 1, v{t0}
v_bfe_u32 v{t2}, v0, 4, 2
v_xor_b32 v{t1}, v{t1}, v{t2}
v_lshlrev_b32 v{t1}, 4, v{t1}
v_lshl_add_u32 v{vXR}, v{t0}, 7, v{t1}
v_add_u32 v{vXR}, s{sXL}, v{vXR}
v_xor_b32 v{vXR+1}, 64, v{vXR}
v_lshrrev_b32 v{t1}, 5, v0
v_lshl_add_u32 v{vGW}, v{t1}, 4, v{t0}
v_lshlrev_b32 v{vGW}, 2, v{vGW}
v_add_u32 v{vGW}, {LDS_GATE}, v{vGW}
v_bfe_u32 v{t0}, v0, 5, 1
v_and_b32 v{t1}, 1, v0
v_bfe_u32 v{t2}, v0, 1, 1
v_cmp_eq_u32 {m0_}, v{t1}, v{t0}
v_mul_u32_u24 v{vPA1}, 800, v{t0}
v_bfe_u32 v{t1}, v0, 2, 2
v_mad_u32_u24 v{vPA1}, v{t1}, 40, v{vPA1}
v_add_u32 v{vPA1}, {LDS_WP}, v{vPA1}
v_lshl_add_u32 v{vPA}, v{t2}, 3, v{vPA1}
v_bfe_u32 v{t2}, v0, 4, 1
v_lshl_add_u32 v{vPA}, v{t2}, 4, v{vPA}
v_mov_b32 v{t3}, {LDS_Z}
v_cndmask_b32 v{vPA}, v{t3}, v{vPA}, {m0_}
v_lshlrev_b32 v{vKA}, 1, v{t0}
v_lshl_add_u32 v{vKA}, v{t1}, 2, v{vKA}
v_mul_u32_u24 v{vKA}, 272, v{vKA}
v_and_b32 v{t1}, 3, v0
v_lshl_add_u32 v{t2}, v{t2}, 2, v{t1}
v_lshl_add_u32 v{vKA}, v{t2}, 3, v{vKA}
v_bfe_u32 v{t2}, v0, 4, 2
v_cmp_eq_u32 {m0_}, v{t1}, v{t2}
v_add_u32 v{vPA1}, 32, v{vPA1}
v_and_b32 v{t1}, 31, v0
v_lshrrev_b32 v{t2}, 6, v0
v_cndmask_b32 v{vPA1}, v{t3}, v{vPA1}, {m0_}
v_lshl_add_u32 v{t1}, v{t2}, 5, v{t1}
v_mul_u32_u24 v{t1}, 272, v{t1}
v_mul_u32_u24 v{t3}, 80, v{t0}
v_add_u32 v{vPW}, v{t1}, v{t3}
v_mad_u32_u24 v{vVW}, v{t0}, 48, v{t1}
v_mad_u32_u24 v{vKA}, v{t2}, 40, v{vKA}
v_and_b32 v{vGA}, 31, v0
v_add_u32 v{vGA+1}, 32, v{vGA}
v_min_u32 v{vGA+1}, 54, v{vGA+1}
v_bfe_u32 v{a3}, v0, 5, 1
v_lshlrev_b32 v{a0}, 3, v{a3}
v_lshl_add_u32 v{vOT}, v{vGA}, 4, v{a0}
v_lshlrev_b32 v{a0}, 10, v{a3}
v_lshl_add_u32 v{vGA}, v{vGA}, 4, v{a0}
v_lshl_add_u32 v{vGA+1}, v{vGA+1}, 4, v{a0}
v_and_b32 v{a0}, 15, v0
v_bfe_u32 v{a1}, v0, 4, 1
v_mad_i32_i24 v{a2}, v{a1}, -8, v{a0}
v_lshl_add_u32 v{a0}, v{a3}, 4, v{a0}
v_and_b32 v{vKT}, 1, v{a2}
v_lshlrev_b32 v{vKT}, 4, v{vKT}
v_mov_b32 v{vKT+1}, 0x3f80
v_lshlrev_b32 v{vKT}, v{vKT}, v{vKT+1}
v_lshrrev_b32 v{a2}, 1, v{a2}
v_cmp_eq_u32 {m0_}, 0, v{a2}
v_cmp_eq_u32 {m1_}, 1, v{a2}
s_lshr_b32 s73, s{SW}, 1
v_cndmask_b32 v{ID}, 0, v{vKT}, {m0_}
v_cndmask_b32 v{ID+1}, 0, v{vKT}, {m1_}
v_cmp_eq_u32 {m0_}, 2, v{a2}
v_cmp_eq_u32 {m1_}, 3, v{a2}
s_mul_i32 s73, s73, 1680
v_cndmask_b32 v{ID+2}, 0, v{vKT}, {m0_}
v_cndmask_b32 v{ID+3}, 0, v{vKT}, {m1_}
s_mul_i32 s75, s{SW}, 40
s_add_u32 s73, s73, s75
s_add_u32 s73, s73, {LDS_KVT}
v_cmp_le_u32 {m0_}, 22, v{a0}
v_cmp_le_u32 {m1_}, 12, v{a0}
v_mul_u32_u24 v{vKT}, 80, v{a0}
v_mov_b32 v{a2}, {8-22*80}
v_cndmask_b32 v{a2}, 0, v{a2}, {m0_}
v_lshl_add_u32 v{vKT}, v{a1}, 4, v{vKT}
v_add_u32 v{vKT+1}, 808, v{vKT}
v_add3_u32 v{vKT}, v{vKT}, v{a2}, s73
v_lshl_add_u32 v{a2}, v{a0}, 1, v{a1}
v_mul_u32_u24 v{a2}, 80, v{a2}
v_subrev_u32 v{a2}, {24*80-32}, v{a2}
v_cndmask_b32 v{vKT+1}, v{vKT+1}, v{a2}, {m1_}
v_add_u32 v{vKT+1}, s73, v{vKT+1}
v_bfe_u32 v{a0}, v0, 2, 1
v_cmp_eq_u32 {m0_}, v{a0}, v{a3}
v_bfe_u32 v{a1}, v0, 3, 2
v_and_b32 v{a2}, 3, v0
v_lshl_add_u32 v{a1}, v{a1}, 2, v{a2}
v_mad_u32_u24 v{a1}, v{a0}, 22, v{a1}
v_mul_u32_u24 v{a1}, 80, v{a1}
v_add_u32 v{vOA}, {LDS_KVT}, v{a1}
v_add_u32 v{vOA+1}, {LDS_KVT+1280}, v{a1}
v_mov_b32 v{a2}, {LDS_Z}
v_cndmask_b32 v{vOA}, v{a2}, v{vOA}, {m0_}
v_cndmask_b32 v{vOA+1}, v{a2}, v{vOA+1}, {m0_}
v_lshlrev_b32 v{t1}, 2, v0
v_min_u32 v{t1}, 700, v{t1}
v_add_u32 v{t1}, {LDS_Z}, v{t1}
v_mov_b32 v{t2}, 0
""")
    setup.append(lambda: A.l(f"ds_write_b32 v{t1}, v{t2}", "z"))
    def wrap(sreg, step, size):
        return f"s_add_u32 s{sreg}, s{sreg}, {step}\ns_sub_u32 s{sT2}, s{sreg}, {size}\ns_min_u32 s{sreg}, s{sreg}, s{sT2}\n"

    def xslot(u):
        return 2048 * (u & 3) + (0 if BORROW and 4 <= u < 8 else LDS_X)

    def issue_x(u):
        if u >= 20:
            return []
        pre = f"s_add_u32 m0, s{sXL}, {xslot(u)}\n"
        if u & 1:
            pre += f"s_add_u32 s{sT0}, s{sXO}, 20480\n" + wrap(sXO, 128, 1280)
        so = sT0 if u & 1 else sXO
        return [(pre if i == 0 else "", lambda i=i: A.v(f"buffer_load_dwordx4 v{vXA+i}, {S(R_X,4)}, s{so} offen offset:{1024*i} lds", f"x{u}")) for i in range(2)]

    def read_x(u):
        A.vwait(f"x{u}")
        for jj in range(2):
            A.l(f"ds_read_b128 {V(Xr(u//4,u&1,(u&2)+jj),4)}, v{vXR+jj} offset:{xslot(u)}", f"xr{u}")

    wround, qround = [0], [0]

    def issue_w(upto):
        o = []
        for i in range(wround[0], min(upto, 25)):
            pre = f"s_add_u32 m0, s{sT3}, {4096*(i%10)}\n" + (wrap(sWO2, 4096, 102400) if i else "")
            o.append((pre, lambda i=i: A.v(f"buffer_load_dwordx4 v{vL16}, {S(R_W,4)}, s{sWO2} offen sc1 lds", f"w{i}")))
        wround[0] = max(wround[0], min(upto, 25))
        return o

    def issue_q(upto):
        o = []
        for i in range(qround[0], upto):
            pre = f"s_add_u32 m0, s{sT3}, {LDS_QA+4096*i if i < 9 else LDS_QB+4096*(i-9)}\n" + (wrap(sQO, 4096, 61440) if i else "")
            o.append((pre, lambda i=i: A.v(f"buffer_load_dwordx4 v{vL16}, {S(R_M1,4)}, s{sQO} offen sc1 lds", f"q{i}")))
        qround[0] = upto
        return o
    NEED = lambda h: (10 * h + 9) // 4 + 1
    FREED = lambda h: (10 * h + 6) // 4 + 1

    U2, U3 = OPT.get("u2", 8), OPT.get("u3", 11)
    BORROW = U2 >= 8
    NX0, NX1, NXR = OPT.get("nx0", 1), OPT.get("nx1", 3), 8 if BORROW else 4
    for q in range(240):
        assert (q * 171) >> 9 == q // 3
    for _ in range(OPT.get("npre", 30)):
        setup.pop(0)()
    A("s_waitcnt lgkmcnt(0)")
    A.c("---- this workgroup's share of the weight repack: 8 rows x 6 head pairs of wqkv -> MFMA fragment order")
    srd(R_W, P_WQKV, 2457600)
    for i in range(2):
        A(f"s_add_u32 m0, s{sT3}, {LDS_UK+4096*i}")
        A(f"s_add_u32 s{sT0}, s{sUS}, {1280*(i+1)}")
        A.v(f"buffer_load_dwordx4 v{vU+i}, {S(R_W,4)}, s{sT0} offen lds", "uk")

    def load_uq():
        A(f"s_add_u32 m0, s{sT3}, {LDS_UQ}")
        A("s_nop 0")
        A.v(f"buffer_load_dwordx4 v{vU}, {S(R_W,4)}, s{sUS} offen lds", "uq")
    if OPT.get("qe", 1):
        load_uq()
    load_epoch()
    srd(R_X, P_U, 2621440)
    for u in range(NX0):
        run(flat(issue_x(u)))
    A(f"""
s_lshl_b32 s{sKA}, s{sCG}, 2
s_add_u32 s{sKA}, s{sKA}, s{SW}
s_lshl_b32 s{sKA}, s{sKA}, 2
s_and_b32 s{sT1}, s{sRG}, 3
s_add_u32 s{sKA}, s{sKA}, s{sT1}
s_lshl_b32 s{sKA}, s{sKA}, 8
s_lshl_b32 s{sUT}, s{sJ}, 8
s_add_u32 s{sUT}, s{sUT}, {C_UT}
s_mov_b64 {S(ONE,2)}, 1
s_lshl_b32 s{sOWN}, s{SW}, 3
s_add_u32 s{sOWN}, s{sOWN}, s{sCT}
""")

    def guarded(cmp_, f):
        _lab[0] += 1
        k = _lab[0]
        A(cmp_)
        A(f"s_cbranch_scc1 L_rp{k}")
        f()
        A(f"L_rp{k}:")
    reporter = lambda f: guarded(f"s_cmp_ge_u32 s{sOWN}, 5", f)
    producer = lambda f: guarded(f"s_cmp_ge_u32 s2, {ID_B+240}", f)
    cnt_read(CQ0 + 2, sKA)
    reporter(lambda: cnt_read(CQ1 + 2, sUT))
    stamp("B", "iss0")
    srd(R_M1, P_WPHI, 25600)
    srd(R_WS, P_WS, WS_SIZE)
    A(f"""
s_lshl_b32 s{sT1}, s{sRG}, 4
s_load_dwordx4 {S(20,4)}, {S(P_GATE,2)}, s{sT1}
s_lshl_b32 s{sKF}, s{sHP}, 2
s_add_u32 s{sKF}, s{sKF}, s{SW}
s_lshl_b32 s{sKF}, s{sKF}, 8
s_add_u32 s{sKF}, s{sKF}, {C_KV}
s_lshl_b32 s{sOF}, s{sST}, 1
s_lshr_b32 s{sT1}, s{SW}, 1
s_add_u32 s{sOF}, s{sOF}, s{sT1}
s_lshl_b32 s{sOF}, s{sOF}, 2
s_lshr_b32 s{sT1}, s{sHP}, 2
s_add_u32 s{sOF}, s{sOF}, s{sT1}
s_lshl_b32 s{sOF}, s{sOF}, 8
s_add_u32 s{sOF}, s{sOF}, {C_O}
s_mul_i32 s{sKW}, s{sHP}, 52
s_lshr_b32 s{sKW}, s{sKW}, 8
s_min_u32 s{sKW}, s{sKW}, 2
s_lshl_b32 s{sKW}, s{sKW}, 2
s_and_b32 s{sT1}, s{sST}, 3
s_add_u32 s{sKW}, s{sKW}, s{sT1}
s_lshl_b32 s{sKW}, s{sKW}, 2
s_add_u32 s{sKW}, s{sKW}, s{SW}
s_lshl_b32 s{sKW}, s{sKW}, 8
""")
    vR, vS, c0, c1, c2, c3 = 84, 88, 92, 93, 94, 95
    A(f"""
v_bfe_u32 v{c0}, v0, 2, 2
v_bfe_u32 v{c1}, v0, 1, 1
v_mul_u32_u24 v{c1}, 40, v{c1}
v_lshl_add_u32 v{c1}, v{c0}, 6, v{c1}
v_and_b32 v{c2}, 1, v0
v_lshl_add_u32 v{c1}, v{c2}, 4, v{c1}
v_lshlrev_b32 v{c0}, 9, v{c0}
v_lshl_add_u32 v{c2}, v{c2}, 12, v{c0}
v_bfe_u32 v{vU+2}, v0, 4, 2
v_and_b32 v{vU+3}, 15, v0
""")
    for n in range(2):
        A(f"""
v_lshrrev_b32 v{c3}, 6, v0
v_lshl_add_u32 v{c3}, v{c3}, 3, v{vU+2}
v_add_u32 v{c3}, {4*n}, v{c3}
v_min_u32 v{c3}, 29, v{c3}
v_mul_u32_u24 v{vS+n}, 52, v{c3}
v_lshrrev_b32 v{vS+n}, 8, v{vS+n}
v_mad_u32_u24 v{vR+n}, v{vS+n}, 5, v{c3}
v_lshl_add_u32 v{vR+n}, v{vR+n}, 3, v{c1}
v_and_b32 v{vR+n}, 511, v{vR+n}
v_add_u32 v{vR+n}, v{vR+n}, v{c2}
v_mul_u32_u24 v{vS+n}, 95, v{vS+n}
v_add_lshl_u32 v{vS+n}, v{vS+n}, v{c3}, 10
v_lshl_add_u32 v{vS+n}, v{vU+3}, 4, v{vS+n}
""")
    A(f"""
v_lshrrev_b32 v{c3}, 4, v0
v_add_u32 v{c3}, s{sCG}, v{c3}
v_mul_u32_u24 v{vS+2}, 86, v{c3}
v_lshrrev_b32 v{vS+2}, 8, v{vS+2}
v_mad_i32_i24 v{c3}, v{vS+2}, -3, v{c3}
v_and_b32 v{c2}, 2, v{c3}
v_add_u32 v{vR+2}, v{c3}, v{c2}
v_mad_u32_u24 v{vR+2}, v{vS+2}, 10, v{vR+2}
v_lshl_add_u32 v{vR+2}, v{vR+2}, 3, v{c1}
v_and_b32 v{vR+2}, 511, v{vR+2}
v_add_u32 v{vR+2}, v{vR+2}, v{c0}
v_add_u32 v{vR+2}, {LDS_UQ}, v{vR+2}
v_mad_u32_u24 v{vS+2}, v{vS+2}, 60, v{c3}
v_lshlrev_b32 v{vS+2}, 10, v{vS+2}
v_lshl_add_u32 v{vS+2}, v{vU+3}, 4, v{vS+2}
v_lshlrev_b32 v{c2}, 1, v{c2}
v_and_b32 v{vS+3}, v{c2}, v0
""")
    for q in range(18):
        assert (q * 86) >> 8 == q // 3
    run(setup)
    srd(R_M2, P_OUT, 2621440)
    A(f"""
s_lshr_b32 s{sT1}, s{sRG}, 2
s_and_b32 s{sT2}, s{sRG}, 3
s_lshl_b32 s{sT2}, s{sT2}, 8
s_mul_i32 s73, s{sCG}, 100
s_add_u32 s{sT1}, s{sT1}, s73
s_mul_i32 s73, s{sT1}, 5120
s_add_u32 s73, s73, s{sT2}
s_add_u32 s73, s73, {WS_WKV}
s_mul_i32 s75, s{sT1}, 3072
s_add_u32 s75, s75, s{sT2}
s_add_u32 s75, s75, {WS_WQ}
s_sub_u32 s19, s2, {ID_B}
s_lshl_b32 s{sT1}, s{SW}, 8
s_add_u32 s{sT1}, s{sT1}, s19
s_lshl_b32 s19, s19, 8
s_add_u32 s19, s19, {C_KV}
""")
    A.lwait_all()
    make_tag()
    cnt_claim(CQ0, sKA)
    reporter(lambda: cnt_claim(CQ1, sUT))
    guarded(f"s_cmp_ge_u32 s{sT1}, 192", lambda: cnt_init(19))
    QE = OPT.get("qe", 1)

    def q_share():
        for h in range(2):
            A.l(f"ds_read_b64_tr_b16 {V(76+2*h,2)}, v{vR+2} offset:{2048*h}", "_")
        lwait_lds(c0, vL8, 8)
        A("s_mov_b64 exec, vcc")
        for p in range(4):
            A(f"v_mov_b32 v{76+p}, s{20+p}")
        A("s_mov_b64 exec, -1")
        A.v(f"buffer_store_dwordx4 {V(76,4)}, v{vS+2}, {S(R_WS,4)}, s75 offen sc1", "qst")
    TA_ = [81, 93, 94, 95]

    def hand_over():
        for it in range(4):
            for h in range(2):
                A(f"ds_read_b64_tr_b16 {V(16+4*it+2*h,2)}, v{TA_[it ^ (1-h)]} offset:{LDS_X+512*(1-h)}")
        lwait_lds(c0, vL8, 8)
        for it in range(0 if OPT.get('nout') else 4):
            A(f"buffer_store_dwordx4 {V(16+4*it,4)}, v82, {S(R_WS,4)}, s{sUO} offen sc1")
            if it < 3:
                A(f"s_add_u32 s{sUO}, s{sUO}, 65536")
    A(f"v_cmp_ne_u32 vcc, 0, v{vS+3}")
    A.vwait("uk", "uq")
    A("s_barrier")
    stamp("B", "ukv")
    for n in range(2):
        for h in range(2):
            A.l(f"ds_read_b64_tr_b16 {V(56+4*n+2*h,2)}, v{vR+n} offset:{LDS_UK+2048*h}", "_")
    lwait_lds(c0, vL8, 8)
    for n in range(2):
        A.v(f"buffer_store_dwordx4 {V(56+4*n,4)}, v{vS+n}, {S(R_WS,4)}, s73 offen sc1", "kst")
    if QE:
        q_share()
    else:
        load_uq()
    for u in range(NX0, NX1):
        run(flat(issue_x(u)))
    A(f"""
s_mul_i32 s{sT1}, s{SW}, 400
s_add_u32 m0, s{sT1}, {LDS_WP}
s_mul_i32 s{sT2}, s{sHP}, 1600
s_add_u32 s{sT1}, s{sT1}, s{sT2}
s_mov_b64 exec, 0x1ffffff
""")
    A.v(f"buffer_load_dwordx4 v{vL16}, {S(R_M1,4)}, s{sT1} offen lds", "wp")
    A("s_mov_b64 exec, -1")
    A(f"""
s_mul_i32 s{sT1}, s{sHP}, 102400
s_add_u32 s{sT1}, s{sT1}, {WS_WKV}
s_add_u32 s{R_W}, s{P_WS}, s{sT1}
s_addc_u32 s{R_W+1}, s{P_WS+1}, 0
s_mov_b32 s{R_W+2}, 102400
s_mul_i32 s{sT1}, s{sHP}, 61440
s_add_u32 s{sT1}, s{sT1}, {WS_WQ}
s_add_u32 s{R_M1}, s{P_WS}, s{sT1}
s_addc_u32 s{R_M1+1}, s{P_WS+1}, 0
s_mov_b32 s{R_M1+2}, 61440
v_not_b32 v80, v0
v_bfe_u32 v81, v80, 4, 2
v_bfe_u32 v80, v80, 2, 2
v_lshl_add_u32 v81, v81, 3, v80
v_bfe_u32 v82, v81, 1, 3
v_bfe_u32 v83, v0, 1, 1
v_xor_b32 v82, v82, v83
v_lshlrev_b32 v82, 4, v82
v_lshl_add_u32 v81, v81, 7, v82
v_and_b32 v82, 1, v0
v_lshl_add_u32 v81, v82, 3, v81
v_add_u32 v81, s{sXL}, v81
v_bfe_u32 v82, v0, 2, 2
v_lshlrev_b32 v82, 14, v82
v_and_b32 v83, 3, v0
v_lshl_add_u32 v82, v83, 4, v82
v_and_b32 v83, 0x30, v0
v_lshl_add_u32 v82, v83, 2, v82
v_xor_b32 v93, 32, v81
v_xor_b32 v94, 64, v81
v_xor_b32 v95, 96, v81
s_lshl_b32 s{sT1}, s{sST}, 2
s_add_u32 s{sT1}, s{sT1}, s{SW}
s_sub_u32 s{sT1}, 63, s{sT1}
s_lshl_b32 s{sT1}, s{sT1}, 8
s_lshl_b32 s73, s{sJ}, 18
s_add_u32 s{sT1}, s{sT1}, s73
s_add_u32 s{sUO}, s{sT1}, {WS_UT}
""")
    A.vwait("kst", "qst")
    A.lwait_all()
    A(f"s_mov_b64 {S(CQ1,2)}, {257 if QE else 256}")
    A("s_barrier")
    producer(lambda: cnt_add(CQ1 if QE else ONE, sKA))
    stamp("B", "kflag")
    if not QE:
        A.vwait("uq")
        A("s_barrier")
        q_share()
    A.vwait("x1")
    guarded(f"s_cmp_ge_u32 s{sCT}, 5", hand_over)
    stamp("B", "utst")
    assert 2 <= NX1 < NXR
    for u in range(NX1, NXR):
        run(flat(issue_x(u)))
    stamp("B", "iss1")

    def refill(u):
        return u + 4 if not BORROW or u >= 8 else (u + 8 if u < 4 else 99)

    A.c("---- x tile -> registers")
    for u in range(U3 + 1):
        read_x(u)
        ld = []
        if u:
            A.lwait(f"xr{u-1}")
            ld += issue_x(refill(u - 1))
        if u == NX1:
            A("s_barrier")
            if not QE:
                producer(lambda: cnt_add(CQ1, sKA))
            reporter(lambda: cnt_add(ONE, sUT))
            stamp("B", "utflag")
        if u == U2:
            run(flat(ld))
            ld = []
            cnt_wait(CQ0, sKW, 20, sCNT, probed=False, low=True, nap=OPT.get('napw', 0))
            A("s_barrier")
            stamp("B", "kwseen")
        if u >= U2:
            ld = issue_w(min(10, wround[0] + OPT.get("wper", 3))) + ld
        run(flat(ld))
    assert U2 >= NX1

    def ready(h):
        A.vwait(f"w{NEED(h)-1}")
        A("s_barrier")
        stamp("B", f"w{h}")

    A.c("---- GEMM1a: k and v for two heads, 20 k-steps in one stream")
    run(flat(issue_w(NEED(1))))
    ready(0)
    pipe = FragPipe(vL16)
    mm = pipe.stream([(n // 5, n % 5, 1024 * (n % 40)) for n in range(100)], ACC)
    st_ = Stream()
    st_.at(0, flat(issue_w(10)))
    u = U3 + 1
    lastx = [0]
    for h in range(10):
        k0 = 20 * h
        for kk in (0, 5, 14):
            if u < 20:
                st_.at(k0 + kk, [lambda u=u: read_x(u), lambda u=u: A.lwait(f"xr{u-1}")] + flat(issue_x(refill(u - 1))))
                u += 1
                lastx[0] = k0 + kk
        if h < 9:
            st_.exact(k0 + 19 - 2 * pipe.look, lambda h=h: ready(h + 1))
            mm[k0 + 20] = (lambda f=mm[k0 + 20], h=h: (need_x(h + 1), f()))
        if h:
            st_.at(k0 + 20 - 2 * pipe.look, flat(issue_w(10 + FREED(h - 1))))

    def need_x(h):
        assert f"x{2*h+1}" not in A.vm
        A.lwait(f"xr{2*h}", f"xr{2*h+1}")

    HQ = OPT.get("hq", 6)
    assert u == 20 and lastx[0] < 20 * HQ
    st_.at(20 * HQ - 50, L(f"""
s_and_b32 s{sWC}, s{sCT}, 4
s_add_u32 s{sWC}, s{sWC}, s{SW}
s_lshl_b32 s{sWC}, s{sWC}, 8
s_add_u32 s{sWC}, s{sWC}, {C_WO}
s_and_b32 s20, s{sKW}, 0xfff
s_add_u32 s21, s20, 0x1000
s_add_u32 s22, s20, 0x2000
""") + [(lambda i=i: cnt_read(CQ0 + 2 * i, 20 + i)) for i in range(3)])
    st_.at(20 * HQ + 2, [lambda: A.lwait("xr19")] + [(lambda i=i: cnt_async(CQ0 + 2 * i, 14, 20 + i, 20 * 257, sCNT, nap=2)) for i in range(3)])
    for h in range(HQ, 10):
        st_.at(20 * h + 21 - 2 * pipe.look, flat(issue_q(9 if h == 9 else min(9, qround[0] + OPT.get("qper", 3)))))
    need_x(0)
    st_.run(mm)
    assert wround[0] == 25
    stamp("B", "g1a")
    if OPT.get("fine"):
        finish("B")
        return

    A.c("---- phi_k, kv partial")
    KP, VP = 8, 20
    phi_frags(PF0, vPA)
    for t in range(5):
        for sg in range(2):
            for hh in range(2):
                a_ = ACC + 8 * t + 4 * sg + 2 * hh
                A(f"v_cvt_pk_bf16_f32 v{(KP if sg==0 else VP)+2*t+hh}, v{a_}, v{a_+1}")
    phi_frags(PF1, vPA1)
    A(f"""
v_mov_b32 v{KP+10}, 0
v_mov_b32 v{KP+11}, 0
""")
    for i in range(10):
        A(f"v_permlane16_swap_b32 v{KP+i}, v{VP+i}")
    A(f"""
v_mov_b32 v{VP+10}, 0x3f80
v_mov_b32 v{VP+11}, 0
""")
    A.lwait_all()
    phi_mfma([KP, KP + 4, KP + 8])
    cnt_read(CQ0 + 2, sWC)
    A("s_barrier")
    for i in range(3):
        A.l(f"ds_write_b128 v{vVW}, {V(VP+4*i,4)} offset:{LDS_PV+160+16*i}", "pv")
    stamp("B", "pmf")

    def wr_plus():
        for i in range(2):
            A.l(f"ds_write_b128 v{vPW}, {V(PHI+4*i,4)} offset:{LDS_PV+16*i}", "pv")
    softmax(PK, EE, PHI, 32, OPT.get('pk1', 0), wr_plus)
    for i in range(2, 5):
        A.l(f"ds_write_b128 v{vPW}, {V(PHI+4*i,4)} offset:{LDS_PV+16*i}", "pv")
    stamp("B", "smx")
    vKB, vQR = vVW, vPW
    A(f"""
s_lshr_b32 s{sT0}, s{SW}, 1
s_mul_i32 s{sT0}, s{sT0}, 48
s_mul_i32 s{sT1}, s{SW}, 40
s_sub_u32 s{sT0}, s{sT0}, s{sT1}
s_add_u32 s{sT0}, s{sT0}, 160
v_add_u32 v{vKB}, s{sT0}, v{vKA}
""")
    A.lwait_all()
    A("s_barrier")
    stamp("B", "phik")
    KD = 28
    FR = [56, 64, 72, 80]

    def kvreads(ks):
        for h in range(2):
            A.l(f"ds_read_b64_tr_b16 {V(FR[ks%4]+2*h,2)}, v{vKA} offset:{LDS_PV+ks*4352+h*272}", f"kv{ks}")
        for h in range(2):
            A.l(f"ds_read_b64_tr_b16 {V(FR[ks%4]+4+2*h,2)}, v{vKB} offset:{LDS_PV+ks*4352+h*272}", f"kv{ks}")
    for ks in range(3):
        kvreads(ks)
    sWO = 75
    fl = L(f"""
v_and_b32 v14, 31, v0
v_bfe_u32 v15, v0, 5, 1
v_mad_u32_u24 v15, v15, 22, v14
v_lshlrev_b32 v15, 4, v15
s_lshl_b32 s{sT0}, s{sHP}, 2
s_add_u32 s{sT0}, s{sT0}, s{SW}
s_lshl_b32 s{sT1}, s{sT0}, 4
s_add_u32 s{sT1}, s{sT1}, s{sST}
s_lshl_b32 s{sT1}, s{sT1}, 10
s_add_u32 s{sT1}, s{sT1}, {WS_KVP}
v_add_u32 v{vQR}, {LDS_QB}, v{vL16}
""")
    for ks in range(8):
        A.lwait(f"kv{ks}")
        A(f"v_mfma_f32_32x32x16_bf16 {V(KD,16)}, {V(FR[ks%4],4)}, {V(FR[ks%4]+4,4)}, {'0' if ks==0 else V(KD,16)}")
        if ks + 3 < 8:
            kvreads(ks + 3)
        else:
            for _ in range(5):
                if fl:
                    fl.pop(0)()
    run(fl)
    A.vwait("q8")
    A("s_barrier")
    for i in range(6):
        A(f"v_cvt_pk_bf16_f32 v{8+i}, v{KD+2*i}, v{KD+2*i+1}")
    set_exec(0x003FFFFF003FFFFF)
    A.v(f"buffer_store_dwordx4 {V(8,4)}, v15, {S(R_WS,4)}, s{sT1} offen sc1", "kvst")
    A("s_mov_b32 exec_hi, 0")
    A.v(f"buffer_store_dwordx2 {V(12,2)}, v{vL8}, {S(R_WS,4)}, s{sT1} offen offset:704 sc1", "kvst")
    A("s_mov_b64 exec, -1")
    stamp("B", "kvst")
    if not OPT.get('abl'):
        cnt_wait(CQ0 + 2, sWC, 20, sCNT, nap=8)

    A.c("---- GEMM1b (q); wo fragments stream into the x registers as they die")
    QA = 56
    WOR = [XB + 4 * i for i in range(24)] + [92]
    G = Xr(3, 0, 0)
    pipe = FragPipe(vQR)
    mm = pipe.stream([(n // 3, n % 3, LDS_QA - LDS_QB + 1024 * n if n < 36 else 1024 * (n - 36)) for n in range(60)], QA)

    def issue_wo(f0, f1):
        o = []
        for f in range(f0, f1):
            ii, jn = divmod(f, 5)
            pre = ""
            if jn == 0 and ii < 4:
                pre = f"s_add_u32 s{sWC}, s{sST}, {ii}\ns_and_b32 s{sWC}, s{sWC}, 3\ns_mul_i32 s{sWC}, s{sWC}, 5120\ns_add_u32 s{sWC}, s{sWC}, s{sWO}\n"
            elif jn == 0:
                pre = f"s_add_u32 s{sWC}, s{sWO}, 20480\n"
            elif jn == 4:
                pre = f"s_add_u32 s{sWC}, s{sWC}, 4096\n"
            o.append((pre, lambda f=f, jn=jn: A.v(f"buffer_load_dwordx4 {V(WOR[f],4)}, v{vL16}, {S(R_WS,4)}, s{sWC} offen offset:{1024*(jn%4)} sc1", "wo")))
        return o

    def kv_flag():
        A.vwait("kvst")
        cnt_add(ONE, sKF)

    def q2_ready():
        A.vwait("q14")
        A("s_barrier")

    st_ = Stream()
    st_.at(0, flat(issue_q(15)) + L(f"""
s_mul_i32 s{sWO}, s{sCT}, 102400
s_mul_i32 s{sT1}, s{SW}, 25600
s_add_u32 s{sWO}, s{sWO}, s{sT1}
s_add_u32 s{sWO}, s{sWO}, {WS_WO}
"""))
    st_.exact(OPT.get("kvf", 30), kv_flag)
    wol = issue_wo(0, 25)
    NW1, NW2 = OPT.get("nw1", 10), OPT.get("nw2", 20)
    for f_, g_ in enumerate(wol[:NW1]):
        st_.at(max(8 + 3 * f_, OPT.get("wo0", 16) + OPT.get("wostep", 5) * f_), flat([g_]))
    st_.exact(72 - 2 * pipe.look - 1, q2_ready)
    st_.at(OPT.get("kvp", 84), lambda: cnt_read(CQ0, sKF))
    st_.run(mm)
    stamp("B", "g1b")

    A.c("---- gather kv partials, phi_q")
    phi_frags(PF0, vPA)
    A(f"""
s_lshl_b32 s{sT0}, s{sT0}, 14
s_add_u32 s{sT0}, s{sT0}, {WS_KVP}
""")
    A.lwait_all()
    cnt_wait(CQ0, sKF, 16, sCNT)
    stamp("B", "kvseen")
    gl = []
    for pp in range(8):
        for g2 in range(2):
            def f(pp=pp, g2=g2):
                if g2 == 0 and pp % 2 == 0:
                    A(f"s_add_u32 s{sT1}, s{sST}, {pp//2}")
                    A(f"s_and_b32 s{sT1}, s{sT1}, 3")
                    A(f"s_lshl_b32 s{sT1}, s{sT1}, 12")
                    A(f"s_add_u32 s{sT1}, s{sT1}, s{sT0}")
                A.v(f"buffer_load_dwordx4 {V(G+8*pp+4*g2,4)}, v{vGA+g2}, {S(R_WS,4)}, s{sT1} offen offset:{2048*(pp&1)} sc1", f"g{pp}")
            gl.append(f)
    for _ in range(8):
        gl.pop(0)()
    Q0, Q1 = 8, 16
    for t in range(3):
        for sg in range(2):
            for hh in range(2):
                a_ = QA + 8 * t + 4 * sg + 2 * hh
                A(f"v_cvt_pk_bf16_f32 v{(Q0 if sg==0 else Q1)+2*t+hh}, v{a_}, v{a_+1}")
    A(f"""
s_mov_b32 exec_lo, 0
v_mov_b32 v{QA+16}, v{QA+20}
s_mov_b32 exec_lo, 0xffff0000
s_mov_b32 exec_hi, 0xffff0000
""")
    A.l(f"ds_write_b32 v{vGW}, v{QA+16}", "gw")
    A("s_mov_b64 exec, -1")
    phi_frags(PF1, vPA1)
    A(f"v_mov_b32 v{Q0+6}, 0")
    A(f"v_mov_b32 v{Q0+7}, 0")
    for i in range(6):
        A(f"v_permlane16_swap_b32 v{Q0+i}, v{Q1+i}")
    A.lwait("pf")
    phi_mfma([Q0, Q1, Q0 + 4])
    run(gl)
    softmax(PK, EE, PHI, 32, OPT.get('pk3', 0), None, flat(wol[NW1:NW2]))
    stamp("B", "phiq")
    RD = 32
    for pp in range(8):
        A.vwait(f"g{pp}")
        for g2 in range(2):
            d = V(RD + 4 * g2, 4)
            A(f"v_mfma_f32_16x16x32_bf16 {d}, {V(ID,4)}, {V(G+8*pp+4*g2,4)}, {'0' if pp==0 else d}")
    A(f"""
s_lshl_b32 s{sT1}, s{sST}, 2
s_add_u32 s{sT1}, s{sT1}, s{SW}
s_lshl_b32 s{sT1}, s{sT1}, 4
s_add_u32 s{sT1}, s{sT1}, s{sHP}
s_mul_i32 s{sT1}, s{sT1}, 2560
s_add_u32 s{sT1}, s{sT1}, {WS_O}
""")
    for i in range(4):
        A(f"v_cvt_pk_bf16_f32 v{40+i}, v{RD+2*i}, v{RD+2*i+1}")
    A.l(f"ds_write_b64 v{vKT}, {V(40,2)}", "kt")
    A("s_mov_b32 exec_hi, 0x007f007f")
    A.l(f"ds_write_b64 v{vKT+1}, {V(42,2)}", "kt")
    A("s_mov_b64 exec, -1")
    A.lwait_all()
    A("s_barrier")
    stamp("B", "kvt")
    OF_, OD = G, 56
    for T in (1, 0):
        for t in range(5):
            A.l(f"ds_read_b128 {V(OF_+8*t+4*T,4)}, v{vOA+T} offset:{16*t}", f"o{t}_{T}")
    for T in (1, 0):
        for t in range(5):
            A.lwait(f"o{t}_{T}")
            d = V(OD + 16 * T, 16)
            A(f"v_mfma_f32_32x32x16_bf16 {d}, {V(OF_+8*t+4*T,4)}, {V(PHI+4*t,4)}, {'0' if t==0 else d}")
    OP = 28
    A(f"""
v_add_f32 v40, 0x358637bd, v{OD+20}
""")
    if OPT.get("pk3", 0):
        A("v_rcp_f32 v41, v40")
    A("v_rcp_f32 v40, v40")
    for i in (8, 9, 0, 1, 2, 3, 4, 5, 6, 7):
        scale(OD + 2 * i, 40, OPT.get("pk3", 0))
        A(f"v_cvt_pk_bf16_f32 v{OP+i}, v{OD+2*i}, v{OD+2*i+1}")
        if i == 9:
            A.v(f"buffer_store_dwordx2 {V(OP+8,2)}, v{vOT}, {S(R_WS,4)}, s{sT1} offen offset:2048 sc1", "ost")
        if i == 3:
            A.v(f"buffer_store_dwordx4 {V(OP,4)}, v{vL16}, {S(R_WS,4)}, s{sT1} offen sc1", "ost")
        if i == 7:
            A.v(f"buffer_store_dwordx4 {V(OP+4,4)}, v{vL16}, {S(R_WS,4)}, s{sT1} offen offset:1024 sc1", "ost")
    stamp("B", "ost")
    run(flat(wol[NW2:]))

    A.c("---- final projection: the wave sums its K quarter for four row tiles and owns tile (wave + ct) & 3")
    vOM, vOR, vW16 = 2, 3, 7
    vOMS = [72, 73, 74, 75]
    vRW, vRR, vAR, vAR2, vOUT2, vOUT = 1, 4, 5, 6, 2, 3
    sOB = [64, 65, 66, 67]
    sAF, sAT, sOC = 74, 75, 30
    GT, OMG, GA, AC0, AC1, OX = 8, 12, 16, 36, 56, 76
    OFR = [G + 4 * i for i in range(16)] + [OX + 4 * i for i in range(4)]
    A(f"""
s_add_u32 s{sOWN}, s{SW}, s{sCT}
s_and_b32 s{sOWN}, s{sOWN}, 3
s_lshl_b32 s{sCNT}, s{sB}, 2
s_add_u32 s{sCNT}, s{sCNT}, s{sOWN}
s_lshl_b32 s{sCNT}, s{sCNT}, 6
s_add_u32 s{sCNT}, s{sCNT}, {LDS_GATE}
v_and_b32 v42, 0x30, v0
v_add_u32 v42, s{sCNT}, v42
""")
    A.l(f"ds_read_b128 {V(GT,4)}, v42", "gt")
    A(f"""
s_lshl_b32 s{sAF}, s{sCT}, 2
s_add_u32 s{sAF}, s{sAF}, s{SW}
s_mul_i32 s{sAT}, s{sAF}, {20*4096}
s_lshl_b32 s{sAF}, s{sAF}, 8
s_add_u32 s{sAF}, s{sAF}, {C_AF}
s_lshl_b32 s{sWOFF}, s{sST}, 1
s_add_u32 s{sWOFF}, s{sWOFF}, s{sB}
s_lshl_b32 s{sCNT}, s{sWOFF}, 7
s_add_u32 s{sAT}, s{sAT}, s{sCNT}
s_add_u32 s{sAT}, s{sAT}, {WS_AT}
s_lshl_b32 s{sOC}, s{sWOFF}, 2
s_add_u32 s{sOC}, s{sOC}, s{SW}
s_lshl_b32 s{sOC}, s{sOC}, 8
s_add_u32 s{sOC}, s{sOC}, {C_O}
""")
    A.lwait("gt")
    cnt_read(CQ0, sAF)
    A(f"""
v_mov_b32 v{vW16}, v{vL16}
v_and_b32 v40, 15, v0
v_bfe_u32 v43, v0, 4, 2
v_lshlrev_b32 v{vOM}, 9, v43
v_lshl_add_u32 v{vOM}, v40, 4, v{vOM}
v_mul_u32_u24 v{vOR}, 2560, v43
v_lshl_add_u32 v{vOR}, v40, 4, v{vOR}
v_bfe_u32 v49, v0, 3, 3
v_and_b32 v48, 7, v0
s_mul_i32 s{sCNT}, s{SW}, 20
""")
    for i in range(3):
        A(f"""
v_add_u32 v42, {8*i}, v49
v_add_u32 v43, s{sCNT}, v42
v_bfe_u32 v43, v43, 2, 3
v_xor_b32 v43, v43, v48
v_lshlrev_b32 v42, 12, v42
v_lshl_add_u32 v{50+i}, v43, 4, v42
""")
    for e in range(4):
        A(f"v_mul_f32 v{GT+e}, s{sL2E}, v{GT+e}")
    for e in range(4):
        A(f"v_exp_f32 v{GT+e}, -v{GT+e}")
    for e in range(4):
        A(f"v_add_f32 v{GT+e}, 1.0, v{GT+e}")
    for e in range(4):
        A(f"v_rcp_f32 v{GT+e}, v{GT+e}")
    for p in range(4):
        A(f"""
s_add_u32 s{sCNT}, s{sOWN}, {p+1}
s_bfe_u32 s{sJ}, s{sCNT}, 0x10001
s_mul_i32 s{sOB[p]}, s{sJ}, 40960
s_and_b32 s{sJ}, s{sCNT}, 1
s_lshl_b32 s{sJ}, s{sJ}, 8
s_add_u32 s{sOB[p]}, s{sOB[p]}, s{sJ}
""")
    A(f"""
s_mul_i32 s{sCNT}, s{sWOFF}, 81920
s_mul_i32 s{sJ}, s{SW}, 10240
s_add_u32 s{sCNT}, s{sCNT}, s{sJ}
s_add_u32 s{sCNT}, s{sCNT}, {WS_O}
v_add_u32 v{vOM}, s{sCNT}, v{vOM}
v_add_u32 v{vOR}, s{sCNT}, v{vOR}
""")
    for e in range(4):
        A(f"v_sub_f32 v{OMG+e}, 1.0, v{GT+e}")
    A.vwait("ost")
    cnt_add(ONE, sOF)
    stamp("B", "oflag")
    cnt_read(CQ0 + 2, sOC)
    for ii in range(4):
        A(f"""
s_add_u32 s{sCNT}, s{sST}, {ii}
s_and_b32 s{sCNT}, s{sCNT}, 3
s_mul_i32 s{sCNT}, s{sCNT}, 2560
v_add_u32 v{vOMS[ii]}, s{sCNT}, v{vOM}
""")
    A(f"""
v_bfe_u32 v41, v0, 5, 1
v_lshl_add_u32 v41, s{sOWN}, 1, v41
v_and_b32 v42, 7, v40
v_xor_b32 v42, v42, v41
v_lshlrev_b32 v42, 4, v42
v_bfe_u32 v43, v0, 4, 1
v_lshlrev_b32 v43, 3, v43
v_lshlrev_b32 v{vAR}, 9, v40
v_add3_u32 v{vAR}, v{vAR}, v42, v43
v_lshrrev_b32 v42, 2, v40
v_xor_b32 v42, v42, v41
v_lshlrev_b32 v42, 4, v42
v_lshlrev_b32 v{vAR2}, 7, v40
v_add3_u32 v{vAR2}, v{vAR2}, v42, v43
s_mul_i32 s{sCNT}, s{SW}, 15360
s_add_u32 s{sCNT}, s{sCNT}, {LDS_RED}
v_add_u32 v{vRR}, s{sCNT}, v{vW16}
s_lshl_b32 s{sJ}, s2, 2
s_add_u32 s{sJ}, s{sJ}, s{SW}
s_cmp_lg_u32 s{sJ}, {4*ID_B}
s_cbranch_scc1 L_noep1
""")
    EPR = [12, 14, 16, 18, 20, 22, 26, 28]
    for cb in range(8):
        cnt_read(EPR[cb], str(C_WO + 256 * cb))
    A("s_waitcnt lgkmcnt(0)")
    for cb in range(0 if OPT.get('abl') else 8):
        cnt_wait(EPR[cb], str(C_WO + 256 * cb), 20, sCNT)
    A("L_noep1:")
    A("s_waitcnt lgkmcnt(0)")
    if not OPT.get('abl'):
        cnt_wait(CQ0, sAF, 20, sCNT, nap=OPT.get('napa', 2))
    A(f"s_mul_i32 s{sAF}, s{SW}, 2560")
    for i in range(3):
        A(f"s_add_u32 m0, s{sAF}, {LDS_AT+1024*i}")
        if i == 2:
            A("s_mov_b32 exec_hi, 0")
        A.v(f"buffer_load_dwordx4 v{50+i}, {S(R_WS,4)}, s{sAT} offen sc1 lds", "at")
    A("s_mov_b64 exec, -1")
    stamp("B", "aseen")
    cnt_wait(CQ0 + 2, sOC, 8, sCNT)
    stamp("B", "oseen")
    old = []
    for p in range(4):
        for ii in range(5):
            def f(p=p, ii=ii):
                r = V(OFR[5 * p + ii], 4)
                if ii < 4:
                    A.v(f"buffer_load_dwordx4 {r}, v{vOMS[ii]}, {S(R_WS,4)}, s{sOB[p]} offen sc1", f"of{p}_{ii}")
                else:
                    A.v(f"buffer_load_dwordx4 {r}, v{vOR}, {S(R_WS,4)}, s{sOB[p]} offen offset:2048 sc1", f"of{p}_{ii}")
            old.append(f)
    for _ in range(OPT.get("npo", 10)):
        old.pop(0)()
    A.vwait("at")
    A("s_barrier")
    AR = 56
    for jn in range(4):
        A.l(f"ds_read_b64 {V(AR+2*jn,2)}, v{vAR} offset:{LDS_AT+128*jn}", "ar")
    A.l(f"ds_read_b64 {V(AR+8,2)}, v{vAR2} offset:{LDS_AT+8192}", "ar")
    mix = [lambda: A.lwait("ar")]
    for jn in range(5):
        for e in range(4):
            src = AR + 2 * jn + (e >> 1)
            mix += L(f"v_and_b32 v{GA+4*jn+e}, 0xffff0000, v{src}" if e & 1 else f"v_lshlrev_b32 v{GA+4*jn+e}, 16, v{src}")
    mix2 = [(lambda jn=jn, e=e: A(f"v_mul_f32 v{GA+4*jn+e}, v{GT+e}, v{GA+4*jn+e}")) for jn in range(5) for e in range(4)]
    mm = []
    for p in range(4):
        ac = AC0 if p % 2 == 0 else AC1
        for ii in range(5):
            for jn in range(5):
                def m(p=p, ac=ac, ii=ii, jn=jn):
                    if jn == 0:
                        A.vwait(f"of{p}_{ii}")
                        if p == 0 and ii == 0:
                            stamp("B", "o0")
                    d = V(ac + 4 * jn, 4)
                    A(f"v_mfma_f32_16x16x32_bf16 {d}, {V(OFR[5*p+ii],4)}, {V(WOR[5*ii+jn],4)}, {'0' if ii==0 else d}")
                mm.append(m)
    st_ = Stream(budget=2)
    for i, f in enumerate(old):
        st_.at(2 * i, f)
    for i, f in enumerate(mix):
        st_.at(i, f)
    st_.exact(24, lambda: None)
    for p in range(3):
        ac = AC0 if p % 2 == 0 else AC1
        k0 = 25 * (p + 1)
        st_.at(k0 - 3, L(f"""
s_add_u32 s{sCNT}, s{SW}, {p+1}
s_and_b32 s{sCNT}, s{sCNT}, 3
s_mul_i32 s{sCNT}, s{sCNT}, 15360
v_add_u32 v{vRW}, s{sCNT}, v{vW16}
"""))
        for jn in range(5):
            st_.at(k0 + 1 + jn, lambda jn=jn, p=p, ac=ac: A.l(f"ds_write_b128 v{vRW}, {V(ac+4*jn,4)} offset:{LDS_RED+5120*p+1024*jn}", "rw"))
    st_.at(32, mix2)
    st_.at(57, L(f"""
v_bfe_u32 v{vOUT}, v0, 4, 2
v_mul_u32_u24 v{vOUT}, 5120, v{vOUT}
v_and_b32 v{vAR}, 15, v0
v_lshl_add_u32 v{vOUT2}, v{vAR}, 1, v{vOUT}
v_lshl_add_u32 v{vOUT}, v{vAR}, 3, v{vOUT}
s_lshl_b32 s{sAT}, s{sWOFF}, 2
s_add_u32 s{sAT}, s{sAT}, s{sOWN}
s_mul_i32 s{sAT}, s{sAT}, 20480
s_mul_i32 s{sAF}, s{sCT}, 160
s_add_u32 s{sAT}, s{sAT}, s{sAF}
"""))
    KB_ = OPT.get("redbar", 84)
    st_.exact(KB_, lambda: (A.lwait_all(), A("s_barrier")))
    red = []
    for jn in range(5):
        for q in (jn, 5 + jn, 10 + jn):
            red.append(lambda q=q, jn=jn: A.l(f"ds_read_b128 {V(OFR[q],4)}, v{vRR} offset:{1024*q}", f"rr{jn}"))
    st_.at(KB_ + 1, red)
    st_.run(mm, reserve=lambda k: 0)
    stamp("B", "fin")
    PK4 = OPT.get("pk4", 1)

    def add2(d, a_, b_):
        if PK4:
            A(f"v_pk_add_f32 {V(d,2)}, {V(a_,2)}, {V(b_,2)}")
        else:
            for n in range(2):
                A(f"v_add_f32 v{d+n}, v{a_+n}, v{b_+n}")
    for jn in range(5):
        A.lwait(f"rr{jn}")
        for h in range(2):
            r0, r1, r2 = OFR[jn] + 2 * h, OFR[5 + jn] + 2 * h, OFR[10 + jn] + 2 * h
            add2(r0, r0, r1)
            add2(r0, r0, r2)
    OSF = OPT.get("osf", "").replace("_", " ")
    for h in range(2):
        for jn in range(5):
            r0, g_ = OFR[jn] + 2 * h, GA + 4 * jn + 2 * h
            add2(r0, r0, AC1 + 4 * jn + 2 * h)
            if PK4:
                A(f"v_pk_fma_f32 {V(g_,2)}, {V(OMG+2*h,2)}, {V(r0,2)}, {V(g_,2)}")
            else:
                for n in range(2):
                    A(f"v_fma_f32 v{g_+n}, v{OMG+2*h+n}, v{r0+n}, v{g_+n}")
        for e in (2 * h, 2 * h + 1):
            A(f"v_cvt_pk_bf16_f32 v{AC0+4*e}, v{GA+e}, v{GA+4+e}")
            A(f"v_cvt_pk_bf16_f32 v{AC0+4*e+1}, v{GA+8+e}, v{GA+12+e}")
            A.v(f"buffer_store_dwordx2 {V(AC0+4*e,2)}, v{vOUT}, {S(R_M2,4)}, s{sAT} offen offset:{1280*e} {OSF}")
        A(f"v_cvt_pk_bf16_f32 v{AC0+8*h+2}, v{GA+16+2*h}, v{GA+17+2*h}")
        A.v(f"buffer_store_short v{AC0+8*h+2}, v{vOUT2}, {S(R_M2,4)}, s{sAT} offen offset:{2560*h+128} {OSF}")
        A.v(f"buffer_store_short_d16_hi v{AC0+8*h+2}, v{vOUT2}, {S(R_M2,4)}, s{sAT} offen offset:{2560*h+1280+128} {OSF}")
    A(f"""
s_cmp_lg_u32 s{sJ}, {4*ID_B}
s_cbranch_scc1 L_noep2
s_atomic_swap_x2 {S(TAG,2)}, {S(P_WS,2)}, {WS_EPOCH}
L_noep2:
""")
    finish("B")


def role_A():
    sAJ, sTB, sCB, sCH, sLB = 60, 61, 62, 63, 68
    ONE, CQ0, CQ1, CQ2, sUP, sUC, sAC, sGOT, sWC = 18, 20, 28, 40, 69, 48, 49, 50, 51
    sW0, sW1, sW2 = 73, 74, 75
    A.c("---- A prologue")
    A(f"""
s_sub_u32 s{sAJ}, s2, {ID_A}
s_lshl_b32 s{sCH}, s{sAJ}, 2
s_add_u32 s{sCH}, s{sCH}, s{SW}
s_mul_i32 s{sLB}, s{SW}, 20480
v_and_b32 v1, 63, v0
v_lshlrev_b32 v5, 2, v1
s_lshl_b32 s{sT0}, s{sCH}, 8
v_add_u32 v3, s{sT0}, v5
s_and_b32 s{sT3}, s{sCH}, 0xfffffffe
s_lshl_b32 s{sT3}, s{sT3}, 1
s_waitcnt lgkmcnt(0)
""")
    A(f"s_load_dword s70, {S(P_LOGDT,2)}, s{sT3}")
    A(f"s_load_dword s71, {S(P_DSK,2)}, s{sT3}")
    load_epoch()
    for i, p in enumerate((P_LOGA, P_AIM, P_CRE, P_CIM)):
        A.v(f"global_load_dword v{8+i}, v3, {S(p,2)}", "par")
    A(f"""
s_mul_i32 s{sAC}, s{sCH}, 3277
s_lshr_b32 s{sAC}, s{sAC}, 16
s_lshl_b32 s{sAC}, s{sAC}, 8
s_add_u32 s{sAC}, s{sAC}, {C_AF}
s_lshr_b32 s{sUC}, s{sAJ}, 4
s_lshl_b32 s{sUC}, s{sUC}, 8
s_add_u32 s{sUC}, s{sUC}, {C_UT}
s_mov_b64 {S(ONE,2)}, 1
""")
    srd(R_M2, P_WO, 819200)
    A(f"""
s_lshr_b32 s{sT0}, s{sAJ}, 3
s_mul_i32 s{sT1}, s{sT0}, 52
s_lshr_b32 s{sT1}, s{sT1}, 8
s_and_b32 s{sWC}, s{sAJ}, 4
s_mul_i32 s{sW2}, s{sWC}, 102400
s_mul_i32 s{sT3}, s{sWC}, 160
s_add_u32 s{sWC}, s{sWC}, s{sT1}
s_lshl_b32 s{sWC}, s{sWC}, 8
s_add_u32 s{sWC}, s{sWC}, {C_WO}
s_mul_i32 s{sT2}, s{sT0}, 5120
s_add_u32 s{sW2}, s{sW2}, s{sT2}
s_and_b32 s{sT2}, s{sAJ}, 3
s_lshl_b32 s{sW0}, s{sT2}, 8
s_add_u32 s{sW2}, s{sW2}, s{sW0}
s_add_u32 s{sW2}, s{sW2}, {WS_WO}
s_mul_i32 s{sW0}, s{sT1}, 5
s_sub_u32 s{sT0}, s{sT0}, s{sW0}
s_and_b32 s{sW0}, s{sT2}, 1
s_mul_i32 s{sW0}, s{sW0}, 20
s_lshr_b32 s{sW1}, s{sT2}, 1
s_lshl_b32 s{sW1}, s{sW1}, 3
s_add_u32 s{sW0}, s{sW0}, s{sW1}
s_mul_i32 s{sW1}, s{sT0}, 40
s_add_u32 s{sW0}, s{sW0}, s{sW1}
s_mul_i32 s{sT2}, s{sT2}, 40
s_add_u32 s{sT2}, s{sT2}, 16
s_cmp_eq_u32 s{sT0}, 4
s_cselect_b32 s{sW0}, s{sT2}, s{sW0}
s_cselect_b32 s{sW1}, 20, 4
s_mul_i32 s{sT1}, s{sT1}, 160
s_add_u32 s{sW0}, s{sW0}, s{sT1}
s_add_u32 s{sW1}, s{sW1}, s{sW0}
s_mul_i32 s{sW0}, s{sW0}, 1280
s_mul_i32 s{sW1}, s{sW1}, 1280
s_add_u32 s{sW0}, s{sW0}, s{sT3}
s_add_u32 s{sW1}, s{sW1}, s{sT3}
v_lshrrev_b32 v14, 4, v1
v_and_b32 v15, 15, v1
v_mul_u32_u24 v4, 160, v14
v_lshl_add_u32 v245, v15, 1, v4
v_lshl_add_u32 v244, v15, 3, v4
v_mul_u32_u24 v14, 102400, v14
v_lshl_add_u32 v246, v15, 4, v14
""")
    srd(R_WS, P_WS, WS_SIZE)
    A(f"""
s_lshl_b32 s{sT0}, s{sAJ}, 14
s_add_u32 s{sT0}, s{sT0}, {WS_UT}
s_add_u32 s{R_M1}, s{P_WS}, s{sT0}
s_addc_u32 s{R_M1+1}, s{P_WS+1}, 0
s_mov_b32 s{R_M1+2}, 16384
s_mov_b32 s{R_M1+3}, 0x20000
""")
    A("s_waitcnt lgkmcnt(0)")
    make_tag()
    A("s_barrier")
    WL, WU, WD = (176, 192, 200) if OPT.get('wot', 1) == 0 else (192, 208, 216)
    vW4, vW5, vW14 = 244, 245, 246

    def wo_load():
        for e in range(8):
            A(f"buffer_load_dwordx2 {V(WL+2*e,2)}, v{vW4}, {S(R_M2,4)}, s{sW0 if e<4 else sW1} offen offset:{1280*(e&3)}")
        for e in range(8):
            A(f"buffer_load_ushort v{WU+e}, v{vW5}, {S(R_M2,4)}, s{sW0 if e<4 else sW1} offen offset:{1280*(e&3)+128}")

    def wo_store():
        A(f"""
s_setprio {OPT.get('prioR', 3)}
s_mov_b32 s{sW0}, 0x05040100
s_mov_b32 s{sW1}, 0x07060302
s_waitcnt vmcnt(0)
""")
        for jn in range(4):
            for p in range(4):
                A(f"v_perm_b32 v{WD+4*jn+p}, v{WL+2*(2*p+1)+(jn>>1)}, v{WL+2*(2*p)+(jn>>1)}, s{sW0+(jn&1)}")
            A(f"buffer_store_dwordx4 {V(WD+4*jn,4)}, v{vW14}, {S(R_WS,4)}, s{sW2} offen offset:{1024*jn} sc1")
        for p in range(4):
            A(f"v_lshl_or_b32 v{WD+16+p}, v{WU+2*p+1}, 16, v{WU+2*p}")
        A(f"s_add_u32 s{sW2}, s{sW2}, 4096")
        A(f"buffer_store_dwordx4 {V(WD+16,4)}, v{vW14}, {S(R_WS,4)}, s{sW2} offen sc1")
        A(f"s_setprio {OPT.get('prioK' if OPT.get('wot', 1) == 0 else 'prioA', 0)}")
    A.vwait("par")
    stamp("A", "par")
    WOT = OPT.get("wot", 1)
    if WOT == 0:
        only_wave(3, wo_load)
    A(f"s_setprio {OPT.get('prioK', 0)}")
    if OPT.get("fakea"):
        cnt_read(CQ1 + 2, sAC)
        only_wave(3, lambda: cnt_read(CQ2 + 2, sWC))
        A("s_waitcnt lgkmcnt(0)")
        cnt_claim(CQ1, sAC)
        only_wave(3, lambda: cnt_claim(CQ2, sWC))
        only_wave(3, wo_store)
        for _ in range(OPT["fakea"]):
            A("s_sleep 100")
        A("s_waitcnt vmcnt(0) lgkmcnt(0)")
        only_wave(3, lambda: cnt_add(ONE, sWC))
        A("s_branch L_cend")
    A.c("---- per-mode constants (two modes per lane)")
    A(f"""
s_bitcmp1_b32 s{sCH}, 0
s_cselect_b32 s{sT0}, 0, 16
s_lshl_b32 s70, s70, s{sT0}
s_and_b32 s70, s70, 0xffff0000
s_lshl_b32 s71, s71, s{sT0}
s_and_b32 s71, s71, 0xffff0000
v_mov_b32 v32, {LOG2E:#x}
v_mul_f32 v33, s70, v32
v_exp_f32 v33, v33
""")
    A.vwait("par")
    LA, AI, XR, XI = 34, 36, 38, 40
    for (src, dst) in ((8, LA), (9, AI), (10, XR), (11, XI)):
        A(f"v_lshlrev_b32 v{dst}, 16, v{src}")
        A(f"v_and_b32 v{dst+1}, 0xffff0000, v{src}")
    A(f"""
v_cvt_pk_bf16_f32 v33, v33, v33
v_and_b32 v33, 0xffff0000, v33
v_mul_f32 v{LA}, v32, v{LA}
v_mul_f32 v{LA+1}, v32, v{LA+1}
v_exp_f32 v{LA}, v{LA}
v_exp_f32 v{LA+1}, v{LA+1}
v_mul_f32 v{AI}, v33, v{AI}
v_mul_f32 v{AI+1}, v33, v{AI+1}
v_cvt_pk_bf16_f32 v{LA+1}, v{LA}, v{LA+1}
v_lshlrev_b32 v{LA}, 16, v{LA+1}
v_and_b32 v{LA+1}, 0xffff0000, v{LA+1}
v_mul_f32 v{LA}, v33, v{LA}
v_mul_f32 v{LA+1}, v33, v{LA+1}
v_mul_f32 v{LA}, v32, v{LA}
v_mul_f32 v{LA+1}, v32, v{LA+1}
v_mul_f32 v{AI}, {INV2PI:#x}, v{AI}
v_mul_f32 v{AI+1}, {INV2PI:#x}, v{AI+1}
v_add_f32 v33, v33, v33
v_mul_f32 v{XR}, v33, v{XR}
v_mul_f32 v{XR+1}, v33, v{XR+1}
v_mul_f32 v{XI}, v33, -v{XI}
v_mul_f32 v{XI+1}, v33, -v{XI+1}
""")
    W = {1: 44, 8: 48, 256: 52}
    for p, w in W.items():
        lit = {1: "1.0", 8: "0x41000000", 256: "0x43800000"}[p]
        for n in range(2):
            A(f"v_mul_f32 v{56+n}, {lit}, v{LA+n}")
            A(f"v_mul_f32 v{58+n}, {lit}, v{AI+n}")
        for n in range(2):
            A(f"v_exp_f32 v{56+n}, -v{56+n}")
            A(f"v_fract_f32 v{58+n}, v{58+n}")
        for n in range(2):
            A(f"v_cos_f32 v{w+n}, v{58+n}")
            A(f"v_sin_f32 v{w+2+n}, v{58+n}")
        A(f"v_pk_mul_f32 {V(w,2)}, {V(w,2)}, {V(56,2)}")
        A(f"v_pk_mul_f32 {V(w+2,2)}, {V(w+2,2)}, {V(56,2)}")
    vSW, vSR = 6, 7
    A(f"""
v_lshlrev_b32 v{vSW}, 3, v1
v_add_u32 v{vSW}, s{sLB}, v{vSW}
v_and_b32 v{vSR}, 31, v1
v_mul_u32_u24 v{vSR}, 528, v{vSR}
v_lshrrev_b32 v12, 5, v1
v_lshlrev_b32 v12, 4, v12
v_add3_u32 v{vSR}, v{vSR}, v12, s{sLB}
""")
    pk = [0]

    def put(reg, rows):
        t = 80 + 2 * (pk[0] % 4)
        pk[0] += 1
        A(f"v_cvt_pk_bf16_f32 v{t}, v{reg}, v{reg+1}")
        A(f"v_cvt_pk_bf16_f32 v{t+1}, v{reg+2}, v{reg+3}")
        for r in rows:
            A.l(f"ds_write_b64 v{vSW}, {V(t,2)} offset:{528*r}", "st")

    def cmul(d, s, w, conj):
        n1, n2 = ("", " neg_lo:[1,0,0] neg_hi:[1,0,0]") if conj else (" neg_lo:[0,0,1] neg_hi:[0,0,1]", "")
        A(f"v_pk_mul_f32 {V(56,2)}, {V(s+2,2)}, {V(w+2,2)}")
        A(f"v_pk_mul_f32 {V(58,2)}, {V(s+2,2)}, {V(w,2)}")
        A(f"v_pk_fma_f32 {V(d+2,2)}, {V(s,2)}, {V(w+2,2)}, {V(58,2)}{n2}")
        A(f"v_pk_fma_f32 {V(d,2)}, {V(s,2)}, {V(w,2)}, {V(56,2)}{n1}")

    A.c("---- X rows")
    g0 = [0, 1, 2, 3, 4, 5, 6, 7, 512, 516, 520, 1024, 1032, 1536, 1544]
    g1 = [256, 256, 258, 260, 260, 260, 262, 264, 768, 772, 776, 1280, 1288, 1792, 1800]
    rows = {}
    for g, lst in enumerate((g0, g1)):
        for i, p in enumerate(lst):
            rows.setdefault(p, []).append(8 * (i >> 2) + 4 * g + (i & 3))
    keep = {0: XR, 2: 60, 4: 64, 6: 68, 8: 72}
    put(XR, rows[0])
    cur = XR
    for p in range(1, 9):
        d = keep.get(p, 76)
        cmul(d, cur, W[1], True)
        if p in rows:
            put(d, rows[p])
        cur = d
    cnt_read(CQ1 + 2, sAC)
    only_wave(3, lambda: cnt_read(CQ2 + 2, sWC))
    for step in range(1, 8):
        for off in (0, 8, 4, 2, 6):
            p = 256 * step + off
            if p in rows:
                cmul(keep[off], keep[off], W[256], True)
                put(keep[off], rows[p])
    XF = 96
    if WOT == 0:
        only_wave(3, wo_store)
    A.lwait_all()
    for ks in range(16):
        A.l(f"ds_read_b128 {V(XF+4*ks,4)}, v{vSR} offset:{32*ks}", "xf")
    A.c("---- Y rows")
    YA, YB = 60, 64
    cmul(YA, W[8], W[8], False)
    A(f"""
v_mov_b32 v24, 0x3f803f80
v_mov_b32 v25, 0
""")
    A.lwait_all()
    stamp("A", "xrows")
    cnt_claim(CQ1, sAC)
    only_wave(3, lambda: cnt_claim(CQ2, sWC))
    A.l(f"ds_write_b64 v{vSW}, {V(24,2)}", "st")
    put(W[8], [1])
    put(YA, [2])
    UL, UN = 224, 240
    USC = ' sc1' if OPT.get('usc', 1) else ''

    def load_u():
        A(f"s_setprio {OPT.get('prioR', 3)}")
        for i in range(4):
            A(f"s_movk_i32 s{sT0}, {4096*i}")
            A(f"buffer_load_dwordx4 {V(UL+4*i,4)}, v2, {S(R_M1,4)}, s{sT0} offen{USC}")
            A(f"buffer_load_dword v{UN+i}, v2, {S(R_M1,4)}, s{sT0} offen offset:64{USC}")
        A(f"s_setprio {OPT.get('prioK', 0)}")
    A("v_lshlrev_b32 v2, 4, v0")
    for c in range(3, 32):
        cmul(YA, YA, W[8], False)
        put(YA, [c])
        if c == OPT.get("uq", 18):
            only_wave(0, lambda: cnt_read(CQ0, sUC))
    A.lwait_all()
    if WOT == 0:
        only_wave(3, lambda: (A("s_waitcnt vmcnt(0)"), cnt_add(ONE, sWC)))
    only_wave(0, lambda: cnt_wait(CQ0, sUC, 16, sCNT, nap=2))
    A("s_barrier")
    load_u()
    A.vm.append("u")
    stamp("A", "utseen")
    YF, KD = 160, 68
    for ks in range(16):
        A.l(f"ds_read_b128 {V(YF+4*ks,4)}, v{vSR} offset:{32*ks}", f"y{ks}")
        if ks >= 6:
            k2 = ks - 6
            A.lwait(f"y{k2}")
            A(f"v_mfma_f32_32x32x16_bf16 {V(KD,16)}, {V(XF+4*k2,4)}, {V(YF+4*k2,4)}, {'0' if k2==0 else V(KD,16)}")
    for k2 in range(10, 16):
        A.lwait(f"y{k2}")
        A(f"v_mfma_f32_32x32x16_bf16 {V(KD,16)}, {V(XF+4*k2,4)}, {V(YF+4*k2,4)}, {V(KD,16)}")
    A("s_barrier")
    vKW, vUW, vKB, vUA = 3, 4, 8, 9
    A(f"""
v_lshlrev_b32 v{vKW}, 4, v1
v_add_u32 v{vKW}, s{sLB}, v{vKW}
v_and_b32 v13, 3, v0
v_mul_u32_u24 v13, 20512, v13
v_lshrrev_b32 v{vUW}, 2, v0
v_lshl_add_u32 v{vUW}, v{vUW}, 4, v13
v_and_b32 v13, 15, v1
v_and_b32 v14, 0x30, v1
v_lshl_add_u32 v{vKB}, v13, 5, v14
v_add_u32 v{vKB}, s{sLB}, v{vKB}
v_add_u32 v{vKB}, 32, v{vKB}
v_lshrrev_b32 v15, 1, v13
v_lshlrev_b32 v15, 2, v15
v_sub_u32 v14, v14, v15
v_and_b32 v13, 1, v13
v_mul_u32_u24 v13, 4160, v13
v_sub_u32 v14, v14, v13
s_mul_i32 s{sT0}, s{SW}, 20512
s_add_u32 s{sT0}, s{sT0}, {4608+4160+4060-512-448}
v_add_u32 v{vUA}, s{sT0}, v14
v_subrev_u32 v{vUA+1}, 1024, v{vUA}
v_subrev_u32 v{vUA+2}, 2048, v{vUA}
v_subrev_u32 v{vUA+3}, 3072, v{vUA}
v_mov_b32 v16, 0
v_mov_b32 v17, 0
v_lshrrev_b32 v13, 5, v1
v_mul_u32_u24 v13, 4160, v13
v_and_b32 v14, 3, v1
v_lshl_add_u32 v13, v14, 3, v13
s_sub_u32 s{sT0}, s{sT0}, {4160+4060-512-448-4096}
v_add_u32 v13, s{sT0}, v13
""")
    A.l(f"ds_write_b64 v{vSW}, {V(16,2)}", "cv")
    A.l(f"ds_write_b64 v13, {V(16,2)}", "cv")
    A(f"""
s_mov_b64 exec, 1
v_add_f32 v{KD}, s71, v{KD}
s_mov_b64 exec, -1
s_mov_b32 vcc_lo, 0x55555555
s_mov_b32 vcc_hi, 0x55555555
""")
    KP = 84
    for i in range(4):
        A(f"v_cvt_pk_bf16_f32 v{KP+i}, v{KD+2*i}, v{KD+2*i+1}")
    A.l(f"ds_write_b128 v{vKW}, {V(KP,4)} offset:512", "cv")
    a_, b_, c_ = KD + 8, KD + 9, KD + 10
    for i, (x_, y_) in enumerate(((a_, a_), (a_, b_), (b_, b_), (c_, c_))):
        A(f"v_cvt_pk_bf16_f32 v{KP+4+i}, v{x_}, v{y_}")
    A.l(f"ds_write_b128 v{vKW}, {V(KP+4,4)} offset:{512+1024}", "cv")
    for blk, d in ((0, KP + 8), (1, 20)):
        a_, b_ = KD + 11 + 2 * blk, KD + 12 + 2 * blk
        A(f"v_cndmask_b32 v18, v{b_}, v{a_}, vcc")
        A(f"v_cvt_pk_bf16_f32 v{d}, v{a_}, v{a_}")
        A(f"v_cvt_pk_bf16_f32 v{d+1}, v{a_}, v{a_}")
        A(f"v_cvt_pk_bf16_f32 v{d+2}, v18, v{b_}")
        A(f"v_cvt_pk_bf16_f32 v{d+3}, v{b_}, v{b_}")
        A.l(f"ds_write_b128 v{vKW}, {V(d,4)} offset:{512+2048+1024*blk}", "cv")
    A.vwait("u")
    for i in range(4):
        A.l(f"ds_write_b128 v{vUW}, {V(UL+4*i,4)} offset:{4608+1024*i}", "cv")
        t = 52 + 4 * i
        for p in range(4):
            hi = UL + 4 * i + p + 1 if p < 3 else UN + i
            A(f"v_alignbit_b32 v{t+p}, v{hi}, v{UL+4*i+p}, 16")
        A.l(f"ds_write_b128 v{vUW}, {V(t,4)} offset:{4608+4160+1024*i}", "cv")
    CA = 16
    A.lwait_all()
    A("s_barrier")
    if WOT == 1:
        A(f"s_setprio {OPT.get('prioR', 3)}")
        only_wave(3, wo_load)
    A(f"s_setprio {OPT.get('prioA', 0)}")
    stamp("A", "cstart")
    if OPT.get("noconv"):
        finish("A")
        return
    A.c("---- convolution: 8 residues x 36 tile products")
    UA = [64, 128]
    KB = [96, 160]

    def creads(r):
        s, out = r & 1, []
        for m in range(8):
            out.append(lambda m=m: A.l(f"ds_read_b128 {V(KB[s]+4*m,4)}, v{vKB} offset:{512*m+64*(7-r)}", f"c{r}_{m}"))
            o = (128 if m % 2 == 0 else 0) + 16 * (7 - r)
            for hh in range(2):
                out.append(lambda m=m, o=o, hh=hh: A.l(f"ds_read2_b32 {V(UA[s]+4*m+2*hh,2)}, v{vUA+m//2} offset0:{o+2*hh} offset1:{o+2*hh+1}", f"c{r}_{m}"))
        return out

    pairs = sorted([(mu, n) for mu in range(8) for n in range(8 - mu)], key=lambda p: (max(p), p[0] + p[1]))
    nxt = creads(0)
    for _ in range(12):
        nxt.pop(0)()
    started = set()
    for r in range(8):
        if r < 7:
            nxt += creads(r + 1)
        for k, (mu, n) in enumerate(pairs):
            A.lwait(f"c{r}_{max(mu, n)}")
            d = V(CA + 4 * (mu + n), 4)
            A(f"v_mfma_f32_16x16x32_bf16 {d}, {V(UA[r&1]+4*mu,4)}, {V(KB[r&1]+4*n,4)}, {d if mu+n in started else '0'}")
            started.add(mu + n)
            if nxt and (r == 0 or k % 3 != 2):
                nxt.pop(0)()
        assert len(nxt) == 0
        if WOT == 1 and r == OPT.get("wor", 0):
            only_wave(3, wo_store)
        if WOT == 1 and r == OPT.get("wor", 0) + 1:
            only_wave(3, lambda: (A("s_waitcnt vmcnt(0)"), cnt_add(ONE, sWC)))
    A("L_cend:")
    A(f"s_setprio {OPT.get('prioR', 3)}")
    stamp("A", "cend")
    A(f"""
v_and_b32 v2, 15, v1
v_lshlrev_b32 v2, 5, v2
v_bfe_u32 v3, v1, 4, 1
v_lshl_add_u32 v2, v3, 9, v2
v_lshrrev_b32 v3, 5, v1
v_lshl_add_u32 v2, v3, 4, v2
s_lshl_b32 s{sT0}, s{sCH}, 12
s_add_u32 s{sT0}, s{sT0}, {WS_AT}
""")
    for q in range(640):
        assert (q * 3277) >> 16 == q // 20
    A.lwait_all()
    for n in range(0, 8, 2):
        d = 48 + 2 * n
        for i in range(4):
            A(f"v_cvt_pk_bf16_f32 v{d+i}, v{CA+4*n+2*i}, v{CA+4*n+2*i+1}")
    for n in range(0, 8, 2):
        d = 48 + 2 * n
        A(f"v_permlane16_swap_b32 v{d}, v{d+2}")
        A(f"v_permlane16_swap_b32 v{d+1}, v{d+3}")
        A.v(f"buffer_store_dwordx4 {V(d,4)}, v2, {S(R_WS,4)}, s{sT0} offen offset:{512*n} sc1", "ast")
    A.vwait("ast")
    cnt_add(ONE, sAC)
    finish("A")


if "B" in OPT["roles"]:
    role_B()
else:
    A("L_B:\ns_endpgm")
A("L_A:")
if "A" in OPT["roles"]:
    role_A()
else:
    A("s_endpgm")
A("L_codeend:")
lines, nn = pad_hazards(A.lines, verbose=False)
if OPT.get("align", 1):
    lines, cnt_, cost_ = align8(lines)
    print("align:", cnt_, cost_, file=sys.stderr)
hdr = open("gated_mix__ssm_conv_s4d__linear_kernel_hedgehog__prompt.s.ref").read().split("; Override launch")[0]
print(hdr + f"; @launch grid=({ID_END},1,1) block=(256,1,1) lds=81920")
print("\n".join(lines))
print(f""".section .rodata,"a"
.p2align 6
.amdhsa_kernel {KN}
  .amdhsa_next_free_vgpr 256
  .amdhsa_next_free_sgpr 102
  .amdhsa_accum_offset 256
  .amdhsa_group_segment_fixed_size 0
  .amdhsa_kernarg_size 120
  .amdhsa_user_sgpr_count 2
  .amdhsa_user_sgpr_kernarg_segment_ptr 1
  .amdhsa_system_sgpr_workgroup_id_x 1
.end_amdhsa_kernel""")
json.dump(stampnames, open("stamps.json", "w"))
print(f"pad states inserted: {nn}", file=sys.stderr)
```

```python
import sys, json
from asmlib import *

KN = "gated_mix__ssm_conv_s4d__linear_kernel_hedgehog__prompt_kernel"
OPT = dict(stamps=0, dump=0, roles="RAB")
for a_ in sys.argv[1:]:
    k_, v_ = a_.split("=")
    OPT[k_] = int(v_) if v_.lstrip("-").isdigit() else v_

C_KW, C_WO, C_UT, C_AF, C_KV, C_O = [256 * n for n in (0, 48, 56, 80, 112, 176)]
WS_EPOCH = 0x20000
WS_WKV = 0xD00000
WS_WQ = 0xF00000
WS_WO = 0x100000
WS_KVP = 0x200000
WS_UT = 0x300000
WS_AT = 0x600000
WS_O = 0x900000
WS_STAMP = 0xC00000
WS_DUMP = 0x1000000
WS_SIZE = 0x4000000 if OPT["dump"] else 0x1000000

ID_A, ID_B, ID_END = 8, 168, 424
SPIN = 1 << 17
LOG2E = 0x3FB8AA3B
INV2PI = 0x3E22F983

P_U, P_LOGA, P_AIM, P_CRE, P_CIM, P_LOGDT, P_DSK = 4, 6, 8, 10, 12, 14, 16
P_WQKV, P_WPHI, P_WO, P_GATE, P_OUT, P_DBG, P_WS = 20, 22, 24, 26, 28, 30, 32
R_X, R_W, R_WS, R_DBG, R_M1, R_M2 = 36, 40, 44, 48, 52, 56
SW = 3
TAG = 34
ST0 = 76

A = Asm()
stampnames = {}
_lab = [0]


def srd(r, p, size):
    A(f"s_mov_b32 s{r}, s{p}")
    A(f"s_mov_b32 s{r+1}, s{p+1}")
    A(f"s_mov_b32 s{r+2}, {size}")
    A(f"s_mov_b32 s{r+3}, 0x20000")


def load_epoch():
    A(f"s_load_dwordx2 {S(TAG,2)}, {S(P_WS,2)}, {WS_EPOCH}")


def make_tag():
    A(f"s_add_u32 s{TAG}, s{TAG}, 0x7f4a7c15")
    A(f"s_addc_u32 s{TAG+1}, s{TAG+1}, 0x9e3779b9")


def cnt_read(r, soff):
    A(f"s_mov_b64 {S(r,2)}, 0")
    A(f"s_atomic_add_x2 {S(r,2)}, {S(P_WS,2)}, {soff if isinstance(soff, str) else 's%d' % soff} glc")


def cnt_peek(r, soff):
    A(f"s_load_dwordx2 {S(r,2)}, {S(P_WS,2)}, s{soff} glc")


def cnt_claim(q, soff):
    A(f"""
s_sub_u32 s{q}, s{q+2}, s{TAG}
s_subb_u32 s{q+1}, s{q+3}, s{TAG+1}
s_lshr_b32 s{q}, s{q}, 16
s_or_b32 s{q}, s{q}, s{q+1}
s_cselect_b64 {S(q,2)}, {S(TAG,2)}, {S(q+2,2)}
s_atomic_cmpswap_x2 {S(q,4)}, {S(P_WS,2)}, s{soff} glc
""")


def cnt_add(one, soff):
    A(f"s_atomic_add_x2 {S(one,2)}, {S(P_WS,2)}, s{soff}")


def cnt_init(soff):
    A(f"s_atomic_swap_x2 {S(TAG,2)}, {S(P_WS,2)}, s{soff}")


def cnt_test(r, n, low=False):
    A(f"s_sub_u32 s{r}, s{r}, s{TAG}")
    A(f"s_subb_u32 s{r+1}, s{r+1}, s{TAG+1}")
    if low:
        A(f"s_and_b32 s{r}, s{r}, 0xffff00ff")
    A(f"s_xor_b32 s{r}, s{r}, {n}")
    A(f"s_or_b32 s{r}, s{r}, s{r+1}")


def cnt_wait(r, soff, n, scnt, probed=True, low=False, nap=0):
    _lab[0] += 1
    k = _lab[0]
    if probed:
        cnt_test(r, n, low)
        A(f"s_cbranch_scc0 L_got{k}")
    A(f"s_mov_b32 s{scnt}, 0")
    A(f"L_spin{k}:")
    cnt_read(r, soff)
    A(f"""
s_add_u32 s{scnt}, s{scnt}, 1
s_cmp_ge_u32 s{scnt}, {SPIN}
s_waitcnt lgkmcnt(0)
s_cbranch_scc1 L_got{k}
""")
    cnt_test(r, n, low)
    if nap:
        A(f"s_cbranch_scc0 L_got{k}")
        A(f"s_sleep {nap}")
    A(f"s_cbranch_scc1 L_spin{k}")
    A(f"L_got{k}:")


def cnt_async(r, t, soff, n, scnt, **kw):
    _lab[0] += 1
    k = _lab[0]
    A(f"s_mov_b64 {S(t,2)}, {S(r,2)}")
    cnt_test(t, n)
    A(f"s_cbranch_scc0 L_as{k}")
    A("s_waitcnt lgkmcnt(0)")
    cnt_wait(r, soff, n, scnt, **kw)
    A(f"L_as{k}:")


def lwait_lds(vt, va, n=6):
    for _ in range(n):
        A(f"ds_read_b32 v{vt}, v{va}")
    A(f"s_waitcnt lgkmcnt({n})")
    A.lg = ["_"] * n


def only_wave(w, f):
    _lab[0] += 1
    k = _lab[0]
    A(f"s_cmp_lg_u32 s{SW}, {w}")
    A(f"s_cbranch_scc1 L_ow{k}")
    f()
    A(f"L_ow{k}:")


def stamp(role, name):
    if not OPT["stamps"]:
        return
    if OPT.get("only") and name not in ("end",) and name not in OPT["only"].split("+"):
        return
    l = stampnames.setdefault(role, [])
    assert len(l) < 12
    A(f"{'s_memtime' if OPT.get('cyc') else 's_memrealtime'} {S(ST0 + 2*len(l), 2)}")
    l.append(name)


def finish(role):
    if OPT["stamps"]:
        stamp(role, "end")
        A("s_waitcnt lgkmcnt(0)")
        A("s_mov_b64 exec, -1")
        A("v_mov_b32 v1, 0")
        for i in range(len(stampnames[role])):
            A(f"v_writelane_b32 v1, s{ST0+2*i}, {i}")
        A("v_and_b32 v2, 63, v0")
        A("v_lshlrev_b32 v2, 2, v2")
        A("s_lshl_b32 s60, s2, 2")
        A(f"s_add_u32 s60, s60, s{SW}")
        A("s_lshl_b32 s60, s60, 6")
        A(f"s_add_u32 s60, s60, {WS_STAMP}")
        A("s_mov_b64 exec, 0xffff")
        A(f"buffer_store_dword v1, v2, {S(R_WS,4)}, s60 offen")
        if OPT.get("dbg") and role == "B":
            A(f"""
s_cmp_lg_u32 s{SW}, 0
s_cbranch_scc1 L_nodbg
s_load_dwordx2 s[60:61], s[0:1], 104
s_not_b32 s62, s{ST0}
v_writelane_b32 v1, s62, 15
s_waitcnt lgkmcnt(0)
global_atomic_umax v2, v1, s[60:61]
L_nodbg:
""")
    A("s_endpgm")
    A.vm, A.lg = [], []


def set_exec(mask):
    if mask == -1 or mask < (1 << 31):
        A(f"s_mov_b64 exec, {mask}")
    else:
        A(f"s_mov_b32 exec_lo, {mask & 0xffffffff:#x}")
        A(f"s_mov_b32 exec_hi, {mask >> 32:#x}")


def dump(regs, slot, vtmp):
    if not OPT["dump"]:
        return
    A(f"v_lshlrev_b32 v{vtmp}, 2, v0")
    A(f"s_sub_u32 s74, s2, {ID_B}")
    A(f"s_mul_i32 s74, s74, {32*1024}")
    A(f"s_add_u32 s74, s74, {WS_DUMP + slot*0x800000}")
    assert len(regs) <= 32
    for r in regs:
        A.v(f"buffer_store_dword v{r}, v{vtmp}, {S(R_WS,4)}, s74 offen", "dump")
        A("s_add_u32 s74, s74, 1024")
    A.vwait_all()


A(f"""
.amdgcn_target "amdgcn-amd-amdhsa--gfx950"
.text
.globl {KN}
.p2align 12
.type {KN},@function
{KN}:
s_load_dwordx16 s[4:19], s[0:1], 0
s_load_dwordx8 s[20:27], s[0:1], 64
s_load_dwordx4 s[28:31], s[0:1], 96
s_load_dwordx2 s[32:33], s[0:1], 112
""")
if OPT["stamps"]:
    A(f"{'s_memtime' if OPT.get('cyc') else 's_memrealtime'} {S(ST0,2)}")
    for r_ in ("B", "A"):
        stampnames[r_] = ["start"]
A(f"""
v_lshrrev_b32 v1, 6, v0
s_cmp_ge_u32 s2, {ID_B}
v_readfirstlane_b32 s{SW}, v1
s_cbranch_scc1 L_B
s_setprio {OPT.get('prioR', 3)}
s_cmp_ge_u32 s2, {ID_A}
s_cbranch_scc1 L_A
""")
A.c("---- code prefetch into L2 (one workgroup per die)")
A(f"""
s_getpc_b64 s[60:61]
L_pc:
v_lshlrev_b32 v2, 7, v0
v_min_u32 v2, L_codeend-L_pc-4, v2
""")
if OPT.get("pfc", 1):
    A("global_load_dword v3, v2, s[60:61]")
A("""
L_exit:
s_endpgm
""")

sST, sHP, sB, sCT = 60, 61, 62, 63
sT0, sT1, sT2, sT3 = 64, 65, 66, 67
sEV, sLO = 68, 70
sCNT, sWOFF = 72, 73
sL2E = 48
sJ, sOWN, sXL = 50, 51, 68
XB, ACC, WF, NWF = 96, 56, 16, 7
vXA, vXR = 8, 10
ONE, CQ0, CQ1, CQ2 = 6, 8, 12, 16
vGA, vKT, vOT, vOA, ID, vGW = 1, 3, 5, 6, 44, 48
vPA, vPA1, vPW, vVW, vKA, vL16, vL8 = 49, 50, 51, 52, 53, 54, 55
LDS_X = 40960
LDS_PV, LDS_WP, LDS_Z, LDS_GATE = 0, 77824, 79424, 80384
LDS_QA, LDS_QB = 40960, 16384
LDS_AT, LDS_KVT, LDS_RED = 0, 10240, 13824


def Xr(c, sg, j):
    return XB + 32 * c + 8 * j + 4 * sg


def L(text):
    return [(lambda l=l: A(l)) for l in (x.strip() for x in text.strip().split("\n")) if l]


def run(lst):
    while lst:
        lst.pop(0)()


class Stream:
    def __init__(self, budget=3):
        self.ev, self.now, self.q, self.budget = {}, {}, [], budget

    def at(self, k, fs):
        self.ev.setdefault(k, []).extend(fs if isinstance(fs, list) else [fs])

    def exact(self, k, f):
        self.now.setdefault(k, []).append(f)

    def run(self, mm, reserve=lambda k: k & 1):
        for k, m in enumerate(mm):
            m()
            j = max(i for i in range(len(A.lines)) if "v_mfma" in A.lines[i] and i >= len(A.lines) - 12)
            self.q += self.ev.pop(k, [])
            while self.q and len(A.lines) - 1 - j < self.budget - reserve(k):
                self.q.pop(0)()
            if k in self.now:
                run(self.q)
                run(self.now.pop(k))
        run(self.q)
        assert not self.ev and not self.now


def flat(items):
    o = []
    for pre, ld in items:
        o += L(pre) + [ld]
    return o


def dma_addr(v, i, div, fields, extra, t0, vl):
    t1, t2 = t0 + 1, t0 + 2
    magic = {10: 6554, 5: 13108}[div]
    for q in range(1280):
        assert (q * magic) >> 16 == q // div
    o = []
    if i:
        o.append(f"v_add_u32 v{t0}, {64*i}, v{vl}")
    q_ = t0 if i else vl
    o.append(f"v_mul_u32_u24 v{t1}, {magic}, v{q_}")
    o.append(f"v_lshrrev_b32 v{t1}, 16, v{t1}")
    o.append(f"v_mad_i32_i24 v{t0}, v{t1}, -{div}, v{q_}")
    for n, (sb, w, db) in enumerate(fields):
        if n == 0:
            assert db == 0
            o.append(f"v_bfe_u32 v{v}, v{t1}, {sb}, {w}")
        else:
            o.append(f"v_bfe_u32 v{t2}, v{t1}, {sb}, {w}")
            o.append(f"v_lshl_or_b32 v{v}, v{t2}, {db}, v{v}")
    o.append(f"v_mul_u32_u24 v{v}, 240, v{v}")
    if extra:
        o.append(f"v_add_u32 v{t2}, 3, v{t0}")
        o.append(f"v_lshrrev_b32 v{t2}, 3, v{t2}")
        o.append(f"v_mul_u32_u24 v{t2}, {extra//16}, v{t2}")
        o.append(f"v_add3_u32 v{v}, v{v}, v{t0}, v{t2}")
        o.append(f"v_lshlrev_b32 v{v}, 4, v{v}")
    else:
        o.append(f"v_add_lshl_u32 v{v}, v{v}, v{t0}, 4")
    return "\n".join(o)


def softmax(P, E, OUT, tm, pk, after_plus=None, fill=[]):
    mx, mn, acc = tm, tm + 2, tm + 4
    A(f"v_max3_f32 v{mx}, v{P}, v{P+1}, v{P+2}")
    A(f"v_min3_f32 v{mn}, v{P}, v{P+1}, v{P+2}")
    for i in range(3, 19, 2):
        A(f"v_max3_f32 v{mx}, v{mx}, v{P+i}, v{P+i+1}")
        A(f"v_min3_f32 v{mn}, v{mn}, v{P+i}, v{P+i+1}")
    A(f"v_max_f32 v{mx}, v{mx}, v{P+19}")
    A(f"v_min_f32 v{mn}, v{mn}, v{P+19}")
    if pk:
        A(f"v_mul_f32 v{mx+1}, s{sL2E}, v{mx}")
        A(f"v_mul_f32 v{mn+1}, s{sL2E}, v{mn}")
    A(f"v_mul_f32 v{mx}, s{sL2E}, v{mx}")
    A(f"v_mul_f32 v{mn}, s{sL2E}, v{mn}")
    for half in range(2):
        D = E if half == 0 else [P + 2 * i for i in range(10)]
        for i in range(10):
            if pk:
                if half == 0:
                    A(f"v_pk_fma_f32 {V(D[i],2)}, {V(P+2*i,2)}, {S(sL2E,2)}, {V(mx,2)} neg_lo:[0,0,1] neg_hi:[0,0,1]")
                else:
                    A(f"v_pk_fma_f32 {V(D[i],2)}, {V(P+2*i,2)}, {S(sL2E,2)}, {V(mn,2)} neg_lo:[1,0,0] neg_hi:[1,0,0]")
                if i >= 2:
                    A(f"v_pk_add_f32 {V(acc,2)}, {V(D[0] if i==2 else acc,2)}, {V(D[i-1],2)}")
            else:
                for n in range(2):
                    if half == 0:
                        A(f"v_fma_f32 v{D[i]+n}, v{P+2*i+n}, s{sL2E}, -v{mx}")
                    else:
                        A(f"v_fma_f32 v{D[i]+n}, -v{P+2*i+n}, s{sL2E}, v{mn}")
                if i >= 2:
                    for n in range(2):
                        A(f"v_add_f32 v{acc+n}, v{(D[0] if i==2 else acc)+n}, v{D[i-1]+n}")
            for n in range(2):
                A(f"v_exp_f32 v{D[i]+n}, v{D[i]+n}")
                if fill:
                    fill.pop(0)()
        A(f"v_add_f32 v{acc}, v{acc}, v{acc+1}")
        A(f"v_add_f32 v{acc}, v{acc}, v{D[9]}")
        A(f"v_add_f32 v{acc}, v{acc}, v{D[9]+1}")
        if pk:
            A(f"v_rcp_f32 v{acc+1}, v{acc}")
        A(f"v_rcp_f32 v{acc}, v{acc}")
        for i in range(10):
            scale(D[i], acc, pk)
            if i:
                A(f"v_cvt_pk_bf16_f32 v{OUT+10*half+i-1}, v{D[i-1]}, v{D[i-1]+1}")
        A(f"v_cvt_pk_bf16_f32 v{OUT+10*half+9}, v{D[9]}, v{D[9]+1}")
        if half == 0 and after_plus:
            after_plus()
    run(fill)


def scale(d, r, pk):
    if pk:
        A(f"v_pk_mul_f32 {V(d,2)}, {V(d,2)}, {V(r,2)}")
    else:
        A(f"v_mul_f32 v{d}, v{r}, v{d}")
        A(f"v_mul_f32 v{d+1}, v{r}, v{d+1}")


PF0, PF1, PK, PHI = 32, 76, 56, 8
EE = [76 + 2 * i for i in range(8)] + [28, 30]


def phi_frags(pf, vaddr):
    for t in range(3):
        for h in range(2):
            r = pf + 4 * t + 2 * h
            if t == 2 and h == 1:
                A(f"v_mov_b32 v{r}, 0")
                A(f"v_mov_b32 v{r+1}, 0")
            else:
                A.l(f"ds_read_b64_tr_b16 {V(r,2)}, v{vaddr} offset:{320*t+160*h}", "pf")


def phi_mfma(ops):
    for t in range(3):
        A(f"v_mfma_f32_32x32x16_bf16 {V(PK,16)}, {V(PF0+4*t,4)}, {V(ops[t],4)}, {'0' if t==0 else V(PK,16)}")
    for t in range(3):
        A(f"v_mfma_f32_16x16x32_bf16 {V(PK+16,4)}, {V(PF1+4*t,4)}, {V(ops[t],4)}, {'0' if t==0 else V(PK+16,4)}")


class FragPipe:
    def __init__(self, vaddr, look=5):
        self.vaddr, self.look = vaddr, look

    def stream(self, frags, acc):
        reads = [(lambda i=i, o=o: A.l(f"ds_read_b128 {V(WF+4*(i%NWF),4)}, v{self.vaddr} offset:{o}", f"f{i}")) for i, (ks, t, o) in enumerate(frags)]
        out = []
        for i, (ks, t, o) in enumerate(frags):
            for sg in range(2):
                def m(i=i, ks=ks, t=t, sg=sg):
                    if i == 0 and sg == 0:
                        for _ in range(self.look):
                            reads.pop(0)()
                    if sg == 0:
                        A.lwait(f"f{i}")
                    d = V(acc + 8 * t + 4 * sg, 4)
                    A(f"v_mfma_f32_16x16x32_bf16 {d}, {V(WF+4*(i%NWF),4)}, {V(Xr(ks//4,sg,ks%4),4)}, {'0' if ks==0 else d}")
                    if reads and sg == 0:
                        reads.pop(0)()
                out.append(m)
        return out


def role_B():
    A.c("---- B prologue")
    sXO, sWO2, sQO, sKW, sKF, sOF, sWC, sUT = 69, 70, 71, 74, 30, 31, 24, 25
    sKS, sRH, sUS, sKA, sUO = 100, 101, 72, 18, 100
    A(f"""
L_B:
s_cmp_ge_u32 s2, {ID_END}
s_cbranch_scc1 L_exit
s_setprio {OPT.get('prioB', 2)}
s_sub_u32 s{sT0}, s2, {ID_B}
s_and_b32 s{sB}, s{sT0}, 1
s_bfe_u32 s{sST}, s{sT0}, 0x20001
s_lshr_b32 s{sKS}, s{sT0}, 2
s_and_b32 s{sRH}, s{sT0}, 3
s_lshl_b32 s{sRH}, s{sRH}, 2
s_add_u32 s{sRH}, s{sRH}, s{SW}
s_lshr_b32 s{sT0}, s{sT0}, 3
s_mul_i32 s{sT1}, s{sT0}, 86
s_lshr_b32 s{sT1}, s{sT1}, 8
s_mul_i32 s{sCT}, s{sT1}, 3
s_sub_u32 s{sCT}, s{sT0}, s{sCT}
s_add_u32 s{sCT}, s{sCT}, 5
s_sub_u32 s{sT3}, s{sT0}, 12
s_mul_i32 s{sT2}, s{sT3}, 52
s_lshr_b32 s{sT2}, s{sT2}, 8
s_mul_i32 s{sJ}, s{sT2}, 5
s_sub_u32 s{sT3}, s{sT3}, s{sJ}
s_cmp_ge_u32 s{sT0}, 12
s_cselect_b32 s{sCT}, s{sT3}, s{sCT}
s_cselect_b32 s{sT1}, s{sT2}, s{sT1}
s_lshl_b32 s{sST}, s{sST}, 2
s_add_u32 s{sST}, s{sST}, s{sT1}
s_lshl_b32 s{sHP}, s{sB}, 3
s_add_u32 s{sHP}, s{sHP}, s{sCT}
s_add_u32 s{sJ}, s{sT1}, s{sCT}
s_sub_u32 s{sT1}, s{sJ}, 5
s_min_u32 s{sJ}, s{sJ}, s{sT1}
s_sub_u32 s{sT1}, s{sJ}, 5
s_min_u32 s{sJ}, s{sJ}, s{sT1}
s_lshl_b32 s{sJ}, s{sJ}, 1
s_add_u32 s{sJ}, s{sJ}, s{sB}
v_bfe_u32 v2, v0, 3, 3
v_lshl_add_u32 v2, v1, 5, v2
v_mul_u32_u24 v{vXA}, 1280, v2
v_bfe_u32 v2, v0, 4, 2
v_and_b32 v3, 7, v0
v_xor_b32 v2, v2, v3
s_mul_i32 s{sT1}, s{sST}, 163840
v_lshl_add_u32 v{vXA}, v2, 4, v{vXA}
v_add_u32 v{vXA}, s{sT1}, v{vXA}
v_xor_b32 v{vXA+1}, 64, v{vXA}
v_add_u32 v{vXA+1}, {10240-1024}, v{vXA+1}
s_lshl_b32 s{sT3}, s{SW}, 10
s_lshl_b32 s{sXL}, s{SW}, 13
s_lshl_b32 s{sXO}, s{sJ}, 7
s_mul_i32 s{sWO2}, s{sJ}, 10240
s_add_u32 s{sWO2}, s{sWO2}, s{sT3}
s_mul_i32 s{sQO}, s{sJ}, 6144
s_add_u32 s{sQO}, s{sQO}, s{sT3}
s_mov_b32 s{sL2E}, {LOG2E:#x}
s_mov_b32 s{sL2E+1}, {LOG2E:#x}
""")
    t0, t1, t2, t3 = 56, 57, 58, 59
    a0, a1, a2, a3 = 56, 57, 58, 59
    m0_, m1_ = S(56, 2), S(58, 2)
    setup = L(f"""
v_and_b32 v{vL8}, 63, v0
v_lshlrev_b32 v{vL16}, 4, v{vL8}
v_lshlrev_b32 v{vL8}, 3, v{vL8}
v_and_b32 v{t0}, 15, v0
v_lshrrev_b32 v{t1}, 1, v{t0}
v_bfe_u32 v{t2}, v0, 4, 2
v_xor_b32 v{t1}, v{t1}, v{t2}
v_lshlrev_b32 v{t1}, 4, v{t1}
v_lshl_add_u32 v{vXR}, v{t0}, 7, v{t1}
v_add_u32 v{vXR}, s{sXL}, v{vXR}
v_xor_b32 v{vXR+1}, 64, v{vXR}
v_lshrrev_b32 v{t1}, 5, v0
v_lshl_add_u32 v{vGW}, v{t1}, 4, v{t0}
v_lshlrev_b32 v{vGW}, 2, v{vGW}
v_add_u32 v{vGW}, {LDS_GATE}, v{vGW}
v_bfe_u32 v{t0}, v0, 5, 1
v_and_b32 v{t1}, 1, v0
v_bfe_u32 v{t2}, v0, 1, 1
v_cmp_eq_u32 {m0_}, v{t1}, v{t0}
v_mul_u32_u24 v{vPA1}, 800, v{t0}
v_bfe_u32 v{t1}, v0, 2, 2
v_mad_u32_u24 v{vPA1}, v{t1}, 40, v{vPA1}
v_add_u32 v{vPA1}, {LDS_WP}, v{vPA1}
v_lshl_add_u32 v{vPA}, v{t2}, 3, v{vPA1}
v_bfe_u32 v{t2}, v0, 4, 1
v_lshl_add_u32 v{vPA}, v{t2}, 4, v{vPA}
v_mov_b32 v{t3}, {LDS_Z}
v_cndmask_b32 v{vPA}, v{t3}, v{vPA}, {m0_}
v_lshlrev_b32 v{vKA}, 1, v{t0}
v_lshl_add_u32 v{vKA}, v{t1}, 2, v{vKA}
v_mul_u32_u24 v{vKA}, 272, v{vKA}
v_and_b32 v{t1}, 3, v0
v_lshl_add_u32 v{t2}, v{t2}, 2, v{t1}
v_lshl_add_u32 v{vKA}, v{t2}, 3, v{vKA}
v_bfe_u32 v{t2}, v0, 4, 2
v_cmp_eq_u32 {m0_}, v{t1}, v{t2}
v_add_u32 v{vPA1}, 32, v{vPA1}
v_and_b32 v{t1}, 31, v0
v_lshrrev_b32 v{t2}, 6, v0
v_cndmask_b32 v{vPA1}, v{t3}, v{vPA1}, {m0_}
v_lshl_add_u32 v{t1}, v{t2}, 5, v{t1}
v_mul_u32_u24 v{t1}, 272, v{t1}
v_mul_u32_u24 v{t3}, 80, v{t0}
v_add_u32 v{vPW}, v{t1}, v{t3}
v_mad_u32_u24 v{vVW}, v{t0}, 48, v{t1}
v_mad_u32_u24 v{vKA}, v{t2}, 40, v{vKA}
v_and_b32 v{vGA}, 31, v0
v_add_u32 v{vGA+1}, 32, v{vGA}
v_min_u32 v{vGA+1}, 54, v{vGA+1}
v_bfe_u32 v{a3}, v0, 5, 1
v_lshlrev_b32 v{a0}, 3, v{a3}
v_lshl_add_u32 v{vOT}, v{vGA}, 4, v{a0}
v_lshlrev_b32 v{a0}, 10, v{a3}
v_lshl_add_u32 v{vGA}, v{vGA}, 4, v{a0}
v_lshl_add_u32 v{vGA+1}, v{vGA+1}, 4, v{a0}
v_and_b32 v{a0}, 15, v0
v_bfe_u32 v{a1}, v0, 4, 1
v_mad_i32_i24 v{a2}, v{a1}, -8, v{a0}
v_lshl_add_u32 v{a0}, v{a3}, 4, v{a0}
v_and_b32 v{vKT}, 1, v{a2}
v_lshlrev_b32 v{vKT}, 4, v{vKT}
v_mov_b32 v{vKT+1}, 0x3f80
v_lshlrev_b32 v{vKT}, v{vKT}, v{vKT+1}
v_lshrrev_b32 v{a2}, 1, v{a2}
v_cmp_eq_u32 {m0_}, 0, v{a2}
v_cmp_eq_u32 {m1_}, 1, v{a2}
s_lshr_b32 s73, s{SW}, 1
v_cndmask_b32 v{ID}, 0, v{vKT}, {m0_}
v_cndmask_b32 v{ID+1}, 0, v{vKT}, {m1_}
v_cmp_eq_u32 {m0_}, 2, v{a2}
v_cmp_eq_u32 {m1_}, 3, v{a2}
s_mul_i32 s73, s73, 1680
v_cndmask_b32 v{ID+2}, 0, v{vKT}, {m0_}
v_cndmask_b32 v{ID+3}, 0, v{vKT}, {m1_}
s_mul_i32 s75, s{SW}, 40
s_add_u32 s73, s73, s75
s_add_u32 s73, s73, {LDS_KVT}
v_cmp_le_u32 {m0_}, 22, v{a0}
v_cmp_le_u32 {m1_}, 12, v{a0}
v_mul_u32_u24 v{vKT}, 80, v{a0}
v_mov_b32 v{a2}, {8-22*80}
v_cndmask_b32 v{a2}, 0, v{a2}, {m0_}
v_lshl_add_u32 v{vKT}, v{a1}, 4, v{vKT}
v_add_u32 v{vKT+1}, 808, v{vKT}
v_add3_u32 v{vKT}, v{vKT}, v{a2}, s73
v_lshl_add_u32 v{a2}, v{a0}, 1, v{a1}
v_mul_u32_u24 v{a2}, 80, v{a2}
v_subrev_u32 v{a2}, {24*80-32}, v{a2}
v_cndmask_b32 v{vKT+1}, v{vKT+1}, v{a2}, {m1_}
v_add_u32 v{vKT+1}, s73, v{vKT+1}
v_bfe_u32 v{a0}, v0, 2, 1
v_cmp_eq_u32 {m0_}, v{a0}, v{a3}
v_bfe_u32 v{a1}, v0, 3, 2
v_and_b32 v{a2}, 3, v0
v_lshl_add_u32 v{a1}, v{a1}, 2, v{a2}
v_mad_u32_u24 v{a1}, v{a0}, 22, v{a1}
v_mul_u32_u24 v{a1}, 80, v{a1}
v_add_u32 v{vOA}, {LDS_KVT}, v{a1}
v_add_u32 v{vOA+1}, {LDS_KVT+1280}, v{a1}
v_mov_b32 v{a2}, {LDS_Z}
v_cndmask_b32 v{vOA}, v{a2}, v{vOA}, {m0_}
v_cndmask_b32 v{vOA+1}, v{a2}, v{vOA+1}, {m0_}
v_lshlrev_b32 v{t1}, 2, v0
v_min_u32 v{t1}, 700, v{t1}
v_add_u32 v{t1}, {LDS_Z}, v{t1}
v_mov_b32 v{t2}, 0
""")
    setup.append(lambda: A.l(f"ds_write_b32 v{t1}, v{t2}", "z"))
    def wrap(sreg, step, size):
        return f"s_add_u32 s{sreg}, s{sreg}, {step}\ns_sub_u32 s{sT2}, s{sreg}, {size}\ns_min_u32 s{sreg}, s{sreg}, s{sT2}\n"

    def xslot(u):
        return 2048 * (u & 3) + (0 if BORROW and 4 <= u < 8 else LDS_X)

    def issue_x(u):
        if u >= 20:
            return []
        pre = f"s_add_u32 m0, s{sXL}, {xslot(u)}\n"
        if u & 1:
            pre += f"s_add_u32 s{sT0}, s{sXO}, 20480\n" + wrap(sXO, 128, 1280)
        so = sT0 if u & 1 else sXO
        return [(pre if i == 0 else "", lambda i=i: A.v(f"buffer_load_dwordx4 v{vXA+i}, {S(R_X,4)}, s{so} offen offset:{1024*i} lds", f"x{u}")) for i in range(2)]

    def read_x(u):
        A.vwait(f"x{u}")
        for jj in range(2):
            A.l(f"ds_read_b128 {V(Xr(u//4,u&1,(u&2)+jj),4)}, v{vXR+jj} offset:{xslot(u)}", f"xr{u}")

    wround, qround = [0], [0]

    def issue_w(upto):
        o = []
        for i in range(wround[0], min(upto, 25)):
            pre = f"s_add_u32 m0, s{sT3}, {4096*(i%10)}\n" + (wrap(sWO2, 4096, 102400) if i else "")
            o.append((pre, lambda i=i: A.v(f"buffer_load_dwordx4 v{vL16}, {S(R_W,4)}, s{sWO2} offen sc1 lds", f"w{i}")))
        wround[0] = max(wround[0], min(upto, 25))
        return o

    def issue_q(upto):
        o = []
        for i in range(qround[0], upto):
            pre = f"s_add_u32 m0, s{sT3}, {LDS_QA+4096*i if i < 9 else LDS_QB+4096*(i-9)}\n" + (wrap(sQO, 4096, 61440) if i else "")
            o.append((pre, lambda i=i: A.v(f"buffer_load_dwordx4 v{vL16}, {S(R_M1,4)}, s{sQO} offen sc1 lds", f"q{i}")))
        qround[0] = upto
        return o
    NEED = lambda h: (10 * h + 9) // 4 + 1
    FREED = lambda h: (10 * h + 6) // 4 + 1

    U2, U3 = OPT.get("u2", 3), OPT.get("u3", 3)
    BORROW = False

    def guarded(cmp_, f):
        _lab[0] += 1
        k = _lab[0]
        A(cmp_)
        A(f"s_cbranch_scc1 L_rp{k}")
        f()
        A(f"L_rp{k}:")
    IS_NOT_REPACKER = f"s_cmp_ge_u32 s2, {ID_B+80}"
    vU, vT, vTq = 80, 88, 89
    for _ in range(3):
        setup.pop(0)()
    A(IS_NOT_REPACKER)
    A("s_cbranch_scc1 L_e1x")
    A(f"""
v_and_b32 v95, 63, v0
s_mul_i32 s{sUS}, s{sKS}, {32*3840}
s_mul_i32 s{sT1}, s{sRH}, 80
s_add_u32 s{sUS}, s{sUS}, s{sT1}
s_add_u32 s{sT1}, s{sUS}, 1280
""")
    for i in range(5):
        A(dma_addr(vU + i, i, 10, [(0, 2, 0), (3, 1, 2), (2, 1, 3), (4, 1, 4)], 1200, 92, 95))
    for _ in range(OPT.get("dlyr", 0)):
        A("s_nop 15")
    A("s_waitcnt lgkmcnt(0)")
    srd(R_W, P_WQKV, 2457600)
    for i in range(5):
        A(f"s_add_u32 m0, s{sXL}, {1024*i}")
        A(f"s_lshl_b32 s{sKA}, s{sRH}, 8" if i == 0 else "s_nop 0")
        A(f"buffer_load_dwordx4 v{vU+i}, {S(R_W,4)}, s{sT1} offen lds")
    srd(R_X, P_U, 2621440)
    A("s_mov_b32 s51, 0")
    A("s_branch L_e1j")
    A("L_e1x:")
    for _ in range(OPT.get("dly", 0)):
        A("s_nop 15")
    A("s_waitcnt lgkmcnt(0)")
    srd(R_W, P_WQKV, 2457600)
    srd(R_X, P_U, 2621440)
    run(flat(issue_x(0) + issue_x(1)))
    A(f"""
s_lshl_b32 s{sKA}, s{sJ}, 8
s_add_u32 s{sKA}, s{sKA}, {C_UT}
s_lshl_b32 s{sOWN}, s{SW}, 3
s_add_u32 s{sOWN}, s{sOWN}, s{sCT}
L_e1j:
""")
    assert sOWN == 51
    arriver = lambda f: guarded(f"s_cmp_ge_u32 s{sOWN}, 5", f)
    load_epoch()
    arriver(lambda: cnt_read(CQ0 + 2, sKA))
    stamp("B", "iss0")
    srd(R_WS, P_WS, WS_SIZE)
    A(f"""
s_mov_b64 {S(ONE,2)}, 1
s_mov_b64 {S(CQ1,2)}, 256
s_lshl_b32 s{sKF}, s{sHP}, 2
s_add_u32 s{sKF}, s{sKF}, s{SW}
s_lshl_b32 s{sKF}, s{sKF}, 8
s_add_u32 s{sKF}, s{sKF}, {C_KV}
s_lshl_b32 s{sOF}, s{sST}, 1
s_lshr_b32 s{sT1}, s{SW}, 1
s_add_u32 s{sOF}, s{sOF}, s{sT1}
s_lshl_b32 s{sOF}, s{sOF}, 2
s_lshr_b32 s{sT1}, s{sHP}, 2
s_add_u32 s{sOF}, s{sOF}, s{sT1}
s_lshl_b32 s{sOF}, s{sOF}, 8
s_add_u32 s{sOF}, s{sOF}, {C_O}
s_lshl_b32 s{sKW}, s{sHP}, 8
""")
    run(setup)
    srd(R_M2, P_OUT, 2621440)
    stamp("B", "setup")
    A.lwait_all()
    make_tag()
    arriver(lambda: cnt_claim(CQ0, sKA))
    A(IS_NOT_REPACKER)
    A("s_cbranch_scc1 L_e2x")
    A.c("---- repack")
    srd(R_M1, P_GATE, 1280)
    for i in range(3):
        A(dma_addr(vU + i, i, 5, [(1, 2, 0), (0, 1, 2), (3, 2, 3)], 0, 92, 95))
    A(f"""
v_bfe_u32 v92, v0, 5, 1
v_bfe_u32 v93, v0, 2, 3
v_lshl_add_u32 v94, v92, 4, v93
v_mul_u32_u24 v{vT}, 160, v94
v_lshl_add_u32 v94, v92, 3, v93
v_mul_u32_u24 v{vTq}, 160, v94
v_and_b32 v93, 1, v0
v_bfe_u32 v94, v0, 1, 1
v_mad_u32_u24 v94, v94, 40, s{sXL}
v_add_u32 v{vTq}, v{vTq}, v94
v_lshl_add_u32 v{vTq}, v93, 4, v{vTq}
v_mul_u32_u24 v93, 80, v93
v_add3_u32 v{vT}, v{vT}, v94, v93
v_and_b32 v90, 0x30, v0
s_mul_i32 s73, s{sRH}, 20
s_add_u32 s73, s73, s{sKS}
s_mul_i32 s75, s73, 3072
s_add_u32 s75, s75, {WS_WQ}
s_mul_i32 s73, s73, 5120
s_add_u32 s73, s73, {WS_WKV}
s_lshl_b32 s16, s{sRH}, 2
s_add_u32 s16, s16, s{sKS}
s_lshl_b32 s16, s16, 8
s_add_u32 s16, s16, {C_KV}
s_lshl_b32 s17, s{sKS}, 1
s_add_u32 s17, s17, s{SW}
s_lshl_b32 s17, s17, 2
s_lshr_b32 s{sT1}, s{sRH}, 2
s_add_u32 s17, s17, s{sT1}
s_lshl_b32 s17, s17, 8
s_add_u32 s17, s17, {C_O}
s_lshl_b32 s19, s{SW}, 3
s_and_b32 s19, s19, 16
s_add_u32 s19, s19, s{sKS}
""")
    guarded(f"s_cmp_ge_u32 s{sKS}, 4", lambda: cnt_init(16))
    guarded(f"s_cmp_ge_u32 s19, 16", lambda: cnt_init(17))
    keep, A.vm = A.vm, []
    A("s_waitcnt vmcnt(0)")
    names = list(stampnames.get("B", []))
    stamp("B", "ukv")
    for t in range(5):
        for h in range(2):
            A(f"ds_read_b64_tr_b16 {V(56+4*t+2*h,2)}, v{vT} offset:{1280*h+8*t}")
    lwait_lds(92, vL8, 5)
    for t in range(5):
        if t == 4:
            A("s_add_u32 s73, s73, 4096")
        A.v(f"buffer_store_dwordx4 {V(56+4*t,4)}, v{vL16}, {S(R_WS,4)}, s73 offen offset:{1024*(t%4)} sc1", "kst")
    for i in range(3):
        A(f"s_add_u32 m0, s{sXL}, {5120+1024*i}")
        A("s_mov_b32 exec_hi, 0" if i == 2 else f"s_lshl_b32 s19, s{sKS}, 6")
        A.v(f"buffer_load_dwordx4 v{vU+i}, {S(R_W,4)}, s{sUS} offen lds", "uq")
    A("s_mov_b64 exec, -1")
    A.v(f"buffer_load_dwordx4 {V(76,4)}, v90, {S(R_M1,4)}, s19 offen", "uq")
    A.vwait("kst")
    A.lwait_all()
    A("s_barrier")
    cnt_add(ONE, sKA)
    stamp("B", "kflag")
    run(flat(issue_x(0) + issue_x(1)))
    A("s_mov_b32 s16, 0xf0f0f0f0")
    A("s_mov_b32 s17, 0xf0f0f0f0")
    A.vwait("uq")
    for t in range(3):
        for h in range(2):
            A(f"ds_read_b64_tr_b16 {V(56+4*t+2*h,2)}, v{vTq} offset:{5120+80*h+(0,8,32)[t]}")
    lwait_lds(92, vL8, 4)
    for p in range(4):
        A(f"v_cndmask_b32 v{64+p}, v{64+p}, v{76+p}, {S(16,2)}")
    for t in range(3):
        A(f"buffer_store_dwordx4 {V(56+4*t,4)}, v{vL16}, {S(R_WS,4)}, s75 offen offset:{1024*t} sc1")
    run(flat(issue_x(2) + issue_x(3)))
    A("s_branch L_e2j")
    A("L_e2x:")
    A.c("---- slice hand-over")
    A.vm = keep
    if OPT["stamps"]:
        stampnames["B"] = names
    A(f"""
v_not_b32 v80, v0
v_bfe_u32 v81, v80, 4, 2
v_bfe_u32 v80, v80, 2, 2
v_lshl_add_u32 v81, v81, 3, v80
v_bfe_u32 v82, v81, 1, 3
v_bfe_u32 v83, v0, 1, 1
v_xor_b32 v82, v82, v83
v_lshlrev_b32 v82, 4, v82
v_lshl_add_u32 v81, v81, 7, v82
v_and_b32 v82, 1, v0
v_lshl_add_u32 v81, v82, 3, v81
v_add_u32 v81, s{sXL}, v81
v_bfe_u32 v82, v0, 2, 2
v_lshlrev_b32 v82, 14, v82
v_and_b32 v83, 3, v0
v_lshl_add_u32 v82, v83, 4, v82
v_and_b32 v83, 0x30, v0
v_lshl_add_u32 v82, v83, 2, v82
v_xor_b32 v93, 32, v81
v_xor_b32 v94, 64, v81
v_xor_b32 v95, 96, v81
s_lshl_b32 s{sT1}, s{sST}, 2
s_add_u32 s{sT1}, s{sT1}, s{SW}
s_sub_u32 s{sT1}, 63, s{sT1}
s_lshl_b32 s{sT1}, s{sT1}, 8
s_lshl_b32 s73, s{sJ}, 18
s_add_u32 s{sT1}, s{sT1}, s73
s_add_u32 s{sUO}, s{sT1}, {WS_UT}
s_waitcnt vmcnt(0)
""")
    stamp("B", "ukv")
    TA_ = [81, 93, 94, 95]

    def hand_over():
        for it in range(4):
            for h in range(2):
                A(f"ds_read_b64_tr_b16 {V(60+4*it+2*h,2)}, v{TA_[it ^ (1-h)]} offset:{LDS_X+512*(1-h)}")
        lwait_lds(92, vL8, 4)
        for it in range(0 if OPT.get('nout') else 4):
            A(f"buffer_store_dwordx4 {V(60+4*it,4)}, v82, {S(R_WS,4)}, s{sUO} offen sc1")
            if it < 3:
                A(f"s_add_u32 s{sUO}, s{sUO}, 65536")
    guarded(f"s_cmp_ge_u32 s{sCT}, 5", hand_over)
    run(flat(issue_x(2) + issue_x(3)))
    A("s_waitcnt vmcnt(4) lgkmcnt(0)")
    A("s_barrier")
    arriver(lambda: cnt_add(ONE, sKA))
    stamp("B", "kflag")
    A("L_e2j:")
    assert A.vm == ["x0", "x0", "x1", "x1", "x2", "x2", "x3", "x3"]
    A.lg = ["_"] * 4
    srd(R_M1, P_WPHI, 25600)
    A(f"""
s_mul_i32 s{sT1}, s{SW}, 400
s_add_u32 m0, s{sT1}, {LDS_WP}
s_mul_i32 s{sT2}, s{sHP}, 1600
s_add_u32 s{sT1}, s{sT1}, s{sT2}
s_mov_b64 exec, 0x1ffffff
""")
    A.v(f"buffer_load_dwordx4 v{vL16}, {S(R_M1,4)}, s{sT1} offen lds", "wp")
    A(f"""
s_mov_b64 exec, -1
s_mul_i32 s{sT1}, s{sHP}, 102400
s_add_u32 s{sT1}, s{sT1}, {WS_WKV}
s_add_u32 s{R_W}, s{P_WS}, s{sT1}
s_addc_u32 s{R_W+1}, s{P_WS+1}, 0
s_mov_b32 s{R_W+2}, 102400
s_mul_i32 s{sT1}, s{sHP}, 61440
s_add_u32 s{sT1}, s{sT1}, {WS_WQ}
s_add_u32 s{R_M1}, s{P_WS}, s{sT1}
s_addc_u32 s{R_M1+1}, s{P_WS+1}, 0
s_mov_b32 s{R_M1+2}, 61440
""")
    stamp("B", "iss1")
    refill = lambda u: u + 4

    A.c("---- x tile -> registers")
    assert U3 >= 2
    for u in range(U3 + 1):
        read_x(u)
        ld = []
        if u == 2:
            guarded(IS_NOT_REPACKER, lambda: cnt_add(CQ1, sKA))
        if u:
            A.lwait(f"xr{u-1}")
            ld += issue_x(refill(u - 1))
        if u == U2:
            run(flat(ld))
            ld = []
            only_wave(0, lambda: cnt_wait(CQ0, sKW, 20, sCNT, probed=False, low=True, nap=OPT.get('napw', 0)))
            A("s_barrier")
            stamp("B", "kwseen")
        if u >= U2:
            run(flat(issue_w(min(10, wround[0] + (OPT.get("w1st", 10) if u == U2 else OPT.get("wper", 2))))))
        run(flat(ld))

    def ready(h):
        A.vwait(f"w{NEED(h)-1}")
        A("s_barrier")
        stamp("B", f"w{h}")


    A.c("---- GEMM1a: k and v for two heads, 20 k-steps in one stream")
    run(flat(issue_w(NEED(1))))
    ready(0)
    pipe = FragPipe(vL16)
    mm = pipe.stream([(n // 5, n % 5, 1024 * (n % 40)) for n in range(100)], ACC)
    st_ = Stream()
    st_.at(0, flat(issue_w(10)))
    u = U3 + 1
    lastx = [0]
    for h in range(10):
        k0 = 20 * h
        for kk in {2: (0, 12), 3: (0, 5, 14), 4: (0, 4, 11, 15)}[OPT.get("xper", 2)]:
            if u < 20:
                st_.at(k0 + kk, [lambda u=u: read_x(u), lambda u=u: A.lwait(f"xr{u-1}")] + flat(issue_x(refill(u - 1))))
                u += 1
                lastx[0] = k0 + kk
        if h < 9:
            st_.exact(k0 + 19 - 2 * pipe.look, lambda h=h: ready(h + 1))
            mm[k0 + 20] = (lambda f=mm[k0 + 20], h=h: (need_x(h + 1), f()))
        if h:
            st_.at(k0 + 20 - 2 * pipe.look, flat(issue_w(10 + FREED(h - 1))))

    def need_x(h):
        assert f"x{2*h+1}" not in A.vm
        A.lwait(f"xr{2*h}", f"xr{2*h+1}")

    HQ = OPT.get("hq", 8)
    assert u == 20 and lastx[0] < 20 * HQ
    st_.at(20 * HQ - 50, L(f"""
s_and_b32 s{sWC}, s{sCT}, 4
s_add_u32 s{sWC}, s{sWC}, s{SW}
s_lshl_b32 s{sWC}, s{sWC}, 8
s_add_u32 s{sWC}, s{sWC}, {C_WO}
""") + [lambda: only_wave(0, lambda: cnt_read(CQ0, sKW))])
    st_.at(20 * HQ + 2, [lambda: A.lwait("xr19"), lambda: only_wave(0, lambda: cnt_async(CQ0, 14, sKW, 20 * 257, sCNT, nap=2))])
    for h in range(HQ, 10):
        st_.at(20 * h + 21 - 2 * pipe.look, flat(issue_q(9 if h == 9 else min(9, qround[0] + OPT.get("qper", 3)))))
    need_x(0)
    st_.run(mm)
    assert wround[0] == 25
    stamp("B", "g1a")
    if OPT.get("fine"):
        finish("B")
        return

    A.c("---- phi_k, kv partial")
    KP, VP = 8, 20
    phi_frags(PF0, vPA)
    for t in range(5):
        for sg in range(2):
            for hh in range(2):
                a_ = ACC + 8 * t + 4 * sg + 2 * hh
                A(f"v_cvt_pk_bf16_f32 v{(KP if sg==0 else VP)+2*t+hh}, v{a_}, v{a_+1}")
    phi_frags(PF1, vPA1)
    A(f"""
v_mov_b32 v{KP+10}, 0
v_mov_b32 v{KP+11}, 0
""")
    for i in range(10):
        A(f"v_permlane16_swap_b32 v{KP+i}, v{VP+i}")
    A(f"""
v_mov_b32 v{VP+10}, 0x3f80
v_mov_b32 v{VP+11}, 0
""")
    A.lwait_all()
    phi_mfma([KP, KP + 4, KP + 8])
    cnt_read(CQ0 + 2, sWC)
    A("s_barrier")
    for i in range(3):
        A.l(f"ds_write_b128 v{vVW}, {V(VP+4*i,4)} offset:{LDS_PV+160+16*i}", "pv")
    stamp("B", "pmf")

    def wr_plus():
        for i in range(2):
            A.l(f"ds_write_b128 v{vPW}, {V(PHI+4*i,4)} offset:{LDS_PV+16*i}", "pv")
    softmax(PK, EE, PHI, 32, OPT.get('pk1', 0), wr_plus)
    for i in range(2, 5):
        A.l(f"ds_write_b128 v{vPW}, {V(PHI+4*i,4)} offset:{LDS_PV+16*i}", "pv")
    stamp("B", "smx")
    vKB, vQR = vVW, vPW
    A(f"""
s_lshr_b32 s{sT0}, s{SW}, 1
s_mul_i32 s{sT0}, s{sT0}, 48
s_mul_i32 s{sT1}, s{SW}, 40
s_sub_u32 s{sT0}, s{sT0}, s{sT1}
s_add_u32 s{sT0}, s{sT0}, 160
v_add_u32 v{vKB}, s{sT0}, v{vKA}
""")
    A.lwait_all()
    A("s_barrier")
    stamp("B", "phik")
    KD = 28
    FR = [56, 64, 72, 80]

    def kvreads(ks):
        for h in range(2):
            A.l(f"ds_read_b64_tr_b16 {V(FR[ks%4]+2*h,2)}, v{vKA} offset:{LDS_PV+ks*4352+h*272}", f"kv{ks}")
        for h in range(2):
            A.l(f"ds_read_b64_tr_b16 {V(FR[ks%4]+4+2*h,2)}, v{vKB} offset:{LDS_PV+ks*4352+h*272}", f"kv{ks}")
    for ks in range(3):
        kvreads(ks)
    sWO = 75
    fl = L(f"""
v_and_b32 v14, 31, v0
v_bfe_u32 v15, v0, 5, 1
v_mad_u32_u24 v15, v15, 22, v14
v_lshlrev_b32 v15, 4, v15
s_lshl_b32 s{sT0}, s{sHP}, 2
s_add_u32 s{sT0}, s{sT0}, s{SW}
s_lshl_b32 s{sT1}, s{sT0}, 4
s_add_u32 s{sT1}, s{sT1}, s{sST}
s_lshl_b32 s{sT1}, s{sT1}, 10
s_add_u32 s{sT1}, s{sT1}, {WS_KVP}
v_add_u32 v{vQR}, {LDS_QB}, v{vL16}
""")
    for ks in range(8):
        A.lwait(f"kv{ks}")
        A(f"v_mfma_f32_32x32x16_bf16 {V(KD,16)}, {V(FR[ks%4],4)}, {V(FR[ks%4]+4,4)}, {'0' if ks==0 else V(KD,16)}")
        if ks + 3 < 8:
            kvreads(ks + 3)
        else:
            for _ in range(5):
                if fl:
                    fl.pop(0)()
    run(fl)
    A.vwait("q8")
    A("s_barrier")
    for i in range(6):
        A(f"v_cvt_pk_bf16_f32 v{8+i}, v{KD+2*i}, v{KD+2*i+1}")
    set_exec(0x003FFFFF003FFFFF)
    A.v(f"buffer_store_dwordx4 {V(8,4)}, v15, {S(R_WS,4)}, s{sT1} offen sc1", "kvst")
    A("s_mov_b32 exec_hi, 0")
    A.v(f"buffer_store_dwordx2 {V(12,2)}, v{vL8}, {S(R_WS,4)}, s{sT1} offen offset:704 sc1", "kvst")
    A("s_mov_b64 exec, -1")
    stamp("B", "kvst")
    if not OPT.get('abl'):
        cnt_wait(CQ0 + 2, sWC, 20, sCNT, nap=8)

    A.c("---- GEMM1b (q); wo fragments stream into the x registers as they die")
    QA = 56
    WOR = [XB + 4 * i for i in range(24)] + [92]
    G = Xr(3, 0, 0)
    pipe = FragPipe(vQR)
    mm = pipe.stream([(n // 3, n % 3, LDS_QA - LDS_QB + 1024 * n if n < 36 else 1024 * (n - 36)) for n in range(60)], QA)

    def issue_wo(f0, f1):
        o = []
        for f in range(f0, f1):
            ii, jn = divmod(f, 5)
            pre = ""
            if jn == 0 and ii < 4:
                pre = f"s_add_u32 s{sWC}, s{sST}, {ii}\ns_and_b32 s{sWC}, s{sWC}, 3\ns_mul_i32 s{sWC}, s{sWC}, 5120\ns_add_u32 s{sWC}, s{sWC}, s{sWO}\n"
            elif jn == 0:
                pre = f"s_add_u32 s{sWC}, s{sWO}, 20480\n"
            elif jn == 4:
                pre = f"s_add_u32 s{sWC}, s{sWC}, 4096\n"
            o.append((pre, lambda f=f, jn=jn: A.v(f"buffer_load_dwordx4 {V(WOR[f],4)}, v{vL16}, {S(R_WS,4)}, s{sWC} offen offset:{1024*(jn%4)} sc1", "wo")))
        return o

    def kv_flag():
        A.vwait("kvst")
        cnt_add(ONE, sKF)

    def q2_ready():
        A.vwait("q14")
        A("s_barrier")

    st_ = Stream()
    st_.at(0, flat(issue_q(15)) + L(f"""
s_mul_i32 s{sWO}, s{sCT}, 102400
s_mul_i32 s{sT1}, s{SW}, 25600
s_add_u32 s{sWO}, s{sWO}, s{sT1}
s_add_u32 s{sWO}, s{sWO}, {WS_WO}
"""))
    st_.exact(OPT.get("kvf", 30), kv_flag)
    wol = issue_wo(0, 25)
    NW1, NW2 = OPT.get("nw1", 10), OPT.get("nw2", 20)
    for f_, g_ in enumerate(wol[:NW1]):
        st_.at(max(8 + 3 * f_, OPT.get("wo0", 16) + OPT.get("wostep", 5) * f_), flat([g_]))
    st_.exact(72 - 2 * pipe.look - 1, q2_ready)
    st_.at(OPT.get("kvp", 84), lambda: cnt_read(CQ0, sKF))
    st_.run(mm)
    stamp("B", "g1b")

    A.c("---- gather kv partials, phi_q")
    phi_frags(PF0, vPA)
    A(f"""
s_lshl_b32 s{sT0}, s{sT0}, 14
s_add_u32 s{sT0}, s{sT0}, {WS_KVP}
""")
    A.lwait_all()
    cnt_wait(CQ0, sKF, 16, sCNT)
    stamp("B", "kvseen")
    gl = []
    for pp in range(8):
        for g2 in range(2):
            def f(pp=pp, g2=g2):
                if g2 == 0 and pp % 2 == 0:
                    A(f"s_add_u32 s{sT1}, s{sST}, {pp//2}")
                    A(f"s_and_b32 s{sT1}, s{sT1}, 3")
                    A(f"s_lshl_b32 s{sT1}, s{sT1}, 12")
                    A(f"s_add_u32 s{sT1}, s{sT1}, s{sT0}")
                A.v(f"buffer_load_dwordx4 {V(G+8*pp+4*g2,4)}, v{vGA+g2}, {S(R_WS,4)}, s{sT1} offen offset:{2048*(pp&1)} sc1", f"g{pp}")
            gl.append(f)
    for _ in range(8):
        gl.pop(0)()
    Q0, Q1 = 8, 16
    for t in range(3):
        for sg in range(2):
            for hh in range(2):
                a_ = QA + 8 * t + 4 * sg + 2 * hh
                A(f"v_cvt_pk_bf16_f32 v{(Q0 if sg==0 else Q1)+2*t+hh}, v{a_}, v{a_+1}")
    A(f"""
s_mov_b32 exec_lo, 0
v_mov_b32 v{QA+16}, v{QA+20}
s_mov_b32 exec_lo, 0xffff0000
s_mov_b32 exec_hi, 0xffff0000
""")
    A.l(f"ds_write_b32 v{vGW}, v{QA+16}", "gw")
    A("s_mov_b64 exec, -1")
    phi_frags(PF1, vPA1)
    A(f"v_mov_b32 v{Q0+6}, 0")
    A(f"v_mov_b32 v{Q0+7}, 0")
    for i in range(6):
        A(f"v_permlane16_swap_b32 v{Q0+i}, v{Q1+i}")
    A.lwait("pf")
    phi_mfma([Q0, Q1, Q0 + 4])
    run(gl)
    softmax(PK, EE, PHI, 32, OPT.get('pk3', 0), None, flat(wol[NW1:NW2]))
    stamp("B", "phiq")
    RD = 32
    for pp in range(8):
        A.vwait(f"g{pp}")
        for g2 in range(2):
            d = V(RD + 4 * g2, 4)
            A(f"v_mfma_f32_16x16x32_bf16 {d}, {V(ID,4)}, {V(G+8*pp+4*g2,4)}, {'0' if pp==0 else d}")
    A(f"""
s_lshl_b32 s{sT1}, s{sST}, 2
s_add_u32 s{sT1}, s{sT1}, s{SW}
s_lshl_b32 s{sT1}, s{sT1}, 4
s_add_u32 s{sT1}, s{sT1}, s{sHP}
s_mul_i32 s{sT1}, s{sT1}, 2560
s_add_u32 s{sT1}, s{sT1}, {WS_O}
""")
    for i in range(4):
        A(f"v_cvt_pk_bf16_f32 v{40+i}, v{RD+2*i}, v{RD+2*i+1}")
    A.l(f"ds_write_b64 v{vKT}, {V(40,2)}", "kt")
    A("s_mov_b32 exec_hi, 0x007f007f")
    A.l(f"ds_write_b64 v{vKT+1}, {V(42,2)}", "kt")
    A("s_mov_b64 exec, -1")
    A.lwait_all()
    A("s_barrier")
    stamp("B", "kvt")
    OF_, OD = G, 56
    for T in (1, 0):
        for t in range(5):
            A.l(f"ds_read_b128 {V(OF_+8*t+4*T,4)}, v{vOA+T} offset:{16*t}", f"o{t}_{T}")
    for T in (1, 0):
        for t in range(5):
            A.lwait(f"o{t}_{T}")
            d = V(OD + 16 * T, 16)
            A(f"v_mfma_f32_32x32x16_bf16 {d}, {V(OF_+8*t+4*T,4)}, {V(PHI+4*t,4)}, {'0' if t==0 else d}")
    OP = 28
    A(f"""
v_add_f32 v40, 0x358637bd, v{OD+20}
""")
    if OPT.get("pk3", 0):
        A("v_rcp_f32 v41, v40")
    A("v_rcp_f32 v40, v40")
    for i in (8, 9, 0, 1, 2, 3, 4, 5, 6, 7):
        scale(OD + 2 * i, 40, OPT.get("pk3", 0))
        A(f"v_cvt_pk_bf16_f32 v{OP+i}, v{OD+2*i}, v{OD+2*i+1}")
        if i == 9:
            A.v(f"buffer_store_dwordx2 {V(OP+8,2)}, v{vOT}, {S(R_WS,4)}, s{sT1} offen offset:2048 sc1", "ost")
        if i == 3:
            A.v(f"buffer_store_dwordx4 {V(OP,4)}, v{vL16}, {S(R_WS,4)}, s{sT1} offen sc1", "ost")
        if i == 7:
            A.v(f"buffer_store_dwordx4 {V(OP+4,4)}, v{vL16}, {S(R_WS,4)}, s{sT1} offen offset:1024 sc1", "ost")
    stamp("B", "ost")
    run(flat(wol[NW2:]))

    A.c("---- final projection: the wave sums its K quarter for four row tiles and owns tile (wave + ct) & 3")
    vOM, vOR, vW16 = 2, 3, 7
    vOMS = [72, 73, 74, 75]
    vRW, vRR, vAR, vAR2, vOUT2, vOUT = 1, 4, 5, 6, 2, 3
    sOB = [64, 65, 66, 67]
    sAF, sAT, sOC = 74, 75, 30
    GT, OMG, GA, AC0, AC1, OX = 8, 12, 16, 36, 56, 76
    OFR = [G + 4 * i for i in range(16)] + [OX + 4 * i for i in range(4)]
    A(f"""
s_add_u32 s{sOWN}, s{SW}, s{sCT}
s_and_b32 s{sOWN}, s{sOWN}, 3
s_lshl_b32 s{sCNT}, s{sB}, 2
s_add_u32 s{sCNT}, s{sCNT}, s{sOWN}
s_lshl_b32 s{sCNT}, s{sCNT}, 6
s_add_u32 s{sCNT}, s{sCNT}, {LDS_GATE}
v_and_b32 v42, 0x30, v0
v_add_u32 v42, s{sCNT}, v42
""")
    A.l(f"ds_read_b128 {V(GT,4)}, v42", "gt")
    A(f"""
s_lshl_b32 s{sAF}, s{sCT}, 2
s_add_u32 s{sAF}, s{sAF}, s{SW}
s_mul_i32 s{sAT}, s{sAF}, {20*4096}
s_lshl_b32 s{sAF}, s{sAF}, 8
s_add_u32 s{sAF}, s{sAF}, {C_AF}
s_lshl_b32 s{sWOFF}, s{sST}, 1
s_add_u32 s{sWOFF}, s{sWOFF}, s{sB}
s_lshl_b32 s{sCNT}, s{sWOFF}, 7
s_add_u32 s{sAT}, s{sAT}, s{sCNT}
s_add_u32 s{sAT}, s{sAT}, {WS_AT}
s_lshl_b32 s{sOC}, s{sWOFF}, 2
s_add_u32 s{sOC}, s{sOC}, s{SW}
s_lshl_b32 s{sOC}, s{sOC}, 8
s_add_u32 s{sOC}, s{sOC}, {C_O}
""")
    A.lwait("gt")
    cnt_read(CQ0, sAF)
    A(f"""
v_mov_b32 v{vW16}, v{vL16}
v_and_b32 v40, 15, v0
v_bfe_u32 v43, v0, 4, 2
v_lshlrev_b32 v{vOM}, 9, v43
v_lshl_add_u32 v{vOM}, v40, 4, v{vOM}
v_mul_u32_u24 v{vOR}, 2560, v43
v_lshl_add_u32 v{vOR}, v40, 4, v{vOR}
v_bfe_u32 v49, v0, 3, 3
v_and_b32 v48, 7, v0
s_mul_i32 s{sCNT}, s{SW}, 20
""")
    for i in range(3):
        A(f"""
v_add_u32 v42, {8*i}, v49
v_add_u32 v43, s{sCNT}, v42
v_bfe_u32 v43, v43, 2, 3
v_xor_b32 v43, v43, v48
v_lshlrev_b32 v42, 12, v42
v_lshl_add_u32 v{50+i}, v43, 4, v42
""")
    for e in range(4):
        A(f"v_mul_f32 v{GT+e}, s{sL2E}, v{GT+e}")
    for e in range(4):
        A(f"v_exp_f32 v{GT+e}, -v{GT+e}")
    for e in range(4):
        A(f"v_add_f32 v{GT+e}, 1.0, v{GT+e}")
    for e in range(4):
        A(f"v_rcp_f32 v{GT+e}, v{GT+e}")
    for p in range(4):
        A(f"""
s_add_u32 s{sCNT}, s{sOWN}, {p+1}
s_bfe_u32 s{sJ}, s{sCNT}, 0x10001
s_mul_i32 s{sOB[p]}, s{sJ}, 40960
s_and_b32 s{sJ}, s{sCNT}, 1
s_lshl_b32 s{sJ}, s{sJ}, 8
s_add_u32 s{sOB[p]}, s{sOB[p]}, s{sJ}
""")
    A(f"""
s_mul_i32 s{sCNT}, s{sWOFF}, 81920
s_mul_i32 s{sJ}, s{SW}, 10240
s_add_u32 s{sCNT}, s{sCNT}, s{sJ}
s_add_u32 s{sCNT}, s{sCNT}, {WS_O}
v_add_u32 v{vOM}, s{sCNT}, v{vOM}
v_add_u32 v{vOR}, s{sCNT}, v{vOR}
""")
    for e in range(4):
        A(f"v_sub_f32 v{OMG+e}, 1.0, v{GT+e}")
    A.vwait("ost")
    cnt_add(ONE, sOF)
    stamp("B", "oflag")
    cnt_read(CQ0 + 2, sOC)
    for ii in range(4):
        A(f"""
s_add_u32 s{sCNT}, s{sST}, {ii}
s_and_b32 s{sCNT}, s{sCNT}, 3
s_mul_i32 s{sCNT}, s{sCNT}, 2560
v_add_u32 v{vOMS[ii]}, s{sCNT}, v{vOM}
""")
    A(f"""
v_bfe_u32 v41, v0, 5, 1
v_lshl_add_u32 v41, s{sOWN}, 1, v41
v_and_b32 v42, 7, v40
v_xor_b32 v42, v42, v41
v_lshlrev_b32 v42, 4, v42
v_bfe_u32 v43, v0, 4, 1
v_lshlrev_b32 v43, 3, v43
v_lshlrev_b32 v{vAR}, 9, v40
v_add3_u32 v{vAR}, v{vAR}, v42, v43
v_lshrrev_b32 v42, 2, v40
v_xor_b32 v42, v42, v41
v_lshlrev_b32 v42, 4, v42
v_lshlrev_b32 v{vAR2}, 7, v40
v_add3_u32 v{vAR2}, v{vAR2}, v42, v43
s_mul_i32 s{sCNT}, s{SW}, 15360
s_add_u32 s{sCNT}, s{sCNT}, {LDS_RED}
v_add_u32 v{vRR}, s{sCNT}, v{vW16}
s_lshl_b32 s{sJ}, s2, 2
s_add_u32 s{sJ}, s{sJ}, s{SW}
s_cmp_lg_u32 s{sJ}, {4*ID_B}
s_cbranch_scc1 L_noep1
""")
    EPR = [12, 14, 16, 18, 20, 22, 26, 28]
    for cb in range(8):
        cnt_read(EPR[cb], str(C_WO + 256 * cb))
    A("s_waitcnt lgkmcnt(0)")
    for cb in range(0 if OPT.get('abl') else 8):
        cnt_wait(EPR[cb], str(C_WO + 256 * cb), 20, sCNT)
    A("L_noep1:")
    A("s_waitcnt lgkmcnt(0)")
    if not OPT.get('abl'):
        cnt_wait(CQ0, sAF, 20, sCNT, nap=OPT.get('napa', 2))
    A(f"s_mul_i32 s{sAF}, s{SW}, 2560")
    for i in range(3):
        A(f"s_add_u32 m0, s{sAF}, {LDS_AT+1024*i}")
        if i == 2:
            A("s_mov_b32 exec_hi, 0")
        A.v(f"buffer_load_dwordx4 v{50+i}, {S(R_WS,4)}, s{sAT} offen sc1 lds", "at")
    A("s_mov_b64 exec, -1")
    stamp("B", "aseen")
    cnt_wait(CQ0 + 2, sOC, 8, sCNT)
    stamp("B", "oseen")
    old = []
    for p in range(4):
        for ii in range(5):
            def f(p=p, ii=ii):
                r = V(OFR[5 * p + ii], 4)
                if ii < 4:
                    A.v(f"buffer_load_dwordx4 {r}, v{vOMS[ii]}, {S(R_WS,4)}, s{sOB[p]} offen sc1", f"of{p}_{ii}")
                else:
                    A.v(f"buffer_load_dwordx4 {r}, v{vOR}, {S(R_WS,4)}, s{sOB[p]} offen offset:2048 sc1", f"of{p}_{ii}")
            old.append(f)
    for _ in range(OPT.get("npo", 10)):
        old.pop(0)()
    A.vwait("at")
    A("s_barrier")
    AR = 56
    for jn in range(4):
        A.l(f"ds_read_b64 {V(AR+2*jn,2)}, v{vAR} offset:{LDS_AT+128*jn}", "ar")
    A.l(f"ds_read_b64 {V(AR+8,2)}, v{vAR2} offset:{LDS_AT+8192}", "ar")
    mix = [lambda: A.lwait("ar")]
    for jn in range(5):
        for e in range(4):
            src = AR + 2 * jn + (e >> 1)
            mix += L(f"v_and_b32 v{GA+4*jn+e}, 0xffff0000, v{src}" if e & 1 else f"v_lshlrev_b32 v{GA+4*jn+e}, 16, v{src}")
    mix2 = [(lambda jn=jn, e=e: A(f"v_mul_f32 v{GA+4*jn+e}, v{GT+e}, v{GA+4*jn+e}")) for jn in range(5) for e in range(4)]
    mm = []
    for p in range(4):
        ac = AC0 if p % 2 == 0 else AC1
        for ii in range(5):
            for jn in range(5):
                def m(p=p, ac=ac, ii=ii, jn=jn):
                    if jn == 0:
                        A.vwait(f"of{p}_{ii}")
                        if p == 0 and ii == 0:
                            stamp("B", "o0")
                    d = V(ac + 4 * jn, 4)
                    A(f"v_mfma_f32_16x16x32_bf16 {d}, {V(OFR[5*p+ii],4)}, {V(WOR[5*ii+jn],4)}, {'0' if ii==0 else d}")
                mm.append(m)
    st_ = Stream(budget=2)
    for i, f in enumerate(old):
        st_.at(2 * i, f)
    for i, f in enumerate(mix):
        st_.at(i, f)
    st_.exact(24, lambda: None)
    for p in range(3):
        ac = AC0 if p % 2 == 0 else AC1
        k0 = 25 * (p + 1)
        st_.at(k0 - 3, L(f"""
s_add_u32 s{sCNT}, s{SW}, {p+1}
s_and_b32 s{sCNT}, s{sCNT}, 3
s_mul_i32 s{sCNT}, s{sCNT}, 15360
v_add_u32 v{vRW}, s{sCNT}, v{vW16}
"""))
        for jn in range(5):
            st_.at(k0 + 1 + jn, lambda jn=jn, p=p, ac=ac: A.l(f"ds_write_b128 v{vRW}, {V(ac+4*jn,4)} offset:{LDS_RED+5120*p+1024*jn}", "rw"))
    st_.at(32, mix2)
    st_.at(57, L(f"""
v_bfe_u32 v{vOUT}, v0, 4, 2
v_mul_u32_u24 v{vOUT}, 5120, v{vOUT}
v_and_b32 v{vAR}, 15, v0
v_lshl_add_u32 v{vOUT2}, v{vAR}, 1, v{vOUT}
v_lshl_add_u32 v{vOUT}, v{vAR}, 3, v{vOUT}
s_lshl_b32 s{sAT}, s{sWOFF}, 2
s_add_u32 s{sAT}, s{sAT}, s{sOWN}
s_mul_i32 s{sAT}, s{sAT}, 20480
s_mul_i32 s{sAF}, s{sCT}, 160
s_add_u32 s{sAT}, s{sAT}, s{sAF}
"""))
    KB_ = OPT.get("redbar", 84)
    st_.exact(KB_, lambda: (A.lwait_all(), A("s_barrier")))
    red = []
    for jn in range(5):
        for q in (jn, 5 + jn, 10 + jn):
            red.append(lambda q=q, jn=jn: A.l(f"ds_read_b128 {V(OFR[q],4)}, v{vRR} offset:{1024*q}", f"rr{jn}"))
    st_.at(KB_ + 1, red)
    st_.run(mm, reserve=lambda k: 0)
    stamp("B", "fin")
    PK4 = OPT.get("pk4", 1)

    def add2(d, a_, b_):
        if PK4:
            A(f"v_pk_add_f32 {V(d,2)}, {V(a_,2)}, {V(b_,2)}")
        else:
            for n in range(2):
                A(f"v_add_f32 v{d+n}, v{a_+n}, v{b_+n}")
    for jn in range(5):
        A.lwait(f"rr{jn}")
        for h in range(2):
            r0, r1, r2 = OFR[jn] + 2 * h, OFR[5 + jn] + 2 * h, OFR[10 + jn] + 2 * h
            add2(r0, r0, r1)
            add2(r0, r0, r2)
    OSF = OPT.get("osf", "").replace("_", " ")
    for h in range(2):
        for jn in range(5):
            r0, g_ = OFR[jn] + 2 * h, GA + 4 * jn + 2 * h
            add2(r0, r0, AC1 + 4 * jn + 2 * h)
            if PK4:
                A(f"v_pk_fma_f32 {V(g_,2)}, {V(OMG+2*h,2)}, {V(r0,2)}, {V(g_,2)}")
            else:
                for n in range(2):
                    A(f"v_fma_f32 v{g_+n}, v{OMG+2*h+n}, v{r0+n}, v{g_+n}")
        for e in (2 * h, 2 * h + 1):
            A(f"v_cvt_pk_bf16_f32 v{AC0+4*e}, v{GA+e}, v{GA+4+e}")
            A(f"v_cvt_pk_bf16_f32 v{AC0+4*e+1}, v{GA+8+e}, v{GA+12+e}")
            A.v(f"buffer_store_dwordx2 {V(AC0+4*e,2)}, v{vOUT}, {S(R_M2,4)}, s{sAT} offen offset:{1280*e} {OSF}")
        A(f"v_cvt_pk_bf16_f32 v{AC0+8*h+2}, v{GA+16+2*h}, v{GA+17+2*h}")
        A.v(f"buffer_store_short v{AC0+8*h+2}, v{vOUT2}, {S(R_M2,4)}, s{sAT} offen offset:{2560*h+128} {OSF}")
        A.v(f"buffer_store_short_d16_hi v{AC0+8*h+2}, v{vOUT2}, {S(R_M2,4)}, s{sAT} offen offset:{2560*h+1280+128} {OSF}")
    A(f"""
s_cmp_lg_u32 s{sJ}, {4*ID_B}
s_cbranch_scc1 L_noep2
s_atomic_swap_x2 {S(TAG,2)}, {S(P_WS,2)}, {WS_EPOCH}
L_noep2:
""")
    finish("B")


def role_A():
    sAJ, sTB, sCB, sCH, sLB = 60, 61, 62, 63, 68
    ONE, CQ0, CQ1, CQ2, sUP, sUC, sAC, sGOT, sWC = 18, 20, 28, 40, 69, 48, 49, 50, 51
    sW0, sW1, sW2 = 73, 74, 75
    A.c("---- A prologue")
    A(f"""
s_sub_u32 s{sAJ}, s2, {ID_A}
s_lshl_b32 s{sCH}, s{sAJ}, 2
s_add_u32 s{sCH}, s{sCH}, s{SW}
s_mul_i32 s{sLB}, s{SW}, 20480
v_and_b32 v1, 63, v0
v_lshlrev_b32 v5, 2, v1
s_lshl_b32 s{sT0}, s{sCH}, 8
v_add_u32 v3, s{sT0}, v5
s_and_b32 s{sT3}, s{sCH}, 0xfffffffe
s_lshl_b32 s{sT3}, s{sT3}, 1
s_waitcnt lgkmcnt(0)
""")
    A(f"s_load_dword s70, {S(P_LOGDT,2)}, s{sT3}")
    A(f"s_load_dword s71, {S(P_DSK,2)}, s{sT3}")
    load_epoch()
    for i, p in enumerate((P_LOGA, P_AIM, P_CRE, P_CIM)):
        A.v(f"global_load_dword v{8+i}, v3, {S(p,2)}", "par")
    A(f"""
s_mul_i32 s{sAC}, s{sCH}, 3277
s_lshr_b32 s{sAC}, s{sAC}, 16
s_lshl_b32 s{sAC}, s{sAC}, 8
s_add_u32 s{sAC}, s{sAC}, {C_AF}
s_lshr_b32 s{sUC}, s{sAJ}, 4
s_lshl_b32 s{sUC}, s{sUC}, 8
s_add_u32 s{sUC}, s{sUC}, {C_UT}
s_mov_b64 {S(ONE,2)}, 1
""")
    srd(R_M2, P_WO, 819200)
    A(f"""
s_lshr_b32 s{sT0}, s{sAJ}, 3
s_mul_i32 s{sT1}, s{sT0}, 52
s_lshr_b32 s{sT1}, s{sT1}, 8
s_and_b32 s{sWC}, s{sAJ}, 4
s_mul_i32 s{sW2}, s{sWC}, 102400
s_mul_i32 s{sT3}, s{sWC}, 160
s_add_u32 s{sWC}, s{sWC}, s{sT1}
s_lshl_b32 s{sWC}, s{sWC}, 8
s_add_u32 s{sWC}, s{sWC}, {C_WO}
s_mul_i32 s{sT2}, s{sT0}, 5120
s_add_u32 s{sW2}, s{sW2}, s{sT2}
s_and_b32 s{sT2}, s{sAJ}, 3
s_lshl_b32 s{sW0}, s{sT2}, 8
s_add_u32 s{sW2}, s{sW2}, s{sW0}
s_add_u32 s{sW2}, s{sW2}, {WS_WO}
s_mul_i32 s{sW0}, s{sT1}, 5
s_sub_u32 s{sT0}, s{sT0}, s{sW0}
s_and_b32 s{sW0}, s{sT2}, 1
s_mul_i32 s{sW0}, s{sW0}, 20
s_lshr_b32 s{sW1}, s{sT2}, 1
s_lshl_b32 s{sW1}, s{sW1}, 3
s_add_u32 s{sW0}, s{sW0}, s{sW1}
s_mul_i32 s{sW1}, s{sT0}, 40
s_add_u32 s{sW0}, s{sW0}, s{sW1}
s_mul_i32 s{sT2}, s{sT2}, 40
s_add_u32 s{sT2}, s{sT2}, 16
s_cmp_eq_u32 s{sT0}, 4
s_cselect_b32 s{sW0}, s{sT2}, s{sW0}
s_cselect_b32 s{sW1}, 20, 4
s_mul_i32 s{sT1}, s{sT1}, 160
s_add_u32 s{sW0}, s{sW0}, s{sT1}
s_add_u32 s{sW1}, s{sW1}, s{sW0}
s_mul_i32 s{sW0}, s{sW0}, 1280
s_mul_i32 s{sW1}, s{sW1}, 1280
s_add_u32 s{sW0}, s{sW0}, s{sT3}
s_add_u32 s{sW1}, s{sW1}, s{sT3}
v_lshrrev_b32 v14, 4, v1
v_and_b32 v15, 15, v1
v_mul_u32_u24 v4, 160, v14
v_lshl_add_u32 v245, v15, 1, v4
v_lshl_add_u32 v244, v15, 3, v4
v_mul_u32_u24 v14, 102400, v14
v_lshl_add_u32 v246, v15, 4, v14
""")
    srd(R_WS, P_WS, WS_SIZE)
    A(f"""
s_lshl_b32 s{sT0}, s{sAJ}, 14
s_add_u32 s{sT0}, s{sT0}, {WS_UT}
s_add_u32 s{R_M1}, s{P_WS}, s{sT0}
s_addc_u32 s{R_M1+1}, s{P_WS+1}, 0
s_mov_b32 s{R_M1+2}, 16384
s_mov_b32 s{R_M1+3}, 0x20000
""")
    A("s_waitcnt lgkmcnt(0)")
    make_tag()
    A("s_barrier")
    WL, WU, WD = (176, 192, 200) if OPT.get('wot', 2) != 1 else (192, 208, 216)
    vW4, vW5, vW14 = 244, 245, 246

    def wo_load():
        for e in range(8):
            A(f"buffer_load_dwordx2 {V(WL+2*e,2)}, v{vW4}, {S(R_M2,4)}, s{sW0 if e<4 else sW1} offen offset:{1280*(e&3)}")
        for e in range(8):
            A(f"buffer_load_ushort v{WU+e}, v{vW5}, {S(R_M2,4)}, s{sW0 if e<4 else sW1} offen offset:{1280*(e&3)+128}")

    def wo_store():
        A(f"""
s_setprio {OPT.get('prioR', 3)}
s_mov_b32 s{sW0}, 0x05040100
s_mov_b32 s{sW1}, 0x07060302
s_waitcnt vmcnt(0)
""")
        for jn in range(4):
            for p in range(4):
                A(f"v_perm_b32 v{WD+4*jn+p}, v{WL+2*(2*p+1)+(jn>>1)}, v{WL+2*(2*p)+(jn>>1)}, s{sW0+(jn&1)}")
            A(f"buffer_store_dwordx4 {V(WD+4*jn,4)}, v{vW14}, {S(R_WS,4)}, s{sW2} offen offset:{1024*jn} sc1")
        for p in range(4):
            A(f"v_lshl_or_b32 v{WD+16+p}, v{WU+2*p+1}, 16, v{WU+2*p}")
        A(f"s_add_u32 s{sW2}, s{sW2}, 4096")
        A(f"buffer_store_dwordx4 {V(WD+16,4)}, v{vW14}, {S(R_WS,4)}, s{sW2} offen sc1")
        A(f"s_setprio {OPT.get('prioK' if OPT.get('wot', 2) != 1 else 'prioA', 0)}")
    A.vwait("par")
    stamp("A", "par")
    WOT = OPT.get("wot", 2)
    if WOT == 0:
        only_wave(3, wo_load)
    A(f"s_setprio {OPT.get('prioK', 0)}")
    if OPT.get("fakea"):
        cnt_read(CQ1 + 2, sAC)
        only_wave(3, lambda: cnt_read(CQ2 + 2, sWC))
        A("s_waitcnt lgkmcnt(0)")
        cnt_claim(CQ1, sAC)
        only_wave(3, lambda: cnt_claim(CQ2, sWC))
        only_wave(3, wo_store)
        A("s_waitcnt vmcnt(0) lgkmcnt(0)")
        only_wave(3, lambda: cnt_add(ONE, sWC))
        for _ in range(OPT["fakea"]):
            A("s_sleep 100")
        A("s_branch L_cend")
    A.c("---- per-mode constants (two modes per lane)")
    A(f"""
s_bitcmp1_b32 s{sCH}, 0
s_cselect_b32 s{sT0}, 0, 16
s_lshl_b32 s70, s70, s{sT0}
s_and_b32 s70, s70, 0xffff0000
s_lshl_b32 s71, s71, s{sT0}
s_and_b32 s71, s71, 0xffff0000
v_mov_b32 v32, {LOG2E:#x}
v_mul_f32 v33, s70, v32
v_exp_f32 v33, v33
""")
    A.vwait("par")
    LA, AI, XR, XI = 34, 36, 38, 40
    for (src, dst) in ((8, LA), (9, AI), (10, XR), (11, XI)):
        A(f"v_lshlrev_b32 v{dst}, 16, v{src}")
        A(f"v_and_b32 v{dst+1}, 0xffff0000, v{src}")
    A(f"""
v_cvt_pk_bf16_f32 v33, v33, v33
v_and_b32 v33, 0xffff0000, v33
v_mul_f32 v{LA}, v32, v{LA}
v_mul_f32 v{LA+1}, v32, v{LA+1}
v_exp_f32 v{LA}, v{LA}
v_exp_f32 v{LA+1}, v{LA+1}
v_mul_f32 v{AI}, v33, v{AI}
v_mul_f32 v{AI+1}, v33, v{AI+1}
v_cvt_pk_bf16_f32 v{LA+1}, v{LA}, v{LA+1}
v_lshlrev_b32 v{LA}, 16, v{LA+1}
v_and_b32 v{LA+1}, 0xffff0000, v{LA+1}
v_mul_f32 v{LA}, v33, v{LA}
v_mul_f32 v{LA+1}, v33, v{LA+1}
v_mul_f32 v{LA}, v32, v{LA}
v_mul_f32 v{LA+1}, v32, v{LA+1}
v_mul_f32 v{AI}, {INV2PI:#x}, v{AI}
v_mul_f32 v{AI+1}, {INV2PI:#x}, v{AI+1}
v_add_f32 v33, v33, v33
v_mul_f32 v{XR}, v33, v{XR}
v_mul_f32 v{XR+1}, v33, v{XR+1}
v_mul_f32 v{XI}, v33, -v{XI}
v_mul_f32 v{XI+1}, v33, -v{XI+1}
""")
    W = {1: 44, 8: 48, 256: 52}
    for p, w in W.items():
        lit = {1: "1.0", 8: "0x41000000", 256: "0x43800000"}[p]
        for n in range(2):
            A(f"v_mul_f32 v{56+n}, {lit}, v{LA+n}")
            A(f"v_mul_f32 v{58+n}, {lit}, v{AI+n}")
        for n in range(2):
            A(f"v_exp_f32 v{56+n}, -v{56+n}")
            A(f"v_fract_f32 v{58+n}, v{58+n}")
        for n in range(2):
            A(f"v_cos_f32 v{w+n}, v{58+n}")
            A(f"v_sin_f32 v{w+2+n}, v{58+n}")
        A(f"v_pk_mul_f32 {V(w,2)}, {V(w,2)}, {V(56,2)}")
        A(f"v_pk_mul_f32 {V(w+2,2)}, {V(w+2,2)}, {V(56,2)}")
    vSW, vSR = 6, 7
    A(f"""
v_lshlrev_b32 v{vSW}, 3, v1
v_add_u32 v{vSW}, s{sLB}, v{vSW}
v_and_b32 v{vSR}, 31, v1
v_mul_u32_u24 v{vSR}, 528, v{vSR}
v_lshrrev_b32 v12, 5, v1
v_lshlrev_b32 v12, 4, v12
v_add3_u32 v{vSR}, v{vSR}, v12, s{sLB}
""")
    pk = [0]

    def put(reg, rows):
        t = 80 + 2 * (pk[0] % 4)
        pk[0] += 1
        A(f"v_cvt_pk_bf16_f32 v{t}, v{reg}, v{reg+1}")
        A(f"v_cvt_pk_bf16_f32 v{t+1}, v{reg+2}, v{reg+3}")
        for r in rows:
            A.l(f"ds_write_b64 v{vSW}, {V(t,2)} offset:{528*r}", "st")

    def cmul(d, s, w, conj):
        n1, n2 = ("", " neg_lo:[1,0,0] neg_hi:[1,0,0]") if conj else (" neg_lo:[0,0,1] neg_hi:[0,0,1]", "")
        A(f"v_pk_mul_f32 {V(56,2)}, {V(s+2,2)}, {V(w+2,2)}")
        A(f"v_pk_mul_f32 {V(58,2)}, {V(s+2,2)}, {V(w,2)}")
        A(f"v_pk_fma_f32 {V(d+2,2)}, {V(s,2)}, {V(w+2,2)}, {V(58,2)}{n2}")
        A(f"v_pk_fma_f32 {V(d,2)}, {V(s,2)}, {V(w,2)}, {V(56,2)}{n1}")

    A.c("---- X rows")
    g0 = [0, 1, 2, 3, 4, 5, 6, 7, 512, 516, 520, 1024, 1032, 1536, 1544]
    g1 = [256, 256, 258, 260, 260, 260, 262, 264, 768, 772, 776, 1280, 1288, 1792, 1800]
    rows = {}
    for g, lst in enumerate((g0, g1)):
        for i, p in enumerate(lst):
            rows.setdefault(p, []).append(8 * (i >> 2) + 4 * g + (i & 3))
    keep = {0: XR, 2: 60, 4: 64, 6: 68, 8: 72}
    put(XR, rows[0])
    cur = XR
    for p in range(1, 9):
        d = keep.get(p, 76)
        cmul(d, cur, W[1], True)
        if p in rows:
            put(d, rows[p])
        cur = d
    cnt_read(CQ1 + 2, sAC)
    only_wave(3, lambda: cnt_read(CQ2 + 2, sWC))
    for step in range(1, 8):
        for off in (0, 8, 4, 2, 6):
            p = 256 * step + off
            if p in rows:
                cmul(keep[off], keep[off], W[256], True)
                put(keep[off], rows[p])
    XF = 96
    if WOT == 0:
        only_wave(3, wo_store)
    if WOT == 2:
        A(f"s_setprio {OPT.get('prioR', 3)}")
        only_wave(3, wo_load)
        A(f"s_setprio {OPT.get('prioK', 0)}")
    A.lwait_all()
    for ks in range(16):
        A.l(f"ds_read_b128 {V(XF+4*ks,4)}, v{vSR} offset:{32*ks}", "xf")
    A.c("---- Y rows")
    YA, YB = 60, 64
    cmul(YA, W[8], W[8], False)
    A(f"""
v_mov_b32 v24, 0x3f803f80
v_mov_b32 v25, 0
""")
    A.lwait_all()
    stamp("A", "xrows")
    cnt_claim(CQ1, sAC)
    only_wave(3, lambda: cnt_claim(CQ2, sWC))
    A.l(f"ds_write_b64 v{vSW}, {V(24,2)}", "st")
    put(W[8], [1])
    put(YA, [2])
    UL, UN = 224, 240
    USC = ' sc1' if OPT.get('usc', 1) else ''

    def load_u():
        A(f"s_setprio {OPT.get('prioR', 3)}")
        for i in range(4):
            A(f"s_movk_i32 s{sT0}, {4096*i}")
            A(f"buffer_load_dwordx4 {V(UL+4*i,4)}, v2, {S(R_M1,4)}, s{sT0} offen{USC}")
            A(f"buffer_load_dword v{UN+i}, v2, {S(R_M1,4)}, s{sT0} offen offset:64{USC}")
        A(f"s_setprio {OPT.get('prioK', 0)}")
    A("v_lshlrev_b32 v2, 4, v0")
    for c in range(3, 32):
        cmul(YA, YA, W[8], False)
        put(YA, [c])
        if c == OPT.get("uq", 18):
            only_wave(0, lambda: cnt_read(CQ0, sUC))
    if WOT == 2:
        only_wave(3, wo_store)
    A.lwait_all()
    if WOT != 1:
        only_wave(3, lambda: (A("s_waitcnt vmcnt(0)"), cnt_add(ONE, sWC)))
    stamp("A", "yrows")
    YF, KD = 160, 68
    for ks in range(16):
        A.l(f"ds_read_b128 {V(YF+4*ks,4)}, v{vSR} offset:{32*ks}", f"y{ks}")
        if ks >= 6:
            k2 = ks - 6
            A.lwait(f"y{k2}")
            A(f"v_mfma_f32_32x32x16_bf16 {V(KD,16)}, {V(XF+4*k2,4)}, {V(YF+4*k2,4)}, {'0' if k2==0 else V(KD,16)}")
    for k2 in range(10, 16):
        A.lwait(f"y{k2}")
        A(f"v_mfma_f32_32x32x16_bf16 {V(KD,16)}, {V(XF+4*k2,4)}, {V(YF+4*k2,4)}, {V(KD,16)}")
    vKW, vUW, vKB, vUA = 3, 4, 8, 9
    A(f"""
v_lshlrev_b32 v{vKW}, 4, v1
v_add_u32 v{vKW}, s{sLB}, v{vKW}
v_and_b32 v13, 3, v0
v_mul_u32_u24 v13, 20512, v13
v_lshrrev_b32 v{vUW}, 2, v0
v_lshl_add_u32 v{vUW}, v{vUW}, 4, v13
v_and_b32 v13, 15, v1
v_and_b32 v14, 0x30, v1
v_lshl_add_u32 v{vKB}, v13, 5, v14
v_add_u32 v{vKB}, s{sLB}, v{vKB}
v_add_u32 v{vKB}, 32, v{vKB}
v_lshrrev_b32 v15, 1, v13
v_lshlrev_b32 v15, 2, v15
v_sub_u32 v14, v14, v15
v_and_b32 v13, 1, v13
v_mul_u32_u24 v13, 4160, v13
v_sub_u32 v14, v14, v13
s_mul_i32 s{sT0}, s{SW}, 20512
s_add_u32 s{sT0}, s{sT0}, {4608+4160+4060-512-448}
v_add_u32 v{vUA}, s{sT0}, v14
v_subrev_u32 v{vUA+1}, 1024, v{vUA}
v_subrev_u32 v{vUA+2}, 2048, v{vUA}
v_subrev_u32 v{vUA+3}, 3072, v{vUA}
v_mov_b32 v16, 0
v_mov_b32 v17, 0
v_lshrrev_b32 v13, 5, v1
v_mul_u32_u24 v13, 4160, v13
v_and_b32 v14, 3, v1
v_lshl_add_u32 v13, v14, 3, v13
s_sub_u32 s{sT0}, s{sT0}, {4160+4060-512-448-4096}
v_add_u32 v13, s{sT0}, v13
""")
    A.l(f"ds_write_b64 v{vSW}, {V(16,2)}", "cv")
    A.l(f"ds_write_b64 v13, {V(16,2)}", "cv")
    A(f"""
s_mov_b64 exec, 1
v_add_f32 v{KD}, s71, v{KD}
s_mov_b64 exec, -1
s_mov_b32 vcc_lo, 0x55555555
s_mov_b32 vcc_hi, 0x55555555
""")
    KP = 84
    for i in range(4):
        A(f"v_cvt_pk_bf16_f32 v{KP+i}, v{KD+2*i}, v{KD+2*i+1}")
    A.l(f"ds_write_b128 v{vKW}, {V(KP,4)} offset:512", "cv")
    a_, b_, c_ = KD + 8, KD + 9, KD + 10
    for i, (x_, y_) in enumerate(((a_, a_), (a_, b_), (b_, b_), (c_, c_))):
        A(f"v_cvt_pk_bf16_f32 v{KP+4+i}, v{x_}, v{y_}")
    A.l(f"ds_write_b128 v{vKW}, {V(KP+4,4)} offset:{512+1024}", "cv")
    for blk, d in ((0, KP + 8), (1, 20)):
        a_, b_ = KD + 11 + 2 * blk, KD + 12 + 2 * blk
        A(f"v_cndmask_b32 v18, v{b_}, v{a_}, vcc")
        A(f"v_cvt_pk_bf16_f32 v{d}, v{a_}, v{a_}")
        A(f"v_cvt_pk_bf16_f32 v{d+1}, v{a_}, v{a_}")
        A(f"v_cvt_pk_bf16_f32 v{d+2}, v18, v{b_}")
        A(f"v_cvt_pk_bf16_f32 v{d+3}, v{b_}, v{b_}")
        A.l(f"ds_write_b128 v{vKW}, {V(d,4)} offset:{512+2048+1024*blk}", "cv")
    stamp("A", "kdone")
    only_wave(0, lambda: cnt_wait(CQ0, sUC, 16, sCNT, nap=OPT.get("napu", 1)))
    A("s_barrier")
    load_u()
    A.vm.append("u")
    stamp("A", "utseen")
    A.vwait("u")
    for i in range(4):
        A.l(f"ds_write_b128 v{vUW}, {V(UL+4*i,4)} offset:{4608+1024*i}", "cv")
        t = 52 + 4 * i
        for p in range(4):
            hi = UL + 4 * i + p + 1 if p < 3 else UN + i
            A(f"v_alignbit_b32 v{t+p}, v{hi}, v{UL+4*i+p}, 16")
        A.l(f"ds_write_b128 v{vUW}, {V(t,4)} offset:{4608+4160+1024*i}", "cv")
    CA = 16
    A.lwait_all()
    A("s_barrier")
    if WOT == 1:
        A(f"s_setprio {OPT.get('prioR', 3)}")
        only_wave(3, wo_load)
    A(f"s_setprio {OPT.get('prioA', 0)}")
    stamp("A", "cstart")
    if OPT.get("noconv"):
        finish("A")
        return
    A.c("---- convolution: 8 residues x 36 tile products")
    UA = [64, 128]
    KB = [96, 160]

    def creads(r):
        s, out = r & 1, []
        for m in range(8):
            out.append(lambda m=m: A.l(f"ds_read_b128 {V(KB[s]+4*m,4)}, v{vKB} offset:{512*m+64*(7-r)}", f"c{r}_{m}"))
            o = (128 if m % 2 == 0 else 0) + 16 * (7 - r)
            for hh in range(2):
                out.append(lambda m=m, o=o, hh=hh: A.l(f"ds_read2_b32 {V(UA[s]+4*m+2*hh,2)}, v{vUA+m//2} offset0:{o+2*hh} offset1:{o+2*hh+1}", f"c{r}_{m}"))
        return out

    pairs = sorted([(mu, n) for mu in range(8) for n in range(8 - mu)], key=lambda p: (max(p), p[0] + p[1]))
    nxt = creads(0)
    for _ in range(12):
        nxt.pop(0)()
    started = set()
    for r in range(8):
        if r < 7:
            nxt += creads(r + 1)
        for k, (mu, n) in enumerate(pairs):
            A.lwait(f"c{r}_{max(mu, n)}")
            d = V(CA + 4 * (mu + n), 4)
            A(f"v_mfma_f32_16x16x32_bf16 {d}, {V(UA[r&1]+4*mu,4)}, {V(KB[r&1]+4*n,4)}, {d if mu+n in started else '0'}")
            started.add(mu + n)
            if nxt and (r == 0 or k % 3 != 2):
                nxt.pop(0)()
        assert len(nxt) == 0
        if WOT == 1 and r == OPT.get("wor", 0):
            only_wave(3, wo_store)
        if WOT == 1 and r == OPT.get("wor", 0) + 1:
            only_wave(3, lambda: (A("s_waitcnt vmcnt(0)"), cnt_add(ONE, sWC)))
    A("L_cend:")
    A(f"s_setprio {OPT.get('prioR', 3)}")
    stamp("A", "cend")
    A(f"""
v_and_b32 v2, 15, v1
v_lshlrev_b32 v2, 5, v2
v_bfe_u32 v3, v1, 4, 1
v_lshl_add_u32 v2, v3, 9, v2
v_lshrrev_b32 v3, 5, v1
v_lshl_add_u32 v2, v3, 4, v2
s_lshl_b32 s{sT0}, s{sCH}, 12
s_add_u32 s{sT0}, s{sT0}, {WS_AT}
""")
    for q in range(640):
        assert (q * 3277) >> 16 == q // 20
    A.lwait_all()
    for n in range(0, 8, 2):
        d = 48 + 2 * n
        for i in range(4):
            A(f"v_cvt_pk_bf16_f32 v{d+i}, v{CA+4*n+2*i}, v{CA+4*n+2*i+1}")
    for n in range(0, 8, 2):
        d = 48 + 2 * n
        A(f"v_permlane16_swap_b32 v{d}, v{d+2}")
        A(f"v_permlane16_swap_b32 v{d+1}, v{d+3}")
        A.v(f"buffer_store_dwordx4 {V(d,4)}, v2, {S(R_WS,4)}, s{sT0} offen offset:{512*n} sc1", "ast")
    A.vwait("ast")
    cnt_add(ONE, sAC)
    finish("A")


if "B" in OPT["roles"]:
    role_B()
else:
    A("L_B:\ns_endpgm")
A("L_A:")
if "A" in OPT["roles"]:
    role_A()
else:
    A("s_endpgm")
A("L_codeend:")
lines, nn = pad_hazards(A.lines, verbose=False)
if OPT.get("align", 1):
    lines, cnt_, cost_ = align8(lines)
    print("align:", cnt_, cost_, file=sys.stderr)
hdr = open("gated_mix__ssm_conv_s4d__linear_kernel_hedgehog__prompt.s.ref").read().split("; Override launch")[0]
print(hdr + f"; @launch grid=({ID_END},1,1) block=(256,1,1) lds=81920")
print("\n".join(lines))
print(f""".section .rodata,"a"
.p2align 6
.amdhsa_kernel {KN}
  .amdhsa_next_free_vgpr 256
  .amdhsa_next_free_sgpr 102
  .amdhsa_accum_offset 256
  .amdhsa_group_segment_fixed_size 0
  .amdhsa_kernarg_size 120
  .amdhsa_user_sgpr_count 2
  .amdhsa_user_sgpr_kernarg_segment_ptr 1
  .amdhsa_system_sgpr_workgroup_id_x 1
.end_amdhsa_kernel""")
json.dump(stampnames, open("stamps.json", "w"))
print(f"pad states inserted: {nn}", file=sys.stderr)
```

```python
import sys, json
from asmlib import *

KN = "gated_mix__ssm_conv_s4d__linear_kernel_hedgehog__prompt_kernel"
OPT = dict(stamps=0, dump=0, roles="RAB")
for a_ in sys.argv[1:]:
    k_, v_ = a_.split("=")
    OPT[k_] = int(v_) if v_.lstrip("-").isdigit() else v_

C_KW, C_WO, C_UT, C_AF, C_KV, C_O = [256 * n for n in (0, 48, 56, 80, 112, 176)]
WS_EPOCH = 0x20000
WS_WKV = 0xD00000
WS_WQ = 0xF00000
WS_WO = 0x100000
WS_KVP = 0x200000
WS_UT = 0x300000
WS_AT = 0x600000
WS_O = 0x900000
WS_STAMP = 0xC00000
WS_DUMP = 0x1000000
WS_SIZE = 0x4000000 if OPT["dump"] else 0x1000000

ID_A, ID_B, ID_END = 8, 168, 424
SPIN = 1 << 17
LOG2E = 0x3FB8AA3B
INV2PI = 0x3E22F983

P_U, P_LOGA, P_AIM, P_CRE, P_CIM, P_LOGDT, P_DSK = 4, 6, 8, 10, 12, 14, 16
P_WQKV, P_WPHI, P_WO, P_GATE, P_OUT, P_DBG, P_WS = 20, 22, 24, 26, 28, 30, 32
R_X, R_W, R_WS, R_DBG, R_M1, R_M2 = 36, 40, 44, 48, 52, 56
SW = 3
TAG = 34
ST0 = 76

A = Asm()
stampnames = {}
_lab = [0]


def srd(r, p, size):
    A(f"s_mov_b32 s{r}, s{p}")
    A(f"s_mov_b32 s{r+1}, s{p+1}")
    A(f"s_mov_b32 s{r+2}, {size}")
    A(f"s_mov_b32 s{r+3}, 0x20000")


def load_epoch():
    A(f"s_load_dwordx2 {S(TAG,2)}, {S(P_WS,2)}, {WS_EPOCH}")


def make_tag():
    A(f"s_add_u32 s{TAG}, s{TAG}, 0x7f4a7c15")
    A(f"s_addc_u32 s{TAG+1}, s{TAG+1}, 0x9e3779b9")


def cnt_read(r, soff):
    A(f"s_mov_b64 {S(r,2)}, 0")
    A(f"s_atomic_add_x2 {S(r,2)}, {S(P_WS,2)}, {soff if isinstance(soff, str) else 's%d' % soff} glc")


def cnt_peek(r, soff):
    A(f"s_load_dwordx2 {S(r,2)}, {S(P_WS,2)}, s{soff} glc")


def cnt_claim(q, soff):
    A(f"""
s_sub_u32 s{q}, s{q+2}, s{TAG}
s_subb_u32 s{q+1}, s{q+3}, s{TAG+1}
s_lshr_b32 s{q}, s{q}, 16
s_or_b32 s{q}, s{q}, s{q+1}
s_cselect_b64 {S(q,2)}, {S(TAG,2)}, {S(q+2,2)}
s_atomic_cmpswap_x2 {S(q,4)}, {S(P_WS,2)}, s{soff} glc
""")


def cnt_add(one, soff):
    A(f"s_atomic_add_x2 {S(one,2)}, {S(P_WS,2)}, s{soff}")


def cnt_init(soff):
    A(f"s_atomic_swap_x2 {S(TAG,2)}, {S(P_WS,2)}, s{soff}")


def cnt_test(r, n, low=False):
    A(f"s_sub_u32 s{r}, s{r}, s{TAG}")
    A(f"s_subb_u32 s{r+1}, s{r+1}, s{TAG+1}")
    if low:
        A(f"s_and_b32 s{r}, s{r}, 0xffff00ff")
    A(f"s_xor_b32 s{r}, s{r}, {n}")
    A(f"s_or_b32 s{r}, s{r}, s{r+1}")


def cnt_wait(r, soff, n, scnt, probed=True, low=False, nap=0):
    _lab[0] += 1
    k = _lab[0]
    if probed:
        cnt_test(r, n, low)
        A(f"s_cbranch_scc0 L_got{k}")
    A(f"s_mov_b32 s{scnt}, 0")
    A(f"L_spin{k}:")
    cnt_read(r, soff)
    A(f"""
s_add_u32 s{scnt}, s{scnt}, 1
s_cmp_ge_u32 s{scnt}, {SPIN}
s_waitcnt lgkmcnt(0)
s_cbranch_scc1 L_got{k}
""")
    cnt_test(r, n, low)
    if nap:
        A(f"s_cbranch_scc0 L_got{k}")
        A(f"s_sleep {nap}")
    A(f"s_cbranch_scc1 L_spin{k}")
    A(f"L_got{k}:")


def cnt_async(r, t, soff, n, scnt, **kw):
    _lab[0] += 1
    k = _lab[0]
    A(f"s_mov_b64 {S(t,2)}, {S(r,2)}")
    cnt_test(t, n)
    A(f"s_cbranch_scc0 L_as{k}")
    A("s_waitcnt lgkmcnt(0)")
    cnt_wait(r, soff, n, scnt, **kw)
    A(f"L_as{k}:")


def cnt_probe(q, soff, first=False):
    if first:
        A(f"s_mov_b64 {S(q,2)}, 0")
    A(f"s_atomic_umax_x2 {S(q,2)}, {S(P_WS,2)}, s{soff} glc")


def cnt_poll2(r, t, soff, n, scnt, low=False):
    _lab[0] += 1
    k = _lab[0]

    def test(o):
        A(f"s_mov_b64 {S(t,2)}, {S(o,2)}")
        cnt_test(t, n, low)
        A(f"s_cbranch_scc0 L_p2e{k}")
    test(r)
    test(r + 2)
    A(f"s_mov_b32 s{scnt}, 0")
    A(f"L_p2{k}:")
    for q in (r, r + 2):
        A("s_waitcnt lgkmcnt(2)")
        test(q)
        cnt_probe(q, soff)
    A(f"""
s_add_u32 s{scnt}, s{scnt}, 1
s_cmp_lt_u32 s{scnt}, {SPIN}
s_cbranch_scc1 L_p2{k}
L_p2e{k}:
""")


def lwait_lds(vt, va, n=6):
    for _ in range(n):
        A(f"ds_read_b32 v{vt}, v{va}")
    A(f"s_waitcnt lgkmcnt({n})")
    A.lg = ["_"] * n


def only_wave(w, f):
    _lab[0] += 1
    k = _lab[0]
    A(f"s_cmp_lg_u32 s{SW}, {w}")
    A(f"s_cbranch_scc1 L_ow{k}")
    f()
    A(f"L_ow{k}:")


def stamp(role, name):
    if not OPT["stamps"]:
        return
    if OPT.get("only") and name not in ("end",) and name not in OPT["only"].split("+"):
        return
    l = stampnames.setdefault(role, [])
    assert len(l) < 12
    A(f"{'s_memtime' if OPT.get('cyc') else 's_memrealtime'} {S(ST0 + 2*len(l), 2)}")
    l.append(name)


def finish(role):
    if OPT["stamps"]:
        stamp(role, "end")
        A("s_waitcnt lgkmcnt(0)")
        A("s_mov_b64 exec, -1")
        A("v_mov_b32 v1, 0")
        for i in range(len(stampnames[role])):
            A(f"v_writelane_b32 v1, s{ST0+2*i}, {i}")
        A("v_and_b32 v2, 63, v0")
        A("v_lshlrev_b32 v2, 2, v2")
        A("s_lshl_b32 s60, s2, 2")
        A(f"s_add_u32 s60, s60, s{SW}")
        A("s_lshl_b32 s60, s60, 6")
        A(f"s_add_u32 s60, s60, {WS_STAMP}")
        A("s_mov_b64 exec, 0xffff")
        A(f"buffer_store_dword v1, v2, {S(R_WS,4)}, s60 offen")
        if OPT.get("dbg") and role == "B":
            A(f"""
s_cmp_lg_u32 s{SW}, 0
s_cbranch_scc1 L_nodbg
s_load_dwordx2 s[60:61], s[0:1], 104
s_not_b32 s62, s{ST0}
v_writelane_b32 v1, s62, 15
s_waitcnt lgkmcnt(0)
global_atomic_umax v2, v1, s[60:61]
L_nodbg:
""")
    A("s_endpgm")
    A.vm, A.lg = [], []


def set_exec(mask):
    if mask == -1 or mask < (1 << 31):
        A(f"s_mov_b64 exec, {mask}")
    else:
        A(f"s_mov_b32 exec_lo, {mask & 0xffffffff:#x}")
        A(f"s_mov_b32 exec_hi, {mask >> 32:#x}")


def dump(regs, slot, vtmp):
    if not OPT["dump"]:
        return
    A(f"v_lshlrev_b32 v{vtmp}, 2, v0")
    A(f"s_sub_u32 s74, s2, {ID_B}")
    A(f"s_mul_i32 s74, s74, {32*1024}")
    A(f"s_add_u32 s74, s74, {WS_DUMP + slot*0x800000}")
    assert len(regs) <= 32
    for r in regs:
        A.v(f"buffer_store_dword v{r}, v{vtmp}, {S(R_WS,4)}, s74 offen", "dump")
        A("s_add_u32 s74, s74, 1024")
    A.vwait_all()


A(f"""
.amdgcn_target "amdgcn-amd-amdhsa--gfx950"
.text
.globl {KN}
.p2align 12
.type {KN},@function
{KN}:
s_load_dwordx16 s[4:19], s[0:1], 0
s_load_dwordx8 s[20:27], s[0:1], 64
s_load_dwordx4 s[28:31], s[0:1], 96
s_load_dwordx2 s[32:33], s[0:1], 112
""")
if OPT["stamps"]:
    A(f"{'s_memtime' if OPT.get('cyc') else 's_memrealtime'} {S(ST0,2)}")
    for r_ in ("B", "A"):
        stampnames[r_] = ["start"]
A(f"""
v_lshrrev_b32 v1, 6, v0
s_cmp_ge_u32 s2, {ID_B}
v_readfirstlane_b32 s{SW}, v1
s_cbranch_scc1 L_B
s_setprio {OPT.get('prioR', 3)}
s_cmp_ge_u32 s2, {ID_A}
s_cbranch_scc1 L_A
""")
A.c("---- code prefetch into L2 (one workgroup per die)")
A(f"""
s_getpc_b64 s[60:61]
L_pc:
v_lshlrev_b32 v2, 7, v0
v_min_u32 v2, L_codeend-L_pc-4, v2
""")
if OPT.get("pfc", 1):
    A("global_load_dword v3, v2, s[60:61]")
A("""
L_exit:
s_endpgm
""")

sST, sHP, sB, sCT = 60, 61, 62, 63
sT0, sT1, sT2, sT3 = 64, 65, 66, 67
sEV, sLO = 68, 70
sCNT, sWOFF = 72, 73
sL2E = 48
sJ, sOWN, sXL = 50, 51, 68
XB, ACC, WF, NWF = 96, 56, 16, 7
vXA, vXR = 8, 10
ONE, CQ0, CQ1, CQ2 = 6, 8, 12, 16
vGA, vKT, vOT, vOA, ID, vGW = 1, 3, 5, 6, 44, 48
vPA, vPA1, vPW, vVW, vKA, vL16, vL8 = 49, 50, 51, 52, 53, 54, 55
LDS_X = 40960
LDS_PV, LDS_WP, LDS_Z, LDS_GATE = 0, 77824, 79424, 80384
LDS_QA, LDS_QB = 40960, 16384
LDS_AT, LDS_KVT, LDS_RED = 0, 10240, 13824


def Xr(c, sg, j):
    return XB + 32 * c + 8 * j + 4 * sg


def L(text):
    return [(lambda l=l: A(l)) for l in (x.strip() for x in text.strip().split("\n")) if l]


def run(lst):
    while lst:
        lst.pop(0)()


class Stream:
    def __init__(self, budget=3):
        self.ev, self.now, self.q, self.budget = {}, {}, [], budget

    def at(self, k, fs):
        self.ev.setdefault(k, []).extend(fs if isinstance(fs, list) else [fs])

    def exact(self, k, f):
        self.now.setdefault(k, []).append(f)

    def run(self, mm, reserve=lambda k: k & 1):
        for k, m in enumerate(mm):
            m()
            j = max(i for i in range(len(A.lines)) if "v_mfma" in A.lines[i] and i >= len(A.lines) - 12)
            self.q += self.ev.pop(k, [])
            while self.q and len(A.lines) - 1 - j < self.budget - reserve(k):
                self.q.pop(0)()
            if k in self.now:
                run(self.q)
                run(self.now.pop(k))
        run(self.q)
        assert not self.ev and not self.now


def flat(items):
    o = []
    for pre, ld in items:
        o += L(pre) + [ld]
    return o


def dma_addr(v, i, div, fields, extra, t0, vl):
    t1, t2 = t0 + 1, t0 + 2
    magic = {10: 6554, 5: 13108}[div]
    for q in range(1280):
        assert (q * magic) >> 16 == q // div
    o = []
    if i:
        o.append(f"v_add_u32 v{t0}, {64*i}, v{vl}")
    q_ = t0 if i else vl
    o.append(f"v_mul_u32_u24 v{t1}, {magic}, v{q_}")
    o.append(f"v_lshrrev_b32 v{t1}, 16, v{t1}")
    o.append(f"v_mad_i32_i24 v{t0}, v{t1}, -{div}, v{q_}")
    for n, (sb, w, db) in enumerate(fields):
        if n == 0:
            assert db == 0
            o.append(f"v_bfe_u32 v{v}, v{t1}, {sb}, {w}")
        else:
            o.append(f"v_bfe_u32 v{t2}, v{t1}, {sb}, {w}")
            o.append(f"v_lshl_or_b32 v{v}, v{t2}, {db}, v{v}")
    o.append(f"v_mul_u32_u24 v{v}, 240, v{v}")
    if extra:
        o.append(f"v_add_u32 v{t2}, 3, v{t0}")
        o.append(f"v_lshrrev_b32 v{t2}, 3, v{t2}")
        o.append(f"v_mul_u32_u24 v{t2}, {extra//16}, v{t2}")
        o.append(f"v_add3_u32 v{v}, v{v}, v{t0}, v{t2}")
        o.append(f"v_lshlrev_b32 v{v}, 4, v{v}")
    else:
        o.append(f"v_add_lshl_u32 v{v}, v{v}, v{t0}, 4")
    return "\n".join(o)


def softmax(P, E, OUT, tm, hook, ratio=False):
    mx, mn, acc, keep = tm, tm + 1, tm + 2, tm + 4
    A(f"v_max3_f32 v{mx}, v{P[0]}, v{P[1]}, v{P[2]}")
    A(f"v_min3_f32 v{mn}, v{P[0]}, v{P[1]}, v{P[2]}")
    for i in range(3, 19, 2):
        A(f"v_max3_f32 v{mx}, v{mx}, v{P[i]}, v{P[i+1]}")
        A(f"v_min3_f32 v{mn}, v{mn}, v{P[i]}, v{P[i+1]}")
    A(f"v_max_f32 v{mx}, v{mx}, v{P[19]}")
    A(f"v_min_f32 v{mn}, v{mn}, v{P[19]}")
    A(f"v_mul_f32 v{mx}, s{sL2E}, v{mx}")
    A(f"v_mul_f32 v{mn}, s{sL2E}, v{mn}")
    for half in range(2):
        D = E if half == 0 else P
        for i in range(0, 20, 2):
            for n in range(2):
                if half == 0:
                    A(f"v_fma_f32 v{D[i+n]}, v{P[i+n]}, s{sL2E}, -v{mx}")
                else:
                    A(f"v_fma_f32 v{D[i+n]}, -v{P[i+n]}, s{sL2E}, v{mn}")
            if i >= 4:
                for n in range(2):
                    A(f"v_add_f32 v{acc+n}, v{D[n] if i==4 else acc+n}, v{D[i-2+n]}")
            for n in range(2):
                A(f"v_exp_f32 v{D[i+n]}, v{D[i+n]}")
                hook(30 * half + i + n)
        A(f"v_add_f32 v{acc}, v{acc}, v{acc+1}")
        A(f"v_add_f32 v{acc}, v{acc}, v{D[18]}")
        plain = ratio and half == 0
        A(f"v_add_f32 v{keep if plain else acc}, v{acc}, v{D[19]}")
        if not plain:
            A(f"v_rcp_f32 v{acc}, v{acc}")
            if ratio:
                A(f"v_mul_f32 v{acc}, v{keep}, v{acc}")
        for i in range(0, 20, 2):
            if not plain:
                for n in range(2):
                    A(f"v_mul_f32 v{D[i+n]}, v{acc}, v{D[i+n]}")
            A(f"v_cvt_pk_bf16_f32 v{OUT+10*half+i//2}, v{D[i]}, v{D[i+1]}")
            hook(30 * half + 20 + i // 2)


class Hooks:
    def __init__(self):
        self.ev, self.q = {}, []

    def at(self, n, fs, burst=False):
        fs = fs if isinstance(fs, list) else [fs]
        self.ev.setdefault(n, []).extend([lambda fs=fs: run(fs)] if burst else fs)

    def __call__(self, n):
        self.q += self.ev.pop(n, [])
        if self.q:
            self.q.pop(0)()
        if n == 59:
            run(self.q)
            assert not self.ev


def scale(d, r, pk):
    if pk:
        A(f"v_pk_mul_f32 {V(d,2)}, {V(d,2)}, {V(r,2)}")
    else:
        A(f"v_mul_f32 v{d}, v{r}, v{d}")
        A(f"v_mul_f32 v{d+1}, v{r}, v{d+1}")


PHI = 8


def phi_frags(pf, vaddr, tag):
    o = []
    for t in range(3):
        for h in range(2):
            r = pf + 4 * t + 2 * h
            if t == 2 and h == 1:
                o += L(f"v_mov_b32 v{r}, 0\nv_mov_b32 v{r+1}, 0")
            else:
                o.append(lambda r=r, t=t, h=h: A.l(f"ds_read_b64_tr_b16 {V(r,2)}, v{vaddr} offset:{320*t+160*h}", tag))
    return o


def phi_mfma(t, op, pf0, pf1, pk0, pk1):
    A(f"v_mfma_f32_16x16x32_bf16 {V(pk1,4)}, {V(pf1+4*t,4)}, {V(op,4)}, {'0' if t==0 else V(pk1,4)}")
    A(f"v_mfma_f32_32x32x16_bf16 {V(pk0,16)}, {V(pf0+4*t,4)}, {V(op,4)}, {'0' if t==0 else V(pk0,16)}")


class FragPipe:
    def __init__(self, vaddr, look=5, phase=0):
        self.vaddr, self.look, self.phase = vaddr, look, phase

    def stream(self, frags, acc):
        reads = [(lambda i=i, o=o: A.l(f"ds_read_b128 {V(WF+4*((i+self.phase)%NWF),4)}, v{self.vaddr} offset:{o}", f"f{i}")) for i, (ks, t, o) in enumerate(frags)]
        out = []
        for i, (ks, t, o) in enumerate(frags):
            for sg in range(2):
                def m(i=i, ks=ks, t=t, sg=sg):
                    if i == 0 and sg == 0:
                        for _ in range(self.look):
                            reads.pop(0)()
                    if sg == 0:
                        A.lwait(f"f{i}")
                    d = V(acc + 8 * t + 4 * sg, 4)
                    A(f"v_mfma_f32_16x16x32_bf16 {d}, {V(WF+4*((i+self.phase)%NWF),4)}, {V(Xr(ks//4,sg,ks%4),4)}, {'0' if ks==0 else d}")
                    if reads and sg == 0:
                        reads.pop(0)()
                out.append(m)
        return out


def role_B():
    A.c("---- B prologue")
    sXO, sWO2, sQO, sKW, sKF, sOF, sWC, sUT = 69, 70, 71, 74, 30, 31, 24, 25
    sKS, sRH, sUS, sKA, sUO = 100, 101, 72, 18, 100
    A(f"""
L_B:
s_cmp_ge_u32 s2, {ID_END}
s_cbranch_scc1 L_exit
s_setprio {OPT.get('prioB', 2)}
s_sub_u32 s{sT0}, s2, {ID_B}
s_and_b32 s{sB}, s{sT0}, 1
s_bfe_u32 s{sST}, s{sT0}, 0x20001
s_lshr_b32 s{sKS}, s{sT0}, 2
s_and_b32 s{sRH}, s{sT0}, 3
s_lshl_b32 s{sRH}, s{sRH}, 2
s_add_u32 s{sRH}, s{sRH}, s{SW}
s_lshr_b32 s{sT0}, s{sT0}, 3
s_mul_i32 s{sT1}, s{sT0}, 86
s_lshr_b32 s{sT1}, s{sT1}, 8
s_mul_i32 s{sCT}, s{sT1}, 3
s_sub_u32 s{sCT}, s{sT0}, s{sCT}
s_add_u32 s{sCT}, s{sCT}, 5
s_sub_u32 s{sT3}, s{sT0}, 12
s_mul_i32 s{sT2}, s{sT3}, 52
s_lshr_b32 s{sT2}, s{sT2}, 8
s_mul_i32 s{sJ}, s{sT2}, 5
s_sub_u32 s{sT3}, s{sT3}, s{sJ}
s_cmp_ge_u32 s{sT0}, 12
s_cselect_b32 s{sCT}, s{sT3}, s{sCT}
s_cselect_b32 s{sT1}, s{sT2}, s{sT1}
s_lshl_b32 s{sST}, s{sST}, 2
s_add_u32 s{sST}, s{sST}, s{sT1}
s_lshl_b32 s{sHP}, s{sB}, 3
s_add_u32 s{sHP}, s{sHP}, s{sCT}
s_add_u32 s{sJ}, s{sT1}, s{sCT}
s_sub_u32 s{sT1}, s{sJ}, 5
s_min_u32 s{sJ}, s{sJ}, s{sT1}
s_sub_u32 s{sT1}, s{sJ}, 5
s_min_u32 s{sJ}, s{sJ}, s{sT1}
s_lshl_b32 s{sJ}, s{sJ}, 1
s_add_u32 s{sJ}, s{sJ}, s{sB}
v_bfe_u32 v2, v0, 3, 3
v_lshl_add_u32 v2, v1, 5, v2
v_mul_u32_u24 v{vXA}, 1280, v2
v_bfe_u32 v2, v0, 4, 2
v_and_b32 v3, 7, v0
v_xor_b32 v2, v2, v3
s_mul_i32 s{sT1}, s{sST}, 163840
v_lshl_add_u32 v{vXA}, v2, 4, v{vXA}
v_add_u32 v{vXA}, s{sT1}, v{vXA}
v_xor_b32 v{vXA+1}, 64, v{vXA}
v_add_u32 v{vXA+1}, {10240-1024}, v{vXA+1}
s_lshl_b32 s{sT3}, s{SW}, 10
s_lshl_b32 s{sXL}, s{SW}, 13
s_lshl_b32 s{sXO}, s{sJ}, 7
s_mul_i32 s{sWO2}, s{sJ}, 10240
s_add_u32 s{sWO2}, s{sWO2}, s{sT3}
s_mul_i32 s{sQO}, s{sJ}, 6144
s_add_u32 s{sQO}, s{sQO}, s{sT3}
s_mov_b32 s{sL2E}, {LOG2E:#x}
s_mov_b32 s{sL2E+1}, {LOG2E:#x}
""")
    t0, t1, t2, t3 = 56, 57, 58, 59
    a0, a1, a2, a3 = 56, 57, 58, 59
    m0_, m1_ = S(56, 2), S(58, 2)
    setup = L(f"""
v_and_b32 v{vL8}, 63, v0
v_lshlrev_b32 v{vL16}, 4, v{vL8}
v_lshlrev_b32 v{vL8}, 3, v{vL8}
v_and_b32 v{t0}, 15, v0
v_lshrrev_b32 v{t1}, 1, v{t0}
v_bfe_u32 v{t2}, v0, 4, 2
v_xor_b32 v{t1}, v{t1}, v{t2}
v_lshlrev_b32 v{t1}, 4, v{t1}
v_lshl_add_u32 v{vXR}, v{t0}, 7, v{t1}
v_add_u32 v{vXR}, s{sXL}, v{vXR}
v_xor_b32 v{vXR+1}, 64, v{vXR}
v_lshrrev_b32 v{t1}, 5, v0
v_lshl_add_u32 v{vGW}, v{t1}, 4, v{t0}
v_lshlrev_b32 v{vGW}, 2, v{vGW}
v_add_u32 v{vGW}, {LDS_GATE}, v{vGW}
v_bfe_u32 v{t0}, v0, 5, 1
v_and_b32 v{t1}, 1, v0
v_bfe_u32 v{t2}, v0, 1, 1
v_cmp_eq_u32 {m0_}, v{t1}, v{t0}
v_mul_u32_u24 v{vPA1}, 800, v{t0}
v_bfe_u32 v{t1}, v0, 2, 2
v_mad_u32_u24 v{vPA1}, v{t1}, 40, v{vPA1}
v_add_u32 v{vPA1}, {LDS_WP}, v{vPA1}
v_lshl_add_u32 v{vPA}, v{t2}, 3, v{vPA1}
v_bfe_u32 v{t2}, v0, 4, 1
v_lshl_add_u32 v{vPA}, v{t2}, 4, v{vPA}
v_mov_b32 v{t3}, {LDS_Z}
v_cndmask_b32 v{vPA}, v{t3}, v{vPA}, {m0_}
v_lshlrev_b32 v{vKA}, 1, v{t0}
v_lshl_add_u32 v{vKA}, v{t1}, 2, v{vKA}
v_mul_u32_u24 v{vKA}, 272, v{vKA}
v_and_b32 v{t1}, 3, v0
v_lshl_add_u32 v{t2}, v{t2}, 2, v{t1}
v_lshl_add_u32 v{vKA}, v{t2}, 3, v{vKA}
v_bfe_u32 v{t2}, v0, 4, 2
v_cmp_eq_u32 {m0_}, v{t1}, v{t2}
v_add_u32 v{vPA1}, 32, v{vPA1}
v_and_b32 v{t1}, 31, v0
v_lshrrev_b32 v{t2}, 6, v0
v_cndmask_b32 v{vPA1}, v{t3}, v{vPA1}, {m0_}
v_lshl_add_u32 v{t1}, v{t2}, 5, v{t1}
v_mul_u32_u24 v{t1}, 272, v{t1}
v_mul_u32_u24 v{t3}, 80, v{t0}
v_add_u32 v{vPW}, v{t1}, v{t3}
v_mad_u32_u24 v{vVW}, v{t0}, 48, v{t1}
v_mad_u32_u24 v{vKA}, v{t2}, 40, v{vKA}
v_and_b32 v{vGA}, 31, v0
v_add_u32 v{vGA+1}, 32, v{vGA}
v_min_u32 v{vGA+1}, 54, v{vGA+1}
v_bfe_u32 v{a3}, v0, 5, 1
v_lshlrev_b32 v{a0}, 3, v{a3}
v_lshl_add_u32 v{vOT}, v{vGA}, 4, v{a0}
v_lshlrev_b32 v{a0}, 10, v{a3}
v_lshl_add_u32 v{vGA}, v{vGA}, 4, v{a0}
v_lshl_add_u32 v{vGA+1}, v{vGA+1}, 4, v{a0}
v_and_b32 v{a0}, 15, v0
v_bfe_u32 v{a1}, v0, 4, 1
v_mad_i32_i24 v{a2}, v{a1}, -8, v{a0}
v_lshl_add_u32 v{a0}, v{a3}, 4, v{a0}
v_and_b32 v{vKT}, 1, v{a2}
v_lshlrev_b32 v{vKT}, 4, v{vKT}
v_mov_b32 v{vKT+1}, 0x3f80
v_lshlrev_b32 v{vKT}, v{vKT}, v{vKT+1}
v_lshrrev_b32 v{a2}, 1, v{a2}
v_cmp_eq_u32 {m0_}, 0, v{a2}
v_cmp_eq_u32 {m1_}, 1, v{a2}
s_lshr_b32 s73, s{SW}, 1
v_cndmask_b32 v{ID}, 0, v{vKT}, {m0_}
v_cndmask_b32 v{ID+1}, 0, v{vKT}, {m1_}
v_cmp_eq_u32 {m0_}, 2, v{a2}
v_cmp_eq_u32 {m1_}, 3, v{a2}
s_mul_i32 s73, s73, 1680
v_cndmask_b32 v{ID+2}, 0, v{vKT}, {m0_}
v_cndmask_b32 v{ID+3}, 0, v{vKT}, {m1_}
s_mul_i32 s75, s{SW}, 40
s_add_u32 s73, s73, s75
s_add_u32 s73, s73, {LDS_KVT}
v_cmp_le_u32 {m0_}, 22, v{a0}
v_cmp_le_u32 {m1_}, 12, v{a0}
v_mul_u32_u24 v{vKT}, 80, v{a0}
v_mov_b32 v{a2}, {8-22*80}
v_cndmask_b32 v{a2}, 0, v{a2}, {m0_}
v_lshl_add_u32 v{vKT}, v{a1}, 4, v{vKT}
v_add_u32 v{vKT+1}, 808, v{vKT}
v_add3_u32 v{vKT}, v{vKT}, v{a2}, s73
v_lshl_add_u32 v{a2}, v{a0}, 1, v{a1}
v_mul_u32_u24 v{a2}, 80, v{a2}
v_subrev_u32 v{a2}, {24*80-32}, v{a2}
v_cndmask_b32 v{vKT+1}, v{vKT+1}, v{a2}, {m1_}
v_add_u32 v{vKT+1}, s73, v{vKT+1}
v_bfe_u32 v{a0}, v0, 2, 1
v_cmp_eq_u32 {m0_}, v{a0}, v{a3}
v_bfe_u32 v{a1}, v0, 3, 2
v_and_b32 v{a2}, 3, v0
v_lshl_add_u32 v{a1}, v{a1}, 2, v{a2}
v_mad_u32_u24 v{a1}, v{a0}, 22, v{a1}
v_mul_u32_u24 v{a1}, 80, v{a1}
v_add_u32 v{vOA}, {LDS_KVT}, v{a1}
v_add_u32 v{vOA+1}, {LDS_KVT+1280}, v{a1}
v_mov_b32 v{a2}, {LDS_Z}
v_cndmask_b32 v{vOA}, v{a2}, v{vOA}, {m0_}
v_cndmask_b32 v{vOA+1}, v{a2}, v{vOA+1}, {m0_}
v_lshlrev_b32 v{t1}, 2, v0
v_min_u32 v{t1}, 700, v{t1}
v_add_u32 v{t1}, {LDS_Z}, v{t1}
v_mov_b32 v{t2}, 0
""")
    setup.append(lambda: A.l(f"ds_write_b32 v{t1}, v{t2}", "z"))
    def wrap(sreg, step, size):
        return f"s_add_u32 s{sreg}, s{sreg}, {step}\ns_sub_u32 s{sT2}, s{sreg}, {size}\ns_min_u32 s{sreg}, s{sreg}, s{sT2}\n"

    def xslot(u):
        return 2048 * (u & 3) + (0 if BORROW and 4 <= u < 8 else LDS_X)

    def issue_x(u):
        if u >= 20:
            return []
        pre = f"s_add_u32 m0, s{sXL}, {xslot(u)}\n"
        if u & 1:
            pre += f"s_add_u32 s{sT0}, s{sXO}, 20480\n" + wrap(sXO, 128, 1280)
        so = sT0 if u & 1 else sXO
        return [(pre if i == 0 else "", lambda i=i: A.v(f"buffer_load_dwordx4 v{vXA+i}, {S(R_X,4)}, s{so} offen offset:{1024*i} lds", f"x{u}")) for i in range(2)]

    def read_x(u):
        A.vwait(f"x{u}")
        for jj in range(2):
            A.l(f"ds_read_b128 {V(Xr(u//4,u&1,(u&2)+jj),4)}, v{vXR+jj} offset:{xslot(u)}", f"xr{u}")

    wround, qround = [0], [0]

    def issue_w(upto):
        o = []
        for i in range(wround[0], min(upto, 25)):
            pre = f"s_add_u32 m0, s{sT3}, {4096*(i%10)}\n" + (wrap(sWO2, 4096, 102400) if i else "")
            o.append((pre, lambda i=i: A.v(f"buffer_load_dwordx4 v{vL16}, {S(R_W,4)}, s{sWO2} offen sc1 lds", f"w{i}")))
        wround[0] = max(wround[0], min(upto, 25))
        return o

    def issue_q(upto):
        o = []
        for i in range(qround[0], upto):
            pre = f"s_add_u32 m0, s{sT3}, {LDS_QA+4096*i if i < 9 else LDS_QB+4096*(i-9)}\n" + (wrap(sQO, 4096, 61440) if i else "")
            o.append((pre, lambda i=i: A.v(f"buffer_load_dwordx4 v{vL16}, {S(R_M1,4)}, s{sQO} offen sc1 lds", f"q{i}")))
        qround[0] = upto
        return o
    NEED = lambda h: (10 * h + 9) // 4 + 1
    FREED = lambda h: (10 * h + 6) // 4 + 1

    U2, U3 = OPT.get("u2", 3), OPT.get("u3", 3)
    BORROW = False

    def guarded(cmp_, f):
        _lab[0] += 1
        k = _lab[0]
        A(cmp_)
        A(f"s_cbranch_scc1 L_rp{k}")
        f()
        A(f"L_rp{k}:")
    IS_NOT_REPACKER = f"s_cmp_ge_u32 s2, {ID_B+80}"
    vU, vT, vTq = 80, 88, 89
    for _ in range(3):
        setup.pop(0)()
    A(IS_NOT_REPACKER)
    A("s_cbranch_scc1 L_e1x")
    A(f"""
v_and_b32 v95, 63, v0
s_mul_i32 s{sUS}, s{sKS}, {32*3840}
s_mul_i32 s{sT1}, s{sRH}, 80
s_add_u32 s{sUS}, s{sUS}, s{sT1}
s_add_u32 s{sT1}, s{sUS}, 1280
""")
    for i in range(5):
        A(dma_addr(vU + i, i, 10, [(0, 2, 0), (3, 1, 2), (2, 1, 3), (4, 1, 4)], 1200, 92, 95))
    for _ in range(OPT.get("dlyr", 0)):
        A("s_nop 15")
    A("s_waitcnt lgkmcnt(0)")
    srd(R_W, P_WQKV, 2457600)
    for i in range(5):
        A(f"s_add_u32 m0, s{sXL}, {1024*i}")
        A(f"s_lshl_b32 s{sKA}, s{sRH}, 8" if i == 0 else "s_nop 0")
        A(f"buffer_load_dwordx4 v{vU+i}, {S(R_W,4)}, s{sT1} offen lds")
    srd(R_X, P_U, 2621440)
    A("s_mov_b32 s51, 0")
    A("s_branch L_e1j")
    A("L_e1x:")
    for _ in range(OPT.get("dly", 0)):
        A("s_nop 15")
    A("s_waitcnt lgkmcnt(0)")
    srd(R_W, P_WQKV, 2457600)
    srd(R_X, P_U, 2621440)
    run(flat(issue_x(0) + issue_x(1)))
    A(f"""
s_lshl_b32 s{sKA}, s{sJ}, 8
s_add_u32 s{sKA}, s{sKA}, {C_UT}
s_lshl_b32 s{sOWN}, s{SW}, 3
s_add_u32 s{sOWN}, s{sOWN}, s{sCT}
L_e1j:
""")
    assert sOWN == 51
    arriver = lambda f: guarded(f"s_cmp_ge_u32 s{sOWN}, 5", f)
    load_epoch()
    arriver(lambda: cnt_read(CQ0 + 2, sKA))
    stamp("B", "iss0")
    srd(R_WS, P_WS, WS_SIZE)
    A(f"""
s_mov_b64 {S(ONE,2)}, 1
s_mov_b64 {S(CQ1,2)}, 256
s_lshl_b32 s{sKF}, s{sHP}, 2
s_add_u32 s{sKF}, s{sKF}, s{SW}
s_lshl_b32 s{sKF}, s{sKF}, 8
s_add_u32 s{sKF}, s{sKF}, {C_KV}
s_lshl_b32 s{sOF}, s{sST}, 1
s_lshr_b32 s{sT1}, s{SW}, 1
s_add_u32 s{sOF}, s{sOF}, s{sT1}
s_lshl_b32 s{sOF}, s{sOF}, 2
s_lshr_b32 s{sT1}, s{sHP}, 2
s_add_u32 s{sOF}, s{sOF}, s{sT1}
s_lshl_b32 s{sOF}, s{sOF}, 8
s_add_u32 s{sOF}, s{sOF}, {C_O}
s_lshl_b32 s{sKW}, s{sHP}, 8
""")
    run(setup)
    srd(R_M2, P_OUT, 2621440)
    stamp("B", "setup")
    A.lwait_all()
    make_tag()
    arriver(lambda: cnt_claim(CQ0, sKA))
    A(IS_NOT_REPACKER)
    A("s_cbranch_scc1 L_e2x")
    A.c("---- repack")
    srd(R_M1, P_GATE, 1280)
    for i in range(3):
        A(dma_addr(vU + i, i, 5, [(1, 2, 0), (0, 1, 2), (3, 2, 3)], 0, 92, 95))
    A(f"""
v_bfe_u32 v92, v0, 5, 1
v_bfe_u32 v93, v0, 2, 3
v_lshl_add_u32 v94, v92, 4, v93
v_mul_u32_u24 v{vT}, 160, v94
v_lshl_add_u32 v94, v92, 3, v93
v_mul_u32_u24 v{vTq}, 160, v94
v_and_b32 v93, 1, v0
v_bfe_u32 v94, v0, 1, 1
v_mad_u32_u24 v94, v94, 40, s{sXL}
v_add_u32 v{vTq}, v{vTq}, v94
v_lshl_add_u32 v{vTq}, v93, 4, v{vTq}
v_mul_u32_u24 v93, 80, v93
v_add3_u32 v{vT}, v{vT}, v94, v93
v_and_b32 v90, 0x30, v0
s_mul_i32 s73, s{sRH}, 20
s_add_u32 s73, s73, s{sKS}
s_mul_i32 s75, s73, 3072
s_add_u32 s75, s75, {WS_WQ}
s_mul_i32 s73, s73, 5120
s_add_u32 s73, s73, {WS_WKV}
s_lshl_b32 s16, s{sRH}, 2
s_add_u32 s16, s16, s{sKS}
s_lshl_b32 s16, s16, 8
s_add_u32 s16, s16, {C_KV}
s_lshl_b32 s17, s{sKS}, 1
s_add_u32 s17, s17, s{SW}
s_lshl_b32 s17, s17, 2
s_lshr_b32 s{sT1}, s{sRH}, 2
s_add_u32 s17, s17, s{sT1}
s_lshl_b32 s17, s17, 8
s_add_u32 s17, s17, {C_O}
s_lshl_b32 s19, s{SW}, 3
s_and_b32 s19, s19, 16
s_add_u32 s19, s19, s{sKS}
""")
    guarded(f"s_cmp_ge_u32 s{sKS}, 4", lambda: cnt_init(16))
    guarded(f"s_cmp_ge_u32 s19, 16", lambda: cnt_init(17))
    keep, A.vm = A.vm, []
    A("s_waitcnt vmcnt(0)")
    names = list(stampnames.get("B", []))
    stamp("B", "ukv")
    for t in range(5):
        for h in range(2):
            A(f"ds_read_b64_tr_b16 {V(56+4*t+2*h,2)}, v{vT} offset:{1280*h+8*t}")
    lwait_lds(92, vL8, 5)
    for t in range(5):
        if t == 4:
            A("s_add_u32 s73, s73, 4096")
        A.v(f"buffer_store_dwordx4 {V(56+4*t,4)}, v{vL16}, {S(R_WS,4)}, s73 offen offset:{1024*(t%4)} sc1", "kst")
    for i in range(3):
        A(f"s_add_u32 m0, s{sXL}, {5120+1024*i}")
        A("s_mov_b32 exec_hi, 0" if i == 2 else f"s_lshl_b32 s19, s{sKS}, 6")
        A.v(f"buffer_load_dwordx4 v{vU+i}, {S(R_W,4)}, s{sUS} offen lds", "uq")
    A("s_mov_b64 exec, -1")
    A.v(f"buffer_load_dwordx4 {V(76,4)}, v90, {S(R_M1,4)}, s19 offen", "uq")
    A.vwait("kst")
    A.lwait_all()
    A("s_barrier")
    cnt_add(ONE, sKA)
    stamp("B", "kflag")
    run(flat(issue_x(0) + issue_x(1)))
    A("s_mov_b32 s16, 0xf0f0f0f0")
    A("s_mov_b32 s17, 0xf0f0f0f0")
    A.vwait("uq")
    for t in range(3):
        for h in range(2):
            A(f"ds_read_b64_tr_b16 {V(56+4*t+2*h,2)}, v{vTq} offset:{5120+80*h+(0,8,32)[t]}")
    lwait_lds(92, vL8, 4)
    for p in range(4):
        A(f"v_cndmask_b32 v{64+p}, v{64+p}, v{76+p}, {S(16,2)}")
    for t in range(3):
        A(f"buffer_store_dwordx4 {V(56+4*t,4)}, v{vL16}, {S(R_WS,4)}, s75 offen offset:{1024*t} sc1")
    run(flat(issue_x(2) + issue_x(3)))
    A("s_branch L_e2j")
    A("L_e2x:")
    A.c("---- slice hand-over")
    A.vm = keep
    if OPT["stamps"]:
        stampnames["B"] = names
    A(f"""
v_not_b32 v80, v0
v_bfe_u32 v81, v80, 4, 2
v_bfe_u32 v80, v80, 2, 2
v_lshl_add_u32 v81, v81, 3, v80
v_bfe_u32 v82, v81, 1, 3
v_bfe_u32 v83, v0, 1, 1
v_xor_b32 v82, v82, v83
v_lshlrev_b32 v82, 4, v82
v_lshl_add_u32 v81, v81, 7, v82
v_and_b32 v82, 1, v0
v_lshl_add_u32 v81, v82, 3, v81
v_add_u32 v81, s{sXL}, v81
v_bfe_u32 v82, v0, 2, 2
v_lshlrev_b32 v82, 14, v82
v_and_b32 v83, 3, v0
v_lshl_add_u32 v82, v83, 4, v82
v_and_b32 v83, 0x30, v0
v_lshl_add_u32 v82, v83, 2, v82
v_xor_b32 v93, 32, v81
v_xor_b32 v94, 64, v81
v_xor_b32 v95, 96, v81
s_lshl_b32 s{sT1}, s{sST}, 2
s_add_u32 s{sT1}, s{sT1}, s{SW}
s_sub_u32 s{sT1}, 63, s{sT1}
s_lshl_b32 s{sT1}, s{sT1}, 8
s_lshl_b32 s73, s{sJ}, 18
s_add_u32 s{sT1}, s{sT1}, s73
s_add_u32 s{sUO}, s{sT1}, {WS_UT}
s_waitcnt vmcnt(0)
""")
    stamp("B", "ukv")
    TA_ = [81, 93, 94, 95]

    def hand_over():
        for it in range(4):
            for h in range(2):
                A(f"ds_read_b64_tr_b16 {V(60+4*it+2*h,2)}, v{TA_[it ^ (1-h)]} offset:{LDS_X+512*(1-h)}")
        lwait_lds(92, vL8, 4)
        for it in range(0 if OPT.get('nout') else 4):
            A(f"buffer_store_dwordx4 {V(60+4*it,4)}, v82, {S(R_WS,4)}, s{sUO} offen sc1")
            if it < 3:
                A(f"s_add_u32 s{sUO}, s{sUO}, 65536")
    guarded(f"s_cmp_ge_u32 s{sCT}, 5", hand_over)
    run(flat(issue_x(2) + issue_x(3)))
    A("s_waitcnt vmcnt(4) lgkmcnt(0)")
    A("s_barrier")
    arriver(lambda: cnt_add(ONE, sKA))
    stamp("B", "kflag")
    A("L_e2j:")
    assert A.vm == ["x0", "x0", "x1", "x1", "x2", "x2", "x3", "x3"]
    A.lg = ["_"] * 4
    srd(R_M1, P_WPHI, 25600)
    A(f"""
s_mul_i32 s{sT1}, s{SW}, 400
s_add_u32 m0, s{sT1}, {LDS_WP}
s_mul_i32 s{sT2}, s{sHP}, 1600
s_add_u32 s{sT1}, s{sT1}, s{sT2}
s_mov_b64 exec, 0x1ffffff
""")
    A.v(f"buffer_load_dwordx4 v{vL16}, {S(R_M1,4)}, s{sT1} offen lds", "wp")
    A(f"""
s_mov_b64 exec, -1
s_mul_i32 s{sT1}, s{sHP}, 102400
s_add_u32 s{sT1}, s{sT1}, {WS_WKV}
s_add_u32 s{R_W}, s{P_WS}, s{sT1}
s_addc_u32 s{R_W+1}, s{P_WS+1}, 0
s_mov_b32 s{R_W+2}, 102400
s_mul_i32 s{sT1}, s{sHP}, 61440
s_add_u32 s{sT1}, s{sT1}, {WS_WQ}
s_add_u32 s{R_M1}, s{P_WS}, s{sT1}
s_addc_u32 s{R_M1+1}, s{P_WS+1}, 0
s_mov_b32 s{R_M1+2}, 61440
""")
    stamp("B", "iss1")
    refill = lambda u: u + 4

    A.c("---- x tile -> registers")
    assert U3 >= 2
    for u in range(U3 + 1):
        read_x(u)
        ld = []
        if u == 2:
            guarded(IS_NOT_REPACKER, lambda: cnt_add(CQ1, sKA))
        if u:
            A.lwait(f"xr{u-1}")
            ld += issue_x(refill(u - 1))
        if u == U2:
            run(flat(ld))
            ld = []
            only_wave(0, lambda: cnt_wait(CQ0, sKW, 20, sCNT, probed=False, low=True, nap=OPT.get('napw', 0)))
            A("s_barrier")
            stamp("B", "kwseen")
        if u >= U2:
            run(flat(issue_w(min(10, wround[0] + (OPT.get("w1st", 10) if u == U2 else OPT.get("wper", 2))))))
        run(flat(ld))

    def ready(h):
        A.vwait(f"w{NEED(h)-1}")
        A("s_barrier")
        stamp("B", f"w{h}")


    A.c("---- GEMM1a: k and v for two heads, 20 k-steps in one stream")
    run(flat(issue_w(NEED(1))))
    ready(0)
    pipe = FragPipe(vL16, phase=5)
    mm = pipe.stream([(n // 5, n % 5, 1024 * (n % 40)) for n in range(100)], ACC)
    st_ = Stream()
    st_.at(0, flat(issue_w(10)))
    u = U3 + 1
    lastx = [0]
    for h in range(10):
        k0 = 20 * h
        for kk in {2: (0, 12), 3: (0, 5, 14), 4: (0, 4, 11, 15)}[OPT.get("xper", 2)]:
            if u < 20:
                st_.at(k0 + kk, [lambda u=u: read_x(u), lambda u=u: A.lwait(f"xr{u-1}")] + flat(issue_x(refill(u - 1))))
                u += 1
                lastx[0] = k0 + kk
        if h < 9:
            st_.exact(k0 + 19 - 2 * pipe.look, lambda h=h: ready(h + 1))
            mm[k0 + 20] = (lambda f=mm[k0 + 20], h=h: (need_x(h + 1), f()))
        if h:
            st_.at(k0 + 20 - 2 * pipe.look, flat(issue_w(10 + FREED(h - 1))))

    def need_x(h):
        assert f"x{2*h+1}" not in A.vm
        A.lwait(f"xr{2*h}", f"xr{2*h+1}")

    HQ = OPT.get("hq", 8)
    assert u == 20 and lastx[0] < 20 * HQ
    st_.at(20 * HQ - 50, L(f"""
s_and_b32 s{sWC}, s{sCT}, 4
s_add_u32 s{sWC}, s{sWC}, s{SW}
s_lshl_b32 s{sWC}, s{sWC}, 8
s_add_u32 s{sWC}, s{sWC}, {C_WO}
""") + [lambda: only_wave(0, lambda: cnt_read(CQ0, sKW)), lambda: cnt_read(CQ0 + 2, sWC)])
    st_.at(20 * HQ + 2, [lambda: A.lwait("xr19"), lambda: only_wave(0, lambda: cnt_async(CQ0, 14, sKW, 20 * 257, sCNT, nap=2))])
    for h in range(HQ, 10):
        st_.at(20 * h + 21 - 2 * pipe.look, flat(issue_q(9 if h == 9 else min(9, qround[0] + OPT.get("qper", 3)))))
    KP, VP = 8, 20
    PF0, PF1, PK0, PK1 = 56, 68, 80, 32

    def cvt_tile(acc, t, d0, d1):
        return [(lambda sg=sg, hh=hh: A(f"v_cvt_pk_bf16_f32 v{(d0 if sg==0 else d1)+2*t+hh}, v{acc+8*t+4*sg+2*hh}, v{acc+8*t+4*sg+2*hh+1}")) for sg in range(2) for hh in range(2)]
    st_.at(192, L(f"v_mov_b32 v{KP+10}, 0\nv_mov_b32 v{KP+11}, 0"))
    st_.at(195, cvt_tile(ACC, 0, KP, VP))
    st_.at(197, cvt_tile(ACC, 1, KP, VP))
    need_x(0)
    st_.run(mm)
    assert wround[0] == 25
    stamp("B", "g1a")
    if OPT.get("fine"):
        finish("B")
        return

    A.c("---- phi_k, kv partial")
    swap = lambda a_, b_, i0, i1: [A(f"v_permlane16_swap_b32 v{a_+i}, v{b_+i}") for i in range(i0, i1)]
    run(phi_frags(PF0, vPA, "pf"))
    run(cvt_tile(ACC, 2, KP, VP))
    run(phi_frags(PF1, vPA1, "pf"))
    run(cvt_tile(ACC, 3, KP, VP) + cvt_tile(ACC, 4, KP, VP))
    swap(KP, VP, 0, 4)
    A.lwait("pf")
    phi_mfma(0, KP, PF0, PF1, PK0, PK1)
    swap(KP, VP, 4, 8)
    A(f"v_mov_b32 v{VP+10}, 0x3f80")
    A(f"v_mov_b32 v{VP+11}, 0")
    phi_mfma(1, KP + 4, PF0, PF1, PK0, PK1)
    swap(KP, VP, 8, 10)
    phi_mfma(2, KP + 8, PF0, PF1, PK0, PK1)
    A("s_barrier")
    for i in range(3):
        A.l(f"ds_write_b128 v{vVW}, {V(VP+4*i,4)} offset:{LDS_PV+160+16*i}", "pv")
    stamp("B", "pmf")
    hk = Hooks()
    for i, n in enumerate((24, 28, 51, 55, 59)):
        hk.at(n, lambda i=i: A.l(f"ds_write_b128 v{vPW}, {V(PHI+4*i,4)} offset:{LDS_PV+16*i}", "pv"))
    sWO = 75
    hk.at(0, L(f"""
s_lshr_b32 s{sT0}, s{SW}, 1
s_mul_i32 s{sT0}, s{sT0}, 48
s_mul_i32 s{sT1}, s{SW}, 40
s_sub_u32 s{sT0}, s{sT0}, s{sT1}
s_add_u32 s{sT0}, s{sT0}, 160
v_add_u32 v{vVW}, s{sT0}, v{vKA}
s_mul_i32 s{sWO}, s{sCT}, 102400
s_mul_i32 s{sT1}, s{SW}, 25600
s_add_u32 s{sWO}, s{sWO}, s{sT1}
s_add_u32 s{sWO}, s{sWO}, {WS_WO}
s_lshl_b32 s{sT0}, s{sHP}, 2
s_add_u32 s{sT0}, s{sT0}, s{SW}
s_lshl_b32 s{sT0}, s{sT0}, 14
s_add_u32 s{sT0}, s{sT0}, {WS_KVP}
s_lshl_b32 s{sT1}, s{sST}, 10
s_add_u32 s{sT1}, s{sT1}, s{sT0}
"""))

    def wo_touch():
        if not OPT.get('abl'):
            cnt_async(CQ0 + 2, 14, sWC, 20, sCNT, nap=8)
        if OPT.get("wopf", 1):
            A(f"""
s_and_b32 s{sWC}, s{sST}, 3
s_mul_i32 s{sWC}, s{sWC}, 6400
s_add_u32 s{sWC}, s{sWC}, s{sWO}
v_lshlrev_b32 v41, 3, v{vL16}
s_mov_b32 m0, {LDS_GATE+512}
s_mov_b32 exec_hi, 0x3ffff
""")
            A.v(f"buffer_load_dword v41, {S(R_WS,4)}, s{sWC} offen sc1 lds", "pf")
            A("s_mov_b32 exec_hi, -1")
    hk.at(16, wo_touch)
    softmax([PK0 + i for i in range(16)] + [PK1 + i for i in range(4)], [56 + i for i in range(20)], PHI, 36, hk)
    stamp("B", "smx")
    vKB, vQR = vVW, vPW
    A.lwait_all()
    A("s_barrier")
    stamp("B", "phik")
    KD = 28
    FR = [56, 64, 72, 80]

    def kvreads(ks):
        for h in range(2):
            A.l(f"ds_read_b64_tr_b16 {V(FR[ks%4]+2*h,2)}, v{vKA} offset:{LDS_PV+ks*4352+h*272}", f"kv{ks}")
        for h in range(2):
            A.l(f"ds_read_b64_tr_b16 {V(FR[ks%4]+4+2*h,2)}, v{vKB} offset:{LDS_PV+ks*4352+h*272}", f"kv{ks}")
    for ks in range(3):
        kvreads(ks)
    fl = L(f"""
v_and_b32 v14, 31, v0
v_bfe_u32 v15, v0, 5, 1
v_mad_u32_u24 v15, v15, 22, v14
v_lshlrev_b32 v15, 4, v15
v_add_u32 v{vQR}, {LDS_QB}, v{vL16}
""")
    for ks in range(8):
        A.lwait(f"kv{ks}")
        A(f"v_mfma_f32_32x32x16_bf16 {V(KD,16)}, {V(FR[ks%4],4)}, {V(FR[ks%4]+4,4)}, {'0' if ks==0 else V(KD,16)}")
        if ks + 3 < 8:
            kvreads(ks + 3)
        else:
            for _ in range(5):
                if fl:
                    fl.pop(0)()
    run(fl)
    A.vwait("q8")
    A("s_barrier")
    for i in range(6):
        A(f"v_cvt_pk_bf16_f32 v{8+i}, v{KD+2*i}, v{KD+2*i+1}")
    set_exec(0x003FFFFF003FFFFF)
    A.v(f"buffer_store_dwordx4 {V(8,4)}, v15, {S(R_WS,4)}, s{sT1} offen sc1", "kvst")
    A("s_mov_b32 exec_hi, 0")
    A.v(f"buffer_store_dwordx2 {V(12,2)}, v{vL8}, {S(R_WS,4)}, s{sT1} offen offset:704 sc1", "kvst")
    A("s_mov_b64 exec, -1")
    stamp("B", "kvst")

    A.c("---- GEMM1b (q); wo fragments stream into the x registers as they die")
    QA = 56
    WOR = [XB + 4 * i for i in range(8)] + [Xr(3, 0, 0) + 4 * i for i in range(16)] + [92]
    G = Xr(1, 0, 0)
    pipe = FragPipe(vQR, phase=3)
    mm = pipe.stream([(n // 3, n % 3, LDS_QA - LDS_QB + 1024 * n if n < 36 else 1024 * (n - 36)) for n in range(60)], QA)

    def issue_wo(f0, f1):
        o = []
        for f in range(f0, f1):
            ii, jn = divmod(f, 5)
            pre = ""
            if jn == 0 and ii < 4:
                pre = f"s_add_u32 s{sWC}, s{sST}, {ii}\ns_and_b32 s{sWC}, s{sWC}, 3\ns_mul_i32 s{sWC}, s{sWC}, 5120\ns_add_u32 s{sWC}, s{sWC}, s{sWO}\n"
            elif jn == 0:
                pre = f"s_add_u32 s{sWC}, s{sWO}, 20480\n"
            elif jn == 4:
                pre = f"s_add_u32 s{sWC}, s{sWC}, 4096\n"
            o.append((pre, lambda f=f, jn=jn: A.v(f"buffer_load_dwordx4 {V(WOR[f],4)}, v{vL16}, {S(R_WS,4)}, s{sWC} offen offset:{1024*(jn%4)} sc1", "wo")))
        return o

    def kv_flag():
        A.vwait("kvst")
        cnt_add(ONE, sKF)

    def q2_ready():
        A.vwait("q14")
        A("s_barrier")

    gl = []
    for pp in range(8):
        for g2 in range(2):
            pre = ""
            if g2 == 0 and pp % 2 == 0:
                pre = f"s_add_u32 s{sT1}, s{sST}, {pp//2}\ns_and_b32 s{sT1}, s{sT1}, 3\ns_lshl_b32 s{sT1}, s{sT1}, 12\ns_add_u32 s{sT1}, s{sT1}, s{sT0}\n"
            gl.append((pre, lambda pp=pp, g2=g2: A.v(f"buffer_load_dwordx4 {V(G+8*pp+4*g2,4)}, v{vGA+g2}, {S(R_WS,4)}, s{sT1} offen offset:{2048*(pp&1)} sc1", f"g{pp}")))
    Q0, Q1 = 8, 16
    PF0, PF1, PK0, PK1 = 80, 192, 56, 72
    st_ = Stream()
    st_.at(0, flat(issue_q(15)))
    KVF, KVT = OPT.get("kvf", 40), OPT.get("kvt", 92)
    st_.exact(KVF, kv_flag)
    st_.at(KVF + OPT.get("kvp", 4), lambda: cnt_probe(CQ0, sKF, True))
    if OPT.get("p2k", 0):
        st_.at(KVF + OPT.get("kvp2", 26), lambda: cnt_probe(CQ0 + 2, sKF, True))
    wol = issue_wo(0, 25)
    NW0 = OPT.get("nw0", 8)
    for i, g_ in enumerate(wol[:NW0]):
        st_.at(OPT.get("wo0", 30) + OPT.get("wostep", 5) * i, flat([g_]))
    st_.exact(72 - 2 * pipe.look - 1, q2_ready)
    st_.at(70, phi_frags(PF0, vPA, "pf"))
    st_.at(85, phi_frags(PF1, vPA1, "pf"))
    st_.exact(KVT, lambda: ((cnt_poll2(CQ0, 14, sKF, 16, sCNT) if OPT.get('p2k', 0) else cnt_async(CQ0, 14, sKF, 16, sCNT, nap=OPT.get('napk', 0))), stamp("B", "kvseen")))
    NG1 = OPT.get("ng1", 10)
    for i, g_ in enumerate(gl[:NG1]):
        st_.at(min(KVT + 1 + 2 * i, 119), flat([g_]))
    st_.at(110, L(f"v_mov_b32 v{Q0+6}, 0\nv_mov_b32 v{Q0+7}, 0"))
    st_.run(mm)
    stamp("B", "g1b")

    A.c("---- phi_q; the kv partials are summed on the way")
    NW1 = OPT.get("nw1", 16)
    run(flat(gl[NG1:NG1 + 2]))
    run(cvt_tile(QA, 0, Q0, Q1) + cvt_tile(QA, 1, Q0, Q1))
    swap(Q0, Q1, 0, 4)
    run(cvt_tile(QA, 2, Q0, Q1))
    A(f"""
v_mov_b32 v43, v{QA+16}
s_mov_b32 exec_lo, 0
v_mov_b32 v43, v{QA+20}
s_mov_b32 exec_lo, 0xffff0000
s_mov_b32 exec_hi, 0xffff0000
""")
    A.l(f"ds_write_b32 v{vGW}, v43", "gw")
    A("s_mov_b64 exec, -1")
    assert "pf" not in A.lg
    phi_mfma(0, Q0, PF0, PF1, PK0, PK1)
    swap(Q0, Q1, 4, 6)
    phi_mfma(1, Q1, PF0, PF1, PK0, PK1)
    phi_mfma(2, Q0 + 4, PF0, PF1, PK0, PK1)
    run(flat(gl[NG1 + 2:]))
    RD, OF_, OD = 244, G, 56
    assert NW1 <= 20
    hk = Hooks()
    hk.at(OPT.get('woh', 20), flat(wol[NW0:NW1]))

    def reduce_(pp):
        A.vwait(f"g{pp}")
        for g2 in range(2):
            d = V(RD + 4 * g2, 4)
            A(f"v_mfma_f32_16x16x32_bf16 {d}, {V(ID,4)}, {V(G+8*pp+4*g2,4)}, {'0' if pp==0 else d}")

    def kvt_write():
        for i in range(4):
            A(f"v_cvt_pk_bf16_f32 v{RD+8+i}, v{RD+2*i}, v{RD+2*i+1}")
        A.l(f"ds_write_b64 v{vKT}, {V(RD+8,2)}", "kt")
        A("s_mov_b32 exec_hi, 0x007f007f")
        A.l(f"ds_write_b64 v{vKT+1}, {V(RD+10,2)}", "kt")
        A("s_mov_b64 exec, -1")

    def kvt_read():
        A.lwait_all()
        A("s_barrier")
        stamp("B", "kvt")
        for T in (1, 0):
            for t in range(5):
                A.l(f"ds_read_b128 {V(OF_+8*t+4*T,4)}, v{vOA+T} offset:{16*t}", f"o{t}_{T}")
    RH = OPT.get("rh", 34)
    hk2 = {RH + pp: (lambda pp=pp: reduce_(pp)) for pp in range(8)}
    hk2[min(RH + 12, 58)] = kvt_write
    hk2[min(RH + 18, 59)] = kvt_read
    hk.at(40, L(f"""
s_lshl_b32 s{sT1}, s{sST}, 2
s_add_u32 s{sT1}, s{sT1}, s{SW}
s_lshl_b32 s{sT1}, s{sT1}, 4
s_add_u32 s{sT1}, s{sT1}, s{sHP}
s_mul_i32 s{sT1}, s{sT1}, 2560
s_add_u32 s{sT1}, s{sT1}, {WS_O}
"""))
    softmax([PK0 + i for i in range(20)], [76 + i for i in range(16)] + [28, 29, 30, 31], PHI, 38,
            lambda n: (hk(n), hk2.pop(n, lambda: None)()), ratio=True)
    stamp("B", "phiq")
    OP = 28
    tail = L(f"""
v_mul_f32 v42, 0x358637bd, v42
v_add_f32 v40, v42, v{OD+20}
v_rcp_f32 v40, v40
""")
    for i in (8, 9):
        tail += L(f"v_mul_f32 v{OD+2*i}, v40, v{OD+2*i}\nv_mul_f32 v{OD+2*i+1}, v40, v{OD+2*i+1}\nv_cvt_pk_bf16_f32 v{OP+i}, v{OD+2*i}, v{OD+2*i+1}")
    tail.append(lambda: A.v(f"buffer_store_dwordx2 {V(OP+8,2)}, v{vOT}, {S(R_WS,4)}, s{sT1} offen offset:2048 sc1", "ost"))
    for T in (1, 0):
        for t in range(5):
            A.lwait(f"o{t}_{T}")
            d = V(OD + 16 * T, 16)
            A(f"v_mfma_f32_32x32x16_bf16 {d}, {V(OF_+8*t+4*T,4)}, {V(PHI+4*t,4)}, {'0' if t==0 else d}")
            if T == 0 and t == 0:
                tail.pop(0)()
                A("s_nop 5")
            if T == 0 and t == 3:
                for _ in range(5):
                    tail.pop(0)()
    run(tail)
    for i in range(8):
        scale(OD + 2 * i, 40, 0)
        A(f"v_cvt_pk_bf16_f32 v{OP+i}, v{OD+2*i}, v{OD+2*i+1}")
        if i == 3:
            A.v(f"buffer_store_dwordx4 {V(OP,4)}, v{vL16}, {S(R_WS,4)}, s{sT1} offen sc1", "ost")
        if i == 7:
            A.v(f"buffer_store_dwordx4 {V(OP+4,4)}, v{vL16}, {S(R_WS,4)}, s{sT1} offen offset:1024 sc1", "ost")
    stamp("B", "ost")
    NW2 = OPT.get("nw2", 21)
    run(flat(wol[NW1:NW2]))

    A.c("---- final projection: the wave sums its K quarter for four row tiles and owns tile (wave + ct) & 3")
    vOM, vOR, vW16 = 2, 3, 7
    vOMS = [72, 73, 74, 75]
    vRW, vRR, vAR, vAR2, vOUT2, vOUT = 1, 4, 5, 6, 2, 3
    sOB = [64, 65, 66, 67]
    sAF, sAT, sOC = 74, 25, 30
    GT, OMG, GA, AC0, AC1, OX = 8, 12, 16, 36, 56, 76
    OFR = [G + 4 * i for i in range(16)] + [OX + 4 * i for i in range(4)]
    A(f"""
s_add_u32 s{sOWN}, s{SW}, s{sCT}
s_and_b32 s{sOWN}, s{sOWN}, 3
s_lshl_b32 s{sCNT}, s{sB}, 2
s_add_u32 s{sCNT}, s{sCNT}, s{sOWN}
s_lshl_b32 s{sCNT}, s{sCNT}, 6
s_add_u32 s{sCNT}, s{sCNT}, {LDS_GATE}
v_and_b32 v42, 0x30, v0
v_add_u32 v42, s{sCNT}, v42
""")
    A.l(f"ds_read_b128 {V(GT,4)}, v42", "gt")
    A(f"""
s_lshl_b32 s{sAF}, s{sCT}, 2
s_add_u32 s{sAF}, s{sAF}, s{SW}
s_mul_i32 s{sAT}, s{sAF}, {20*4096}
s_lshl_b32 s{sAF}, s{sAF}, 8
s_add_u32 s{sAF}, s{sAF}, {C_AF}
s_lshl_b32 s{sWOFF}, s{sST}, 1
s_add_u32 s{sWOFF}, s{sWOFF}, s{sB}
s_lshl_b32 s{sCNT}, s{sWOFF}, 7
s_add_u32 s{sAT}, s{sAT}, s{sCNT}
s_add_u32 s{sAT}, s{sAT}, {WS_AT}
s_lshl_b32 s{sOC}, s{sWOFF}, 2
s_add_u32 s{sOC}, s{sOC}, s{SW}
s_lshl_b32 s{sOC}, s{sOC}, 8
s_add_u32 s{sOC}, s{sOC}, {C_O}
""")
    A.lwait("gt")
    cnt_read(CQ1, sAF)
    sGOT, sAL = 100, 101

    def a_dma():
        A(f"s_mul_i32 s{sAL}, s{SW}, 2560")
        for i in range(3):
            A(f"s_add_u32 m0, s{sAL}, {LDS_AT+1024*i}")
            A("s_mov_b32 exec_hi, 0" if i == 2 else "s_nop 0")
            A(f"buffer_load_dwordx4 v{68+i}, {S(R_WS,4)}, s{sAT} offen sc1 lds")
        A("s_mov_b64 exec, -1")

    def a_try():
        A(f"s_mov_b64 {S(14,2)}, {S(CQ1,2)}")
        cnt_test(14, 20)
        A(f"s_cselect_b32 s{sGOT}, 0, 1")
        guarded("", a_dma)
    A(f"""
v_mov_b32 v{vW16}, v{vL16}
v_and_b32 v40, 15, v0
v_bfe_u32 v43, v0, 4, 2
v_lshlrev_b32 v{vOM}, 9, v43
v_lshl_add_u32 v{vOM}, v40, 4, v{vOM}
v_mul_u32_u24 v{vOR}, 2560, v43
v_lshl_add_u32 v{vOR}, v40, 4, v{vOR}
v_bfe_u32 v49, v0, 3, 3
v_and_b32 v48, 7, v0
s_mul_i32 s{sCNT}, s{SW}, 20
""")
    for i in range(3):
        A(f"""
v_add_u32 v42, {8*i}, v49
v_add_u32 v43, s{sCNT}, v42
v_bfe_u32 v43, v43, 2, 3
v_xor_b32 v43, v43, v48
v_lshlrev_b32 v42, 12, v42
v_lshl_add_u32 v{68+i}, v43, 4, v42
""")
    for e in range(4):
        A(f"v_mul_f32 v{GT+e}, s{sL2E}, v{GT+e}")
    for e in range(4):
        A(f"v_exp_f32 v{GT+e}, -v{GT+e}")
    for e in range(4):
        A(f"v_add_f32 v{GT+e}, 1.0, v{GT+e}")
    for e in range(4):
        A(f"v_rcp_f32 v{GT+e}, v{GT+e}")
    for p in range(4):
        A(f"""
s_add_u32 s{sCNT}, s{sOWN}, {p+1}
s_bfe_u32 s{sJ}, s{sCNT}, 0x10001
s_mul_i32 s{sOB[p]}, s{sJ}, 40960
s_and_b32 s{sJ}, s{sCNT}, 1
s_lshl_b32 s{sJ}, s{sJ}, 8
s_add_u32 s{sOB[p]}, s{sOB[p]}, s{sJ}
""")
    A(f"""
s_mul_i32 s{sCNT}, s{sWOFF}, 81920
s_mul_i32 s{sJ}, s{SW}, 10240
s_add_u32 s{sCNT}, s{sCNT}, s{sJ}
s_add_u32 s{sCNT}, s{sCNT}, {WS_O}
v_add_u32 v{vOM}, s{sCNT}, v{vOM}
v_add_u32 v{vOR}, s{sCNT}, v{vOR}
""")
    for e in range(4):
        A(f"v_sub_f32 v{OMG+e}, 1.0, v{GT+e}")
    A.vwait("ost")
    cnt_add(ONE, sOF)
    stamp("B", "oflag")
    cnt_probe(CQ0, sOC, True)
    a_try()
    run(flat(wol[NW2:]))
    for ii in range(4):
        A(f"""
s_add_u32 s{sCNT}, s{sST}, {ii}
s_and_b32 s{sCNT}, s{sCNT}, 3
s_mul_i32 s{sCNT}, s{sCNT}, 2560
v_add_u32 v{vOMS[ii]}, s{sCNT}, v{vOM}
""")
    A(f"""
v_bfe_u32 v41, v0, 5, 1
v_lshl_add_u32 v41, s{sOWN}, 1, v41
v_and_b32 v42, 7, v40
v_xor_b32 v42, v42, v41
v_lshlrev_b32 v42, 4, v42
v_bfe_u32 v43, v0, 4, 1
v_lshlrev_b32 v43, 3, v43
v_lshlrev_b32 v{vAR}, 9, v40
v_add3_u32 v{vAR}, v{vAR}, v42, v43
v_lshrrev_b32 v42, 2, v40
v_xor_b32 v42, v42, v41
v_lshlrev_b32 v42, 4, v42
v_lshlrev_b32 v{vAR2}, 7, v40
v_add3_u32 v{vAR2}, v{vAR2}, v42, v43
s_mul_i32 s{sCNT}, s{SW}, 15360
s_add_u32 s{sCNT}, s{sCNT}, {LDS_RED}
v_add_u32 v{vRR}, s{sCNT}, v{vW16}
s_lshl_b32 s{sJ}, s2, 2
s_add_u32 s{sJ}, s{sJ}, s{SW}
s_cmp_lg_u32 s{sJ}, {4*ID_B}
s_cbranch_scc1 L_noep1
""")
    EPR = [4, 70, 16, 18, 20, 22, 26, 28]
    for cb in range(8):
        cnt_read(EPR[cb], str(C_WO + 256 * cb))
    A("s_waitcnt lgkmcnt(0)")
    for cb in range(0 if OPT.get('abl') else 8):
        cnt_wait(EPR[cb], str(C_WO + 256 * cb), 20, sCNT)
    A("L_noep1:")
    if OPT.get("p2o", 1):
        cnt_probe(CQ0 + 2, sOC, True)
        cnt_poll2(CQ0, 14, sOC, 8, sCNT)
    else:
        cnt_async(CQ0, 14, sOC, 8, sCNT)
    stamp("B", "oseen")
    guarded(f"s_cmp_eq_u32 s{sGOT}, 1", lambda: cnt_read(16, sAF))
    old = []
    for p in range(4):
        for ii in range(5):
            def f(p=p, ii=ii):
                r = V(OFR[5 * p + ii], 4)
                if ii < 4:
                    A.v(f"buffer_load_dwordx4 {r}, v{vOMS[ii]}, {S(R_WS,4)}, s{sOB[p]} offen sc1", f"of{p}_{ii}")
                else:
                    A.v(f"buffer_load_dwordx4 {r}, v{vOR}, {S(R_WS,4)}, s{sOB[p]} offen offset:2048 sc1", f"of{p}_{ii}")
            old.append(f)
    for _ in range(OPT.get("npo", 10)):
        old.pop(0)()
    AR = OFR[0]

    def a_fetch():
        def late():
            if not OPT.get('abl'):
                cnt_async(16, 14, sAF, 20, sCNT, nap=OPT.get('napa', 1))
            a_dma()
        guarded(f"s_cmp_eq_u32 s{sGOT}, 1", late)
        stamp("B", "aseen")

    def a_read():
        A.vwait_all()
        A("s_barrier")
        for jn in range(4):
            A.l(f"ds_read_b64 {V(AR+2*jn,2)}, v{vAR} offset:{LDS_AT+128*jn}", "ar")
        A.l(f"ds_read_b64 {V(AR+8,2)}, v{vAR2} offset:{LDS_AT+8192}", "ar")
    mix = [lambda: A.lwait("ar")]
    for jn in range(5):
        for e in range(4):
            src = AR + 2 * jn + (e >> 1)
            mix += L(f"v_and_b32 v{GA+4*jn+e}, 0xffff0000, v{src}" if e & 1 else f"v_lshlrev_b32 v{GA+4*jn+e}, 16, v{src}")
    mix2 = [(lambda jn=jn, e=e: A(f"v_mul_f32 v{GA+4*jn+e}, v{GT+e}, v{GA+4*jn+e}")) for jn in range(5) for e in range(4)]
    mm = []
    for p in range(4):
        ac = AC0 if p % 2 == 0 else AC1
        for ii in range(5):
            for jn in range(5):
                def m(p=p, ac=ac, ii=ii, jn=jn):
                    if jn == 0:
                        A.vwait(f"of{p}_{ii}")
                        if p == 0 and ii == 0:
                            stamp("B", "o0")
                    d = V(ac + 4 * jn, 4)
                    A(f"v_mfma_f32_16x16x32_bf16 {d}, {V(OFR[5*p+ii],4)}, {V(WOR[5*ii+jn],4)}, {'0' if ii==0 else d}")
                mm.append(m)
    st_ = Stream(budget=2)
    for i, f in enumerate(old):
        st_.at(2 * i, f)
    st_.exact(22, a_fetch)
    KA_ = OPT.get("aread", 58)
    st_.exact(KA_, a_read)
    st_.at(KA_ + 4, mix + mix2)
    for p in range(3):
        ac = AC0 if p % 2 == 0 else AC1
        k0 = 25 * (p + 1)
        st_.at(k0 - 3, L(f"""
s_add_u32 s{sCNT}, s{SW}, {p+1}
s_and_b32 s{sCNT}, s{sCNT}, 3
s_mul_i32 s{sCNT}, s{sCNT}, 15360
v_add_u32 v{vRW}, s{sCNT}, v{vW16}
"""))
        for jn in range(5):
            st_.at(k0 + 1 + jn, lambda jn=jn, p=p, ac=ac: A.l(f"ds_write_b128 v{vRW}, {V(ac+4*jn,4)} offset:{LDS_RED+5120*p+1024*jn}", "rw"))
    st_.at(33, L(f"""
v_bfe_u32 v{vOUT}, v0, 4, 2
v_mul_u32_u24 v{vOUT}, 5120, v{vOUT}
v_and_b32 v{GA}, 15, v0
v_lshl_add_u32 v{vOUT2}, v{GA}, 1, v{vOUT}
v_lshl_add_u32 v{vOUT}, v{GA}, 3, v{vOUT}
s_lshl_b32 s{sAT}, s{sWOFF}, 2
s_add_u32 s{sAT}, s{sAT}, s{sOWN}
s_mul_i32 s{sAT}, s{sAT}, 20480
s_mul_i32 s{sAF}, s{sCT}, 160
s_add_u32 s{sAT}, s{sAT}, s{sAF}
"""))
    KB_ = OPT.get("redbar", 84)
    st_.exact(KB_, lambda: (A.lwait_all(), A("s_barrier")))
    red = []
    for jn in range(5):
        for q in (jn, 5 + jn, 10 + jn):
            red.append(lambda q=q, jn=jn: A.l(f"ds_read_b128 {V(OFR[q],4)}, v{vRR} offset:{1024*q}", f"rr{jn}"))
    st_.at(KB_ + 1, red)
    st_.run(mm, reserve=lambda k: 0)
    stamp("B", "fin")
    PK4 = OPT.get("pk4", 1)

    def add2(d, a_, b_):
        if PK4:
            A(f"v_pk_add_f32 {V(d,2)}, {V(a_,2)}, {V(b_,2)}")
        else:
            for n in range(2):
                A(f"v_add_f32 v{d+n}, v{a_+n}, v{b_+n}")
    for jn in range(5):
        A.lwait(f"rr{jn}")
        for h in range(2):
            r0, r1, r2 = OFR[jn] + 2 * h, OFR[5 + jn] + 2 * h, OFR[10 + jn] + 2 * h
            add2(r0, r0, r1)
            add2(r0, r0, r2)
    OSF = OPT.get("osf", "").replace("_", " ")
    for h in range(2):
        for jn in range(5):
            r0, g_ = OFR[jn] + 2 * h, GA + 4 * jn + 2 * h
            add2(r0, r0, AC1 + 4 * jn + 2 * h)
            if PK4:
                A(f"v_pk_fma_f32 {V(g_,2)}, {V(OMG+2*h,2)}, {V(r0,2)}, {V(g_,2)}")
            else:
                for n in range(2):
                    A(f"v_fma_f32 v{g_+n}, v{OMG+2*h+n}, v{r0+n}, v{g_+n}")
        for e in (2 * h, 2 * h + 1):
            A(f"v_cvt_pk_bf16_f32 v{AC0+4*e}, v{GA+e}, v{GA+4+e}")
            A(f"v_cvt_pk_bf16_f32 v{AC0+4*e+1}, v{GA+8+e}, v{GA+12+e}")
            A.v(f"buffer_store_dwordx2 {V(AC0+4*e,2)}, v{vOUT}, {S(R_M2,4)}, s{sAT} offen offset:{1280*e} {OSF}")
        A(f"v_cvt_pk_bf16_f32 v{AC0+8*h+2}, v{GA+16+2*h}, v{GA+17+2*h}")
        A.v(f"buffer_store_short v{AC0+8*h+2}, v{vOUT2}, {S(R_M2,4)}, s{sAT} offen offset:{2560*h+128} {OSF}")
        A.v(f"buffer_store_short_d16_hi v{AC0+8*h+2}, v{vOUT2}, {S(R_M2,4)}, s{sAT} offen offset:{2560*h+1280+128} {OSF}")
    A(f"""
s_cmp_lg_u32 s{sJ}, {4*ID_B}
s_cbranch_scc1 L_noep2
s_atomic_swap_x2 {S(TAG,2)}, {S(P_WS,2)}, {WS_EPOCH}
L_noep2:
""")
    finish("B")


def role_A():
    sAJ, sTB, sCB, sCH, sLB = 60, 61, 62, 63, 68
    ONE, CQ0, CQ1, CQ2, sUP, sUC, sAC, sGOT, sWC = 18, 20, 28, 40, 69, 48, 49, 50, 51
    sW0, sW1, sW2 = 73, 74, 75
    A.c("---- A prologue")
    A(f"""
s_sub_u32 s{sAJ}, s2, {ID_A}
s_lshl_b32 s{sCH}, s{sAJ}, 2
s_add_u32 s{sCH}, s{sCH}, s{SW}
s_mul_i32 s{sLB}, s{SW}, 20480
v_and_b32 v1, 63, v0
v_lshlrev_b32 v5, 2, v1
s_lshl_b32 s{sT0}, s{sCH}, 8
v_add_u32 v3, s{sT0}, v5
s_and_b32 s{sT3}, s{sCH}, 0xfffffffe
s_lshl_b32 s{sT3}, s{sT3}, 1
s_waitcnt lgkmcnt(0)
""")
    A(f"s_load_dword s70, {S(P_LOGDT,2)}, s{sT3}")
    A(f"s_load_dword s71, {S(P_DSK,2)}, s{sT3}")
    load_epoch()
    for i, p in enumerate((P_LOGA, P_AIM, P_CRE, P_CIM)):
        A.v(f"global_load_dword v{8+i}, v3, {S(p,2)}", "par")
    A(f"""
s_mul_i32 s{sAC}, s{sCH}, 3277
s_lshr_b32 s{sAC}, s{sAC}, 16
s_lshl_b32 s{sAC}, s{sAC}, 8
s_add_u32 s{sAC}, s{sAC}, {C_AF}
s_lshr_b32 s{sUC}, s{sAJ}, 4
s_lshl_b32 s{sUC}, s{sUC}, 8
s_add_u32 s{sUC}, s{sUC}, {C_UT}
s_mov_b64 {S(ONE,2)}, 1
""")
    srd(R_M2, P_WO, 819200)
    A(f"""
s_lshr_b32 s{sT0}, s{sAJ}, 3
s_mul_i32 s{sT1}, s{sT0}, 52
s_lshr_b32 s{sT1}, s{sT1}, 8
s_and_b32 s{sWC}, s{sAJ}, 4
s_mul_i32 s{sW2}, s{sWC}, 102400
s_mul_i32 s{sT3}, s{sWC}, 160
s_add_u32 s{sWC}, s{sWC}, s{sT1}
s_lshl_b32 s{sWC}, s{sWC}, 8
s_add_u32 s{sWC}, s{sWC}, {C_WO}
s_mul_i32 s{sT2}, s{sT0}, 5120
s_add_u32 s{sW2}, s{sW2}, s{sT2}
s_and_b32 s{sT2}, s{sAJ}, 3
s_lshl_b32 s{sW0}, s{sT2}, 8
s_add_u32 s{sW2}, s{sW2}, s{sW0}
s_add_u32 s{sW2}, s{sW2}, {WS_WO}
s_mul_i32 s{sW0}, s{sT1}, 5
s_sub_u32 s{sT0}, s{sT0}, s{sW0}
s_and_b32 s{sW0}, s{sT2}, 1
s_mul_i32 s{sW0}, s{sW0}, 20
s_lshr_b32 s{sW1}, s{sT2}, 1
s_lshl_b32 s{sW1}, s{sW1}, 3
s_add_u32 s{sW0}, s{sW0}, s{sW1}
s_mul_i32 s{sW1}, s{sT0}, 40
s_add_u32 s{sW0}, s{sW0}, s{sW1}
s_mul_i32 s{sT2}, s{sT2}, 40
s_add_u32 s{sT2}, s{sT2}, 16
s_cmp_eq_u32 s{sT0}, 4
s_cselect_b32 s{sW0}, s{sT2}, s{sW0}
s_cselect_b32 s{sW1}, 20, 4
s_mul_i32 s{sT1}, s{sT1}, 160
s_add_u32 s{sW0}, s{sW0}, s{sT1}
s_add_u32 s{sW1}, s{sW1}, s{sW0}
s_mul_i32 s{sW0}, s{sW0}, 1280
s_mul_i32 s{sW1}, s{sW1}, 1280
s_add_u32 s{sW0}, s{sW0}, s{sT3}
s_add_u32 s{sW1}, s{sW1}, s{sT3}
v_lshrrev_b32 v14, 4, v1
v_and_b32 v15, 15, v1
v_mul_u32_u24 v4, 160, v14
v_lshl_add_u32 v245, v15, 1, v4
v_lshl_add_u32 v244, v15, 3, v4
v_mul_u32_u24 v14, 102400, v14
v_lshl_add_u32 v246, v15, 4, v14
""")
    srd(R_WS, P_WS, WS_SIZE)
    A(f"""
s_lshl_b32 s{sT0}, s{sAJ}, 14
s_add_u32 s{sT0}, s{sT0}, {WS_UT}
s_add_u32 s{R_M1}, s{P_WS}, s{sT0}
s_addc_u32 s{R_M1+1}, s{P_WS+1}, 0
s_mov_b32 s{R_M1+2}, 16384
s_mov_b32 s{R_M1+3}, 0x20000
""")
    A("s_waitcnt lgkmcnt(0)")
    make_tag()
    A("s_barrier")
    WL, WU, WD = (176, 192, 200) if OPT.get('wot', 2) != 1 else (192, 208, 216)
    vW4, vW5, vW14 = 244, 245, 246

    def wo_load():
        for e in range(8):
            A(f"buffer_load_dwordx2 {V(WL+2*e,2)}, v{vW4}, {S(R_M2,4)}, s{sW0 if e<4 else sW1} offen offset:{1280*(e&3)}")
        for e in range(8):
            A(f"buffer_load_ushort v{WU+e}, v{vW5}, {S(R_M2,4)}, s{sW0 if e<4 else sW1} offen offset:{1280*(e&3)+128}")

    def wo_store():
        A(f"""
s_setprio {OPT.get('prioR', 3)}
s_mov_b32 s{sW0}, 0x05040100
s_mov_b32 s{sW1}, 0x07060302
s_waitcnt vmcnt(0)
""")
        for jn in range(4):
            for p in range(4):
                A(f"v_perm_b32 v{WD+4*jn+p}, v{WL+2*(2*p+1)+(jn>>1)}, v{WL+2*(2*p)+(jn>>1)}, s{sW0+(jn&1)}")
            A(f"buffer_store_dwordx4 {V(WD+4*jn,4)}, v{vW14}, {S(R_WS,4)}, s{sW2} offen offset:{1024*jn} sc1")
        for p in range(4):
            A(f"v_lshl_or_b32 v{WD+16+p}, v{WU+2*p+1}, 16, v{WU+2*p}")
        A(f"s_add_u32 s{sW2}, s{sW2}, 4096")
        A(f"buffer_store_dwordx4 {V(WD+16,4)}, v{vW14}, {S(R_WS,4)}, s{sW2} offen sc1")
        A(f"s_setprio {OPT.get('prioK' if OPT.get('wot', 2) != 1 else 'prioA', 0)}")
    A.vwait("par")
    stamp("A", "par")
    WOT = OPT.get("wot", 2)
    if WOT == 0:
        only_wave(3, wo_load)
    A(f"s_setprio {OPT.get('prioK', 0)}")
    if OPT.get("fakea"):
        cnt_read(CQ1 + 2, sAC)
        only_wave(3, lambda: cnt_read(CQ2 + 2, sWC))
        A("s_waitcnt lgkmcnt(0)")
        cnt_claim(CQ1, sAC)
        only_wave(3, lambda: cnt_claim(CQ2, sWC))
        only_wave(3, wo_store)
        A("s_waitcnt vmcnt(0) lgkmcnt(0)")
        only_wave(3, lambda: cnt_add(ONE, sWC))
        for _ in range(OPT["fakea"]):
            A("s_sleep 100")
        A("s_branch L_cend")
    A.c("---- per-mode constants (two modes per lane)")
    A(f"""
s_bitcmp1_b32 s{sCH}, 0
s_cselect_b32 s{sT0}, 0, 16
s_lshl_b32 s70, s70, s{sT0}
s_and_b32 s70, s70, 0xffff0000
s_lshl_b32 s71, s71, s{sT0}
s_and_b32 s71, s71, 0xffff0000
v_mov_b32 v32, {LOG2E:#x}
v_mul_f32 v33, s70, v32
v_exp_f32 v33, v33
""")
    A.vwait("par")
    LA, AI, XR, XI = 34, 36, 38, 40
    for (src, dst) in ((8, LA), (9, AI), (10, XR), (11, XI)):
        A(f"v_lshlrev_b32 v{dst}, 16, v{src}")
        A(f"v_and_b32 v{dst+1}, 0xffff0000, v{src}")
    A(f"""
v_cvt_pk_bf16_f32 v33, v33, v33
v_and_b32 v33, 0xffff0000, v33
v_mul_f32 v{LA}, v32, v{LA}
v_mul_f32 v{LA+1}, v32, v{LA+1}
v_exp_f32 v{LA}, v{LA}
v_exp_f32 v{LA+1}, v{LA+1}
v_mul_f32 v{AI}, v33, v{AI}
v_mul_f32 v{AI+1}, v33, v{AI+1}
v_cvt_pk_bf16_f32 v{LA+1}, v{LA}, v{LA+1}
v_lshlrev_b32 v{LA}, 16, v{LA+1}
v_and_b32 v{LA+1}, 0xffff0000, v{LA+1}
v_mul_f32 v{LA}, v33, v{LA}
v_mul_f32 v{LA+1}, v33, v{LA+1}
v_mul_f32 v{LA}, v32, v{LA}
v_mul_f32 v{LA+1}, v32, v{LA+1}
v_mul_f32 v{AI}, {INV2PI:#x}, v{AI}
v_mul_f32 v{AI+1}, {INV2PI:#x}, v{AI+1}
v_add_f32 v33, v33, v33
v_mul_f32 v{XR}, v33, v{XR}
v_mul_f32 v{XR+1}, v33, v{XR+1}
v_mul_f32 v{XI}, v33, -v{XI}
v_mul_f32 v{XI+1}, v33, -v{XI+1}
""")
    W = {1: 44, 8: 48, 256: 52}
    for p, w in W.items():
        lit = {1: "1.0", 8: "0x41000000", 256: "0x43800000"}[p]
        for n in range(2):
            A(f"v_mul_f32 v{56+n}, {lit}, v{LA+n}")
            A(f"v_mul_f32 v{58+n}, {lit}, v{AI+n}")
        for n in range(2):
            A(f"v_exp_f32 v{56+n}, -v{56+n}")
            A(f"v_fract_f32 v{58+n}, v{58+n}")
        for n in range(2):
            A(f"v_cos_f32 v{w+n}, v{58+n}")
            A(f"v_sin_f32 v{w+2+n}, v{58+n}")
        A(f"v_pk_mul_f32 {V(w,2)}, {V(w,2)}, {V(56,2)}")
        A(f"v_pk_mul_f32 {V(w+2,2)}, {V(w+2,2)}, {V(56,2)}")
    vSW, vSR = 6, 7
    A(f"""
v_lshlrev_b32 v{vSW}, 3, v1
v_add_u32 v{vSW}, s{sLB}, v{vSW}
v_and_b32 v{vSR}, 31, v1
v_mul_u32_u24 v{vSR}, 528, v{vSR}
v_lshrrev_b32 v12, 5, v1
v_lshlrev_b32 v12, 4, v12
v_add3_u32 v{vSR}, v{vSR}, v12, s{sLB}
""")
    pk = [0]

    def put(reg, rows):
        t = 80 + 2 * (pk[0] % 4)
        pk[0] += 1
        A(f"v_cvt_pk_bf16_f32 v{t}, v{reg}, v{reg+1}")
        A(f"v_cvt_pk_bf16_f32 v{t+1}, v{reg+2}, v{reg+3}")
        for r in rows:
            A.l(f"ds_write_b64 v{vSW}, {V(t,2)} offset:{528*r}", "st")

    def cmul(d, s, w, conj):
        n1, n2 = ("", " neg_lo:[1,0,0] neg_hi:[1,0,0]") if conj else (" neg_lo:[0,0,1] neg_hi:[0,0,1]", "")
        A(f"v_pk_mul_f32 {V(56,2)}, {V(s+2,2)}, {V(w+2,2)}")
        A(f"v_pk_mul_f32 {V(58,2)}, {V(s+2,2)}, {V(w,2)}")
        A(f"v_pk_fma_f32 {V(d+2,2)}, {V(s,2)}, {V(w+2,2)}, {V(58,2)}{n2}")
        A(f"v_pk_fma_f32 {V(d,2)}, {V(s,2)}, {V(w,2)}, {V(56,2)}{n1}")

    A.c("---- X rows")
    g0 = [0, 1, 2, 3, 4, 5, 6, 7, 512, 516, 520, 1024, 1032, 1536, 1544]
    g1 = [256, 256, 258, 260, 260, 260, 262, 264, 768, 772, 776, 1280, 1288, 1792, 1800]
    rows = {}
    for g, lst in enumerate((g0, g1)):
        for i, p in enumerate(lst):
            rows.setdefault(p, []).append(8 * (i >> 2) + 4 * g + (i & 3))
    keep = {0: XR, 2: 60, 4: 64, 6: 68, 8: 72}
    put(XR, rows[0])
    cur = XR
    for p in range(1, 9):
        d = keep.get(p, 76)
        cmul(d, cur, W[1], True)
        if p in rows:
            put(d, rows[p])
        cur = d
    cnt_read(CQ1 + 2, sAC)
    only_wave(3, lambda: cnt_read(CQ2 + 2, sWC))
    for step in range(1, 8):
        for off in (0, 8, 4, 2, 6):
            p = 256 * step + off
            if p in rows:
                cmul(keep[off], keep[off], W[256], True)
                put(keep[off], rows[p])
    XF = 96
    if WOT == 0:
        only_wave(3, wo_store)
    if WOT == 2:
        A(f"s_setprio {OPT.get('prioR', 3)}")
        only_wave(3, wo_load)
        A(f"s_setprio {OPT.get('prioK', 0)}")
    A.lwait_all()
    for ks in range(16):
        A.l(f"ds_read_b128 {V(XF+4*ks,4)}, v{vSR} offset:{32*ks}", "xf")
    A.c("---- Y rows")
    YA, YB = 60, 64
    cmul(YA, W[8], W[8], False)
    A(f"""
v_mov_b32 v24, 0x3f803f80
v_mov_b32 v25, 0
""")
    A.lwait_all()
    stamp("A", "xrows")
    cnt_claim(CQ1, sAC)
    only_wave(3, lambda: cnt_claim(CQ2, sWC))
    A.l(f"ds_write_b64 v{vSW}, {V(24,2)}", "st")
    put(W[8], [1])
    put(YA, [2])
    UL, UN = 224, 240
    USC = ' sc1' if OPT.get('usc', 1) else ''

    def load_u():
        A(f"s_setprio {OPT.get('prioR', 3)}")
        for i in range(4):
            A(f"s_movk_i32 s{sT0}, {4096*i}")
            A(f"buffer_load_dwordx4 {V(UL+4*i,4)}, v2, {S(R_M1,4)}, s{sT0} offen{USC}")
            A(f"buffer_load_dword v{UN+i}, v2, {S(R_M1,4)}, s{sT0} offen offset:64{USC}")
        A(f"s_setprio {OPT.get('prioK', 0)}")
    A("v_lshlrev_b32 v2, 4, v0")
    for c in range(3, 32):
        cmul(YA, YA, W[8], False)
        put(YA, [c])
        if c == OPT.get("uq", 18):
            only_wave(0, lambda: cnt_read(CQ0, sUC))
    if WOT == 2:
        only_wave(3, wo_store)
    A.lwait_all()
    if WOT != 1:
        only_wave(3, lambda: (A("s_waitcnt vmcnt(0)"), cnt_add(ONE, sWC)))
    stamp("A", "yrows")
    YF, KD = 160, 68
    for ks in range(16):
        A.l(f"ds_read_b128 {V(YF+4*ks,4)}, v{vSR} offset:{32*ks}", f"y{ks}")
        if ks >= 6:
            k2 = ks - 6
            A.lwait(f"y{k2}")
            A(f"v_mfma_f32_32x32x16_bf16 {V(KD,16)}, {V(XF+4*k2,4)}, {V(YF+4*k2,4)}, {'0' if k2==0 else V(KD,16)}")
    for k2 in range(10, 16):
        A.lwait(f"y{k2}")
        A(f"v_mfma_f32_32x32x16_bf16 {V(KD,16)}, {V(XF+4*k2,4)}, {V(YF+4*k2,4)}, {V(KD,16)}")
    vKW, vUW, vKB, vUA = 3, 4, 8, 9
    A(f"""
v_lshlrev_b32 v{vKW}, 4, v1
v_add_u32 v{vKW}, s{sLB}, v{vKW}
v_and_b32 v13, 3, v0
v_mul_u32_u24 v13, 20512, v13
v_lshrrev_b32 v{vUW}, 2, v0
v_lshl_add_u32 v{vUW}, v{vUW}, 4, v13
v_and_b32 v13, 15, v1
v_and_b32 v14, 0x30, v1
v_lshl_add_u32 v{vKB}, v13, 5, v14
v_add_u32 v{vKB}, s{sLB}, v{vKB}
v_add_u32 v{vKB}, 32, v{vKB}
v_lshrrev_b32 v15, 1, v13
v_lshlrev_b32 v15, 2, v15
v_sub_u32 v14, v14, v15
v_and_b32 v13, 1, v13
v_mul_u32_u24 v13, 4160, v13
v_sub_u32 v14, v14, v13
s_mul_i32 s{sT0}, s{SW}, 20512
s_add_u32 s{sT0}, s{sT0}, {4608+4160+4060-512-448}
v_add_u32 v{vUA}, s{sT0}, v14
v_subrev_u32 v{vUA+1}, 1024, v{vUA}
v_subrev_u32 v{vUA+2}, 2048, v{vUA}
v_subrev_u32 v{vUA+3}, 3072, v{vUA}
v_mov_b32 v16, 0
v_mov_b32 v17, 0
v_lshrrev_b32 v13, 5, v1
v_mul_u32_u24 v13, 4160, v13
v_and_b32 v14, 3, v1
v_lshl_add_u32 v13, v14, 3, v13
s_sub_u32 s{sT0}, s{sT0}, {4160+4060-512-448-4096}
v_add_u32 v13, s{sT0}, v13
""")
    A.l(f"ds_write_b64 v{vSW}, {V(16,2)}", "cv")
    A.l(f"ds_write_b64 v13, {V(16,2)}", "cv")
    A(f"""
s_mov_b64 exec, 1
v_add_f32 v{KD}, s71, v{KD}
s_mov_b64 exec, -1
s_mov_b32 vcc_lo, 0x55555555
s_mov_b32 vcc_hi, 0x55555555
""")
    KP = 84
    for i in range(4):
        A(f"v_cvt_pk_bf16_f32 v{KP+i}, v{KD+2*i}, v{KD+2*i+1}")
    A.l(f"ds_write_b128 v{vKW}, {V(KP,4)} offset:512", "cv")
    a_, b_, c_ = KD + 8, KD + 9, KD + 10
    for i, (x_, y_) in enumerate(((a_, a_), (a_, b_), (b_, b_), (c_, c_))):
        A(f"v_cvt_pk_bf16_f32 v{KP+4+i}, v{x_}, v{y_}")
    A.l(f"ds_write_b128 v{vKW}, {V(KP+4,4)} offset:{512+1024}", "cv")
    for blk, d in ((0, KP + 8), (1, 20)):
        a_, b_ = KD + 11 + 2 * blk, KD + 12 + 2 * blk
        A(f"v_cndmask_b32 v18, v{b_}, v{a_}, vcc")
        A(f"v_cvt_pk_bf16_f32 v{d}, v{a_}, v{a_}")
        A(f"v_cvt_pk_bf16_f32 v{d+1}, v{a_}, v{a_}")
        A(f"v_cvt_pk_bf16_f32 v{d+2}, v18, v{b_}")
        A(f"v_cvt_pk_bf16_f32 v{d+3}, v{b_}, v{b_}")
        A.l(f"ds_write_b128 v{vKW}, {V(d,4)} offset:{512+2048+1024*blk}", "cv")
    stamp("A", "kdone")
    only_wave(0, lambda: cnt_wait(CQ0, sUC, 16, sCNT, nap=OPT.get("napu", 1)))
    A("s_barrier")
    load_u()
    A.vm.append("u")
    stamp("A", "utseen")
    A.vwait("u")
    for i in range(4):
        A.l(f"ds_write_b128 v{vUW}, {V(UL+4*i,4)} offset:{4608+1024*i}", "cv")
        t = 52 + 4 * i
        for p in range(4):
            hi = UL + 4 * i + p + 1 if p < 3 else UN + i
            A(f"v_alignbit_b32 v{t+p}, v{hi}, v{UL+4*i+p}, 16")
        A.l(f"ds_write_b128 v{vUW}, {V(t,4)} offset:{4608+4160+1024*i}", "cv")
    CA = 16
    A.lwait_all()
    A("s_barrier")
    if WOT == 1:
        A(f"s_setprio {OPT.get('prioR', 3)}")
        only_wave(3, wo_load)
    A(f"s_setprio {OPT.get('prioA', 0)}")
    stamp("A", "cstart")
    if OPT.get("noconv"):
        finish("A")
        return
    A.c("---- convolution: 8 residues x 36 tile products")
    UA = [64, 128]
    KB = [96, 160]

    def creads(r):
        s, out = r & 1, []
        for m in range(8):
            out.append(lambda m=m: A.l(f"ds_read_b128 {V(KB[s]+4*m,4)}, v{vKB} offset:{512*m+64*(7-r)}", f"c{r}_{m}"))
            o = (128 if m % 2 == 0 else 0) + 16 * (7 - r)
            for hh in range(2):
                out.append(lambda m=m, o=o, hh=hh: A.l(f"ds_read2_b32 {V(UA[s]+4*m+2*hh,2)}, v{vUA+m//2} offset0:{o+2*hh} offset1:{o+2*hh+1}", f"c{r}_{m}"))
        return out

    pairs = sorted([(mu, n) for mu in range(8) for n in range(8 - mu)], key=lambda p: (max(p), p[0] + p[1]))
    nxt = creads(0)
    for _ in range(12):
        nxt.pop(0)()
    started = set()
    for r in range(8):
        if r < 7:
            nxt += creads(r + 1)
        for k, (mu, n) in enumerate(pairs):
            A.lwait(f"c{r}_{max(mu, n)}")
            d = V(CA + 4 * (mu + n), 4)
            A(f"v_mfma_f32_16x16x32_bf16 {d}, {V(UA[r&1]+4*mu,4)}, {V(KB[r&1]+4*n,4)}, {d if mu+n in started else '0'}")
            started.add(mu + n)
            if nxt and (r == 0 or k % 3 != 2):
                nxt.pop(0)()
        assert len(nxt) == 0
        if WOT == 1 and r == OPT.get("wor", 0):
            only_wave(3, wo_store)
        if WOT == 1 and r == OPT.get("wor", 0) + 1:
            only_wave(3, lambda: (A("s_waitcnt vmcnt(0)"), cnt_add(ONE, sWC)))
    A("L_cend:")
    A(f"s_setprio {OPT.get('prioR', 3)}")
    stamp("A", "cend")
    A(f"""
v_and_b32 v2, 15, v1
v_lshlrev_b32 v2, 5, v2
v_bfe_u32 v3, v1, 4, 1
v_lshl_add_u32 v2, v3, 9, v2
v_lshrrev_b32 v3, 5, v1
v_lshl_add_u32 v2, v3, 4, v2
s_lshl_b32 s{sT0}, s{sCH}, 12
s_add_u32 s{sT0}, s{sT0}, {WS_AT}
""")
    for q in range(640):
        assert (q * 3277) >> 16 == q // 20
    A.lwait_all()
    for n in range(0, 8, 2):
        d = 48 + 2 * n
        for i in range(4):
            A(f"v_cvt_pk_bf16_f32 v{d+i}, v{CA+4*n+2*i}, v{CA+4*n+2*i+1}")
    for n in range(0, 8, 2):
        d = 48 + 2 * n
        A(f"v_permlane16_swap_b32 v{d}, v{d+2}")
        A(f"v_permlane16_swap_b32 v{d+1}, v{d+3}")
        A.v(f"buffer_store_dwordx4 {V(d,4)}, v2, {S(R_WS,4)}, s{sT0} offen offset:{512*n} sc1", "ast")
    A.vwait("ast")
    cnt_add(ONE, sAC)
    finish("A")


if "B" in OPT["roles"]:
    role_B()
else:
    A("L_B:\ns_endpgm")
A("L_A:")
if "A" in OPT["roles"]:
    role_A()
else:
    A("s_endpgm")
A("L_codeend:")
lines, nn = pad_hazards(A.lines, verbose=False)
if OPT.get("align", 1):
    lines, cnt_, cost_ = align8(lines)
    print("align:", cnt_, cost_, file=sys.stderr)
hdr = open("gated_mix__ssm_conv_s4d__linear_kernel_hedgehog__prompt.s.ref").read().split("; Override launch")[0]
print(hdr + f"; @launch grid=({ID_END},1,1) block=(256,1,1) lds=81920")
print("\n".join(lines))
print(f""".section .rodata,"a"
.p2align 6
.amdhsa_kernel {KN}
  .amdhsa_next_free_vgpr 256
  .amdhsa_next_free_sgpr 102
  .amdhsa_accum_offset 256
  .amdhsa_group_segment_fixed_size 0
  .amdhsa_kernarg_size 120
  .amdhsa_user_sgpr_count 2
  .amdhsa_user_sgpr_kernarg_segment_ptr 1
  .amdhsa_system_sgpr_workgroup_id_x 1
.end_amdhsa_kernel""")
json.dump(stampnames, open("stamps.json", "w"))
print(f"pad states inserted: {nn}", file=sys.stderr)
```

```python
import sys, json
from asmlib import *

KN = "gated_mix__ssm_conv_s4d__linear_kernel_hedgehog__prompt_kernel"
OPT = dict(stamps=0, dump=0, roles="RAB")
for a_ in sys.argv[1:]:
    k_, v_ = a_.split("=")
    OPT[k_] = int(v_) if v_.lstrip("-").isdigit() else v_

C_KW, C_WO, C_UT, C_AF, C_KV, C_O = [256 * n for n in (0, 48, 56, 80, 112, 176)]
WS_EPOCH = 0x20000
WS_WKV = 0xD00000
WS_WQ = 0xF00000
WS_WO = 0x100000
WS_KVP = 0x200000
WS_UT = 0x300000
WS_AT = 0x600000
WS_O = 0x900000
WS_STAMP = 0xC00000
WS_DUMP = 0x1000000
WS_SIZE = 0x4000000 if OPT["dump"] else 0x1000000

ID_A, ID_B, ID_END = 8, 168, 424
SPIN = 1 << 17
LOG2E = 0x3FB8AA3B
INV2PI = 0x3E22F983

P_U, P_LOGA, P_AIM, P_CRE, P_CIM, P_LOGDT, P_DSK = 4, 6, 8, 10, 12, 14, 16
P_WQKV, P_WPHI, P_WO, P_GATE, P_OUT, P_DBG, P_WS = 20, 22, 24, 26, 28, 30, 32
R_X, R_W, R_WS, R_DBG, R_M1, R_M2 = 36, 40, 44, 48, 52, 56
SW = 3
TAG = 34
ST0 = 76

A = Asm()
stampnames = {}
_lab = [0]


def srd(r, p, size):
    A(f"s_mov_b32 s{r}, s{p}")
    A(f"s_mov_b32 s{r+1}, s{p+1}")
    A(f"s_mov_b32 s{r+2}, {size}")
    A(f"s_mov_b32 s{r+3}, 0x20000")


def load_epoch():
    A(f"s_load_dwordx2 {S(TAG,2)}, {S(P_WS,2)}, {WS_EPOCH}")


def make_tag():
    A(f"s_add_u32 s{TAG}, s{TAG}, 0x7f4a7c15")
    A(f"s_addc_u32 s{TAG+1}, s{TAG+1}, 0x9e3779b9")


def cnt_read(r, soff):
    A(f"s_mov_b64 {S(r,2)}, 0")
    A(f"s_atomic_add_x2 {S(r,2)}, {S(P_WS,2)}, {soff if isinstance(soff, str) else 's%d' % soff} glc")


def cnt_peek(r, soff):
    A(f"s_load_dwordx2 {S(r,2)}, {S(P_WS,2)}, s{soff} glc")


def cnt_claim(q, soff):
    A(f"""
s_sub_u32 s{q}, s{q+2}, s{TAG}
s_subb_u32 s{q+1}, s{q+3}, s{TAG+1}
s_lshr_b32 s{q}, s{q}, 16
s_or_b32 s{q}, s{q}, s{q+1}
s_cselect_b64 {S(q,2)}, {S(TAG,2)}, {S(q+2,2)}
s_atomic_cmpswap_x2 {S(q,4)}, {S(P_WS,2)}, s{soff} glc
""")


def cnt_add(one, soff):
    A(f"s_atomic_add_x2 {S(one,2)}, {S(P_WS,2)}, s{soff}")


def cnt_init(soff):
    A(f"s_atomic_swap_x2 {S(TAG,2)}, {S(P_WS,2)}, s{soff}")


def cnt_test(r, n, low=False):
    A(f"s_sub_u32 s{r}, s{r}, s{TAG}")
    A(f"s_subb_u32 s{r+1}, s{r+1}, s{TAG+1}")
    if low:
        A(f"s_and_b32 s{r}, s{r}, 0xffff00ff")
    A(f"s_xor_b32 s{r}, s{r}, {n}")
    A(f"s_or_b32 s{r}, s{r}, s{r+1}")


def cnt_wait(r, soff, n, scnt, probed=True, low=False, nap=0):
    _lab[0] += 1
    k = _lab[0]
    if probed:
        cnt_test(r, n, low)
        A(f"s_cbranch_scc0 L_got{k}")
    A(f"s_mov_b32 s{scnt}, 0")
    A(f"L_spin{k}:")
    cnt_read(r, soff)
    A(f"""
s_add_u32 s{scnt}, s{scnt}, 1
s_cmp_ge_u32 s{scnt}, {SPIN}
s_waitcnt lgkmcnt(0)
s_cbranch_scc1 L_got{k}
""")
    cnt_test(r, n, low)
    if nap:
        A(f"s_cbranch_scc0 L_got{k}")
        A(f"s_sleep {nap}")
    A(f"s_cbranch_scc1 L_spin{k}")
    A(f"L_got{k}:")


def cnt_async(r, t, soff, n, scnt, **kw):
    _lab[0] += 1
    k = _lab[0]
    A(f"s_mov_b64 {S(t,2)}, {S(r,2)}")
    cnt_test(t, n, kw.get("low", False))
    A(f"s_cbranch_scc0 L_as{k}")
    A("s_waitcnt lgkmcnt(0)")
    cnt_wait(r, soff, n, scnt, **kw)
    A(f"L_as{k}:")


def cnt_probe(q, soff, first=False):
    if first:
        A(f"s_mov_b64 {S(q,2)}, 0")
    A(f"s_atomic_umax_x2 {S(q,2)}, {S(P_WS,2)}, s{soff} glc")


def cnt_poll2(r, t, soff, n, scnt, low=False):
    _lab[0] += 1
    k = _lab[0]

    def test(o):
        A(f"s_mov_b64 {S(t,2)}, {S(o,2)}")
        cnt_test(t, n, low)
        A(f"s_cbranch_scc0 L_p2e{k}")
    test(r)
    test(r + 2)
    A(f"s_mov_b32 s{scnt}, 0")
    A(f"L_p2{k}:")
    for q in (r, r + 2):
        A("s_waitcnt lgkmcnt(2)")
        test(q)
        cnt_probe(q, soff)
    A(f"""
s_add_u32 s{scnt}, s{scnt}, 1
s_cmp_lt_u32 s{scnt}, {SPIN}
s_cbranch_scc1 L_p2{k}
L_p2e{k}:
""")


def lwait_lds(vt, va, n=6):
    for _ in range(n):
        A(f"ds_read_b32 v{vt}, v{va}")
    A(f"s_waitcnt lgkmcnt({n})")
    A.lg = ["_"] * n


def only_wave(w, f):
    _lab[0] += 1
    k = _lab[0]
    A(f"s_cmp_lg_u32 s{SW}, {w}")
    A(f"s_cbranch_scc1 L_ow{k}")
    f()
    A(f"L_ow{k}:")


def stamp(role, name):
    if not OPT["stamps"]:
        return
    if OPT.get("only") and name not in ("end",) and name not in OPT["only"].split("+"):
        return
    l = stampnames.setdefault(role, [])
    assert len(l) < 12
    A(f"{'s_memtime' if OPT.get('cyc') else 's_memrealtime'} {S(ST0 + 2*len(l), 2)}")
    l.append(name)
    if OPT.get("both") and len(l) < 12:
        A(f"s_memtime {S(ST0 + 2*len(l), 2)}")
        l.append(name + "_c")


def finish(role):
    if OPT["stamps"]:
        stamp(role, "end")
        A("s_waitcnt lgkmcnt(0)")
        A("s_mov_b64 exec, -1")
        A("v_mov_b32 v1, 0")
        for i in range(len(stampnames[role])):
            A(f"v_writelane_b32 v1, s{ST0+2*i}, {i}")
        A("v_and_b32 v2, 63, v0")
        A("v_lshlrev_b32 v2, 2, v2")
        A("s_lshl_b32 s60, s2, 2")
        A(f"s_add_u32 s60, s60, s{SW}")
        A("s_lshl_b32 s60, s60, 6")
        A(f"s_add_u32 s60, s60, {WS_STAMP}")
        A("s_mov_b64 exec, 0xffff")
        A(f"buffer_store_dword v1, v2, {S(R_WS,4)}, s60 offen")
        if OPT.get("dbg") and role == "B":
            A(f"""
s_cmp_lg_u32 s{SW}, 0
s_cbranch_scc1 L_nodbg
s_load_dwordx2 s[60:61], s[0:1], 104
s_not_b32 s62, s{ST0}
v_writelane_b32 v1, s62, 15
s_waitcnt lgkmcnt(0)
global_atomic_umax v2, v1, s[60:61]
L_nodbg:
""")
    A("s_endpgm")
    A.vm, A.lg = [], []


def set_exec(mask):
    if mask == -1 or mask < (1 << 31):
        A(f"s_mov_b64 exec, {mask}")
    else:
        A(f"s_mov_b32 exec_lo, {mask & 0xffffffff:#x}")
        A(f"s_mov_b32 exec_hi, {mask >> 32:#x}")


def dump(regs, slot, vtmp):
    if not OPT["dump"]:
        return
    A(f"v_lshlrev_b32 v{vtmp}, 2, v0")
    A(f"s_sub_u32 s74, s2, {ID_B}")
    A(f"s_mul_i32 s74, s74, {32*1024}")
    A(f"s_add_u32 s74, s74, {WS_DUMP + slot*0x800000}")
    assert len(regs) <= 32
    for r in regs:
        A.v(f"buffer_store_dword v{r}, v{vtmp}, {S(R_WS,4)}, s74 offen", "dump")
        A("s_add_u32 s74, s74, 1024")
    A.vwait_all()


A(f"""
.amdgcn_target "amdgcn-amd-amdhsa--gfx950"
.text
.globl {KN}
.p2align 12
.type {KN},@function
{KN}:
s_load_dwordx16 s[4:19], s[0:1], 0
s_load_dwordx8 s[20:27], s[0:1], 64
s_load_dwordx4 s[28:31], s[0:1], 96
s_load_dwordx2 s[32:33], s[0:1], 112
""")
if OPT["stamps"]:
    A(f"{'s_memtime' if OPT.get('cyc') else 's_memrealtime'} {S(ST0,2)}")
    for r_ in ("B", "A"):
        stampnames[r_] = ["start"]
A(f"""
v_lshrrev_b32 v1, 6, v0
s_cmp_ge_u32 s2, {ID_B}
v_readfirstlane_b32 s{SW}, v1
s_cbranch_scc1 L_B
s_setprio {OPT.get('prioR', 3)}
s_cmp_ge_u32 s2, {ID_A}
s_cbranch_scc1 L_A
""")
A.c("---- code prefetch into L2 (one workgroup per die)")
A(f"""
s_getpc_b64 s[60:61]
L_pc:
v_lshlrev_b32 v2, 7, v0
v_min_u32 v2, L_codeend-L_pc-4, v2
""")
if OPT.get("pfc", 1):
    A("global_load_dword v3, v2, s[60:61]")
A(f"""
s_or_b32 s60, s2, s{SW}
s_cbranch_scc0 L_ep
L_exit:
s_endpgm
""")
A_HEAD = len(A.lines)

sST, sHP, sB, sCT = 60, 61, 62, 63
sT0, sT1, sT2, sT3 = 64, 65, 66, 67
sEV, sLO = 68, 70
sCNT, sWOFF = 72, 73
sL2E = 48
sJ, sOWN, sXL = 50, 51, 68
XB, ACC, WF, NWF = 96, 56, 16, 7
vXA, vXR = 8, 10
ONE, CQ0, CQ1, CQ2 = 6, 8, 12, 16
vGA, vKT, vOT, vOA, ID, vGW = 1, 3, 5, 6, 44, 48
vPA, vPA1, vPW, vVW, vKA, vL16, vL8 = 49, 50, 51, 52, 53, 54, 55
LDS_X = 40960
LDS_PV, LDS_WP, LDS_Z, LDS_GATE = 0, 77824, 79424, 80384
LDS_QA, LDS_QB = 40960, 16384
LDS_AT, LDS_KVT, LDS_RED = 0, 10240, 13824


def Xr(c, sg, j):
    return XB + 32 * c + 8 * j + 4 * sg


def L(text):
    return [(lambda l=l: A(l)) for l in (x.strip() for x in text.strip().split("\n")) if l]


def run(lst):
    while lst:
        lst.pop(0)()


class Stream:
    def __init__(self, budget=3):
        self.ev, self.now, self.q, self.budget = {}, {}, [], budget

    def at(self, k, fs):
        self.ev.setdefault(k, []).extend(fs if isinstance(fs, list) else [fs])

    def exact(self, k, f):
        self.now.setdefault(k, []).append(f)

    def run(self, mm, reserve=lambda k: k & 1):
        for k, m in enumerate(mm):
            m()
            j = max(i for i in range(len(A.lines)) if "v_mfma" in A.lines[i] and i >= len(A.lines) - 12)
            self.q += self.ev.pop(k, [])
            while self.q and len(A.lines) - 1 - j < self.budget - reserve(k):
                self.q.pop(0)()
            if k in self.now:
                run(self.q)
                run(self.now.pop(k))
        run(self.q)
        assert not self.ev and not self.now


def flat(items):
    o = []
    for pre, ld in items:
        o += L(pre) + [ld]
    return o


def dma_addr(v, i, div, fields, extra, t0, vl):
    t1, t2 = t0 + 1, t0 + 2
    magic = {10: 6554, 5: 13108}[div]
    for q in range(1280):
        assert (q * magic) >> 16 == q // div
    o = []
    if i:
        o.append(f"v_add_u32 v{t0}, {64*i}, v{vl}")
    q_ = t0 if i else vl
    o.append(f"v_mul_u32_u24 v{t1}, {magic}, v{q_}")
    o.append(f"v_lshrrev_b32 v{t1}, 16, v{t1}")
    o.append(f"v_mad_i32_i24 v{t0}, v{t1}, -{div}, v{q_}")
    for n, (sb, w, db) in enumerate(fields):
        if n == 0:
            assert db == 0
            o.append(f"v_bfe_u32 v{v}, v{t1}, {sb}, {w}")
        else:
            o.append(f"v_bfe_u32 v{t2}, v{t1}, {sb}, {w}")
            o.append(f"v_lshl_or_b32 v{v}, v{t2}, {db}, v{v}")
    o.append(f"v_mul_u32_u24 v{v}, 240, v{v}")
    if extra:
        o.append(f"v_add_u32 v{t2}, 3, v{t0}")
        o.append(f"v_lshrrev_b32 v{t2}, 3, v{t2}")
        o.append(f"v_mul_u32_u24 v{t2}, {extra//16}, v{t2}")
        o.append(f"v_add3_u32 v{v}, v{v}, v{t0}, v{t2}")
        o.append(f"v_lshlrev_b32 v{v}, 4, v{v}")
    else:
        o.append(f"v_add_lshl_u32 v{v}, v{v}, v{t0}, 4")
    return "\n".join(o)


def softmax(P, E, OUT, tm, hook, ratio=False):
    mx, mn, acc, keep = tm, tm + 1, tm + 2, tm + 4
    A(f"v_max3_f32 v{mx}, v{P[0]}, v{P[1]}, v{P[2]}")
    A(f"v_min3_f32 v{mn}, v{P[0]}, v{P[1]}, v{P[2]}")
    for i in range(3, 19, 2):
        A(f"v_max3_f32 v{mx}, v{mx}, v{P[i]}, v{P[i+1]}")
        A(f"v_min3_f32 v{mn}, v{mn}, v{P[i]}, v{P[i+1]}")
    A(f"v_max_f32 v{mx}, v{mx}, v{P[19]}")
    A(f"v_min_f32 v{mn}, v{mn}, v{P[19]}")
    A(f"v_mul_f32 v{mx}, s{sL2E}, v{mx}")
    A(f"v_mul_f32 v{mn}, s{sL2E}, v{mn}")
    for half in range(2):
        D = E if half == 0 else P
        for i in range(0, 20, 2):
            for n in range(2):
                if half == 0:
                    A(f"v_fma_f32 v{D[i+n]}, v{P[i+n]}, s{sL2E}, -v{mx}")
                else:
                    A(f"v_fma_f32 v{D[i+n]}, -v{P[i+n]}, s{sL2E}, v{mn}")
            if i >= 4:
                for n in range(2):
                    A(f"v_add_f32 v{acc+n}, v{D[n] if i==4 else acc+n}, v{D[i-2+n]}")
            for n in range(2):
                A(f"v_exp_f32 v{D[i+n]}, v{D[i+n]}")
                hook(30 * half + i + n)
        A(f"v_add_f32 v{acc}, v{acc}, v{acc+1}")
        A(f"v_add_f32 v{acc}, v{acc}, v{D[18]}")
        plain = ratio and half == 0
        A(f"v_add_f32 v{keep if plain else acc}, v{acc}, v{D[19]}")
        if not plain:
            A(f"v_rcp_f32 v{acc}, v{acc}")
            if ratio:
                A(f"v_mul_f32 v{acc}, v{keep}, v{acc}")
        for i in range(0, 20, 2):
            if not plain:
                for n in range(2):
                    A(f"v_mul_f32 v{D[i+n]}, v{acc}, v{D[i+n]}")
            A(f"v_cvt_pk_bf16_f32 v{OUT+10*half+i//2}, v{D[i]}, v{D[i+1]}")
            hook(30 * half + 20 + i // 2)


class Hooks:
    def __init__(self):
        self.ev, self.q = {}, []

    def at(self, n, fs, burst=False):
        fs = fs if isinstance(fs, list) else [fs]
        self.ev.setdefault(n, []).extend([lambda fs=fs: run(fs)] if burst else fs)

    def __call__(self, n):
        self.q += self.ev.pop(n, [])
        if self.q:
            self.q.pop(0)()
        if n == 59:
            run(self.q)
            assert not self.ev


def scale(d, r, pk):
    if pk:
        A(f"v_pk_mul_f32 {V(d,2)}, {V(d,2)}, {V(r,2)}")
    else:
        A(f"v_mul_f32 v{d}, v{r}, v{d}")
        A(f"v_mul_f32 v{d+1}, v{r}, v{d+1}")


PHI = 8


def phi_frags(pf, vaddr, tag):
    o = []
    for t in range(3):
        for h in range(2):
            r = pf + 4 * t + 2 * h
            if t == 2 and h == 1:
                o += L(f"v_mov_b32 v{r}, 0\nv_mov_b32 v{r+1}, 0")
            else:
                o.append(lambda r=r, t=t, h=h: A.l(f"ds_read_b64_tr_b16 {V(r,2)}, v{vaddr} offset:{320*t+160*h}", tag))
    return o


def phi_mfma(t, op, pf0, pf1, pk0, pk1):
    A(f"v_mfma_f32_16x16x32_bf16 {V(pk1,4)}, {V(pf1+4*t,4)}, {V(op,4)}, {'0' if t==0 else V(pk1,4)}")
    A(f"v_mfma_f32_32x32x16_bf16 {V(pk0,16)}, {V(pf0+4*t,4)}, {V(op,4)}, {'0' if t==0 else V(pk0,16)}")


class FragPipe:
    def __init__(self, vaddr, look=5, phase=0):
        self.vaddr, self.look, self.phase = vaddr, look, phase

    def stream(self, frags, acc):
        reads = [(lambda i=i, o=o: A.l(f"ds_read_b128 {V(WF+4*((i+self.phase)%NWF),4)}, v{self.vaddr} offset:{o}", f"f{i}")) for i, (ks, t, o) in enumerate(frags)]
        out = []
        for i, (ks, t, o) in enumerate(frags):
            for sg in range(2):
                def m(i=i, ks=ks, t=t, sg=sg):
                    if i == 0 and sg == 0:
                        for _ in range(self.look):
                            reads.pop(0)()
                    if sg == 0:
                        A.lwait(f"f{i}")
                    d = V(acc + 8 * t + 4 * sg, 4)
                    A(f"v_mfma_f32_16x16x32_bf16 {d}, {V(WF+4*((i+self.phase)%NWF),4)}, {V(Xr(ks//4,sg,ks%4),4)}, {'0' if ks==0 else d}")
                    if reads and sg == 0:
                        reads.pop(0)()
                out.append(m)
        return out


def role_B():
    A.c("---- B prologue")
    sXO, sWO2, sQO, sKW, sKF, sOF, sWC, sUT = 69, 70, 71, 74, 30, 31, 24, 25
    sKS, sRH, sUS, sKA, sUO, sROLE = 100, 101, 72, 18, 100, 49
    A(f"""
L_B:
s_cmp_ge_u32 s2, {ID_END}
s_cbranch_scc1 L_exit
s_setprio {OPT.get('prioB', 2)}
s_sub_u32 s{sT0}, s2, {ID_B}
s_bfe_u32 s{sB}, s{sT0}, 0x10002
s_and_b32 s{sST}, s{sT0}, 3
s_lshr_b32 s{sROLE}, s{sT0}, 3
s_lshl_b32 s{sT3}, s{SW}, 10
""")
    ASYM = OPT.get("asym", 1)
    NT = " nt" if OPT.get("nt", 1) else ""
    vU = 80
    if ASYM:
        A(f"s_mov_b32 s{sKS}, s{sROLE}\ns_lshl_b32 s{sT1}, s{sB}, 5\ns_add_u32 s{sROLE}, s{sROLE}, s{sT1}")
    else:
        A(f"s_lshr_b32 s{sKS}, s{sT0}, 2")
    IS_NOT_REPACKER = f"s_cmp_ge_u32 s{sROLE}, {20 if ASYM else 10}"
    IS_IDLE = f"s_cmp_eq_u32 s{sHP}, 15" if ASYM else f"s_cmp_lt_u32 s{sROLE}, 12"
    A(f"""
v_lshrrev_b32 v2, 3, v0
v_lshrrev_b32 v3, 4, v0
v_xor_b32 v3, v3, v0
v_and_b32 v3, 7, v3
v_mul_u32_u24 v2, 240, v2
v_add_lshl_u32 v{vU}, v2, v3, 4
{IS_NOT_REPACKER}
s_cbranch_scc1 L_e0
s_mul_i32 s{sUS}, s{sST}, 320
s_and_b32 s{sUS}, s{sUS}, 0xffffff80
s_mul_i32 s{sT1}, s{sKS}, {32*3840}
s_add_u32 s{sUS}, s{sUS}, s{sT1}
s_waitcnt lgkmcnt(0)
""")
    srd(R_W, P_WQKV, 2457600)

    def unit_load(sec, tag=None):
        for j_ in range(3):
            A(f"s_add_u32 m0, s{sT3}, {4096*(3*((sec+2)%3)+j_)}")
            A(f"s_add_u32 s{sT1}, s{sUS}, {1280*sec+128*j_}")
            (A if tag is None else lambda t: A.v(t, tag))(f"buffer_load_dwordx4 v{vU}, {S(R_W,4)}, s{sT1} offen{NT} lds")
    unit_load(1)
    unit_load(2)
    A(f"""
L_e0:
s_lshl_b32 s{sRH}, s{sST}, 2
s_add_u32 s{sRH}, s{sRH}, s{SW}
s_bfe_u32 s{sT1}, s{sT0}, 0x20003
s_lshr_b32 s{sCT}, s{sT0}, 5
s_sub_u32 s{sCT}, 7, s{sCT}
s_lshl_b32 s{sST}, s{sST}, 2
s_add_u32 s{sST}, s{sST}, s{sT1}
s_lshl_b32 s{sHP}, s{sB}, 3
s_add_u32 s{sHP}, s{sHP}, s{sCT}
s_cmp_eq_u32 s{sB}, 0
s_mov_b32 s{sJ}, {0x09875421 if ASYM else 0x95197531:#x}
s_cselect_b32 s{sJ}, {0x97418630 if ASYM else 0x84086420:#x}, s{sJ}
s_lshl_b32 s{sT2}, s{sCT}, 2
s_lshr_b32 s{sJ}, s{sJ}, s{sT2}
s_and_b32 s{sJ}, s{sJ}, 15
s_mul_i32 s{sT1}, s{sT1}, 3
s_add_u32 s{sJ}, s{sJ}, s{sT1}
s_sub_u32 s{sT1}, s{sJ}, 10
s_min_u32 s{sJ}, s{sJ}, s{sT1}
v_bfe_u32 v2, v0, 3, 3
v_lshl_add_u32 v2, v1, 5, v2
v_mul_u32_u24 v{vXA}, 1280, v2
v_bfe_u32 v2, v0, 4, 2
v_and_b32 v3, 7, v0
v_xor_b32 v2, v2, v3
s_mul_i32 s{sT1}, s{sST}, 163840
v_lshl_add_u32 v{vXA}, v2, 4, v{vXA}
v_add_u32 v{vXA}, s{sT1}, v{vXA}
v_xor_b32 v{vXA+1}, 64, v{vXA}
v_add_u32 v{vXA+1}, {10240-1024}, v{vXA+1}
s_lshl_b32 s{sXL}, s{SW}, 13
s_lshl_b32 s{sXO}, s{sJ}, 7
s_mul_i32 s{sWO2}, s{sJ}, 10240
s_add_u32 s{sWO2}, s{sWO2}, s{sT3}
s_mul_i32 s{sQO}, s{sJ}, 6144
s_add_u32 s{sQO}, s{sQO}, s{sT3}
s_mov_b32 s{sL2E}, {LOG2E:#x}
""")
    t0, t1, t2, t3 = 56, 57, 58, 59
    a0, a1, a2, a3 = 56, 57, 58, 59
    m0_, m1_ = S(56, 2), S(58, 2)
    setup = L(f"""
v_and_b32 v{vL8}, 63, v0
v_lshlrev_b32 v{vL16}, 4, v{vL8}
v_lshlrev_b32 v{vL8}, 3, v{vL8}
v_and_b32 v{t0}, 15, v0
v_lshrrev_b32 v{t1}, 1, v{t0}
v_bfe_u32 v{t2}, v0, 4, 2
v_xor_b32 v{t1}, v{t1}, v{t2}
v_lshlrev_b32 v{t1}, 4, v{t1}
v_lshl_add_u32 v{vXR}, v{t0}, 7, v{t1}
v_add_u32 v{vXR}, s{sXL}, v{vXR}
v_xor_b32 v{vXR+1}, 64, v{vXR}
v_lshrrev_b32 v{t1}, 5, v0
v_lshl_add_u32 v{vGW}, v{t1}, 4, v{t0}
v_lshlrev_b32 v{vGW}, 2, v{vGW}
v_add_u32 v{vGW}, {LDS_GATE}, v{vGW}
v_bfe_u32 v{t0}, v0, 5, 1
v_and_b32 v{t1}, 1, v0
v_bfe_u32 v{t2}, v0, 1, 1
v_cmp_eq_u32 {m0_}, v{t1}, v{t0}
v_mul_u32_u24 v{vPA1}, 800, v{t0}
v_bfe_u32 v{t1}, v0, 2, 2
v_mad_u32_u24 v{vPA1}, v{t1}, 40, v{vPA1}
v_add_u32 v{vPA1}, {LDS_WP}, v{vPA1}
v_lshl_add_u32 v{vPA}, v{t2}, 3, v{vPA1}
v_bfe_u32 v{t2}, v0, 4, 1
v_lshl_add_u32 v{vPA}, v{t2}, 4, v{vPA}
v_mov_b32 v{t3}, {LDS_Z}
v_cndmask_b32 v{vPA}, v{t3}, v{vPA}, {m0_}
v_lshlrev_b32 v{vKA}, 1, v{t0}
v_lshl_add_u32 v{vKA}, v{t1}, 2, v{vKA}
v_mul_u32_u24 v{vKA}, 272, v{vKA}
v_and_b32 v{t1}, 3, v0
v_lshl_add_u32 v{t2}, v{t2}, 2, v{t1}
v_lshl_add_u32 v{vKA}, v{t2}, 3, v{vKA}
v_bfe_u32 v{t2}, v0, 4, 2
v_cmp_eq_u32 {m0_}, v{t1}, v{t2}
v_add_u32 v{vPA1}, 32, v{vPA1}
v_and_b32 v{t1}, 31, v0
v_lshrrev_b32 v{t2}, 6, v0
v_cndmask_b32 v{vPA1}, v{t3}, v{vPA1}, {m0_}
v_lshl_add_u32 v{t1}, v{t2}, 5, v{t1}
v_mul_u32_u24 v{t1}, 272, v{t1}
v_mul_u32_u24 v{t3}, 80, v{t0}
v_add_u32 v{vPW}, v{t1}, v{t3}
v_mad_u32_u24 v{vVW}, v{t0}, 48, v{t1}
v_mad_u32_u24 v{vKA}, v{t2}, 40, v{vKA}
v_and_b32 v{vGA}, 31, v0
v_add_u32 v{vGA+1}, 32, v{vGA}
v_min_u32 v{vGA+1}, 54, v{vGA+1}
v_bfe_u32 v{a3}, v0, 5, 1
v_lshlrev_b32 v{a0}, 3, v{a3}
v_lshl_add_u32 v{vOT}, v{vGA}, 4, v{a0}
v_lshlrev_b32 v{a0}, 10, v{a3}
v_lshl_add_u32 v{vGA}, v{vGA}, 4, v{a0}
v_lshl_add_u32 v{vGA+1}, v{vGA+1}, 4, v{a0}
v_and_b32 v{a0}, 15, v0
v_bfe_u32 v{a1}, v0, 4, 1
v_mad_i32_i24 v{a2}, v{a1}, -8, v{a0}
v_lshl_add_u32 v{a0}, v{a3}, 4, v{a0}
v_and_b32 v{vKT}, 1, v{a2}
v_lshlrev_b32 v{vKT}, 4, v{vKT}
v_mov_b32 v{vKT+1}, 0x3f80
v_lshlrev_b32 v{vKT}, v{vKT}, v{vKT+1}
v_lshrrev_b32 v{a2}, 1, v{a2}
v_cmp_eq_u32 {m0_}, 0, v{a2}
v_cmp_eq_u32 {m1_}, 1, v{a2}
s_lshr_b32 s73, s{SW}, 1
v_cndmask_b32 v{ID}, 0, v{vKT}, {m0_}
v_cndmask_b32 v{ID+1}, 0, v{vKT}, {m1_}
v_cmp_eq_u32 {m0_}, 2, v{a2}
v_cmp_eq_u32 {m1_}, 3, v{a2}
s_mul_i32 s73, s73, 1680
v_cndmask_b32 v{ID+2}, 0, v{vKT}, {m0_}
v_cndmask_b32 v{ID+3}, 0, v{vKT}, {m1_}
s_mul_i32 s75, s{SW}, 40
s_add_u32 s73, s73, s75
s_add_u32 s73, s73, {LDS_KVT}
v_cmp_le_u32 {m0_}, 22, v{a0}
v_cmp_le_u32 {m1_}, 12, v{a0}
v_mul_u32_u24 v{vKT}, 80, v{a0}
v_mov_b32 v{a2}, {8-22*80}
v_cndmask_b32 v{a2}, 0, v{a2}, {m0_}
v_lshl_add_u32 v{vKT}, v{a1}, 4, v{vKT}
v_add_u32 v{vKT+1}, 808, v{vKT}
v_add3_u32 v{vKT}, v{vKT}, v{a2}, s73
v_lshl_add_u32 v{a2}, v{a0}, 1, v{a1}
v_mul_u32_u24 v{a2}, 80, v{a2}
v_subrev_u32 v{a2}, {24*80-32}, v{a2}
v_cndmask_b32 v{vKT+1}, v{vKT+1}, v{a2}, {m1_}
v_add_u32 v{vKT+1}, s73, v{vKT+1}
v_bfe_u32 v{a0}, v0, 2, 1
v_cmp_eq_u32 {m0_}, v{a0}, v{a3}
v_bfe_u32 v{a1}, v0, 3, 2
v_and_b32 v{a2}, 3, v0
v_lshl_add_u32 v{a1}, v{a1}, 2, v{a2}
v_mad_u32_u24 v{a1}, v{a0}, 22, v{a1}
v_mul_u32_u24 v{a1}, 80, v{a1}
v_add_u32 v{vOA}, {LDS_KVT}, v{a1}
v_add_u32 v{vOA+1}, {LDS_KVT+1280}, v{a1}
v_mov_b32 v{a2}, {LDS_Z}
v_cndmask_b32 v{vOA}, v{a2}, v{vOA}, {m0_}
v_cndmask_b32 v{vOA+1}, v{a2}, v{vOA+1}, {m0_}
v_lshlrev_b32 v{t1}, 2, v0
v_min_u32 v{t1}, 700, v{t1}
v_add_u32 v{t1}, {LDS_Z}, v{t1}
v_mov_b32 v{t2}, 0
""")
    setup.append(lambda a_=t1, b_=t2: A.l(f"ds_write_b32 v{a_}, v{b_}", "z"))
    def wrap(sreg, step, size):
        return f"s_add_u32 s{sreg}, s{sreg}, {step}\ns_sub_u32 s{sT2}, s{sreg}, {size}\ns_min_u32 s{sreg}, s{sreg}, s{sT2}\n"

    def xslot(u):
        return 2048 * (u & 3) + (0 if BORROW and 4 <= u < 8 else LDS_X)

    def issue_x(u):
        if u >= 20:
            return []
        pre = f"s_add_u32 m0, s{sXL}, {xslot(u)}\n"
        if u & 1:
            pre += f"s_add_u32 s{sT0}, s{sXO}, 20480\n" + wrap(sXO, 128, 1280)
        so = sT0 if u & 1 else sXO
        return [(pre if i == 0 else "", lambda i=i: A.v(f"buffer_load_dwordx4 v{vXA+i}, {S(R_X,4)}, s{so} offen offset:{1024*i} lds", f"x{u}")) for i in range(2)]

    def read_x(u):
        A.vwait(f"x{u}")
        for jj in range(2):
            A.l(f"ds_read_b128 {V(Xr(u//4,u&1,(u&2)+jj),4)}, v{vXR+jj} offset:{xslot(u)}", f"xr{u}")

    wround, qround = [0], [0]

    def issue_w(upto):
        o = []
        for i in range(wround[0], min(upto, 25)):
            pre = f"s_add_u32 m0, s{sT3}, {4096*(i%10)}\n" + (wrap(sWO2, 4096, 102400) if i else "")
            o.append((pre, lambda i=i: A.v(f"buffer_load_dwordx4 v{vL16}, {S(R_W,4)}, s{sWO2} offen sc1 lds", f"w{i}")))
        wround[0] = max(wround[0], min(upto, 25))
        return o

    def issue_q(upto):
        o = []
        for i in range(qround[0], upto):
            pre = f"s_add_u32 m0, s{sT3}, {LDS_QA+4096*i if i < 9 else LDS_QB+4096*(i-9)}\n" + (wrap(sQO, 4096, 61440) if i else "")
            o.append((pre, lambda i=i: A.v(f"buffer_load_dwordx4 v{vL16}, {S(R_M1,4)}, s{sQO} offen sc1 lds", f"q{i}")))
        qround[0] = upto
        return o
    NEED = lambda h: (10 * h + 9) // 4 + 1
    FREED = lambda h: (10 * h + 6) // 4 + 1

    U2, U3 = OPT.get("u2", 3), OPT.get("u3", 3)
    BORROW = False

    def guarded(cmp_, f):
        _lab[0] += 1
        k = _lab[0]
        A(cmp_)
        A(f"s_cbranch_scc1 L_rp{k}")
        f()
        A(f"L_rp{k}:")
    for _ in range(OPT.get("npre", 60)):
        setup.pop(0)()
    A("s_waitcnt lgkmcnt(0)")
    srd(R_W, P_WQKV, 2457600)
    srd(R_X, P_U, 2621440)
    A(f"""
s_lshl_b32 s{sKA}, s{sRH}, 8
s_mov_b32 s{sOWN}, 0
{IS_NOT_REPACKER}
s_cbranch_scc0 L_e1j
""")
    run(flat(issue_x(0) + issue_x(1)))
    A(f"""
s_lshl_b32 s{sKA}, s{sJ}, 8
s_add_u32 s{sKA}, s{sKA}, {C_UT}
{IS_IDLE}
s_cselect_b32 s{sOWN}, 5, 0
s_lshl_b32 s{sRH}, s{SW}, 3
s_add_u32 s{sOWN}, s{sOWN}, s{sRH}
s_sub_u32 s{sRH}, s{sOWN}, 24
""")
    IS_NOT_WO = f"s_cmp_ge_u32 s{sRH}, 5"
    sAJ, sW0, sW1, sW2, t0, t1, t2, t3 = 14, 15, 16, 17, 8, 9, 12, 13

    def wo_fetch():
        A(f"""
s_mul_i32 s{sAJ}, s{sST}, 10
s_add_u32 s{sAJ}, s{sAJ}, s{sJ}
s_mov_b32 s{sOWN}, 0
s_lshr_b32 s{t0}, s{sAJ}, 3
s_mul_i32 s{t1}, s{t0}, 52
s_lshr_b32 s{t1}, s{t1}, 8
s_and_b32 s{sKA}, s{sAJ}, 4
s_mul_i32 s{sW2}, s{sKA}, 102400
s_mul_i32 s{t3}, s{sKA}, 160
s_add_u32 s{sKA}, s{sKA}, s{t1}
s_lshl_b32 s{sKA}, s{sKA}, 8
s_add_u32 s{sKA}, s{sKA}, {C_WO}
s_mul_i32 s{t2}, s{t0}, 5120
s_add_u32 s{sW2}, s{sW2}, s{t2}
s_and_b32 s{t2}, s{sAJ}, 3
s_lshl_b32 s{sW0}, s{t2}, 8
s_add_u32 s{sW2}, s{sW2}, s{sW0}
s_add_u32 s{sW2}, s{sW2}, {WS_WO}
s_mul_i32 s{sW0}, s{t1}, 5
s_sub_u32 s{t0}, s{t0}, s{sW0}
s_and_b32 s{sW0}, s{t2}, 1
s_mul_i32 s{sW0}, s{sW0}, 20
s_lshr_b32 s{sW1}, s{t2}, 1
s_lshl_b32 s{sW1}, s{sW1}, 3
s_add_u32 s{sW0}, s{sW0}, s{sW1}
s_mul_i32 s{sW1}, s{t0}, 40
s_add_u32 s{sW0}, s{sW0}, s{sW1}
s_mul_i32 s{t2}, s{t2}, 40
s_add_u32 s{t2}, s{t2}, 16
s_cmp_eq_u32 s{t0}, 4
s_cselect_b32 s{sW0}, s{t2}, s{sW0}
s_cselect_b32 s{sW1}, 20, 4
s_mul_i32 s{t1}, s{t1}, 160
s_add_u32 s{sW0}, s{sW0}, s{t1}
s_add_u32 s{sW1}, s{sW1}, s{sW0}
s_mul_i32 s{sW0}, s{sW0}, 1280
s_mul_i32 s{sW1}, s{sW1}, 1280
s_add_u32 s{sW0}, s{sW0}, s{t3}
s_add_u32 s{sW1}, s{sW1}, s{t3}
s_sub_u32 s{sW1}, s{sW1}, 5120
v_and_b32 v95, 63, v0
""")
        srd(R_M1, P_WO, 819200)
        for i, so, ex in ((0, sW0, None), (1, sW0, None), (2, sW0, "exec_hi, 0"), (2, sW1, "not"), (3, sW1, None), (4, sW1, None)):
            if ex != "not":
                A(f"""
s_mov_b64 exec, -1
v_add_u32 v92, {64*i}, v95
v_mul_u32_u24 v93, 205, v92
v_lshrrev_b32 v93, 13, v93
v_mad_u32_u24 v92, v93, 40, v92
s_movk_i32 s{t0}, {1024*i}
s_mov_b32 m0, s{t0}
v_lshlrev_b32 v92, 4, v92
""")
            if ex:
                A("s_not_b64 exec, exec" if ex == "not" else f"s_mov_b32 {ex}")
            A(f"buffer_load_dwordx4 v92, {S(R_M1,4)}, s{so} offen{NT} lds")
    for q in range(320):
        assert (q * 205) >> 13 == q // 40
    guarded(IS_NOT_WO, wo_fetch)
    A("L_e1j:")
    assert sOWN == 51
    arriver = lambda f: guarded(f"s_cmp_ge_u32 s{sOWN}, 5", f)
    load_epoch()
    arriver(lambda: cnt_read(CQ0 + 2, sKA))
    stamp("B", "iss0")
    srd(R_WS, P_WS, WS_SIZE)
    A(f"""
s_mov_b64 {S(ONE,2)}, 1
s_mov_b64 {S(CQ1,2)}, 256
s_lshl_b32 s{sKF}, s{sHP}, 2
s_add_u32 s{sKF}, s{sKF}, s{SW}
s_lshl_b32 s{sKF}, s{sKF}, 8
s_add_u32 s{sKF}, s{sKF}, {C_KV}
s_lshl_b32 s{sOF}, s{sST}, 1
s_lshr_b32 s{sT1}, s{SW}, 1
s_add_u32 s{sOF}, s{sOF}, s{sT1}
s_lshl_b32 s{sOF}, s{sOF}, 2
s_lshr_b32 s{sT1}, s{sHP}, 2
s_add_u32 s{sOF}, s{sOF}, s{sT1}
s_lshl_b32 s{sOF}, s{sOF}, 8
s_add_u32 s{sOF}, s{sOF}, {C_O}
s_lshl_b32 s{sKW}, s{sHP}, 8
""")
    run(setup)
    srd(R_M2, P_OUT, 2621440)
    stamp("B", "setup")
    A.lwait_all()
    make_tag()
    arriver(lambda: cnt_claim(CQ0, sKA))
    A(IS_NOT_REPACKER)
    A("s_cbranch_scc1 L_e2x")
    A.c("---- repack")
    srd(R_M1, P_GATE, 1280)
    vT, vTq = 16, 26
    A(f"""
v_bfe_u32 v92, v0, 4, 2
v_bfe_u32 v93, v0, 2, 2
v_lshl_add_u32 v92, v92, 3, v93
v_bfe_u32 v93, v92, 1, 3
v_lshlrev_b32 v93, 4, v93
v_lshlrev_b32 v92, 7, v92
s_and_b32 s{sT1}, s{sRH}, 4
s_lshl_b32 s{sT1}, s{sT1}, 4
s_mul_i32 s{sT2}, s{SW}, 80
s_add_u32 s{sT1}, s{sT1}, s{sT2}
v_bfe_u32 v94, v0, 1, 1
v_mad_u32_u24 v94, v94, 40, s{sT1}
v_and_b32 v95, 1, v0
v_lshl_add_u32 v91, v95, 4, v94
v_mul_u32_u24 v95, 12288, v95
v_add_u32 v95, v95, v92
""")
    for n, (col, add, base) in enumerate([(94, 8 * t, 95) for t in range(5)] + [(91, o, 92) for o in (0, 8, 32)]):
        r = vT + 2 * n
        A(f"""
v_add_u32 v88, {add}, v{col}
v_lshrrev_b32 v89, 7, v88
v_and_b32 v88, 127, v88
v_xor_b32 v88, v88, v93
v_lshl_add_u32 v89, v89, 12, v{base}
v_add_u32 v{r}, v88, v89
v_xor_b32 v{r+1}, 32, v{r}
""")
    A(f"""
v_and_b32 v90, 0x30, v0
s_mul_i32 s73, s{sRH}, 20
s_add_u32 s73, s73, s{sKS}
s_mul_i32 s75, s73, 3072
s_add_u32 s75, s75, {WS_WQ}
s_mul_i32 s73, s73, 5120
s_add_u32 s73, s73, {WS_WKV}
s_lshl_b32 s16, s{sRH}, 2
s_add_u32 s16, s16, s{sKS}
s_lshl_b32 s16, s16, 8
s_add_u32 s16, s16, {C_KV}
s_lshl_b32 s17, s{sKS}, 1
s_add_u32 s17, s17, s{SW}
s_lshl_b32 s17, s17, 2
s_lshr_b32 s{sT1}, s{sRH}, 2
s_add_u32 s17, s17, s{sT1}
s_lshl_b32 s17, s17, 8
s_add_u32 s17, s17, {C_O}
s_lshl_b32 s19, s{SW}, 3
s_and_b32 s19, s19, 16
s_add_u32 s19, s19, s{sKS}
""")
    guarded(f"s_cmp_ge_u32 s{sKS}, 4", lambda: cnt_init(16))
    guarded(f"s_cmp_ge_u32 s19, 16", lambda: cnt_init(17))
    keep, A.vm = A.vm, []
    A("s_waitcnt vmcnt(0)")
    A("s_barrier")
    names = list(stampnames.get("B", []))
    stamp("B", "ukv")
    for t in range(5):
        for h in range(2):
            A(f"ds_read_b64_tr_b16 {V(56+4*t+2*h,2)}, v{vT+2*t+h} offset:{512*h}")
    lwait_lds(92, vL8, 5)
    for t in range(5):
        if t == 4:
            A("s_add_u32 s73, s73, 4096")
        A.v(f"buffer_store_dwordx4 {V(56+4*t,4)}, v{vL16}, {S(R_WS,4)}, s73 offen offset:{1024*(t%4)} sc1", "kst")
    A("s_barrier")
    unit_load(0, "uq")
    A(f"s_lshl_b32 s19, s{sKS}, 6")
    A.v(f"buffer_load_dwordx4 {V(76,4)}, v90, {S(R_M1,4)}, s19 offen", "uq")
    A.vwait("kst")
    A.lwait_all()
    A("s_barrier")
    cnt_add(ONE, sKA)
    stamp("B", "kflag")
    QL = OPT.get("ql", 1)
    run(flat(issue_x(0) + issue_x(1) + (issue_x(2) + issue_x(3) if QL else [])))
    A("s_mov_b32 s16, 0xf0f0f0f0")
    A("s_mov_b32 s17, 0xf0f0f0f0")
    A.vwait("uq")
    A("s_barrier")
    for t in range(3):
        for h in range(2):
            A(f"ds_read_b64_tr_b16 {V(56+4*t+2*h,2)}, v{vTq+2*t+h} offset:{24576+512*h}")
    lwait_lds(92, vL8, 4)
    for p in range(4):
        A(f"v_cndmask_b32 v{64+p}, v{64+p}, v{76+p}, {S(16,2)}")

    def q_store():
        for t in range(3):
            A(f"buffer_store_dwordx4 {V(56+4*t,4)}, v{vL16}, {S(R_WS,4)}, s75 offen offset:{1024*t} sc1")
    if not QL:
        q_store()
        run(flat(issue_x(2) + issue_x(3)))
    A("s_branch L_e2j")
    A("L_e2x:")
    A.c("---- slice hand-over")
    A.vm = keep
    if OPT["stamps"]:
        stampnames["B"] = names
    A(f"""
v_bfe_u32 v81, v0, 4, 2
v_bfe_u32 v80, v0, 2, 2
v_lshl_add_u32 v81, v81, 3, v80
v_bfe_u32 v82, v81, 1, 3
v_bfe_u32 v83, v0, 1, 1
v_xor_b32 v82, v82, v83
v_lshlrev_b32 v82, 4, v82
v_lshl_add_u32 v81, v81, 7, v82
v_and_b32 v82, 1, v0
v_lshl_add_u32 v81, v82, 3, v81
v_add_u32 v81, s{sXL}, v81
v_bfe_u32 v82, v0, 2, 2
v_lshlrev_b32 v82, 14, v82
v_and_b32 v83, 3, v0
v_lshl_add_u32 v82, v83, 4, v82
v_and_b32 v83, 0x30, v0
v_lshl_add_u32 v82, v83, 2, v82
v_xor_b32 v93, 32, v81
v_xor_b32 v94, 64, v81
v_xor_b32 v95, 96, v81
s_lshl_b32 s{sT1}, s{sST}, 2
s_add_u32 s{sT1}, s{sT1}, s{SW}
s_lshl_b32 s{sT1}, s{sT1}, 8
s_lshl_b32 s73, s{sJ}, 18
s_add_u32 s{sT1}, s{sT1}, s73
s_add_u32 s{sUO}, s{sT1}, {WS_UT}
s_waitcnt vmcnt(0)
""")
    stamp("B", "ukv")
    TA_ = [81, 93, 94, 95]

    def hand_over():
        for it in range(4):
            for h in range(2):
                A(f"ds_read_b64_tr_b16 {V(60+4*it+2*h,2)}, v{TA_[it ^ h]} offset:{LDS_X+512*h}")
        lwait_lds(92, vL8, 4)
        for it in range(0 if OPT.get('nout') else 4):
            A(f"buffer_store_dwordx4 {V(60+4*it,4)}, v82, {S(R_WS,4)}, s{sUO} offen sc1")
            if it < 3:
                A(f"s_add_u32 s{sUO}, s{sUO}, 65536")

    def wo_put():
        WL, WU, WD = 16, 32, 224
        A(f"""
v_bfe_u32 v84, v0, 4, 2
v_and_b32 v85, 15, v0
v_mul_u32_u24 v86, 160, v84
v_lshl_add_u32 v87, v85, 1, v86
v_lshl_add_u32 v86, v85, 3, v86
v_mul_u32_u24 v84, 102400, v84
v_lshl_add_u32 v84, v85, 4, v84
s_mov_b32 s{sW0}, 0x05040100
s_mov_b32 s{sW1}, 0x07060302
""")
        for e in range(8):
            A(f"ds_read_b64 {V(WL+2*e,2)}, v86 offset:{640*e}")
            A(f"ds_read_u16 v{WU+e}, v87 offset:{640*e+128}")
        lwait_lds(92, vL8, 4)
        for jn in range(4):
            for p in range(4):
                A(f"v_perm_b32 v{WD+4*jn+p}, v{WL+2*(2*p+1)+(jn>>1)}, v{WL+2*(2*p)+(jn>>1)}, s{sW0+(jn&1)}")
            A(f"buffer_store_dwordx4 {V(WD+4*jn,4)}, v84, {S(R_WS,4)}, s{sW2} offen offset:{1024*jn} sc1")
        for p in range(4):
            A(f"v_lshl_or_b32 v{WD+16+p}, v{WU+2*p+1}, 16, v{WU+2*p}")
        A(f"s_add_u32 s{sW2}, s{sW2}, 4096")
        A(f"buffer_store_dwordx4 {V(WD+16,4)}, v84, {S(R_WS,4)}, s{sW2} offen sc1")
    guarded(IS_IDLE, hand_over)
    guarded(IS_NOT_WO, wo_put)
    if OPT.get("ordb", 1):
        A("s_barrier")
    run(flat(issue_x(2) + issue_x(3)))
    A("s_waitcnt vmcnt(4) lgkmcnt(0)")
    A("s_barrier")
    arriver(lambda: cnt_add(ONE, sKA))
    stamp("B", "kflag")
    A("L_e2j:")
    assert A.vm == ["x0", "x0", "x1", "x1", "x2", "x2", "x3", "x3"]
    A.lg = ["_"] * 4
    srd(R_M1, P_WPHI, 25600)
    A(f"""
s_mul_i32 s{sT1}, s{SW}, 400
s_add_u32 m0, s{sT1}, {LDS_WP}
s_mul_i32 s{sT2}, s{sHP}, 1600
s_add_u32 s{sT1}, s{sT1}, s{sT2}
s_mov_b64 exec, 0x1ffffff
""")
    A.v(f"buffer_load_dwordx4 v{vL16}, {S(R_M1,4)}, s{sT1} offen lds", "wp")
    A(f"""
s_mov_b64 exec, -1
s_mul_i32 s{sT1}, s{sHP}, 102400
s_add_u32 s{sT1}, s{sT1}, {WS_WKV}
s_add_u32 s{R_W}, s{P_WS}, s{sT1}
s_addc_u32 s{R_W+1}, s{P_WS+1}, 0
s_mov_b32 s{R_W+2}, 102400
s_mul_i32 s{sT1}, s{sHP}, 61440
s_add_u32 s{sT1}, s{sT1}, {WS_WQ}
s_add_u32 s{R_M1}, s{P_WS}, s{sT1}
s_addc_u32 s{R_M1+1}, s{P_WS+1}, 0
s_mov_b32 s{R_M1+2}, 61440
""")
    stamp("B", "iss1")
    refill = lambda u: u + 4

    A.c("---- x tile -> registers")
    assert U3 >= 2
    U1 = OPT.get("u1", 99)
    for u in range(U3 + 1):
        read_x(u)
        ld = []
        if u == 2 and not QL:
            guarded(IS_NOT_REPACKER, lambda: cnt_add(CQ1, sKA))
        if u:
            A.lwait(f"xr{u-1}")
            ld += issue_x(refill(u - 1))
        if u == U2:
            run(flat(ld))
            ld = []
            if U1 < U2:
                only_wave(0, lambda: cnt_async(CQ0, 14, sKW, 20, sCNT, low=True, nap=OPT.get('napw', 0)))
            else:
                only_wave(0, lambda: cnt_wait(CQ0, sKW, 20, sCNT, probed=False, low=True, nap=OPT.get('napw', 0)))
            A("s_barrier")
            stamp("B", "kwseen")
        if u >= U2:
            run(flat(issue_w(min(10, wround[0] + (OPT.get("w1st", 10) if u == U2 else OPT.get("wper", 2))))))
        if u == U2 and QL:
            guarded(IS_NOT_REPACKER, q_store)
            A.vm.append("qs")
            QMARK = len(A.vm)
            A.vm.pop()
            UQ = U2 + 4
        run(flat(ld))
        if u == U1 < U2:
            only_wave(0, lambda: cnt_read(CQ0, sKW))

    def ready(h):
        A.vwait(f"w{NEED(h)-1}")
        A("s_barrier")
        stamp("B", f"w{h}")


    A.c("---- GEMM1a: k and v for two heads, 20 k-steps in one stream")
    run(flat(issue_w(NEED(1))))
    ready(0)
    pipe = FragPipe(vL16, phase=5)
    mm = pipe.stream([(n // 5, n % 5, 1024 * (n % 40)) for n in range(100)], ACC)
    st_ = Stream()
    st_.at(0, flat(issue_w(10)))
    u = U3 + 1
    assert not QL or UQ > U3
    lastx = [0]
    for h in range(10):
        k0 = 20 * h
        for kk in {2: (0, 12), 3: (0, 5, 14), 4: (0, 4, 11, 15)}[OPT.get("xper", 2)]:
            if u < 20:
                st_.at(k0 + kk, [lambda u=u: read_x(u), lambda u=u: A.lwait(f"xr{u-1}")] + flat(issue_x(refill(u - 1))))
                if QL and u == UQ:
                    st_.at(k0 + kk, lambda: guarded(IS_NOT_REPACKER, lambda: cnt_add(CQ1, sKA)))
                u += 1
                lastx[0] = k0 + kk
        if h < 9:
            st_.exact(k0 + 19 - 2 * pipe.look, lambda h=h: ready(h + 1))
            mm[k0 + 20] = (lambda f=mm[k0 + 20], h=h: (need_x(h + 1), f()))
        if h:
            st_.at(k0 + 20 - 2 * pipe.look, flat(issue_w(10 + FREED(h - 1))))

    def need_x(h):
        assert f"x{2*h+1}" not in A.vm
        A.lwait(f"xr{2*h}", f"xr{2*h+1}")

    HQ = OPT.get("hq", 8)
    assert u == 20 and lastx[0] < 20 * HQ
    st_.at(20 * HQ - 50, L(f"""
s_and_b32 s{sWC}, s{sCT}, 4
s_add_u32 s{sWC}, s{sWC}, s{SW}
s_lshl_b32 s{sWC}, s{sWC}, 8
s_add_u32 s{sWC}, s{sWC}, {C_WO}
""") + [lambda: only_wave(0, lambda: cnt_read(CQ0, sKW)), lambda: cnt_read(CQ0 + 2, sWC)])
    st_.at(20 * HQ + 2, [lambda: A.lwait("xr19"), lambda: only_wave(0, lambda: cnt_async(CQ0, 14, sKW, 20 * 257, sCNT, nap=2))])
    for h in range(HQ, 10 if OPT.get("qin", 0) else 0):
        st_.at(20 * h + 21 - 2 * pipe.look, flat(issue_q(9 if h == 9 else min(9, qround[0] + OPT.get("qper", 3)))))
    KP, VP = 8, 20
    PF0, PF1, PK0, PK1 = 56, 68, 80, 32

    def cvt_tile(acc, t, d0, d1):
        return [(lambda sg=sg, hh=hh: A(f"v_cvt_pk_bf16_f32 v{(d0 if sg==0 else d1)+2*t+hh}, v{acc+8*t+4*sg+2*hh}, v{acc+8*t+4*sg+2*hh+1}")) for sg in range(2) for hh in range(2)]
    st_.at(192, L(f"v_mov_b32 v{KP+10}, 0\nv_mov_b32 v{KP+11}, 0"))
    st_.at(195, cvt_tile(ACC, 0, KP, VP))
    st_.at(197, cvt_tile(ACC, 1, KP, VP))
    need_x(0)
    st_.run(mm)
    assert wround[0] == 25
    stamp("B", "g1a")
    if OPT.get("fine"):
        finish("B")
        return

    A.c("---- phi_k, kv partial")
    swap = lambda a_, b_, i0, i1: [A(f"v_permlane16_swap_b32 v{a_+i}, v{b_+i}") for i in range(i0, i1)]
    run(phi_frags(PF0, vPA, "pf"))
    run(cvt_tile(ACC, 2, KP, VP))
    run(phi_frags(PF1, vPA1, "pf"))
    run(cvt_tile(ACC, 3, KP, VP) + cvt_tile(ACC, 4, KP, VP))
    swap(KP, VP, 0, 4)
    A.lwait("pf")
    phi_mfma(0, KP, PF0, PF1, PK0, PK1)
    swap(KP, VP, 4, 8)
    A(f"v_mov_b32 v{VP+10}, 0x3f80")
    A(f"v_mov_b32 v{VP+11}, 0")
    phi_mfma(1, KP + 4, PF0, PF1, PK0, PK1)
    swap(KP, VP, 8, 10)
    phi_mfma(2, KP + 8, PF0, PF1, PK0, PK1)
    A("s_barrier")
    for i in range(3):
        A.l(f"ds_write_b128 v{vVW}, {V(VP+4*i,4)} offset:{LDS_PV+160+16*i}", "pv")
    stamp("B", "pmf")
    hk = Hooks()
    hk1 = {n: (lambda i=i: A.l(f"ds_write_b128 v{vPW}, {V(PHI+4*i,4)} offset:{LDS_PV+16*i}", "pv")) for i, n in enumerate((24, 28, 51, 55, 59))}
    sWO = 75
    hk.at(0, L(f"""
s_lshr_b32 s{sT0}, s{SW}, 1
s_mul_i32 s{sT0}, s{sT0}, 48
s_mul_i32 s{sT1}, s{SW}, 40
s_sub_u32 s{sT0}, s{sT0}, s{sT1}
s_add_u32 s{sT0}, s{sT0}, 160
v_add_u32 v{vVW}, s{sT0}, v{vKA}
s_mul_i32 s{sWO}, s{sCT}, 102400
s_mul_i32 s{sT1}, s{SW}, 25600
s_add_u32 s{sWO}, s{sWO}, s{sT1}
s_add_u32 s{sWO}, s{sWO}, {WS_WO}
s_lshl_b32 s{sT0}, s{sHP}, 2
s_add_u32 s{sT0}, s{sT0}, s{SW}
s_lshl_b32 s{sT0}, s{sT0}, 14
s_add_u32 s{sT0}, s{sT0}, {WS_KVP}
s_lshl_b32 s{sT1}, s{sST}, 10
s_add_u32 s{sT1}, s{sT1}, s{sT0}
"""))

    def wo_touch():
        if not OPT.get('abl'):
            cnt_async(CQ0 + 2, 14, sWC, 20, sCNT, nap=8)
        if OPT.get("wopf", 1):
            A(f"""
s_and_b32 s{sWC}, s{sST}, 3
s_mul_i32 s{sWC}, s{sWC}, 6400
s_add_u32 s{sWC}, s{sWC}, s{sWO}
v_lshlrev_b32 v41, 3, v{vL16}
s_mov_b32 m0, {LDS_GATE+512}
s_mov_b32 exec_hi, 0x3ffff
""")
            A.v(f"buffer_load_dword v41, {S(R_WS,4)}, s{sWC} offen sc1 lds", "pf")
            A("s_mov_b32 exec_hi, -1")
    qe_ = flat(issue_q(9))
    for _ in range(min(len(qe_), OPT.get("qpre", 7))):
        qe_.pop(0)()
    hk.at(1, qe_)
    hk.at(2, wo_touch)
    softmax([PK0 + i for i in range(16)] + [PK1 + i for i in range(4)], [56 + i for i in range(20)], PHI, 36,
            lambda n: (hk1.pop(n, lambda: None)(), hk(n)))
    stamp("B", "smx")
    vKB, vQR = vVW, vPW
    A.lwait_all()
    A("s_barrier")
    stamp("B", "phik")
    KD = 28
    FR = [56, 64, 72, 80]

    def kvreads(ks):
        for h in range(2):
            A.l(f"ds_read_b64_tr_b16 {V(FR[ks%4]+2*h,2)}, v{vKA} offset:{LDS_PV+ks*4352+h*272}", f"kv{ks}")
        for h in range(2):
            A.l(f"ds_read_b64_tr_b16 {V(FR[ks%4]+4+2*h,2)}, v{vKB} offset:{LDS_PV+ks*4352+h*272}", f"kv{ks}")
    for ks in range(3):
        kvreads(ks)
    fl = L(f"""
v_and_b32 v14, 31, v0
v_bfe_u32 v15, v0, 5, 1
v_mad_u32_u24 v15, v15, 22, v14
v_lshlrev_b32 v15, 4, v15
v_add_u32 v{vQR}, {LDS_QB}, v{vL16}
""")
    for ks in range(8):
        A.lwait(f"kv{ks}")
        A(f"v_mfma_f32_32x32x16_bf16 {V(KD,16)}, {V(FR[ks%4],4)}, {V(FR[ks%4]+4,4)}, {'0' if ks==0 else V(KD,16)}")
        if ks + 3 < 8:
            kvreads(ks + 3)
        else:
            for _ in range(5):
                if fl:
                    fl.pop(0)()
    run(fl)
    A.vwait("q8")
    A("s_barrier")
    for i in range(6):
        A(f"v_cvt_pk_bf16_f32 v{8+i}, v{KD+2*i}, v{KD+2*i+1}")
    set_exec(0x003FFFFF003FFFFF)
    A.v(f"buffer_store_dwordx4 {V(8,4)}, v15, {S(R_WS,4)}, s{sT1} offen sc1", "kvst")
    A("s_mov_b32 exec_hi, 0")
    A.v(f"buffer_store_dwordx2 {V(12,2)}, v{vL8}, {S(R_WS,4)}, s{sT1} offen offset:704 sc1", "kvst")
    A("s_mov_b64 exec, -1")
    stamp("B", "kvst")

    A.c("---- GEMM1b (q); wo fragments stream into the x registers as they die")
    QA = 56
    WOR = [XB + 4 * i for i in range(8)] + [Xr(3, 0, 0) + 4 * i for i in range(16)] + [92]
    G = Xr(1, 0, 0)
    pipe = FragPipe(vQR, phase=3)
    mm = pipe.stream([(n // 3, n % 3, LDS_QA - LDS_QB + 1024 * n if n < 36 else 1024 * (n - 36)) for n in range(60)], QA)

    def issue_wo(f0, f1):
        o = []
        for f in range(f0, f1):
            ii, jn = divmod(f, 5)
            pre = ""
            if jn == 0 and ii < 4:
                pre = f"s_add_u32 s{sWC}, s{sST}, {ii}\ns_and_b32 s{sWC}, s{sWC}, 3\ns_mul_i32 s{sWC}, s{sWC}, 5120\ns_add_u32 s{sWC}, s{sWC}, s{sWO}\n"
            elif jn == 0:
                pre = f"s_add_u32 s{sWC}, s{sWO}, 20480\n"
            elif jn == 4:
                pre = f"s_add_u32 s{sWC}, s{sWC}, 4096\n"
            o.append((pre, lambda f=f, jn=jn: A.v(f"buffer_load_dwordx4 {V(WOR[f],4)}, v{vL16}, {S(R_WS,4)}, s{sWC} offen offset:{1024*(jn%4)} sc1", "wo")))
        return o

    def kv_flag():
        stamp("B", "kvw")
        A.vwait("kvst")
        cnt_add(ONE, sKF)
        stamp("B", "kvadd")

    def q2_ready():
        stamp("B", "q2w")
        A.vwait("q14")
        A("s_barrier")
        stamp("B", "q2")

    gl = []
    for pp in range(8):
        for g2 in range(2):
            pre = ""
            if g2 == 0 and pp % 2 == 0:
                pre = f"s_add_u32 s{sT1}, s{sST}, {pp//2}\ns_and_b32 s{sT1}, s{sT1}, 3\ns_lshl_b32 s{sT1}, s{sT1}, 12\ns_add_u32 s{sT1}, s{sT1}, s{sT0}\n"
            gl.append((pre, lambda pp=pp, g2=g2: A.v(f"buffer_load_dwordx4 {V(G+8*pp+4*g2,4)}, v{vGA+g2}, {S(R_WS,4)}, s{sT1} offen offset:{2048*(pp&1)} sc1", f"g{pp}")))
    Q0, Q1 = 8, 16
    PF0, PF1, PK0, PK1 = 80, 192, 56, 72
    st_ = Stream()
    st_.at(0, flat(issue_q(15)))
    KVF, KVT = OPT.get("kvf", 40), OPT.get("kvt", 92)
    st_.exact(KVF, kv_flag)
    st_.at(KVF + OPT.get("kvp", 4), lambda: cnt_probe(CQ0, sKF, True))
    if OPT.get("p2k", 0):
        st_.at(KVF + OPT.get("kvp2", 26), lambda: cnt_probe(CQ0 + 2, sKF, True))
    wol = issue_wo(0, 25)
    NW0 = OPT.get("nw0", 8)
    for i, g_ in enumerate(wol[:NW0]):
        st_.at(OPT.get("wo0", 30) + OPT.get("wostep", 5) * i, flat([g_]))
    st_.exact(72 - 2 * pipe.look - 1, q2_ready)
    st_.at(70, phi_frags(PF0, vPA, "pf"))
    st_.at(85, phi_frags(PF1, vPA1, "pf"))
    st_.exact(KVT, lambda: (stamp("B", "kvtest"), (cnt_poll2(CQ0, 14, sKF, 16, sCNT) if OPT.get('p2k', 0) else cnt_async(CQ0, 14, sKF, 16, sCNT, nap=OPT.get('napk', 0))), stamp("B", "kvseen")))
    NG1 = OPT.get("ng1", 10)
    for i, g_ in enumerate(gl[:NG1]):
        st_.at(min(KVT + 1 + 2 * i, 119), flat([g_]))
    st_.at(110, L(f"v_mov_b32 v{Q0+6}, 0\nv_mov_b32 v{Q0+7}, 0"))
    st_.run(mm)
    stamp("B", "g1b")

    A.c("---- phi_q; the kv partials are summed on the way")
    NW1 = OPT.get("nw1", 16)
    run(flat(gl[NG1:NG1 + 2]))
    run(cvt_tile(QA, 0, Q0, Q1) + cvt_tile(QA, 1, Q0, Q1))
    swap(Q0, Q1, 0, 4)
    run(cvt_tile(QA, 2, Q0, Q1))
    A(f"""
v_mov_b32 v43, v{QA+16}
s_mov_b32 exec_lo, 0
v_mov_b32 v43, v{QA+20}
s_mov_b32 exec_lo, 0xffff0000
s_mov_b32 exec_hi, 0xffff0000
""")
    A.l(f"ds_write_b32 v{vGW}, v43", "gw")
    A("s_mov_b64 exec, -1")
    assert "pf" not in A.lg
    phi_mfma(0, Q0, PF0, PF1, PK0, PK1)
    swap(Q0, Q1, 4, 6)
    phi_mfma(1, Q1, PF0, PF1, PK0, PK1)
    phi_mfma(2, Q0 + 4, PF0, PF1, PK0, PK1)
    run(flat(gl[NG1 + 2:]))
    RD, OF_, OD = 244, G, 56
    assert NW1 <= 20
    hk = Hooks()
    hk.at(OPT.get('woh', 20), flat(wol[NW0:NW1]))

    def reduce_(pp):
        A.vwait(f"g{pp}")
        for g2 in range(2):
            d = V(RD + 4 * g2, 4)
            A(f"v_mfma_f32_16x16x32_bf16 {d}, {V(ID,4)}, {V(G+8*pp+4*g2,4)}, {'0' if pp==0 else d}")

    def kvt_write():
        for i in range(4):
            A(f"v_cvt_pk_bf16_f32 v{RD+8+i}, v{RD+2*i}, v{RD+2*i+1}")
        A.l(f"ds_write_b64 v{vKT}, {V(RD+8,2)}", "kt")
        A("s_mov_b32 exec_hi, 0x007f007f")
        A.l(f"ds_write_b64 v{vKT+1}, {V(RD+10,2)}", "kt")
        A("s_mov_b64 exec, -1")

    def kvt_read():
        A.lwait_all()
        A("s_barrier")
        stamp("B", "kvt")
        for T in (1, 0):
            for t in range(5):
                A.l(f"ds_read_b128 {V(OF_+8*t+4*T,4)}, v{vOA+T} offset:{16*t}", f"o{t}_{T}")
    RH = OPT.get("rh", 34)
    hk2 = {RH + pp: (lambda pp=pp: reduce_(pp)) for pp in range(8)}
    hk2[min(RH + 12, 58)] = kvt_write
    hk2[min(RH + 18, 59)] = kvt_read
    hk.at(40, L(f"""
s_lshl_b32 s{sT1}, s{sST}, 2
s_add_u32 s{sT1}, s{sT1}, s{SW}
s_lshl_b32 s{sT1}, s{sT1}, 4
s_add_u32 s{sT1}, s{sT1}, s{sHP}
s_mul_i32 s{sT1}, s{sT1}, 2560
s_add_u32 s{sT1}, s{sT1}, {WS_O}
"""))
    softmax([PK0 + i for i in range(20)], [76 + i for i in range(16)] + [28, 29, 30, 31], PHI, 38,
            lambda n: (hk(n), hk2.pop(n, lambda: None)()), ratio=True)
    stamp("B", "phiq")
    OP = 28
    tail = L(f"""
v_mul_f32 v42, 0x358637bd, v42
v_add_f32 v40, v42, v{OD+20}
v_rcp_f32 v40, v40
""")
    for i in (8, 9):
        tail += L(f"v_mul_f32 v{OD+2*i}, v40, v{OD+2*i}\nv_mul_f32 v{OD+2*i+1}, v40, v{OD+2*i+1}\nv_cvt_pk_bf16_f32 v{OP+i}, v{OD+2*i}, v{OD+2*i+1}")
    tail.append(lambda: A.v(f"buffer_store_dwordx2 {V(OP+8,2)}, v{vOT}, {S(R_WS,4)}, s{sT1} offen offset:2048 sc1", "ost"))
    for T in (1, 0):
        for t in range(5):
            A.lwait(f"o{t}_{T}")
            d = V(OD + 16 * T, 16)
            A(f"v_mfma_f32_32x32x16_bf16 {d}, {V(OF_+8*t+4*T,4)}, {V(PHI+4*t,4)}, {'0' if t==0 else d}")
            if T == 0 and t == 0:
                tail.pop(0)()
                A("s_nop 5")
            if T == 0 and t == 3:
                for _ in range(5):
                    tail.pop(0)()
    run(tail)
    for i in range(8):
        scale(OD + 2 * i, 40, 0)
        A(f"v_cvt_pk_bf16_f32 v{OP+i}, v{OD+2*i}, v{OD+2*i+1}")
        if i == 3:
            A.v(f"buffer_store_dwordx4 {V(OP,4)}, v{vL16}, {S(R_WS,4)}, s{sT1} offen sc1", "ost")
        if i == 7:
            A.v(f"buffer_store_dwordx4 {V(OP+4,4)}, v{vL16}, {S(R_WS,4)}, s{sT1} offen offset:1024 sc1", "ost")
    stamp("B", "ost")
    NW2 = OPT.get("nw2", 21)
    run(flat(wol[NW1:NW2]))

    A.c("---- final projection: the wave sums its K quarter for four row tiles and owns tile (wave + ct) & 3")
    vOM, vOR, vW16 = 2, 3, 7
    vOMS = [72, 73, 74, 75]
    vRW, vRR, vAR, vAR2, vOUT2, vOUT = 1, 4, 5, 6, 2, 3
    sOB = [64, 65, 66, 67]
    sAF, sAT, sOC = 74, 25, 30
    GT, OMG, GA, AC0, AC1, OX = 8, 12, 16, 36, 56, 76
    OFR = [G + 4 * i for i in range(16)] + [OX + 4 * i for i in range(4)]
    A(f"""
s_add_u32 s{sOWN}, s{SW}, s{sCT}
s_and_b32 s{sOWN}, s{sOWN}, 3
s_lshl_b32 s{sCNT}, s{sB}, 2
s_add_u32 s{sCNT}, s{sCNT}, s{sOWN}
s_lshl_b32 s{sCNT}, s{sCNT}, 6
s_add_u32 s{sCNT}, s{sCNT}, {LDS_GATE}
v_and_b32 v42, 0x30, v0
v_add_u32 v42, s{sCNT}, v42
""")
    A.l(f"ds_read_b128 {V(GT,4)}, v42", "gt")
    A(f"""
s_lshl_b32 s{sAF}, s{sCT}, 2
s_add_u32 s{sAF}, s{sAF}, s{SW}
s_mul_i32 s{sAT}, s{sAF}, {20*4096}
s_lshl_b32 s{sAF}, s{sAF}, 8
s_add_u32 s{sAF}, s{sAF}, {C_AF}
s_lshl_b32 s{sWOFF}, s{sST}, 1
s_add_u32 s{sWOFF}, s{sWOFF}, s{sB}
s_lshl_b32 s{sCNT}, s{sWOFF}, 7
s_add_u32 s{sAT}, s{sAT}, s{sCNT}
s_add_u32 s{sAT}, s{sAT}, {WS_AT}
s_lshl_b32 s{sOC}, s{sWOFF}, 2
s_add_u32 s{sOC}, s{sOC}, s{SW}
s_lshl_b32 s{sOC}, s{sOC}, 8
s_add_u32 s{sOC}, s{sOC}, {C_O}
""")
    A.lwait("gt")
    cnt_read(CQ1, sAF)
    sGOT, sAL = 100, 101

    def a_dma():
        A(f"s_mul_i32 s{sAL}, s{SW}, 2560")
        for i in range(3):
            A(f"s_add_u32 m0, s{sAL}, {LDS_AT+1024*i}")
            A("s_mov_b32 exec_hi, 0" if i == 2 else "s_nop 0")
            A(f"buffer_load_dwordx4 v{68+i}, {S(R_WS,4)}, s{sAT} offen sc1 lds")
        A("s_mov_b64 exec, -1")

    def a_try():
        A(f"s_mov_b64 {S(14,2)}, {S(CQ1,2)}")
        cnt_test(14, 20)
        A(f"s_cselect_b32 s{sGOT}, 0, 1")
        guarded("", a_dma)
    A(f"""
v_mov_b32 v{vW16}, v{vL16}
v_and_b32 v40, 15, v0
v_bfe_u32 v43, v0, 4, 2
v_lshlrev_b32 v{vOM}, 9, v43
v_lshl_add_u32 v{vOM}, v40, 4, v{vOM}
v_mul_u32_u24 v{vOR}, 2560, v43
v_lshl_add_u32 v{vOR}, v40, 4, v{vOR}
v_bfe_u32 v49, v0, 3, 3
v_and_b32 v48, 7, v0
s_mul_i32 s{sCNT}, s{SW}, 20
""")
    for i in range(3):
        A(f"""
v_add_u32 v42, {8*i}, v49
v_add_u32 v43, s{sCNT}, v42
v_bfe_u32 v43, v43, 2, 3
v_xor_b32 v43, v43, v48
v_lshlrev_b32 v42, 12, v42
v_lshl_add_u32 v{68+i}, v43, 4, v42
""")
    for e in range(4):
        A(f"v_mul_f32 v{GT+e}, s{sL2E}, v{GT+e}")
    for e in range(4):
        A(f"v_exp_f32 v{GT+e}, -v{GT+e}")
    for e in range(4):
        A(f"v_add_f32 v{GT+e}, 1.0, v{GT+e}")
    for e in range(4):
        A(f"v_rcp_f32 v{GT+e}, v{GT+e}")
    for p in range(4):
        A(f"""
s_add_u32 s{sCNT}, s{sOWN}, {p+1}
s_bfe_u32 s{sJ}, s{sCNT}, 0x10001
s_mul_i32 s{sOB[p]}, s{sJ}, 40960
s_and_b32 s{sJ}, s{sCNT}, 1
s_lshl_b32 s{sJ}, s{sJ}, 8
s_add_u32 s{sOB[p]}, s{sOB[p]}, s{sJ}
""")
    A(f"""
s_mul_i32 s{sCNT}, s{sWOFF}, 81920
s_mul_i32 s{sJ}, s{SW}, 10240
s_add_u32 s{sCNT}, s{sCNT}, s{sJ}
s_add_u32 s{sCNT}, s{sCNT}, {WS_O}
v_add_u32 v{vOM}, s{sCNT}, v{vOM}
v_add_u32 v{vOR}, s{sCNT}, v{vOR}
""")
    for e in range(4):
        A(f"v_sub_f32 v{OMG+e}, 1.0, v{GT+e}")
    A.vwait("ost")
    cnt_add(ONE, sOF)
    stamp("B", "oflag")
    cnt_probe(CQ0, sOC, True)
    a_try()
    run(flat(wol[NW2:]))
    for ii in range(4):
        A(f"""
s_add_u32 s{sCNT}, s{sST}, {ii}
s_and_b32 s{sCNT}, s{sCNT}, 3
s_mul_i32 s{sCNT}, s{sCNT}, 2560
v_add_u32 v{vOMS[ii]}, s{sCNT}, v{vOM}
""")
    A(f"""
v_bfe_u32 v41, v0, 5, 1
v_lshl_add_u32 v41, s{sOWN}, 1, v41
v_and_b32 v42, 7, v40
v_xor_b32 v42, v42, v41
v_lshlrev_b32 v42, 4, v42
v_bfe_u32 v43, v0, 4, 1
v_lshlrev_b32 v43, 3, v43
v_lshlrev_b32 v{vAR}, 9, v40
v_add3_u32 v{vAR}, v{vAR}, v42, v43
v_lshrrev_b32 v42, 2, v40
v_xor_b32 v42, v42, v41
v_lshlrev_b32 v42, 4, v42
v_lshlrev_b32 v{vAR2}, 7, v40
v_add3_u32 v{vAR2}, v{vAR2}, v42, v43
s_mul_i32 s{sCNT}, s{SW}, 15360
s_add_u32 s{sCNT}, s{sCNT}, {LDS_RED}
v_add_u32 v{vRR}, s{sCNT}, v{vW16}
""")
    if OPT.get("p2o", 0):
        cnt_probe(CQ0 + 2, sOC, True)
        cnt_poll2(CQ0, 14, sOC, 8, sCNT)
    else:
        cnt_async(CQ0, 14, sOC, 8, sCNT)
    stamp("B", "oseen")
    guarded(f"s_cmp_eq_u32 s{sGOT}, 1", lambda: cnt_read(16, sAF))
    old = []
    for p in range(4):
        for ii in range(5):
            def f(p=p, ii=ii):
                r = V(OFR[5 * p + ii], 4)
                if ii < 4:
                    A.v(f"buffer_load_dwordx4 {r}, v{vOMS[ii]}, {S(R_WS,4)}, s{sOB[p]} offen sc1", f"of{p}_{ii}")
                else:
                    A.v(f"buffer_load_dwordx4 {r}, v{vOR}, {S(R_WS,4)}, s{sOB[p]} offen offset:2048 sc1", f"of{p}_{ii}")
            old.append(f)
    for _ in range(OPT.get("npo", 10)):
        old.pop(0)()
    AR = OFR[0]

    def a_fetch():
        def late():
            if not OPT.get('abl'):
                cnt_async(16, 14, sAF, 20, sCNT, nap=OPT.get('napa', 1))
            a_dma()
        guarded(f"s_cmp_eq_u32 s{sGOT}, 1", late)
        stamp("B", "aseen")

    def a_read():
        stamp("B", "arw")
        A.vwait_all()
        A("s_barrier")
        stamp("B", "ar")
        for jn in range(4):
            A.l(f"ds_read_b64 {V(AR+2*jn,2)}, v{vAR} offset:{LDS_AT+128*jn}", "ar")
        A.l(f"ds_read_b64 {V(AR+8,2)}, v{vAR2} offset:{LDS_AT+8192}", "ar")
    mix = [lambda: A.lwait("ar")]
    for jn in range(5):
        for e in range(4):
            src = AR + 2 * jn + (e >> 1)
            mix += L(f"v_and_b32 v{GA+4*jn+e}, 0xffff0000, v{src}" if e & 1 else f"v_lshlrev_b32 v{GA+4*jn+e}, 16, v{src}")
    mix2 = [(lambda jn=jn, e=e: A(f"v_mul_f32 v{GA+4*jn+e}, v{GT+e}, v{GA+4*jn+e}")) for jn in range(5) for e in range(4)]
    mm = []
    for p in range(4):
        ac = AC0 if p % 2 == 0 else AC1
        for ii in range(5):
            for jn in range(5):
                def m(p=p, ac=ac, ii=ii, jn=jn):
                    if jn == 0:
                        A.vwait(f"of{p}_{ii}")
                        if p == 0 and ii == 0:
                            stamp("B", "o0")
                    d = V(ac + 4 * jn, 4)
                    A(f"v_mfma_f32_16x16x32_bf16 {d}, {V(OFR[5*p+ii],4)}, {V(WOR[5*ii+jn],4)}, {'0' if ii==0 else d}")
                mm.append(m)
    st_ = Stream(budget=2)
    for i, f in enumerate(old):
        st_.at(2 * i, f)
    st_.exact(22, a_fetch)
    KA_ = OPT.get("aread", 58)
    st_.exact(KA_, a_read)
    st_.at(KA_ + 4, mix + mix2)
    for p in range(3):
        ac = AC0 if p % 2 == 0 else AC1
        k0 = 25 * (p + 1)
        st_.at(k0 - 3, L(f"""
s_add_u32 s{sCNT}, s{SW}, {p+1}
s_and_b32 s{sCNT}, s{sCNT}, 3
s_mul_i32 s{sCNT}, s{sCNT}, 15360
v_add_u32 v{vRW}, s{sCNT}, v{vW16}
"""))
        for jn in range(5):
            st_.at(k0 + 1 + jn, lambda jn=jn, p=p, ac=ac: A.l(f"ds_write_b128 v{vRW}, {V(ac+4*jn,4)} offset:{LDS_RED+5120*p+1024*jn}", "rw"))
    st_.at(33, L(f"""
v_bfe_u32 v{vOUT}, v0, 4, 2
v_mul_u32_u24 v{vOUT}, 5120, v{vOUT}
v_and_b32 v{GA}, 15, v0
v_lshl_add_u32 v{vOUT2}, v{GA}, 1, v{vOUT}
v_lshl_add_u32 v{vOUT}, v{GA}, 3, v{vOUT}
s_lshl_b32 s{sAT}, s{sWOFF}, 2
s_add_u32 s{sAT}, s{sAT}, s{sOWN}
s_mul_i32 s{sAT}, s{sAT}, 20480
s_mul_i32 s{sAF}, s{sCT}, 160
s_add_u32 s{sAT}, s{sAT}, s{sAF}
"""))
    KB_ = OPT.get("redbar", 84)
    st_.exact(KB_, lambda: (stamp("B", "rbw"), A.lwait_all(), A("s_barrier"), stamp("B", "rb")))
    red = []
    for jn in range(5):
        for q in (jn, 5 + jn, 10 + jn):
            red.append(lambda q=q, jn=jn: A.l(f"ds_read_b128 {V(OFR[q],4)}, v{vRR} offset:{1024*q}", f"rr{jn}"))
    st_.at(KB_ + 1, red)
    st_.run(mm, reserve=lambda k: 0)
    stamp("B", "fin")
    PK4 = OPT.get("pk4", 1)

    def add2(d, a_, b_):
        if PK4:
            A(f"v_pk_add_f32 {V(d,2)}, {V(a_,2)}, {V(b_,2)}")
        else:
            for n in range(2):
                A(f"v_add_f32 v{d+n}, v{a_+n}, v{b_+n}")
    for jn in range(5):
        A.lwait(f"rr{jn}")
        for h in range(2):
            r0, r1, r2 = OFR[jn] + 2 * h, OFR[5 + jn] + 2 * h, OFR[10 + jn] + 2 * h
            add2(r0, r0, r1)
            add2(r0, r0, r2)
    OSF = OPT.get("osf", "").replace("_", " ")
    for h in range(2):
        for jn in range(5):
            r0, g_ = OFR[jn] + 2 * h, GA + 4 * jn + 2 * h
            add2(r0, r0, AC1 + 4 * jn + 2 * h)
            if PK4:
                A(f"v_pk_fma_f32 {V(g_,2)}, {V(OMG+2*h,2)}, {V(r0,2)}, {V(g_,2)}")
            else:
                for n in range(2):
                    A(f"v_fma_f32 v{g_+n}, v{OMG+2*h+n}, v{r0+n}, v{g_+n}")
        for e in (2 * h, 2 * h + 1):
            A(f"v_cvt_pk_bf16_f32 v{AC0+4*e}, v{GA+e}, v{GA+4+e}")
            A(f"v_cvt_pk_bf16_f32 v{AC0+4*e+1}, v{GA+8+e}, v{GA+12+e}")
            A.v(f"buffer_store_dwordx2 {V(AC0+4*e,2)}, v{vOUT}, {S(R_M2,4)}, s{sAT} offen offset:{1280*e} {OSF}")
        A(f"v_cvt_pk_bf16_f32 v{AC0+8*h+2}, v{GA+16+2*h}, v{GA+17+2*h}")
        A.v(f"buffer_store_short v{AC0+8*h+2}, v{vOUT2}, {S(R_M2,4)}, s{sAT} offen offset:{2560*h+128} {OSF}")
        A.v(f"buffer_store_short_d16_hi v{AC0+8*h+2}, v{vOUT2}, {S(R_M2,4)}, s{sAT} offen offset:{2560*h+1280+128} {OSF}")
    finish("B")


def role_A():
    sAJ, sTB, sCB, sCH, sLB = 60, 61, 62, 63, 68
    ONE, CQ0, CQ1, CQ2, sUP, sUC, sAC, sGOT, sWC = 18, 20, 28, 40, 69, 48, 49, 50, 51
    sW0, sW1, sW2 = 73, 74, 75
    A.c("---- A prologue")
    A(f"""
s_sub_u32 s{sAJ}, s2, {ID_A}
s_lshl_b32 s{sCH}, s{sAJ}, 2
s_add_u32 s{sCH}, s{sCH}, s{SW}
s_mul_i32 s{sLB}, s{SW}, 20480
v_and_b32 v1, 63, v0
v_lshlrev_b32 v5, 2, v1
s_lshl_b32 s{sT0}, s{sCH}, 8
v_add_u32 v3, s{sT0}, v5
s_and_b32 s{sT3}, s{sCH}, 0xfffffffe
s_lshl_b32 s{sT3}, s{sT3}, 1
s_waitcnt lgkmcnt(0)
""")
    A(f"s_load_dword s70, {S(P_LOGDT,2)}, s{sT3}")
    A(f"s_load_dword s71, {S(P_DSK,2)}, s{sT3}")
    load_epoch()
    for i, p in enumerate((P_LOGA, P_AIM, P_CRE, P_CIM)):
        A.v(f"global_load_dword v{8+i}, v3, {S(p,2)}{' nt' if OPT.get('nt', 1) else ''}", "par")
    if OPT.get("ahead", 1):
        A("s_branch L_A2")
        k = A.lines.index("L_A:")
        head = A.lines[k:]
        del A.lines[k:]
        A.lines[A_HEAD:A_HEAD] = head
        A("L_A2:")
    A(f"""
s_mul_i32 s{sAC}, s{sCH}, 3277
s_lshr_b32 s{sAC}, s{sAC}, 16
s_lshl_b32 s{sAC}, s{sAC}, 8
s_add_u32 s{sAC}, s{sAC}, {C_AF}
s_lshr_b32 s{sUC}, s{sAJ}, 4
s_lshl_b32 s{sUC}, s{sUC}, 8
s_add_u32 s{sUC}, s{sUC}, {C_UT}
s_mov_b64 {S(ONE,2)}, 1
""")
    srd(R_WS, P_WS, WS_SIZE)
    A(f"""
s_lshl_b32 s{sT0}, s{sAJ}, 14
s_add_u32 s{sT0}, s{sT0}, {WS_UT}
s_add_u32 s{R_M1}, s{P_WS}, s{sT0}
s_addc_u32 s{R_M1+1}, s{P_WS+1}, 0
s_mov_b32 s{R_M1+2}, 16384
s_mov_b32 s{R_M1+3}, 0x20000
""")
    A("s_waitcnt lgkmcnt(0)")
    make_tag()
    BAND = {9: 224, 7: 228, 5: 232, 3: 236, 2: 240}
    A("""
v_and_b32 v12, 15, v1
v_lshrrev_b32 v13, 1, v1
v_and_b32 v13, 24, v13
""")
    for wd, first in ((9, 4), (7, 5), (5, 6), (3, 11), (2, 12)):
        A(f"""
v_mov_b32 v14, {((1 << wd) - 1) << first}
v_lshlrev_b32 v14, v12, v14
v_lshrrev_b32 v14, v13, v14
""")
        for p in range(4):
            r = BAND[wd] + p
            A(f"v_bfe_u32 v15, v14, {2*p+1}, 1")
            A(f"v_bfe_u32 v{r}, v14, {2*p}, 1")
            A(f"v_lshl_or_b32 v{r}, v15, 16, v{r}")
            if wd != 2:
                A(f"v_mul_u32_u24 v{r}, 0x3f80, v{r}")
    A.vwait("par")
    stamp("A", "par")
    A(f"s_setprio {OPT.get('prioK', 0)}")
    if OPT.get("fakea"):
        cnt_read(CQ1 + 2, sAC)
        A("s_waitcnt lgkmcnt(0)")
        cnt_claim(CQ1, sAC)
        for _ in range(OPT["fakea"]):
            A("s_sleep 100")
        A("s_branch L_cend")
    A.c("---- per-mode constants (two modes per lane)")
    A(f"""
s_bitcmp1_b32 s{sCH}, 0
s_cselect_b32 s{sT0}, 0, 16
s_lshl_b32 s70, s70, s{sT0}
s_and_b32 s70, s70, 0xffff0000
s_lshl_b32 s71, s71, s{sT0}
s_and_b32 s71, s71, 0xffff0000
v_mov_b32 v32, {LOG2E:#x}
v_mul_f32 v33, s70, v32
v_exp_f32 v33, v33
""")
    A.vwait("par")
    LA, AI, XR, XI = 34, 36, 38, 40
    for (src, dst) in ((8, LA), (9, AI), (10, XR), (11, XI)):
        A(f"v_lshlrev_b32 v{dst}, 16, v{src}")
        A(f"v_and_b32 v{dst+1}, 0xffff0000, v{src}")
    A(f"""
v_cvt_pk_bf16_f32 v33, v33, v33
v_and_b32 v33, 0xffff0000, v33
v_mul_f32 v{LA}, v32, v{LA}
v_mul_f32 v{LA+1}, v32, v{LA+1}
v_exp_f32 v{LA}, v{LA}
v_exp_f32 v{LA+1}, v{LA+1}
v_mul_f32 v{AI}, v33, v{AI}
v_mul_f32 v{AI+1}, v33, v{AI+1}
v_cvt_pk_bf16_f32 v{LA+1}, v{LA}, v{LA+1}
v_lshlrev_b32 v{LA}, 16, v{LA+1}
v_and_b32 v{LA+1}, 0xffff0000, v{LA+1}
v_mul_f32 v{LA}, v33, v{LA}
v_mul_f32 v{LA+1}, v33, v{LA+1}
v_mul_f32 v{LA}, v32, v{LA}
v_mul_f32 v{LA+1}, v32, v{LA+1}
v_mul_f32 v{AI}, {INV2PI:#x}, v{AI}
v_mul_f32 v{AI+1}, {INV2PI:#x}, v{AI+1}
v_add_f32 v33, v33, v33
v_mul_f32 v{XR}, v33, v{XR}
v_mul_f32 v{XR+1}, v33, v{XR+1}
v_mul_f32 v{XI}, v33, -v{XI}
v_mul_f32 v{XI+1}, v33, -v{XI+1}
""")
    W = {1: 44, 8: 48, 256: 52}
    for p, w in W.items():
        lit = {1: "1.0", 8: "0x41000000", 256: "0x43800000"}[p]
        for n in range(2):
            A(f"v_mul_f32 v{56+n}, {lit}, v{LA+n}")
            A(f"v_mul_f32 v{58+n}, {lit}, v{AI+n}")
        for n in range(2):
            A(f"v_exp_f32 v{56+n}, -v{56+n}")
            A(f"v_fract_f32 v{58+n}, v{58+n}")
        for n in range(2):
            A(f"v_cos_f32 v{w+n}, v{58+n}")
            A(f"v_sin_f32 v{w+2+n}, v{58+n}")
        A(f"v_pk_mul_f32 {V(w,2)}, {V(w,2)}, {V(56,2)}")
        A(f"v_pk_mul_f32 {V(w+2,2)}, {V(w+2,2)}, {V(56,2)}")
    vSW, vSR = 6, 7
    A(f"""
v_lshlrev_b32 v{vSW}, 3, v1
v_add_u32 v{vSW}, s{sLB}, v{vSW}
v_and_b32 v{vSR}, 31, v1
v_mul_u32_u24 v{vSR}, 528, v{vSR}
v_lshrrev_b32 v12, 5, v1
v_lshlrev_b32 v12, 4, v12
v_add3_u32 v{vSR}, v{vSR}, v12, s{sLB}
""")
    pk, pend = [0], []

    def put(reg, rows):
        pend.append((reg, rows))

    def flush(stage=None):
        if pend and stage in (0, None):
            pk[0] += 1
            t, reg = 80 + 2 * (pk[0] % 4), pend[0][0]
            A(f"v_cvt_pk_bf16_f32 v{t+1}, v{reg+2}, v{reg+3}")
            A(f"v_cvt_pk_bf16_f32 v{t}, v{reg}, v{reg+1}")
        if pend and stage in (1, None):
            for r in pend.pop(0)[1]:
                A.l(f"ds_write_b64 v{vSW}, {V(80+2*(pk[0]%4),2)} offset:{528*r}", "st")

    def cmul(d, s, w, conj):
        n1, n2 = ("", " neg_lo:[1,0,0] neg_hi:[1,0,0]") if conj else (" neg_lo:[0,0,1] neg_hi:[0,0,1]", "")
        A(f"v_pk_mul_f32 {V(56,2)}, {V(s+2,2)}, {V(w+2,2)}")
        A(f"v_pk_mul_f32 {V(58,2)}, {V(s+2,2)}, {V(w,2)}")
        flush(0)
        A(f"v_pk_fma_f32 {V(d+2,2)}, {V(s,2)}, {V(w+2,2)}, {V(58,2)}{n2}")
        A(f"v_pk_fma_f32 {V(d,2)}, {V(s,2)}, {V(w,2)}, {V(56,2)}{n1}")
        flush(1)

    A.c("---- X rows")
    g0 = [0, 1, 2, 3, 4, 5, 6, 7, 8, 516, 520, 1032, 1544]
    g1 = [256, 256, 258, 260, 260, 260, 262, 264, 264, 772, 776, 1288, 1800]
    rows = {}
    for g, lst in enumerate((g0, g1)):
        for i, p in enumerate(lst):
            rows.setdefault(p, []).append(8 * (i >> 2) + 4 * g + (i & 3))
    keep = {0: XR, 2: 60, 4: 64, 6: 68, 8: 72}
    put(XR, rows[0])
    cur = XR
    for p in range(1, 9):
        d = keep.get(p, 76)
        cmul(d, cur, W[1], True)
        put(d, rows[p])
        cur = d
    for step in range(1, 8):
        for off in (0, 2, 6, 8, 4):
            p = 256 * step + off
            if p in rows:
                cmul(keep[off], keep[off], W[256], True)
                put(keep[off], rows[p])
    XF, YA = 96, 60
    cmul(YA, W[8], W[8], False)
    assert not pend
    for ks in range(16):
        A.l(f"ds_read_b128 {V(XF+4*ks,4)}, v{vSR} offset:{32*ks}", "xf")
    A.c("---- Y rows")
    A(f"""
v_mov_b32 v24, 0x3f803f80
v_mov_b32 v25, 0
""")
    stamp("A", "xrows")
    A.l(f"ds_write_b64 v{vSW}, {V(24,2)}", "st")
    put(W[8], [1])
    flush()
    put(YA, [2])
    for c in range(3, 32):
        cmul(YA, YA, W[8], False)
        put(YA, [c])
    flush()
    stamp("A", "yrows")
    YF, KD = 160, 68
    L_KF, L_SQ = 4608, 4608 + 2432
    vKW, vKA, vSA, vS4, vS8, vUB, vUD = 3, 8, 10, 11, 12, 4, 2
    fl = L(f"""
v_and_b32 v13, 15, v1
v_and_b32 v14, 0x30, v1
v_lshl_add_u32 v{vUB}, v13, 5, v14
v_add_u32 v{vUB}, s{sLB}, v{vUB}
v_add_u32 v15, 1, v13
v_and_b32 v13, 1, v15
v_lshrrev_b32 v15, 1, v15
v_lshlrev_b32 v15, 2, v15
v_sub_u32 v15, s{sLB}, v15
v_mul_u32_u24 v{vKA}, 1216, v13
v_add3_u32 v{vKA}, v{vKA}, v15, v14
v_add_u32 v{vKA}, {L_KF+32}, v{vKA}
v_add_u32 v{vKA+1}, 64, v{vKA}
v_mul_u32_u24 v{vSA}, 832, v13
v_lshrrev_b32 v14, 1, v14
v_add3_u32 v{vSA}, v{vSA}, v15, v14
v_add_u32 v{vSA}, {L_SQ+32}, v{vSA}
v_and_b32 v13, 1, v1
v_and_b32 v14, 0x3e, v1
v_sub_u32 v14, s{sLB}, v14
v_add_u32 v14, {L_SQ+62}, v14
v_lshl_add_u32 v{vS4}, v13, 8, v14
v_mul_u32_u24 v13, 160, v13
v_add_u32 v{vS8}, v13, v14
v_lshlrev_b32 v13, 4, v1
v_sub_u32 v{vKW}, s{sLB}, v13
v_add_u32 v{vKW}, {L_KF+1072}, v{vKW}
v_add_u32 v13, s{sLB}, v13
s_lshl_b32 s{sT0}, s{SW}, 4
v_lshl_add_u32 v{vUD}, v1, 6, s{sT0}
v_mov_b32 v16, 0
v_mov_b32 v17, 0
v_mov_b32 v18, 0
v_mov_b32 v19, 0
""")
    for ks in range(16):
        A.l(f"ds_read_b128 {V(YF+4*ks,4)}, v{vSR} offset:{32*ks}", f"y{ks}")
        if ks >= 6:
            k2 = ks - 6
            A.lwait(f"y{k2}")
            A(f"v_mfma_f32_32x32x16_bf16 {V(KD,16)}, {V(XF+4*k2,4)}, {V(YF+4*k2,4)}, {'0' if k2==0 else V(KD,16)}")
            for _ in range(4):
                if fl:
                    fl.pop(0)()
    run(fl)
    zero = [lambda: A.l(f"ds_write_b64 v{vSW}, {V(16,2)}", "cv")]
    zero += [(lambda i=i: A.l(f"ds_write_b128 v13, {V(16,4)} offset:{L_KF+1024*i}", "cv")) for i in range(4)]
    for k2 in range(10, 16):
        A.lwait(f"y{k2}")
        A(f"v_mfma_f32_32x32x16_bf16 {V(KD,16)}, {V(XF+4*k2,4)}, {V(YF+4*k2,4)}, {V(KD,16)}")
        if zero:
            zero.pop(0)()
    A(f"""
s_mov_b64 exec, 1
v_add_f32 v{KD}, s71, v{KD}
s_mov_b64 exec, -1
""")
    for c_ in range(2):
        for p in range(4):
            A(f"v_cvt_pk_bf16_f32 v{84+4*c_+p}, v{KD+7+c_-2*p}, v{KD+6+c_-2*p}")
        A.l(f"ds_write_b128 v{vKW}, {V(84+4*c_,4)} offset:{1216*c_}", "cv")
    A(f"""
v_cvt_pk_bf16_f32 v92, v{KD+9}, v{KD+10}
v_cvt_pk_bf16_f32 v93, v{KD+11}, v{KD+12}
v_cvt_pk_bf16_f32 v21, v{KD+8}, v{KD+8}
v_lshrrev_b32 v22, 16, v87
v_and_b32 v20, 0xffff0000, v21
v_mov_b32 v23, s{sLB}
v_readlane_b32 s{sT0}, v92, 63
""")
    for c_ in range(2):
        A.l(f"ds_write_b16 v{vS4}, v92 offset:{32+834*c_}", "cv")
        A.l(f"ds_write_b16_d16_hi v{vS4}, v92 offset:{32+128+834*c_}", "cv")
        A.l(f"ds_write_b16 v{vS8}, v93 offset:{512+64+834*c_}", "cv")
        A.l(f"ds_write_b16_d16_hi v{vS8}, v93 offset:{512+834*c_}", "cv")
    A("s_mov_b64 exec, 1")
    A.l(f"ds_write_b32 v23, v22 offset:{L_KF+1216+1088}", "cv")
    A("s_mov_b32 exec_lo, 0")
    A("s_mov_b32 exec_hi, 0x80000000")
    A.l(f"ds_write_b64 v23, {V(20,2)} offset:{L_KF+56}", "cv")
    A.l(f"ds_write_b32 v23, v21 offset:{L_KF+1216+60}", "cv")
    A("s_mov_b64 exec, -1")
    A(f"s_lshr_b32 s{sT0}, s{sT0}, 16")
    for p in range(4):
        A(f"v_mul_u32_u24 v{BAND[2]+p}, s{sT0}, v{BAND[2]+p}")
    stamp("A", "kdone")
    cnt_read(CQ1 + 2, sAC)
    only_wave(0, lambda: cnt_read(CQ0, sUC))
    KF, SF = 96, 164
    for m in range(17):
        a_, o = (vKA + 1, 16 * (15 - m)) if m < 16 else (vKA, 0)
        for hh in range(2):
            A.l(f"ds_read2_b32 {V(KF+4*m+2*hh,2)}, v{a_} offset0:{o+2*hh} offset1:{o+2*hh+1}", "kf")
    SFR = {}
    for ty, seqs, ns in (("P", (0, 128), (2, 3, 4)), ("Q", (256, 384), (2, 3, 4)), ("E", (512, 672), (4, 5, 6, 7))):
        for n in ns:
            SFR[ty, n] = SF + 4 * len(SFR)
            for hh in range(2):
                o = (seqs[hh] + 32 * (ns[-1] - n)) // 4
                A.l(f"ds_read2_b32 {V(SFR[ty,n]+2*hh,2)}, v{vSA} offset0:{o} offset1:{o+1}", "kf")
    A.lwait_all()
    cnt_claim(CQ1, sAC)
    only_wave(0, lambda: cnt_wait(CQ0, sUC, 16, sCNT, nap=OPT.get("napu", 1)))
    A("s_barrier")
    A(f"s_setprio {OPT.get('prioR', 3)}")
    USC = ' sc1' if OPT.get('usc', 0) else ''
    for i in range(4):
        A(f"s_add_u32 m0, s{sLB}, {512+1024*i}")
        A(f"s_movk_i32 s{sT0}, {4096*i}")
        A.v(f"buffer_load_dwordx4 v{vUD}, {S(R_M1,4)}, s{sT0} offen{USC} lds", "u")
    stamp("A", "utseen")
    A(f"s_setprio {OPT.get('prioA', 0)}")
    A.vwait("u")
    stamp("A", "cstart")
    if OPT.get("noconv"):
        finish("A")
        return
    A.c("---- convolution. Lags < 515: Toeplitz tiles of K times input blocks. Beyond that K is constant over runs of")
    A.c("---- the rounded position: window sums of the input (0/1 band matrices) times the decimated K.")
    CA = 16
    UR, NUR, LOOK = 48, 8, 6
    GU = [80, 88]
    DD, ZZ = [204, 212], [220, 244]
    started = set()

    def mfma(d, a_, b_, key=None):
        c = "0" if key is None or key not in started else V(d, 4)
        started.add(key)
        A(f"v_mfma_f32_16x16x32_bf16 {V(d,4)}, {V(a_,4)}, {V(b_,4)}, {c}")

    ufr = [(r, n) for r in range(8) for n in range(8)]
    fine = []
    for i, (r, n) in enumerate(ufr):
        for mu, a_ in ((0, KF + 4 * r), (1, KF + 4 * (8 + r)), (2, KF + 64), (4, BAND[2])):
            if mu + n <= 7 and (mu < 2 or r == 0):
                fine.append((i, mu + n, a_))
    uread = lambda i: A.l(f"ds_read_b128 {V(UR+4*(i%NUR),4)}, v{vUB} offset:{32+512*ufr[i][1]+64*(7-ufr[i][0])}", f"u{i}")
    gread = lambda mu: [(lambda h=h: A.l(f"ds_read_b128 {V(GU[mu&1]+4*h,4)}, v{vUB} offset:{480+512*mu-16*h}", f"g{mu}")) for h in range(2)]
    ops = [(mu, ty) for mu in range(6) for ty in "PQE" if ty != "E" or mu < 4]
    HALF = {"P": ((0, 3), (0, 5)), "Q": ((1, 3), (1, 5)), "E": ((0, 7), (1, 9))}
    extra, fill = {}, {}
    for j, (mu, ty) in enumerate(ops):
        p = 2 + 8 * j
        d, z = DD[j & 1], ZZ[j & 1]

        def build(mu=mu, ty=ty, d=d):
            A.lwait(f"g{mu}")
            for h, (uf, wd) in enumerate(HALF[ty]):
                mfma(d + 4 * h, GU[mu & 1] + 4 * uf, BAND[wd])

        def use(mu=mu, ty=ty, z=z):
            for (t_, n), f_ in SFR.items():
                if t_ == ty and mu + n <= 7:
                    mfma(CA + 4 * (mu + n), z, f_, mu + n)
        extra.setdefault(p, []).append(build)
        extra.setdefault(min(p + 7, len(fine) - 1), []).insert(0, use)
        for q in range(4):
            fill.setdefault(p + 4 + q // 2, []).append(lambda q=q, d=d, z=z: A(f"v_cvt_pk_bf16_f32 v{z+q}, v{d+2*q}, v{d+2*q+1}"))
        if ty == "Q" and mu < 5:
            fill.setdefault(p + 1, []).extend(gread(mu + 1))
    for i in range(2):
        uread(i)
    run(gread(0))
    for i in range(2, LOOK):
        uread(i)
    nread = LOOK
    for k, (i, n, a_) in enumerate(fine):
        A.lwait(f"u{i}")
        mfma(CA + 4 * n, a_, UR + 4 * (i % NUR), n)
        if nread < len(ufr) and nread <= i + LOOK:
            uread(nread)
            nread += 1
        run(fill.pop(k, []))
        run(extra.pop(k, []))
    assert not fill and not extra and nread == 64
    A("L_cend:")
    A(f"s_setprio {OPT.get('prioR', 3)}")
    stamp("A", "cend")
    A(f"""
v_and_b32 v2, 15, v1
v_lshlrev_b32 v2, 5, v2
v_bfe_u32 v3, v1, 4, 1
v_lshl_add_u32 v2, v3, 9, v2
v_lshrrev_b32 v3, 5, v1
v_lshl_add_u32 v2, v3, 4, v2
s_lshl_b32 s{sT0}, s{sCH}, 12
s_add_u32 s{sT0}, s{sT0}, {WS_AT}
""")
    for q in range(640):
        assert (q * 3277) >> 16 == q // 20
    A.lwait_all()
    for n in range(0, 8, 2):
        d = 48 + 2 * n
        for i in range(4):
            A(f"v_cvt_pk_bf16_f32 v{d+i}, v{CA+4*n+2*i}, v{CA+4*n+2*i+1}")
    for n in range(0, 8, 2):
        d = 48 + 2 * n
        A(f"v_permlane16_swap_b32 v{d}, v{d+2}")
        A(f"v_permlane16_swap_b32 v{d+1}, v{d+3}")
        A.v(f"buffer_store_dwordx4 {V(d,4)}, v2, {S(R_WS,4)}, s{sT0} offen offset:{512*n} sc1", "ast")
    A.vwait("ast")
    cnt_add(ONE, sAC)
    finish("A")


def role_R():
    CQ0 = 20
    A("L_ep:")
    A("s_waitcnt lgkmcnt(0)")
    load_epoch()
    A("s_waitcnt lgkmcnt(0)")
    make_tag()
    srd(R_WS, P_WS, WS_SIZE)
    cnt_wait(CQ0, str(C_KV), 16, sCNT, probed=False, nap=32)
    cnt_wait(CQ0, str(C_AF), 20, sCNT, probed=False, nap=16)
    A(f"""
v_and_b32 v1, 63, v0
v_lshlrev_b32 v2, 8, v1
v_add_u32 v3, {C_AF}, v2
v_add_u32 v4, {C_WO-32*256}, v2
v_cmp_gt_u32 vcc, 32, v1
v_cndmask_b32 v3, v4, v3, vcc
v_lshlrev_b32 v4, 10, v1
v_add_u32 v4, {C_KV-40*1024}, v4
v_cmp_gt_u32 vcc, 40, v1
v_cndmask_b32 v3, v4, v3, vcc
v_cndmask_b32 v6, 16, 20, vcc
v_mov_b32 v7, s{TAG+1}
v_add_co_u32 v6, vcc, s{TAG}, v6
v_addc_co_u32 v7, vcc, 0, v7, vcc
s_mov_b32 exec_hi, 0xffffff
s_mov_b32 s{sCNT}, 0
L_epl:
v_mov_b32 v4, 0
v_mov_b32 v5, 0
buffer_atomic_add_x2 v[4:5], v3, {S(R_WS,4)}, 0 offen sc0 sc1
s_add_u32 s{sCNT}, s{sCNT}, 1
s_waitcnt vmcnt(0)
v_cmp_ne_u64 vcc, v[4:5], v[6:7]
s_cbranch_vccz L_epd
s_sleep 16
s_cmp_lt_u32 s{sCNT}, {SPIN}
s_cbranch_scc1 L_epl
L_epd:
""")
    A(f"s_atomic_swap_x2 {S(TAG,2)}, {S(P_WS,2)}, {WS_EPOCH}")
    A("s_endpgm")


if "B" in OPT["roles"]:
    role_B()
else:
    A("L_B:\ns_endpgm")
A("L_A:")
if "A" in OPT["roles"]:
    role_A()
else:
    A("s_endpgm")
role_R()
A("L_codeend:")
lines, nn = pad_hazards(A.lines, verbose=False)
if OPT.get("align", 1):
    lines, cnt_, cost_ = align8(lines)
    print("align:", cnt_, cost_, file=sys.stderr)
hdr = open("gated_mix__ssm_conv_s4d__linear_kernel_hedgehog__prompt.s.ref").read().split("; Override launch")[0]
print(hdr + f"; @launch grid=({ID_END},1,1) block=(256,1,1) lds=81920")
print("\n".join(lines))
print(f""".section .rodata,"a"
.p2align 6
.amdhsa_kernel {KN}
  .amdhsa_next_free_vgpr 256
  .amdhsa_next_free_sgpr 102
  .amdhsa_accum_offset 256
  .amdhsa_group_segment_fixed_size 0
  .amdhsa_kernarg_size 120
  .amdhsa_user_sgpr_count 2
  .amdhsa_user_sgpr_kernarg_segment_ptr 1
  .amdhsa_system_sgpr_workgroup_id_x 1
.end_amdhsa_kernel""")
json.dump(stampnames, open("stamps.json", "w"))
print(f"pad states inserted: {nn}", file=sys.stderr)
```

```python
import sys, json
from asmlib import *

KN = "gated_mix__ssm_conv_s4d__linear_kernel_hedgehog__prompt_kernel"
OPT = dict(stamps=0, dump=0, roles="RAB")
for a_ in sys.argv[1:]:
    k_, v_ = a_.split("=")
    OPT[k_] = int(v_) if v_.lstrip("-").isdigit() else v_

C_KW, C_WO, C_UT, C_AF, C_KV, C_O = [256 * n for n in (0, 48, 56, 80, 112, 176)]
WS_EPOCH = 0x20000
WS_WKV = 0xD00000
WS_WQ = 0xF00000
WS_WO = 0x100000
WS_KVP = 0x200000
WS_UT = 0x300000
WS_AT = 0x600000
WS_O = 0x900000
WS_STAMP = 0xC00000
WS_DUMP = 0x1000000
WS_SIZE = 0x4000000 if OPT["dump"] else 0x1000000

ID_A, ID_B, ID_END = 8, 168, 424
SPIN = 1 << 17
LOG2E = 0x3FB8AA3B
INV2PI = 0x3E22F983

P_U, P_LOGA, P_AIM, P_CRE, P_CIM, P_LOGDT, P_DSK = 4, 6, 8, 10, 12, 14, 16
P_WQKV, P_WPHI, P_WO, P_GATE, P_OUT, P_DBG, P_WS = 20, 22, 24, 26, 28, 30, 32
R_X, R_W, R_WS, R_DBG, R_M1, R_M2 = 36, 40, 44, 48, 52, 56
SW = 3
TAG = 34
ST0 = 76

A = Asm()
stampnames = {}
_lab = [0]


def srd(r, p, size):
    A(f"s_mov_b32 s{r}, s{p}")
    A(f"s_mov_b32 s{r+1}, s{p+1}")
    A(f"s_mov_b32 s{r+2}, {size}")
    A(f"s_mov_b32 s{r+3}, 0x20000")


def load_epoch():
    A(f"s_load_dwordx2 {S(TAG,2)}, {S(P_WS,2)}, {WS_EPOCH}")


def make_tag():
    A(f"s_add_u32 s{TAG}, s{TAG}, 0x7f4a7c15")
    A(f"s_addc_u32 s{TAG+1}, s{TAG+1}, 0x9e3779b9")


def cnt_read(r, soff):
    A(f"s_mov_b64 {S(r,2)}, 0")
    A(f"s_atomic_add_x2 {S(r,2)}, {S(P_WS,2)}, {soff if isinstance(soff, str) else 's%d' % soff} glc")


def cnt_peek(r, soff):
    A(f"s_load_dwordx2 {S(r,2)}, {S(P_WS,2)}, s{soff} glc")


def cnt_claim(q, soff):
    A(f"""
s_sub_u32 s{q}, s{q+2}, s{TAG}
s_subb_u32 s{q+1}, s{q+3}, s{TAG+1}
s_lshr_b32 s{q}, s{q}, 16
s_or_b32 s{q}, s{q}, s{q+1}
s_cselect_b64 {S(q,2)}, {S(TAG,2)}, {S(q+2,2)}
s_atomic_cmpswap_x2 {S(q,4)}, {S(P_WS,2)}, s{soff} glc
""")


def cnt_add(one, soff):
    A(f"s_atomic_add_x2 {S(one,2)}, {S(P_WS,2)}, s{soff}")


def cnt_init(soff):
    A(f"s_atomic_swap_x2 {S(TAG,2)}, {S(P_WS,2)}, s{soff}")


def cnt_test(r, n, low=False):
    A(f"s_sub_u32 s{r}, s{r}, s{TAG}")
    A(f"s_subb_u32 s{r+1}, s{r+1}, s{TAG+1}")
    if low:
        A(f"s_and_b32 s{r}, s{r}, 0xffff00ff")
    A(f"s_xor_b32 s{r}, s{r}, {n}")
    A(f"s_or_b32 s{r}, s{r}, s{r+1}")


def cnt_wait(r, soff, n, scnt, probed=True, low=False, nap=0):
    _lab[0] += 1
    k = _lab[0]
    if probed:
        cnt_test(r, n, low)
        A(f"s_cbranch_scc0 L_got{k}")
    A(f"s_mov_b32 s{scnt}, 0")
    A(f"L_spin{k}:")
    cnt_read(r, soff)
    A(f"""
s_add_u32 s{scnt}, s{scnt}, 1
s_cmp_ge_u32 s{scnt}, {SPIN}
s_waitcnt lgkmcnt(0)
s_cbranch_scc1 L_got{k}
""")
    cnt_test(r, n, low)
    if nap:
        A(f"s_cbranch_scc0 L_got{k}")
        A(f"s_sleep {nap}")
    A(f"s_cbranch_scc1 L_spin{k}")
    A(f"L_got{k}:")


def cnt_async(r, t, soff, n, scnt, **kw):
    _lab[0] += 1
    k = _lab[0]
    A(f"s_mov_b64 {S(t,2)}, {S(r,2)}")
    cnt_test(t, n, kw.get("low", False))
    A(f"s_cbranch_scc0 L_as{k}")
    A("s_waitcnt lgkmcnt(0)")
    cnt_wait(r, soff, n, scnt, **kw)
    A(f"L_as{k}:")


def cnt_probe(q, soff, first=False):
    if first:
        A(f"s_mov_b64 {S(q,2)}, 0")
    A(f"s_atomic_umax_x2 {S(q,2)}, {S(P_WS,2)}, s{soff} glc")


def cnt_poll2(r, t, soff, n, scnt, low=False):
    _lab[0] += 1
    k = _lab[0]

    def test(o):
        A(f"s_mov_b64 {S(t,2)}, {S(o,2)}")
        cnt_test(t, n, low)
        A(f"s_cbranch_scc0 L_p2e{k}")
    test(r)
    test(r + 2)
    A(f"s_mov_b32 s{scnt}, 0")
    A(f"L_p2{k}:")
    for q in (r, r + 2):
        A("s_waitcnt lgkmcnt(2)")
        test(q)
        cnt_probe(q, soff)
    A(f"""
s_add_u32 s{scnt}, s{scnt}, 1
s_cmp_lt_u32 s{scnt}, {SPIN}
s_cbranch_scc1 L_p2{k}
L_p2e{k}:
""")


def lwait_lds(vt, va, n=6):
    for _ in range(n):
        A(f"ds_read_b32 v{vt}, v{va}")
    A(f"s_waitcnt lgkmcnt({n})")
    A.lg = ["_"] * n


def only_wave(w, f):
    _lab[0] += 1
    k = _lab[0]
    A(f"s_cmp_lg_u32 s{SW}, {w}")
    A(f"s_cbranch_scc1 L_ow{k}")
    f()
    A(f"L_ow{k}:")


def stamp(role, name):
    if not OPT["stamps"]:
        return
    if OPT.get("only") and name not in ("end",) and name not in OPT["only"].split("+"):
        return
    l = stampnames.setdefault(role, [])
    assert len(l) < 12
    A(f"{'s_memtime' if OPT.get('cyc') else 's_memrealtime'} {S(ST0 + 2*len(l), 2)}")
    l.append(name)
    if OPT.get("both") and len(l) < 12:
        A(f"s_memtime {S(ST0 + 2*len(l), 2)}")
        l.append(name + "_c")


def finish(role):
    if OPT["stamps"]:
        stamp(role, "end")
        A("s_waitcnt lgkmcnt(0)")
        if OPT.get("leak") and role == "B":
            i_ = stampnames[role].index(OPT["leak"])
            e_ = ST0 + 2 * (len(stampnames[role]) - 1)
            A(f"""
s_cmp_lg_u32 s2, {ID_B + OPT.get('leakwg', 0)}
s_cbranch_scc1 L_noleak
s_sub_u32 s60, s{ST0+2*i_}, s{ST0+2*stampnames[role].index(OPT.get('leakfrom', 'start'))}
s_mul_i32 s60, s60, {OPT.get('leakmul', 1)}
s_min_u32 s60, s60, 20000
L_leak:
s_memrealtime s[62:63]
s_waitcnt lgkmcnt(0)
s_sub_u32 s62, s62, s{e_}
s_cmp_lt_u32 s62, s60
s_cbranch_scc1 L_leak
L_noleak:
s_endpgm
""")
        A("s_mov_b64 exec, -1")
        A("v_mov_b32 v1, 0")
        for i in range(len(stampnames[role])):
            A(f"v_writelane_b32 v1, s{ST0+2*i}, {i}")
        A("v_and_b32 v2, 63, v0")
        A("v_lshlrev_b32 v2, 2, v2")
        A("s_lshl_b32 s60, s2, 2")
        A(f"s_add_u32 s60, s60, s{SW}")
        A("s_lshl_b32 s60, s60, 6")
        A(f"s_add_u32 s60, s60, {WS_STAMP}")
        A("s_mov_b64 exec, 0xffff")
        A(f"buffer_store_dword v1, v2, {S(R_WS,4)}, s60 offen")
        if OPT.get("dbg") and role == "B":
            A(f"""
s_cmp_lg_u32 s{SW}, 0
s_cbranch_scc1 L_nodbg
s_load_dwordx2 s[60:61], s[0:1], 104
s_not_b32 s62, s{ST0}
v_writelane_b32 v1, s62, 15
s_waitcnt lgkmcnt(0)
global_atomic_umax v2, v1, s[60:61]
L_nodbg:
""")
    A("s_endpgm")
    A.vm, A.lg = [], []


def set_exec(mask):
    if mask == -1 or mask < (1 << 31):
        A(f"s_mov_b64 exec, {mask}")
    else:
        A(f"s_mov_b32 exec_lo, {mask & 0xffffffff:#x}")
        A(f"s_mov_b32 exec_hi, {mask >> 32:#x}")


def dump(regs, slot, vtmp):
    if not OPT["dump"]:
        return
    A(f"v_lshlrev_b32 v{vtmp}, 2, v0")
    A(f"s_sub_u32 s74, s2, {ID_B}")
    A(f"s_mul_i32 s74, s74, {32*1024}")
    A(f"s_add_u32 s74, s74, {WS_DUMP + slot*0x800000}")
    assert len(regs) <= 32
    for r in regs:
        A.v(f"buffer_store_dword v{r}, v{vtmp}, {S(R_WS,4)}, s74 offen", "dump")
        A("s_add_u32 s74, s74, 1024")
    A.vwait_all()


A(f"""
.amdgcn_target "amdgcn-amd-amdhsa--gfx950"
.text
.globl {KN}
.p2align 12
.type {KN},@function
{KN}:
s_load_dwordx16 s[4:19], s[0:1], 0
s_load_dwordx8 s[20:27], s[0:1], 64
s_load_dwordx4 s[28:31], s[0:1], 96
s_load_dwordx2 s[32:33], s[0:1], 112
""")
if OPT["stamps"]:
    A(f"{'s_memtime' if OPT.get('cyc') else 's_memrealtime'} {S(ST0,2)}")
    for r_ in ("B", "A"):
        stampnames[r_] = ["start"]
A(f"""
v_lshrrev_b32 v1, 6, v0
s_cmp_ge_u32 s2, {ID_B}
v_readfirstlane_b32 s{SW}, v1
s_cbranch_scc1 L_B
s_setprio {OPT.get('prioR', 3)}
s_cmp_ge_u32 s2, {ID_A}
s_cbranch_scc1 L_A
""")
A.c("---- code prefetch into L2 (one workgroup per die)")
A(f"""
s_getpc_b64 s[60:61]
L_pc:
v_lshlrev_b32 v2, 7, v0
v_min_u32 v2, L_codeend-L_pc-4, v2
""")
if OPT.get("pfc", 1):
    A("global_load_dword v3, v2, s[60:61]")
A(f"""
s_or_b32 s60, s2, s{SW}
s_cbranch_scc0 L_ep
L_exit:
s_endpgm
""")
A_HEAD = len(A.lines)

sST, sHP, sB, sCT = 60, 61, 62, 63
sT0, sT1, sT2, sT3 = 64, 65, 66, 67
sEV, sLO = 68, 70
sCNT, sWOFF = 72, 73
sL2E = 48
sJ, sOWN, sXL = 50, 51, 68
XB, ACC, WF, NWF = 96, 56, 16, 7
vXA, vXR = 8, 10
ONE, CQ0, CQ1, CQ2 = 6, 8, 12, 16
vGA, vKT, vOT, vOA, ID, vGW = 1, 3, 5, 6, 44, 48
vPA, vPA1, vPW, vVW, vKA, vL16, vL8 = 49, 50, 51, 52, 53, 54, 55
LDS_X = 40960
LDS_PV, LDS_WP, LDS_Z, LDS_GATE = 0, 77824, 79424, 80384
LDS_QA, LDS_QB = 40960, 16384
LDS_AT, LDS_KVT, LDS_RED = 0, 10240, 13824


def Xr(c, sg, j):
    return XB + 32 * c + 8 * j + 4 * sg


def L(text):
    return [(lambda l=l: A(l)) for l in (x.strip() for x in text.strip().split("\n")) if l]


def run(lst):
    while lst:
        lst.pop(0)()


class Stream:
    def __init__(self, budget=3):
        self.ev, self.now, self.q, self.budget = {}, {}, [], budget

    def at(self, k, fs):
        self.ev.setdefault(k, []).extend(fs if isinstance(fs, list) else [fs])

    def exact(self, k, f):
        self.now.setdefault(k, []).append(f)

    def run(self, mm, reserve=lambda k: k & 1):
        for k, m in enumerate(mm):
            m()
            j = max(i for i in range(len(A.lines)) if "v_mfma" in A.lines[i] and i >= len(A.lines) - 12)
            self.q += self.ev.pop(k, [])
            while self.q and len(A.lines) - 1 - j < self.budget - reserve(k):
                self.q.pop(0)()
            if k in self.now:
                run(self.q)
                run(self.now.pop(k))
        run(self.q)
        assert not self.ev and not self.now


def flat(items):
    o = []
    for pre, ld in items:
        o += L(pre) + [ld]
    return o


def dma_addr(v, i, div, fields, extra, t0, vl):
    t1, t2 = t0 + 1, t0 + 2
    magic = {10: 6554, 5: 13108}[div]
    for q in range(1280):
        assert (q * magic) >> 16 == q // div
    o = []
    if i:
        o.append(f"v_add_u32 v{t0}, {64*i}, v{vl}")
    q_ = t0 if i else vl
    o.append(f"v_mul_u32_u24 v{t1}, {magic}, v{q_}")
    o.append(f"v_lshrrev_b32 v{t1}, 16, v{t1}")
    o.append(f"v_mad_i32_i24 v{t0}, v{t1}, -{div}, v{q_}")
    for n, (sb, w, db) in enumerate(fields):
        if n == 0:
            assert db == 0
            o.append(f"v_bfe_u32 v{v}, v{t1}, {sb}, {w}")
        else:
            o.append(f"v_bfe_u32 v{t2}, v{t1}, {sb}, {w}")
            o.append(f"v_lshl_or_b32 v{v}, v{t2}, {db}, v{v}")
    o.append(f"v_mul_u32_u24 v{v}, 240, v{v}")
    if extra:
        o.append(f"v_add_u32 v{t2}, 3, v{t0}")
        o.append(f"v_lshrrev_b32 v{t2}, 3, v{t2}")
        o.append(f"v_mul_u32_u24 v{t2}, {extra//16}, v{t2}")
        o.append(f"v_add3_u32 v{v}, v{v}, v{t0}, v{t2}")
        o.append(f"v_lshlrev_b32 v{v}, 4, v{v}")
    else:
        o.append(f"v_add_lshl_u32 v{v}, v{v}, v{t0}, 4")
    return "\n".join(o)


def softmax(P, E, OUT, tm, hook, ratio=False):
    mx, mn, acc, keep = tm, tm + 1, tm + 2, tm + 4
    A(f"v_max3_f32 v{mx}, v{P[0]}, v{P[1]}, v{P[2]}")
    A(f"v_min3_f32 v{mn}, v{P[0]}, v{P[1]}, v{P[2]}")
    for i in range(3, 19, 2):
        A(f"v_max3_f32 v{mx}, v{mx}, v{P[i]}, v{P[i+1]}")
        A(f"v_min3_f32 v{mn}, v{mn}, v{P[i]}, v{P[i+1]}")
    A(f"v_max_f32 v{mx}, v{mx}, v{P[19]}")
    A(f"v_min_f32 v{mn}, v{mn}, v{P[19]}")
    A(f"v_mul_f32 v{mx}, s{sL2E}, v{mx}")
    A(f"v_mul_f32 v{mn}, s{sL2E}, v{mn}")
    for half in range(2):
        D = E if half == 0 else P
        for i in range(0, 20, 2):
            for n in range(2):
                if half == 0:
                    A(f"v_fma_f32 v{D[i+n]}, v{P[i+n]}, s{sL2E}, -v{mx}")
                else:
                    A(f"v_fma_f32 v{D[i+n]}, -v{P[i+n]}, s{sL2E}, v{mn}")
            if i >= 4:
                for n in range(2):
                    A(f"v_add_f32 v{acc+n}, v{D[n] if i==4 else acc+n}, v{D[i-2+n]}")
            for n in range(2):
                A(f"v_exp_f32 v{D[i+n]}, v{D[i+n]}")
                hook(30 * half + i + n)
        A(f"v_add_f32 v{acc}, v{acc}, v{acc+1}")
        A(f"v_add_f32 v{acc}, v{acc}, v{D[18]}")
        plain = ratio and half == 0
        A(f"v_add_f32 v{keep if plain else acc}, v{acc}, v{D[19]}")
        if not plain:
            A(f"v_rcp_f32 v{acc}, v{acc}")
            if ratio:
                A(f"v_mul_f32 v{acc}, v{keep}, v{acc}")
        for i in range(0, 20, 2):
            if not plain:
                for n in range(2):
                    A(f"v_mul_f32 v{D[i+n]}, v{acc}, v{D[i+n]}")
            A(f"v_cvt_pk_bf16_f32 v{OUT+10*half+i//2}, v{D[i]}, v{D[i+1]}")
            hook(30 * half + 20 + i // 2)


class Hooks:
    def __init__(self):
        self.ev, self.q = {}, []

    def at(self, n, fs, burst=False):
        fs = fs if isinstance(fs, list) else [fs]
        self.ev.setdefault(n, []).extend([lambda fs=fs: run(fs)] if burst else fs)

    def __call__(self, n):
        self.q += self.ev.pop(n, [])
        if self.q:
            self.q.pop(0)()
        if n == 59:
            run(self.q)
            assert not self.ev


def scale(d, r, pk):
    if pk:
        A(f"v_pk_mul_f32 {V(d,2)}, {V(d,2)}, {V(r,2)}")
    else:
        A(f"v_mul_f32 v{d}, v{r}, v{d}")
        A(f"v_mul_f32 v{d+1}, v{r}, v{d+1}")


PHI = 8


def phi_frags(pf, vaddr, tag):
    o = []
    for t in range(3):
        for h in range(2):
            r = pf + 4 * t + 2 * h
            if t == 2 and h == 1:
                o += L(f"v_mov_b32 v{r}, 0\nv_mov_b32 v{r+1}, 0")
            else:
                o.append(lambda r=r, t=t, h=h: A.l(f"ds_read_b64_tr_b16 {V(r,2)}, v{vaddr} offset:{320*t+160*h}", tag))
    return o


def phi_mfma(t, op, pf0, pf1, pk0, pk1):
    A(f"v_mfma_f32_16x16x32_bf16 {V(pk1,4)}, {V(pf1+4*t,4)}, {V(op,4)}, {'0' if t==0 else V(pk1,4)}")
    A(f"v_mfma_f32_32x32x16_bf16 {V(pk0,16)}, {V(pf0+4*t,4)}, {V(op,4)}, {'0' if t==0 else V(pk0,16)}")


class FragPipe:
    def __init__(self, vaddr, look=5, phase=0):
        self.vaddr, self.look, self.phase = vaddr, look, phase

    def stream(self, frags, acc):
        reads = [(lambda i=i, o=o: A.l(f"ds_read_b128 {V(WF+4*((i+self.phase)%NWF),4)}, v{self.vaddr} offset:{o}", f"f{i}")) for i, (ks, t, o) in enumerate(frags)]
        out = []
        for i, (ks, t, o) in enumerate(frags):
            for sg in range(2):
                def m(i=i, ks=ks, t=t, sg=sg):
                    if i == 0 and sg == 0:
                        for _ in range(self.look):
                            reads.pop(0)()
                    if sg == 0:
                        A.lwait(f"f{i}")
                    d = V(acc + 8 * t + 4 * sg, 4)
                    A(f"v_mfma_f32_16x16x32_bf16 {d}, {V(WF+4*((i+self.phase)%NWF),4)}, {V(Xr(ks//4,sg,ks%4),4)}, {'0' if ks==0 else d}")
                    if reads and sg == 0:
                        reads.pop(0)()
                out.append(m)
        return out


def role_B():
    A.c("---- B prologue")
    sXO, sWO2, sQO, sKW, sKF, sOF, sWC, sUT = 69, 70, 71, 74, 30, 31, 24, 25
    sKS, sRH, sUS, sKA, sUO, sROLE = 100, 101, 72, 18, 100, 49
    A(f"""
L_B:
s_cmp_ge_u32 s2, {ID_END}
s_cbranch_scc1 L_exit
s_setprio {OPT.get('prioB', 2)}
s_sub_u32 s{sT0}, s2, {ID_B}
s_bfe_u32 s{sB}, s{sT0}, 0x10002
s_and_b32 s{sST}, s{sT0}, 3
s_lshr_b32 s{sROLE}, s{sT0}, 3
s_lshl_b32 s{sT3}, s{SW}, 10
""")
    ASYM = OPT.get("asym", 0)
    NT = " nt" if OPT.get("nt", 1) else ""
    vU = 80
    if ASYM:
        A(f"s_mov_b32 s{sKS}, s{sROLE}\ns_lshl_b32 s{sT1}, s{sB}, 5\ns_add_u32 s{sROLE}, s{sROLE}, s{sT1}")
    else:
        A(f"s_lshr_b32 s{sKS}, s{sT0}, 2")
    IS_NOT_REPACKER = f"s_cmp_ge_u32 s{sROLE}, {20 if ASYM else 10}"
    IS_IDLE = f"s_cmp_eq_u32 s{sHP}, 15" if ASYM else f"s_cmp_lt_u32 s{sROLE}, 12"
    A(f"""
v_lshrrev_b32 v2, 3, v0
v_lshrrev_b32 v3, 4, v0
v_xor_b32 v3, v3, v0
v_and_b32 v3, 7, v3
v_mul_u32_u24 v2, 240, v2
v_add_lshl_u32 v{vU}, v2, v3, 4
{IS_NOT_REPACKER}
s_cbranch_scc1 L_e0
s_mul_i32 s{sUS}, s{sST}, 320
s_and_b32 s{sUS}, s{sUS}, 0xffffff80
s_mul_i32 s{sT1}, s{sKS}, {32*3840}
s_add_u32 s{sUS}, s{sUS}, s{sT1}
s_waitcnt lgkmcnt(0)
""")
    srd(R_W, P_WQKV, 2457600)

    def unit_load(sec, tag=None):
        for j_ in range(3):
            A(f"s_add_u32 m0, s{sT3}, {4096*(3*((sec+2)%3)+j_)}")
            A(f"s_add_u32 s{sT1}, s{sUS}, {1280*sec+128*j_}")
            (A if tag is None else lambda t: A.v(t, tag))(f"buffer_load_dwordx4 v{vU}, {S(R_W,4)}, s{sT1} offen{NT} lds")
    unit_load(1)
    unit_load(2)
    A(f"""
L_e0:
s_lshl_b32 s{sRH}, s{sST}, 2
s_add_u32 s{sRH}, s{sRH}, s{SW}
s_bfe_u32 s{sT1}, s{sT0}, 0x20003
s_lshr_b32 s{sCT}, s{sT0}, 5
s_sub_u32 s{sCT}, 7, s{sCT}
s_lshl_b32 s{sST}, s{sST}, 2
s_add_u32 s{sST}, s{sST}, s{sT1}
s_lshl_b32 s{sHP}, s{sB}, 3
s_add_u32 s{sHP}, s{sHP}, s{sCT}
s_cmp_eq_u32 s{sB}, 0
s_mov_b32 s{sJ}, {0x09875421 if ASYM else 0x95197531:#x}
s_cselect_b32 s{sJ}, {0x97418630 if ASYM else 0x84086420:#x}, s{sJ}
s_lshl_b32 s{sT2}, s{sCT}, 2
s_lshr_b32 s{sJ}, s{sJ}, s{sT2}
s_and_b32 s{sJ}, s{sJ}, 15
s_mul_i32 s{sT1}, s{sT1}, 3
s_add_u32 s{sJ}, s{sJ}, s{sT1}
s_sub_u32 s{sT1}, s{sJ}, 10
s_min_u32 s{sJ}, s{sJ}, s{sT1}
v_bfe_u32 v2, v0, 3, 3
v_lshl_add_u32 v2, v1, 5, v2
v_mul_u32_u24 v{vXA}, 1280, v2
v_bfe_u32 v2, v0, 4, 2
v_and_b32 v3, 7, v0
v_xor_b32 v2, v2, v3
s_mul_i32 s{sT1}, s{sST}, 163840
v_lshl_add_u32 v{vXA}, v2, 4, v{vXA}
v_add_u32 v{vXA}, s{sT1}, v{vXA}
v_xor_b32 v{vXA+1}, 64, v{vXA}
v_add_u32 v{vXA+1}, {10240-1024}, v{vXA+1}
s_lshl_b32 s{sXL}, s{SW}, 13
s_lshl_b32 s{sXO}, s{sJ}, 7
s_mul_i32 s{sWO2}, s{sJ}, 10240
s_add_u32 s{sWO2}, s{sWO2}, s{sT3}
s_mul_i32 s{sQO}, s{sJ}, 6144
s_add_u32 s{sQO}, s{sQO}, s{sT3}
s_mov_b32 s{sL2E}, {LOG2E:#x}
""")
    t0, t1, t2, t3 = 56, 57, 58, 59
    a0, a1, a2, a3 = 56, 57, 58, 59
    m0_, m1_ = S(56, 2), S(58, 2)
    setup = L(f"""
v_and_b32 v{vL8}, 63, v0
v_lshlrev_b32 v{vL16}, 4, v{vL8}
v_lshlrev_b32 v{vL8}, 3, v{vL8}
v_and_b32 v{t0}, 15, v0
v_lshrrev_b32 v{t1}, 1, v{t0}
v_bfe_u32 v{t2}, v0, 4, 2
v_xor_b32 v{t1}, v{t1}, v{t2}
v_lshlrev_b32 v{t1}, 4, v{t1}
v_lshl_add_u32 v{vXR}, v{t0}, 7, v{t1}
v_add_u32 v{vXR}, s{sXL}, v{vXR}
v_xor_b32 v{vXR+1}, 64, v{vXR}
v_lshrrev_b32 v{t1}, 5, v0
v_lshl_add_u32 v{vGW}, v{t1}, 4, v{t0}
v_lshlrev_b32 v{vGW}, 2, v{vGW}
v_add_u32 v{vGW}, {LDS_GATE}, v{vGW}
v_bfe_u32 v{t0}, v0, 5, 1
v_and_b32 v{t1}, 1, v0
v_bfe_u32 v{t2}, v0, 1, 1
v_cmp_eq_u32 {m0_}, v{t1}, v{t0}
v_mul_u32_u24 v{vPA1}, 800, v{t0}
v_bfe_u32 v{t1}, v0, 2, 2
v_mad_u32_u24 v{vPA1}, v{t1}, 40, v{vPA1}
v_add_u32 v{vPA1}, {LDS_WP}, v{vPA1}
v_lshl_add_u32 v{vPA}, v{t2}, 3, v{vPA1}
v_bfe_u32 v{t2}, v0, 4, 1
v_lshl_add_u32 v{vPA}, v{t2}, 4, v{vPA}
v_mov_b32 v{t3}, {LDS_Z}
v_cndmask_b32 v{vPA}, v{t3}, v{vPA}, {m0_}
v_lshlrev_b32 v{vKA}, 1, v{t0}
v_lshl_add_u32 v{vKA}, v{t1}, 2, v{vKA}
v_mul_u32_u24 v{vKA}, 272, v{vKA}
v_and_b32 v{t1}, 3, v0
v_lshl_add_u32 v{t2}, v{t2}, 2, v{t1}
v_lshl_add_u32 v{vKA}, v{t2}, 3, v{vKA}
v_bfe_u32 v{t2}, v0, 4, 2
v_cmp_eq_u32 {m0_}, v{t1}, v{t2}
v_add_u32 v{vPA1}, 32, v{vPA1}
v_and_b32 v{t1}, 31, v0
v_lshrrev_b32 v{t2}, 6, v0
v_cndmask_b32 v{vPA1}, v{t3}, v{vPA1}, {m0_}
v_lshl_add_u32 v{t1}, v{t2}, 5, v{t1}
v_mul_u32_u24 v{t1}, 272, v{t1}
v_mul_u32_u24 v{t3}, 80, v{t0}
v_add_u32 v{vPW}, v{t1}, v{t3}
v_mad_u32_u24 v{vVW}, v{t0}, 48, v{t1}
v_mad_u32_u24 v{vKA}, v{t2}, 40, v{vKA}
v_and_b32 v{vGA}, 31, v0
v_add_u32 v{vGA+1}, 32, v{vGA}
v_min_u32 v{vGA+1}, 54, v{vGA+1}
v_bfe_u32 v{a3}, v0, 5, 1
v_lshlrev_b32 v{a0}, 3, v{a3}
v_lshl_add_u32 v{vOT}, v{vGA}, 4, v{a0}
v_lshlrev_b32 v{a0}, 10, v{a3}
v_lshl_add_u32 v{vGA}, v{vGA}, 4, v{a0}
v_lshl_add_u32 v{vGA+1}, v{vGA+1}, 4, v{a0}
v_and_b32 v{a0}, 15, v0
v_bfe_u32 v{a1}, v0, 4, 1
v_mad_i32_i24 v{a2}, v{a1}, -8, v{a0}
v_lshl_add_u32 v{a0}, v{a3}, 4, v{a0}
v_and_b32 v{vKT}, 1, v{a2}
v_lshlrev_b32 v{vKT}, 4, v{vKT}
v_mov_b32 v{vKT+1}, 0x3f80
v_lshlrev_b32 v{vKT}, v{vKT}, v{vKT+1}
v_lshrrev_b32 v{a2}, 1, v{a2}
v_cmp_eq_u32 {m0_}, 0, v{a2}
v_cmp_eq_u32 {m1_}, 1, v{a2}
s_lshr_b32 s73, s{SW}, 1
v_cndmask_b32 v{ID}, 0, v{vKT}, {m0_}
v_cndmask_b32 v{ID+1}, 0, v{vKT}, {m1_}
v_cmp_eq_u32 {m0_}, 2, v{a2}
v_cmp_eq_u32 {m1_}, 3, v{a2}
s_mul_i32 s73, s73, 1680
v_cndmask_b32 v{ID+2}, 0, v{vKT}, {m0_}
v_cndmask_b32 v{ID+3}, 0, v{vKT}, {m1_}
s_mul_i32 s75, s{SW}, 40
s_add_u32 s73, s73, s75
s_add_u32 s73, s73, {LDS_KVT}
v_cmp_le_u32 {m0_}, 22, v{a0}
v_cmp_le_u32 {m1_}, 12, v{a0}
v_mul_u32_u24 v{vKT}, 80, v{a0}
v_mov_b32 v{a2}, {8-22*80}
v_cndmask_b32 v{a2}, 0, v{a2}, {m0_}
v_lshl_add_u32 v{vKT}, v{a1}, 4, v{vKT}
v_add_u32 v{vKT+1}, 808, v{vKT}
v_add3_u32 v{vKT}, v{vKT}, v{a2}, s73
v_lshl_add_u32 v{a2}, v{a0}, 1, v{a1}
v_mul_u32_u24 v{a2}, 80, v{a2}
v_subrev_u32 v{a2}, {24*80-32}, v{a2}
v_cndmask_b32 v{vKT+1}, v{vKT+1}, v{a2}, {m1_}
v_add_u32 v{vKT+1}, s73, v{vKT+1}
v_bfe_u32 v{a0}, v0, 2, 1
v_cmp_eq_u32 {m0_}, v{a0}, v{a3}
v_bfe_u32 v{a1}, v0, 3, 2
v_and_b32 v{a2}, 3, v0
v_lshl_add_u32 v{a1}, v{a1}, 2, v{a2}
v_mad_u32_u24 v{a1}, v{a0}, 22, v{a1}
v_mul_u32_u24 v{a1}, 80, v{a1}
v_add_u32 v{vOA}, {LDS_KVT}, v{a1}
v_add_u32 v{vOA+1}, {LDS_KVT+1280}, v{a1}
v_mov_b32 v{a2}, {LDS_Z}
v_cndmask_b32 v{vOA}, v{a2}, v{vOA}, {m0_}
v_cndmask_b32 v{vOA+1}, v{a2}, v{vOA+1}, {m0_}
v_lshlrev_b32 v{t1}, 2, v0
v_min_u32 v{t1}, 700, v{t1}
v_add_u32 v{t1}, {LDS_Z}, v{t1}
v_mov_b32 v{t2}, 0
""")
    setup.append(lambda a_=t1, b_=t2: A.l(f"ds_write_b32 v{a_}, v{b_}", "z"))
    def wrap(sreg, step, size):
        return f"s_add_u32 s{sreg}, s{sreg}, {step}\ns_sub_u32 s{sT2}, s{sreg}, {size}\ns_min_u32 s{sreg}, s{sreg}, s{sT2}\n"

    def xslot(u):
        return 2048 * (u & 3) + (0 if BORROW and 4 <= u < 8 else LDS_X)

    def issue_x(u):
        if u >= 20:
            return []
        pre = f"s_add_u32 m0, s{sXL}, {xslot(u)}\n"
        if u & 1:
            pre += f"s_add_u32 s{sT0}, s{sXO}, 20480\n" + wrap(sXO, 128, 1280)
        so = sT0 if u & 1 else sXO
        return [(pre if i == 0 else "", lambda i=i: A.v(f"buffer_load_dwordx4 v{vXA+i}, {S(R_X,4)}, s{so} offen offset:{1024*i} lds", f"x{u}")) for i in range(2)]

    def read_x(u):
        A.vwait(f"x{u}")
        for jj in range(2):
            A.l(f"ds_read_b128 {V(Xr(u//4,u&1,(u&2)+jj),4)}, v{vXR+jj} offset:{xslot(u)}", f"xr{u}")

    wround, qround = [0], [0]

    def issue_w(upto):
        o = []
        for i in range(wround[0], min(upto, 25)):
            pre = f"s_add_u32 m0, s{sT3}, {4096*(i%10)}\n" + (wrap(sWO2, 4096, 102400) if i else "")
            o.append((pre, lambda i=i: A.v(f"buffer_load_dwordx4 v{vL16}, {S(R_W,4)}, s{sWO2} offen sc1 lds", f"w{i}")))
        wround[0] = max(wround[0], min(upto, 25))
        return o

    def issue_q(upto):
        o = []
        for i in range(qround[0], upto):
            pre = f"s_add_u32 m0, s{sT3}, {LDS_QA+4096*i if i < 9 else LDS_QB+4096*(i-9)}\n" + (wrap(sQO, 4096, 61440) if i else "")
            o.append((pre, lambda i=i: A.v(f"buffer_load_dwordx4 v{vL16}, {S(R_M1,4)}, s{sQO} offen sc1 lds", f"q{i}")))
        qround[0] = upto
        return o
    NEED = lambda h: (10 * h + 9) // 4 + 1
    FREED = lambda h: (10 * h + 6) // 4 + 1

    U2, U3 = OPT.get("u2", 3), OPT.get("u3", 3)
    BORROW = False

    def guarded(cmp_, f):
        _lab[0] += 1
        k = _lab[0]
        A(cmp_)
        A(f"s_cbranch_scc1 L_rp{k}")
        f()
        A(f"L_rp{k}:")
    for _ in range(OPT.get("npre", 60)):
        setup.pop(0)()
    A("s_waitcnt lgkmcnt(0)")
    srd(R_W, P_WQKV, 2457600)
    srd(R_X, P_U, 2621440)
    A(f"""
s_lshl_b32 s{sKA}, s{sRH}, 8
s_mov_b32 s{sOWN}, 0
{IS_NOT_REPACKER}
s_cbranch_scc0 L_e1j
""")
    run(flat(issue_x(0) + issue_x(1)))
    A(f"""
s_lshl_b32 s{sKA}, s{sJ}, 8
s_add_u32 s{sKA}, s{sKA}, {C_UT}
{IS_IDLE}
s_cselect_b32 s{sOWN}, 5, 0
s_lshl_b32 s{sRH}, s{SW}, 3
s_add_u32 s{sOWN}, s{sOWN}, s{sRH}
s_sub_u32 s{sRH}, s{sOWN}, 24
""")
    IS_NOT_WO = f"s_cmp_ge_u32 s{sRH}, 5"
    sAJ, sW0, sW1, sW2, t0, t1, t2, t3 = 14, 15, 16, 17, 8, 9, 12, 13

    def wo_fetch():
        A(f"""
s_mul_i32 s{sAJ}, s{sST}, 10
s_add_u32 s{sAJ}, s{sAJ}, s{sJ}
s_mov_b32 s{sOWN}, 0
s_lshr_b32 s{t0}, s{sAJ}, 3
s_mul_i32 s{t1}, s{t0}, 52
s_lshr_b32 s{t1}, s{t1}, 8
s_and_b32 s{sKA}, s{sAJ}, 4
s_mul_i32 s{sW2}, s{sKA}, 102400
s_mul_i32 s{t3}, s{sKA}, 160
s_add_u32 s{sKA}, s{sKA}, s{t1}
s_lshl_b32 s{sKA}, s{sKA}, 8
s_add_u32 s{sKA}, s{sKA}, {C_WO}
s_mul_i32 s{t2}, s{t0}, 5120
s_add_u32 s{sW2}, s{sW2}, s{t2}
s_and_b32 s{t2}, s{sAJ}, 3
s_lshl_b32 s{sW0}, s{t2}, 8
s_add_u32 s{sW2}, s{sW2}, s{sW0}
s_add_u32 s{sW2}, s{sW2}, {WS_WO}
s_mul_i32 s{sW0}, s{t1}, 5
s_sub_u32 s{t0}, s{t0}, s{sW0}
s_and_b32 s{sW0}, s{t2}, 1
s_mul_i32 s{sW0}, s{sW0}, 20
s_lshr_b32 s{sW1}, s{t2}, 1
s_lshl_b32 s{sW1}, s{sW1}, 3
s_add_u32 s{sW0}, s{sW0}, s{sW1}
s_mul_i32 s{sW1}, s{t0}, 40
s_add_u32 s{sW0}, s{sW0}, s{sW1}
s_mul_i32 s{t2}, s{t2}, 40
s_add_u32 s{t2}, s{t2}, 16
s_cmp_eq_u32 s{t0}, 4
s_cselect_b32 s{sW0}, s{t2}, s{sW0}
s_cselect_b32 s{sW1}, 20, 4
s_mul_i32 s{t1}, s{t1}, 160
s_add_u32 s{sW0}, s{sW0}, s{t1}
s_add_u32 s{sW1}, s{sW1}, s{sW0}
s_mul_i32 s{sW0}, s{sW0}, 1280
s_mul_i32 s{sW1}, s{sW1}, 1280
s_add_u32 s{sW0}, s{sW0}, s{t3}
s_add_u32 s{sW1}, s{sW1}, s{t3}
s_sub_u32 s{sW1}, s{sW1}, 5120
v_and_b32 v95, 63, v0
""")
        srd(R_M1, P_WO, 819200)
        for i, so, ex in ((0, sW0, None), (1, sW0, None), (2, sW0, "exec_hi, 0"), (2, sW1, "not"), (3, sW1, None), (4, sW1, None)):
            if ex != "not":
                A(f"""
s_mov_b64 exec, -1
v_add_u32 v92, {64*i}, v95
v_mul_u32_u24 v93, 205, v92
v_lshrrev_b32 v93, 13, v93
v_mad_u32_u24 v92, v93, 40, v92
s_movk_i32 s{t0}, {1024*i}
s_mov_b32 m0, s{t0}
v_lshlrev_b32 v92, 4, v92
""")
            if ex:
                A("s_not_b64 exec, exec" if ex == "not" else f"s_mov_b32 {ex}")
            A(f"buffer_load_dwordx4 v92, {S(R_M1,4)}, s{so} offen{NT} lds")
    for q in range(320):
        assert (q * 205) >> 13 == q // 40
    guarded(IS_NOT_WO, wo_fetch)
    A("L_e1j:")
    assert sOWN == 51
    arriver = lambda f: guarded(f"s_cmp_ge_u32 s{sOWN}, 5", f)
    load_epoch()
    arriver(lambda: cnt_read(CQ0 + 2, sKA))
    stamp("B", "iss0")
    srd(R_WS, P_WS, WS_SIZE)
    A(f"""
s_mov_b64 {S(ONE,2)}, 1
s_mov_b64 {S(CQ1,2)}, 256
s_lshl_b32 s{sKF}, s{sHP}, 2
s_add_u32 s{sKF}, s{sKF}, s{SW}
s_lshl_b32 s{sKF}, s{sKF}, 8
s_add_u32 s{sKF}, s{sKF}, {C_KV}
s_lshl_b32 s{sOF}, s{sST}, 1
s_lshr_b32 s{sT1}, s{SW}, 1
s_add_u32 s{sOF}, s{sOF}, s{sT1}
s_lshl_b32 s{sOF}, s{sOF}, 2
s_lshr_b32 s{sT1}, s{sHP}, 2
s_add_u32 s{sOF}, s{sOF}, s{sT1}
s_lshl_b32 s{sOF}, s{sOF}, 8
s_add_u32 s{sOF}, s{sOF}, {C_O}
s_lshl_b32 s{sKW}, s{sHP}, 8
""")
    run(setup)
    srd(R_M2, P_OUT, 2621440)
    stamp("B", "setup")
    A.lwait_all()
    make_tag()
    arriver(lambda: cnt_claim(CQ0, sKA))
    A(IS_NOT_REPACKER)
    A("s_cbranch_scc1 L_e2x")
    A.c("---- repack")
    srd(R_M1, P_GATE, 1280)
    vT, vTq = 16, 26
    A(f"""
v_bfe_u32 v92, v0, 4, 2
v_bfe_u32 v93, v0, 2, 2
v_lshl_add_u32 v92, v92, 3, v93
v_bfe_u32 v93, v92, 1, 3
v_lshlrev_b32 v93, 4, v93
v_lshlrev_b32 v92, 7, v92
s_and_b32 s{sT1}, s{sRH}, 4
s_lshl_b32 s{sT1}, s{sT1}, 4
s_mul_i32 s{sT2}, s{SW}, 80
s_add_u32 s{sT1}, s{sT1}, s{sT2}
v_bfe_u32 v94, v0, 1, 1
v_mad_u32_u24 v94, v94, 40, s{sT1}
v_and_b32 v95, 1, v0
v_lshl_add_u32 v91, v95, 4, v94
v_mul_u32_u24 v95, 12288, v95
v_add_u32 v95, v95, v92
""")
    for n, (col, add, base) in enumerate([(94, 8 * t, 95) for t in range(5)] + [(91, o, 92) for o in (0, 8, 32)]):
        r = vT + 2 * n
        A(f"""
v_add_u32 v88, {add}, v{col}
v_lshrrev_b32 v89, 7, v88
v_and_b32 v88, 127, v88
v_xor_b32 v88, v88, v93
v_lshl_add_u32 v89, v89, 12, v{base}
v_add_u32 v{r}, v88, v89
v_xor_b32 v{r+1}, 32, v{r}
""")
    A(f"""
v_and_b32 v90, 0x30, v0
s_mul_i32 s73, s{sRH}, 20
s_add_u32 s73, s73, s{sKS}
s_mul_i32 s75, s73, 3072
s_add_u32 s75, s75, {WS_WQ}
s_mul_i32 s73, s73, 5120
s_add_u32 s73, s73, {WS_WKV}
s_lshl_b32 s16, s{sRH}, 2
s_add_u32 s16, s16, s{sKS}
s_lshl_b32 s16, s16, 8
s_add_u32 s16, s16, {C_KV}
s_lshl_b32 s17, s{sKS}, 1
s_add_u32 s17, s17, s{SW}
s_lshl_b32 s17, s17, 2
s_lshr_b32 s{sT1}, s{sRH}, 2
s_add_u32 s17, s17, s{sT1}
s_lshl_b32 s17, s17, 8
s_add_u32 s17, s17, {C_O}
s_lshl_b32 s19, s{SW}, 3
s_and_b32 s19, s19, 16
s_add_u32 s19, s19, s{sKS}
""")
    guarded(f"s_cmp_ge_u32 s{sKS}, 4", lambda: cnt_init(16))
    guarded(f"s_cmp_ge_u32 s19, 16", lambda: cnt_init(17))
    keep, A.vm = A.vm, []
    A("s_waitcnt vmcnt(0)")
    A("s_barrier")
    names = list(stampnames.get("B", []))
    stamp("B", "ukv")
    for t in range(5):
        for h in range(2):
            A(f"ds_read_b64_tr_b16 {V(56+4*t+2*h,2)}, v{vT+2*t+h} offset:{512*h}")
    lwait_lds(92, vL8, 5)
    for t in range(5):
        if t == 4:
            A("s_add_u32 s73, s73, 4096")
        A.v(f"buffer_store_dwordx4 {V(56+4*t,4)}, v{vL16}, {S(R_WS,4)}, s73 offen offset:{1024*(t%4)} sc1", "kst")
    A("s_barrier")
    unit_load(0, "uq")
    A(f"s_lshl_b32 s19, s{sKS}, 6")
    A.v(f"buffer_load_dwordx4 {V(76,4)}, v90, {S(R_M1,4)}, s19 offen", "uq")
    A.vwait("kst")
    A.lwait_all()
    A("s_barrier")
    cnt_add(ONE, sKA)
    stamp("B", "kflag")
    QL = OPT.get("ql", 1)
    run(flat(issue_x(0) + issue_x(1) + (issue_x(2) + issue_x(3) if QL else [])))
    A("s_mov_b32 s16, 0xf0f0f0f0")
    A("s_mov_b32 s17, 0xf0f0f0f0")
    A.vwait("uq")
    A("s_barrier")
    for t in range(3):
        for h in range(2):
            A(f"ds_read_b64_tr_b16 {V(56+4*t+2*h,2)}, v{vTq+2*t+h} offset:{24576+512*h}")
    lwait_lds(92, vL8, 4)
    for p in range(4):
        A(f"v_cndmask_b32 v{64+p}, v{64+p}, v{76+p}, {S(16,2)}")

    def q_store():
        for t in range(3):
            A(f"buffer_store_dwordx4 {V(56+4*t,4)}, v{vL16}, {S(R_WS,4)}, s75 offen offset:{1024*t} sc1")
    if not QL:
        q_store()
        run(flat(issue_x(2) + issue_x(3)))
    A("s_branch L_e2j")
    A("L_e2x:")
    A.c("---- slice hand-over")
    A.vm = keep
    if OPT["stamps"]:
        stampnames["B"] = names
    A(f"""
v_bfe_u32 v81, v0, 4, 2
v_bfe_u32 v80, v0, 2, 2
v_lshl_add_u32 v81, v81, 3, v80
v_bfe_u32 v82, v81, 1, 3
v_bfe_u32 v83, v0, 1, 1
v_xor_b32 v82, v82, v83
v_lshlrev_b32 v82, 4, v82
v_lshl_add_u32 v81, v81, 7, v82
v_and_b32 v82, 1, v0
v_lshl_add_u32 v81, v82, 3, v81
v_add_u32 v81, s{sXL}, v81
v_bfe_u32 v82, v0, 2, 2
v_lshlrev_b32 v82, 14, v82
v_and_b32 v83, 3, v0
v_lshl_add_u32 v82, v83, 4, v82
v_and_b32 v83, 0x30, v0
v_lshl_add_u32 v82, v83, 2, v82
v_xor_b32 v93, 32, v81
v_xor_b32 v94, 64, v81
v_xor_b32 v95, 96, v81
s_lshl_b32 s{sT1}, s{sST}, 2
s_add_u32 s{sT1}, s{sT1}, s{SW}
s_lshl_b32 s{sT1}, s{sT1}, 8
s_lshl_b32 s73, s{sJ}, 18
s_add_u32 s{sT1}, s{sT1}, s73
s_add_u32 s{sUO}, s{sT1}, {WS_UT}
s_waitcnt vmcnt(0)
""")
    stamp("B", "ukv")
    TA_ = [81, 93, 94, 95]

    def hand_over():
        for it in range(4):
            for h in range(2):
                A(f"ds_read_b64_tr_b16 {V(60+4*it+2*h,2)}, v{TA_[it ^ h]} offset:{LDS_X+512*h}")
        lwait_lds(92, vL8, 4)
        for it in range(0 if OPT.get('nout') else 4):
            A(f"buffer_store_dwordx4 {V(60+4*it,4)}, v82, {S(R_WS,4)}, s{sUO} offen sc1")
            if it < 3:
                A(f"s_add_u32 s{sUO}, s{sUO}, 65536")

    def wo_put():
        WL, WU, WD = 16, 32, 224
        A(f"""
v_bfe_u32 v84, v0, 4, 2
v_and_b32 v85, 15, v0
v_mul_u32_u24 v86, 160, v84
v_lshl_add_u32 v87, v85, 1, v86
v_lshl_add_u32 v86, v85, 3, v86
v_mul_u32_u24 v84, 102400, v84
v_lshl_add_u32 v84, v85, 4, v84
s_mov_b32 s{sW0}, 0x05040100
s_mov_b32 s{sW1}, 0x07060302
""")
        for e in range(8):
            A(f"ds_read_b64 {V(WL+2*e,2)}, v86 offset:{640*e}")
            A(f"ds_read_u16 v{WU+e}, v87 offset:{640*e+128}")
        lwait_lds(92, vL8, 4)
        for jn in range(4):
            for p in range(4):
                A(f"v_perm_b32 v{WD+4*jn+p}, v{WL+2*(2*p+1)+(jn>>1)}, v{WL+2*(2*p)+(jn>>1)}, s{sW0+(jn&1)}")
            A(f"buffer_store_dwordx4 {V(WD+4*jn,4)}, v84, {S(R_WS,4)}, s{sW2} offen offset:{1024*jn} sc1")
        for p in range(4):
            A(f"v_lshl_or_b32 v{WD+16+p}, v{WU+2*p+1}, 16, v{WU+2*p}")
        A(f"s_add_u32 s{sW2}, s{sW2}, 4096")
        A(f"buffer_store_dwordx4 {V(WD+16,4)}, v84, {S(R_WS,4)}, s{sW2} offen sc1")
    guarded(IS_IDLE, hand_over)
    guarded(IS_NOT_WO, wo_put)
    if OPT.get("ordb", 1):
        A("s_barrier")
    run(flat(issue_x(2) + issue_x(3)))
    A("s_waitcnt vmcnt(4) lgkmcnt(0)")
    A("s_barrier")
    arriver(lambda: cnt_add(ONE, sKA))
    stamp("B", "kflag")
    A("L_e2j:")
    assert A.vm == ["x0", "x0", "x1", "x1", "x2", "x2", "x3", "x3"]
    A.lg = ["_"] * 4
    srd(R_M1, P_WPHI, 25600)
    A(f"""
s_mul_i32 s{sT1}, s{SW}, 400
s_add_u32 m0, s{sT1}, {LDS_WP}
s_mul_i32 s{sT2}, s{sHP}, 1600
s_add_u32 s{sT1}, s{sT1}, s{sT2}
s_mov_b64 exec, 0x1ffffff
""")
    A.v(f"buffer_load_dwordx4 v{vL16}, {S(R_M1,4)}, s{sT1} offen lds", "wp")
    A(f"""
s_mov_b64 exec, -1
s_mul_i32 s{sT1}, s{sHP}, 102400
s_add_u32 s{sT1}, s{sT1}, {WS_WKV}
s_add_u32 s{R_W}, s{P_WS}, s{sT1}
s_addc_u32 s{R_W+1}, s{P_WS+1}, 0
s_mov_b32 s{R_W+2}, 102400
s_mul_i32 s{sT1}, s{sHP}, 61440
s_add_u32 s{sT1}, s{sT1}, {WS_WQ}
s_add_u32 s{R_M1}, s{P_WS}, s{sT1}
s_addc_u32 s{R_M1+1}, s{P_WS+1}, 0
s_mov_b32 s{R_M1+2}, 61440
""")
    stamp("B", "iss1")
    refill = lambda u: u + 4

    A.c("---- x tile -> registers")
    assert U3 >= 2
    U1 = OPT.get("u1", 99)
    for u in range(U3 + 1):
        read_x(u)
        ld = []
        if u == 2 and not QL:
            guarded(IS_NOT_REPACKER, lambda: cnt_add(CQ1, sKA))
        if u:
            A.lwait(f"xr{u-1}")
            ld += issue_x(refill(u - 1))
        if u == U2:
            run(flat(ld))
            ld = []
            if U1 < U2:
                only_wave(0, lambda: cnt_async(CQ0, 14, sKW, 20, sCNT, low=True, nap=OPT.get('napw', 0)))
            else:
                only_wave(0, lambda: cnt_wait(CQ0, sKW, 20, sCNT, probed=False, low=True, nap=OPT.get('napw', 0)))
            A("s_barrier")
            stamp("B", "kwseen")
        if u >= U2:
            run(flat(issue_w(min(10, wround[0] + (OPT.get("w1st", 10) if u == U2 else OPT.get("wper", 2))))))
        if u == U2 and QL:
            guarded(IS_NOT_REPACKER, q_store)
            A.vm.append("qs")
            QMARK = len(A.vm)
            A.vm.pop()
            UQ = U2 + 4
        run(flat(ld))
        if u == U1 < U2:
            only_wave(0, lambda: cnt_read(CQ0, sKW))

    def ready(h):
        A.vwait(f"w{NEED(h)-1}")
        A("s_barrier")
        stamp("B", f"w{h}")


    A.c("---- GEMM1a: k and v for two heads, 20 k-steps in one stream")
    run(flat(issue_w(NEED(1))))
    ready(0)
    pipe = FragPipe(vL16, phase=5)
    mm = pipe.stream([(n // 5, n % 5, 1024 * (n % 40)) for n in range(100)], ACC)
    st_ = Stream()
    st_.at(0, flat(issue_w(10)))
    u = U3 + 1
    assert not QL or UQ > U3
    lastx = [0]
    for h in range(10):
        k0 = 20 * h
        for kk in {2: (0, 12), 3: (0, 5, 14), 4: (0, 4, 11, 15)}[OPT.get("xper", 2)]:
            if u < 20:
                st_.at(k0 + kk, [lambda u=u: read_x(u), lambda u=u: A.lwait(f"xr{u-1}")] + flat(issue_x(refill(u - 1))))
                if QL and u == UQ:
                    st_.at(k0 + kk, lambda: guarded(IS_NOT_REPACKER, lambda: cnt_add(CQ1, sKA)))
                u += 1
                lastx[0] = k0 + kk
        if h < 9:
            st_.exact(k0 + 19 - 2 * pipe.look, lambda h=h: ready(h + 1))
            mm[k0 + 20] = (lambda f=mm[k0 + 20], h=h: (need_x(h + 1), f()))
        if h:
            st_.at(k0 + 20 - 2 * pipe.look, flat(issue_w(10 + FREED(h - 1))))

    def need_x(h):
        assert f"x{2*h+1}" not in A.vm
        A.lwait(f"xr{2*h}", f"xr{2*h+1}")

    HQ = OPT.get("hq", 8)
    assert u == 20 and lastx[0] < 20 * HQ
    st_.at(20 * HQ - 50, L(f"""
s_and_b32 s{sWC}, s{sCT}, 4
s_add_u32 s{sWC}, s{sWC}, s{SW}
s_lshl_b32 s{sWC}, s{sWC}, 8
s_add_u32 s{sWC}, s{sWC}, {C_WO}
""") + [lambda: only_wave(0, lambda: cnt_read(CQ0, sKW)), lambda: cnt_read(CQ0 + 2, sWC)])
    st_.at(20 * HQ + 2, [lambda: A.lwait("xr19"), lambda: only_wave(0, lambda: cnt_async(CQ0, 14, sKW, 20 * 257, sCNT, nap=2))])
    for h in range(HQ, 10 if OPT.get("qin", 1) else 0):
        st_.at(20 * h + 21 - 2 * pipe.look, flat(issue_q(9 if h == 9 else min(9, qround[0] + OPT.get("qper", 3)))))
    KP, VP = 8, 20
    PF0, PF1, PK0, PK1 = 56, 68, 80, 32

    def cvt_tile(acc, t, d0, d1):
        return [(lambda sg=sg, hh=hh: A(f"v_cvt_pk_bf16_f32 v{(d0 if sg==0 else d1)+2*t+hh}, v{acc+8*t+4*sg+2*hh}, v{acc+8*t+4*sg+2*hh+1}")) for sg in range(2) for hh in range(2)]
    st_.at(192, L(f"v_mov_b32 v{KP+10}, 0\nv_mov_b32 v{KP+11}, 0"))
    st_.at(195, cvt_tile(ACC, 0, KP, VP))
    st_.at(197, cvt_tile(ACC, 1, KP, VP))
    need_x(0)
    st_.run(mm)
    assert wround[0] == 25
    stamp("B", "g1a")
    if OPT.get("fine"):
        finish("B")
        return

    A.c("---- phi_k, kv partial")
    swap = lambda a_, b_, i0, i1: [A(f"v_permlane16_swap_b32 v{a_+i}, v{b_+i}") for i in range(i0, i1)]
    run(phi_frags(PF0, vPA, "pf"))
    run(cvt_tile(ACC, 2, KP, VP))
    run(phi_frags(PF1, vPA1, "pf"))
    run(cvt_tile(ACC, 3, KP, VP) + cvt_tile(ACC, 4, KP, VP))
    swap(KP, VP, 0, 4)
    A.lwait("pf")
    phi_mfma(0, KP, PF0, PF1, PK0, PK1)
    swap(KP, VP, 4, 8)
    A(f"v_mov_b32 v{VP+10}, 0x3f80")
    A(f"v_mov_b32 v{VP+11}, 0")
    phi_mfma(1, KP + 4, PF0, PF1, PK0, PK1)
    swap(KP, VP, 8, 10)
    phi_mfma(2, KP + 8, PF0, PF1, PK0, PK1)
    A("s_barrier")
    for i in range(3):
        A.l(f"ds_write_b128 v{vVW}, {V(VP+4*i,4)} offset:{LDS_PV+160+16*i}", "pv")
    stamp("B", "pmf")
    hk = Hooks()
    hk1 = {n: (lambda i=i: A.l(f"ds_write_b128 v{vPW}, {V(PHI+4*i,4)} offset:{LDS_PV+16*i}", "pv")) for i, n in enumerate((24, 28, 51, 55, 59))}
    sWO = 75
    hk.at(0, L(f"""
s_lshr_b32 s{sT0}, s{SW}, 1
s_mul_i32 s{sT0}, s{sT0}, 48
s_mul_i32 s{sT1}, s{SW}, 40
s_sub_u32 s{sT0}, s{sT0}, s{sT1}
s_add_u32 s{sT0}, s{sT0}, 160
v_add_u32 v{vVW}, s{sT0}, v{vKA}
s_mul_i32 s{sWO}, s{sCT}, 102400
s_mul_i32 s{sT1}, s{SW}, 25600
s_add_u32 s{sWO}, s{sWO}, s{sT1}
s_add_u32 s{sWO}, s{sWO}, {WS_WO}
s_lshl_b32 s{sT0}, s{sHP}, 2
s_add_u32 s{sT0}, s{sT0}, s{SW}
s_lshl_b32 s{sT0}, s{sT0}, 14
s_add_u32 s{sT0}, s{sT0}, {WS_KVP}
s_lshl_b32 s{sT1}, s{sST}, 10
s_add_u32 s{sT1}, s{sT1}, s{sT0}
"""))

    def wo_touch():
        if not OPT.get('abl'):
            cnt_async(CQ0 + 2, 14, sWC, 20, sCNT, nap=8)
        if OPT.get("wopf", 1):
            A(f"""
s_and_b32 s{sWC}, s{sST}, 3
s_mul_i32 s{sWC}, s{sWC}, 6400
s_add_u32 s{sWC}, s{sWC}, s{sWO}
v_lshlrev_b32 v41, 3, v{vL16}
s_mov_b32 m0, {LDS_GATE+512}
s_mov_b32 exec_hi, 0x3ffff
""")
            A.v(f"buffer_load_dword v41, {S(R_WS,4)}, s{sWC} offen sc1 lds", "pf")
            A("s_mov_b32 exec_hi, -1")
    qe_ = flat(issue_q(9))
    for _ in range(min(len(qe_), OPT.get("qpre", 7))):
        qe_.pop(0)()
    hk.at(1, qe_)
    hk.at(2, wo_touch)
    softmax([PK0 + i for i in range(16)] + [PK1 + i for i in range(4)], [56 + i for i in range(20)], PHI, 36,
            lambda n: (hk1.pop(n, lambda: None)(), hk(n)))
    stamp("B", "smx")
    vKB, vQR = vVW, vPW
    A.lwait_all()
    A("s_barrier")
    stamp("B", "phik")
    KD = 28
    FR = [56, 64, 72, 80]

    def kvreads(ks):
        for h in range(2):
            A.l(f"ds_read_b64_tr_b16 {V(FR[ks%4]+2*h,2)}, v{vKA} offset:{LDS_PV+ks*4352+h*272}", f"kv{ks}")
        for h in range(2):
            A.l(f"ds_read_b64_tr_b16 {V(FR[ks%4]+4+2*h,2)}, v{vKB} offset:{LDS_PV+ks*4352+h*272}", f"kv{ks}")
    for ks in range(3):
        kvreads(ks)
    fl = L(f"""
v_and_b32 v14, 31, v0
v_bfe_u32 v15, v0, 5, 1
v_mad_u32_u24 v15, v15, 22, v14
v_lshlrev_b32 v15, 4, v15
v_add_u32 v{vQR}, {LDS_QB}, v{vL16}
""")
    for ks in range(8):
        A.lwait(f"kv{ks}")
        A(f"v_mfma_f32_32x32x16_bf16 {V(KD,16)}, {V(FR[ks%4],4)}, {V(FR[ks%4]+4,4)}, {'0' if ks==0 else V(KD,16)}")
        if ks + 3 < 8:
            kvreads(ks + 3)
        else:
            for _ in range(5):
                if fl:
                    fl.pop(0)()
    run(fl)
    A.vwait("q8")
    A("s_barrier")
    for i in range(6):
        A(f"v_cvt_pk_bf16_f32 v{8+i}, v{KD+2*i}, v{KD+2*i+1}")
    set_exec(0x003FFFFF003FFFFF)
    A.v(f"buffer_store_dwordx4 {V(8,4)}, v15, {S(R_WS,4)}, s{sT1} offen sc1", "kvst")
    A("s_mov_b32 exec_hi, 0")
    A.v(f"buffer_store_dwordx2 {V(12,2)}, v{vL8}, {S(R_WS,4)}, s{sT1} offen offset:704 sc1", "kvst")
    A("s_mov_b64 exec, -1")
    stamp("B", "kvst")

    A.c("---- GEMM1b (q); wo fragments stream into the x registers as they die")
    QA = 56
    WOR = [XB + 4 * i for i in range(8)] + [Xr(3, 0, 0) + 4 * i for i in range(16)] + [92]
    G = Xr(1, 0, 0)
    pipe = FragPipe(vQR, phase=3)
    mm = pipe.stream([(n // 3, n % 3, LDS_QA - LDS_QB + 1024 * n if n < 36 else 1024 * (n - 36)) for n in range(60)], QA)

    def issue_wo(f0, f1):
        o = []
        for f in range(f0, f1):
            ii, jn = divmod(f, 5)
            pre = ""
            if jn == 0 and ii < 4:
                pre = f"s_add_u32 s{sWC}, s{sST}, {ii}\ns_and_b32 s{sWC}, s{sWC}, 3\ns_mul_i32 s{sWC}, s{sWC}, 5120\ns_add_u32 s{sWC}, s{sWC}, s{sWO}\n"
            elif jn == 0:
                pre = f"s_add_u32 s{sWC}, s{sWO}, 20480\n"
            elif jn == 4:
                pre = f"s_add_u32 s{sWC}, s{sWC}, 4096\n"
            o.append((pre, lambda f=f, jn=jn: A.v(f"buffer_load_dwordx4 {V(WOR[f],4)}, v{vL16}, {S(R_WS,4)}, s{sWC} offen offset:{1024*(jn%4)} sc1", "wo")))
        return o

    def kv_flag():
        stamp("B", "kvw")
        A.vwait("kvst")
        cnt_add(ONE, sKF)
        stamp("B", "kvadd")

    def q2_ready():
        stamp("B", "q2w")
        A.vwait("q14")
        A("s_barrier")
        stamp("B", "q2")

    gl = []
    for pp in range(8):
        for g2 in range(2):
            pre = ""
            if g2 == 0 and pp % 2 == 0:
                pre = f"s_add_u32 s{sT1}, s{sST}, {pp//2}\ns_and_b32 s{sT1}, s{sT1}, 3\ns_lshl_b32 s{sT1}, s{sT1}, 12\ns_add_u32 s{sT1}, s{sT1}, s{sT0}\n"
            gl.append((pre, lambda pp=pp, g2=g2: A.v(f"buffer_load_dwordx4 {V(G+8*pp+4*g2,4)}, v{vGA+g2}, {S(R_WS,4)}, s{sT1} offen offset:{2048*(pp&1)} sc1", f"g{pp}")))
    Q0, Q1 = 8, 16
    PF0, PF1, PK0, PK1 = 80, 192, 56, 72
    st_ = Stream()
    st_.at(0, flat(issue_q(15)))
    KVF, KVT = OPT.get("kvf", 40), OPT.get("kvt", 92)
    st_.exact(KVF, kv_flag)
    st_.at(KVF + OPT.get("kvp", 4), lambda: cnt_probe(CQ0, sKF, True))
    if OPT.get("p2k", 0):
        st_.at(KVF + OPT.get("kvp2", 26), lambda: cnt_probe(CQ0 + 2, sKF, True))
    wol = issue_wo(0, 25)
    NW0 = OPT.get("nw0", 8)
    for i, g_ in enumerate(wol[:NW0]):
        st_.at(OPT.get("wo0", 30) + OPT.get("wostep", 5) * i, flat([g_]))
    st_.exact(72 - 2 * pipe.look - 1, q2_ready)
    st_.at(70, phi_frags(PF0, vPA, "pf"))
    st_.at(85, phi_frags(PF1, vPA1, "pf"))
    st_.exact(KVT, lambda: (stamp("B", "kvtest"), (cnt_poll2(CQ0, 14, sKF, 16, sCNT) if OPT.get('p2k', 0) else cnt_async(CQ0, 14, sKF, 16, sCNT, nap=OPT.get('napk', 0))), stamp("B", "kvseen")))
    NG1 = OPT.get("ng1", 10)
    for i, g_ in enumerate(gl[:NG1]):
        st_.at(min(KVT + 1 + 2 * i, 119), flat([g_]))
    st_.at(110, L(f"v_mov_b32 v{Q0+6}, 0\nv_mov_b32 v{Q0+7}, 0"))
    st_.run(mm)
    stamp("B", "g1b")

    A.c("---- phi_q; the kv partials are summed on the way")
    NW1 = OPT.get("nw1", 16)
    run(flat(gl[NG1:NG1 + 2]))
    run(cvt_tile(QA, 0, Q0, Q1) + cvt_tile(QA, 1, Q0, Q1))
    swap(Q0, Q1, 0, 4)
    run(cvt_tile(QA, 2, Q0, Q1))
    A(f"""
v_mov_b32 v43, v{QA+16}
s_mov_b32 exec_lo, 0
v_mov_b32 v43, v{QA+20}
s_mov_b32 exec_lo, 0xffff0000
s_mov_b32 exec_hi, 0xffff0000
""")
    A.l(f"ds_write_b32 v{vGW}, v43", "gw")
    A("s_mov_b64 exec, -1")
    assert "pf" not in A.lg
    phi_mfma(0, Q0, PF0, PF1, PK0, PK1)
    swap(Q0, Q1, 4, 6)
    phi_mfma(1, Q1, PF0, PF1, PK0, PK1)
    phi_mfma(2, Q0 + 4, PF0, PF1, PK0, PK1)
    run(flat(gl[NG1 + 2:]))
    RD, OF_, OD = 244, G, 56
    assert NW1 <= 20
    hk = Hooks()
    hk.at(OPT.get('woh', 20), flat(wol[NW0:NW1]))

    def reduce_(pp):
        A.vwait(f"g{pp}")
        for g2 in range(2):
            d = V(RD + 4 * g2, 4)
            A(f"v_mfma_f32_16x16x32_bf16 {d}, {V(ID,4)}, {V(G+8*pp+4*g2,4)}, {'0' if pp==0 else d}")

    def kvt_write():
        for i in range(4):
            A(f"v_cvt_pk_bf16_f32 v{RD+8+i}, v{RD+2*i}, v{RD+2*i+1}")
        A.l(f"ds_write_b64 v{vKT}, {V(RD+8,2)}", "kt")
        A("s_mov_b32 exec_hi, 0x007f007f")
        A.l(f"ds_write_b64 v{vKT+1}, {V(RD+10,2)}", "kt")
        A("s_mov_b64 exec, -1")

    def kvt_read():
        A.lwait_all()
        A("s_barrier")
        stamp("B", "kvt")
        for T in (1, 0):
            for t in range(5):
                A.l(f"ds_read_b128 {V(OF_+8*t+4*T,4)}, v{vOA+T} offset:{16*t}", f"o{t}_{T}")
    RH = OPT.get("rh", 34)
    hk2 = {RH + pp: (lambda pp=pp: reduce_(pp)) for pp in range(8)}
    hk2[min(RH + 12, 58)] = kvt_write
    hk2[min(RH + 18, 59)] = kvt_read
    hk.at(40, L(f"""
s_lshl_b32 s{sT1}, s{sST}, 2
s_add_u32 s{sT1}, s{sT1}, s{SW}
s_lshl_b32 s{sT1}, s{sT1}, 4
s_add_u32 s{sT1}, s{sT1}, s{sHP}
s_mul_i32 s{sT1}, s{sT1}, 2560
s_add_u32 s{sT1}, s{sT1}, {WS_O}
"""))
    softmax([PK0 + i for i in range(20)], [76 + i for i in range(16)] + [28, 29, 30, 31], PHI, 38,
            lambda n: (hk(n), hk2.pop(n, lambda: None)()), ratio=True)
    stamp("B", "phiq")
    OP = 28
    tail = L(f"""
v_mul_f32 v42, 0x358637bd, v42
v_add_f32 v40, v42, v{OD+20}
v_rcp_f32 v40, v40
""")
    for i in (8, 9):
        tail += L(f"v_mul_f32 v{OD+2*i}, v40, v{OD+2*i}\nv_mul_f32 v{OD+2*i+1}, v40, v{OD+2*i+1}\nv_cvt_pk_bf16_f32 v{OP+i}, v{OD+2*i}, v{OD+2*i+1}")
    tail.append(lambda: A.v(f"buffer_store_dwordx2 {V(OP+8,2)}, v{vOT}, {S(R_WS,4)}, s{sT1} offen offset:2048 sc1", "ost"))
    for T in (1, 0):
        for t in range(5):
            A.lwait(f"o{t}_{T}")
            d = V(OD + 16 * T, 16)
            A(f"v_mfma_f32_32x32x16_bf16 {d}, {V(OF_+8*t+4*T,4)}, {V(PHI+4*t,4)}, {'0' if t==0 else d}")
            if T == 0 and t == 0:
                tail.pop(0)()
                A("s_nop 5")
            if T == 0 and t == 3:
                for _ in range(5):
                    tail.pop(0)()
    run(tail)
    for i in range(8):
        scale(OD + 2 * i, 40, 0)
        A(f"v_cvt_pk_bf16_f32 v{OP+i}, v{OD+2*i}, v{OD+2*i+1}")
        if i == 3:
            A.v(f"buffer_store_dwordx4 {V(OP,4)}, v{vL16}, {S(R_WS,4)}, s{sT1} offen sc1", "ost")
        if i == 7:
            A.v(f"buffer_store_dwordx4 {V(OP+4,4)}, v{vL16}, {S(R_WS,4)}, s{sT1} offen offset:1024 sc1", "ost")
    stamp("B", "ost")
    NW2 = OPT.get("nw2", 21)
    run(flat(wol[NW1:NW2]))

    A.c("---- final projection: the wave sums its K quarter for four row tiles and owns tile (wave + ct) & 3")
    vOM, vOR, vW16 = 2, 3, 7
    vOMS = [72, 73, 74, 75]
    vRW, vRR, vAR, vAR2, vOUT2, vOUT = 1, 4, 5, 6, 2, 3
    sOB = [64, 65, 66, 67]
    sAF, sAT, sOC = 74, 25, 30
    GT, OMG, GA, AC0, AC1, OX = 8, 12, 16, 36, 56, 76
    OFR = [G + 4 * i for i in range(16)] + [OX + 4 * i for i in range(4)]
    A(f"""
s_add_u32 s{sOWN}, s{SW}, s{sCT}
s_and_b32 s{sOWN}, s{sOWN}, 3
s_lshl_b32 s{sCNT}, s{sB}, 2
s_add_u32 s{sCNT}, s{sCNT}, s{sOWN}
s_lshl_b32 s{sCNT}, s{sCNT}, 6
s_add_u32 s{sCNT}, s{sCNT}, {LDS_GATE}
v_and_b32 v42, 0x30, v0
v_add_u32 v42, s{sCNT}, v42
""")
    A.l(f"ds_read_b128 {V(GT,4)}, v42", "gt")
    A(f"""
s_lshl_b32 s{sAF}, s{sCT}, 2
s_add_u32 s{sAF}, s{sAF}, s{SW}
s_mul_i32 s{sAT}, s{sAF}, {20*4096}
s_lshl_b32 s{sAF}, s{sAF}, 8
s_add_u32 s{sAF}, s{sAF}, {C_AF}
s_lshl_b32 s{sWOFF}, s{sST}, 1
s_add_u32 s{sWOFF}, s{sWOFF}, s{sB}
s_lshl_b32 s{sCNT}, s{sWOFF}, 7
s_add_u32 s{sAT}, s{sAT}, s{sCNT}
s_add_u32 s{sAT}, s{sAT}, {WS_AT}
s_lshl_b32 s{sOC}, s{sWOFF}, 2
s_add_u32 s{sOC}, s{sOC}, s{SW}
s_lshl_b32 s{sOC}, s{sOC}, 8
s_add_u32 s{sOC}, s{sOC}, {C_O}
""")
    A.lwait("gt")
    cnt_read(CQ1, sAF)
    sGOT, sAL = 100, 101

    def a_dma():
        A(f"s_mul_i32 s{sAL}, s{SW}, 2560")
        for i in range(3):
            A(f"s_add_u32 m0, s{sAL}, {LDS_AT+1024*i}")
            A("s_mov_b32 exec_hi, 0" if i == 2 else "s_nop 0")
            A(f"buffer_load_dwordx4 v{68+i}, {S(R_WS,4)}, s{sAT} offen sc1 lds")
        A("s_mov_b64 exec, -1")

    def a_try():
        A(f"s_mov_b64 {S(14,2)}, {S(CQ1,2)}")
        cnt_test(14, 20)
        A(f"s_cselect_b32 s{sGOT}, 0, 1")
        guarded("", a_dma)
    A(f"""
v_mov_b32 v{vW16}, v{vL16}
v_and_b32 v40, 15, v0
v_bfe_u32 v43, v0, 4, 2
v_lshlrev_b32 v{vOM}, 9, v43
v_lshl_add_u32 v{vOM}, v40, 4, v{vOM}
v_mul_u32_u24 v{vOR}, 2560, v43
v_lshl_add_u32 v{vOR}, v40, 4, v{vOR}
v_bfe_u32 v49, v0, 3, 3
v_and_b32 v48, 7, v0
s_mul_i32 s{sCNT}, s{SW}, 20
""")
    for i in range(3):
        A(f"""
v_add_u32 v42, {8*i}, v49
v_add_u32 v43, s{sCNT}, v42
v_bfe_u32 v43, v43, 2, 3
v_xor_b32 v43, v43, v48
v_lshlrev_b32 v42, 12, v42
v_lshl_add_u32 v{68+i}, v43, 4, v42
""")
    for e in range(4):
        A(f"v_mul_f32 v{GT+e}, s{sL2E}, v{GT+e}")
    for e in range(4):
        A(f"v_exp_f32 v{GT+e}, -v{GT+e}")
    for e in range(4):
        A(f"v_add_f32 v{GT+e}, 1.0, v{GT+e}")
    for e in range(4):
        A(f"v_rcp_f32 v{GT+e}, v{GT+e}")
    for p in range(4):
        A(f"""
s_add_u32 s{sCNT}, s{sOWN}, {p+1}
s_bfe_u32 s{sJ}, s{sCNT}, 0x10001
s_mul_i32 s{sOB[p]}, s{sJ}, 40960
s_and_b32 s{sJ}, s{sCNT}, 1
s_lshl_b32 s{sJ}, s{sJ}, 8
s_add_u32 s{sOB[p]}, s{sOB[p]}, s{sJ}
""")
    A(f"""
s_mul_i32 s{sCNT}, s{sWOFF}, 81920
s_mul_i32 s{sJ}, s{SW}, 10240
s_add_u32 s{sCNT}, s{sCNT}, s{sJ}
s_add_u32 s{sCNT}, s{sCNT}, {WS_O}
v_add_u32 v{vOM}, s{sCNT}, v{vOM}
v_add_u32 v{vOR}, s{sCNT}, v{vOR}
""")
    for e in range(4):
        A(f"v_sub_f32 v{OMG+e}, 1.0, v{GT+e}")
    A.vwait("ost")
    cnt_add(ONE, sOF)
    stamp("B", "oflag")
    cnt_probe(CQ0, sOC, True)
    a_try()
    run(flat(wol[NW2:]))
    for ii in range(4):
        A(f"""
s_add_u32 s{sCNT}, s{sST}, {ii}
s_and_b32 s{sCNT}, s{sCNT}, 3
s_mul_i32 s{sCNT}, s{sCNT}, 2560
v_add_u32 v{vOMS[ii]}, s{sCNT}, v{vOM}
""")
    A(f"""
v_bfe_u32 v41, v0, 5, 1
v_lshl_add_u32 v41, s{sOWN}, 1, v41
v_and_b32 v42, 7, v40
v_xor_b32 v42, v42, v41
v_lshlrev_b32 v42, 4, v42
v_bfe_u32 v43, v0, 4, 1
v_lshlrev_b32 v43, 3, v43
v_lshlrev_b32 v{vAR}, 9, v40
v_add3_u32 v{vAR}, v{vAR}, v42, v43
v_lshrrev_b32 v42, 2, v40
v_xor_b32 v42, v42, v41
v_lshlrev_b32 v42, 4, v42
v_lshlrev_b32 v{vAR2}, 7, v40
v_add3_u32 v{vAR2}, v{vAR2}, v42, v43
s_mul_i32 s{sCNT}, s{SW}, 15360
s_add_u32 s{sCNT}, s{sCNT}, {LDS_RED}
v_add_u32 v{vRR}, s{sCNT}, v{vW16}
""")
    if OPT.get("p2o", 0):
        cnt_probe(CQ0 + 2, sOC, True)
        cnt_poll2(CQ0, 14, sOC, 8, sCNT)
    else:
        cnt_async(CQ0, 14, sOC, 8, sCNT)
    stamp("B", "oseen")
    guarded(f"s_cmp_eq_u32 s{sGOT}, 1", lambda: cnt_read(16, sAF))
    old = []
    for p in range(4):
        for ii in range(5):
            def f(p=p, ii=ii):
                r = V(OFR[5 * p + ii], 4)
                if ii < 4:
                    A.v(f"buffer_load_dwordx4 {r}, v{vOMS[ii]}, {S(R_WS,4)}, s{sOB[p]} offen sc1", f"of{p}_{ii}")
                else:
                    A.v(f"buffer_load_dwordx4 {r}, v{vOR}, {S(R_WS,4)}, s{sOB[p]} offen offset:2048 sc1", f"of{p}_{ii}")
            old.append(f)
    for _ in range(OPT.get("npo", 10)):
        old.pop(0)()
    AR = OFR[0]

    def a_fetch():
        def late():
            if not OPT.get('abl'):
                cnt_async(16, 14, sAF, 20, sCNT, nap=OPT.get('napa', 1))
            a_dma()
        guarded(f"s_cmp_eq_u32 s{sGOT}, 1", late)
        stamp("B", "aseen")

    def a_read():
        stamp("B", "arw")
        A.vwait_all()
        A("s_barrier")
        stamp("B", "ar")
        for jn in range(4):
            A.l(f"ds_read_b64 {V(AR+2*jn,2)}, v{vAR} offset:{LDS_AT+128*jn}", "ar")
        A.l(f"ds_read_b64 {V(AR+8,2)}, v{vAR2} offset:{LDS_AT+8192}", "ar")
    mix = [lambda: A.lwait("ar")]
    for jn in range(5):
        for e in range(4):
            src = AR + 2 * jn + (e >> 1)
            mix += L(f"v_and_b32 v{GA+4*jn+e}, 0xffff0000, v{src}" if e & 1 else f"v_lshlrev_b32 v{GA+4*jn+e}, 16, v{src}")
    mix2 = [(lambda jn=jn, e=e: A(f"v_mul_f32 v{GA+4*jn+e}, v{GT+e}, v{GA+4*jn+e}")) for jn in range(5) for e in range(4)]
    mm = []
    for p in range(4):
        ac = AC0 if p % 2 == 0 else AC1
        for ii in range(5):
            for jn in range(5):
                def m(p=p, ac=ac, ii=ii, jn=jn):
                    if jn == 0:
                        A.vwait(f"of{p}_{ii}")
                        if p == 0 and ii == 0:
                            stamp("B", "o0")
                    d = V(ac + 4 * jn, 4)
                    A(f"v_mfma_f32_16x16x32_bf16 {d}, {V(OFR[5*p+ii],4)}, {V(WOR[5*ii+jn],4)}, {'0' if ii==0 else d}")
                mm.append(m)
    st_ = Stream(budget=2)
    for i, f in enumerate(old):
        st_.at(2 * i, f)
    st_.exact(22, a_fetch)
    KA_ = OPT.get("aread", 58)
    st_.exact(KA_, a_read)
    st_.at(KA_ + 4, mix + mix2)
    for p in range(3):
        ac = AC0 if p % 2 == 0 else AC1
        k0 = 25 * (p + 1)
        st_.at(k0 - 3, L(f"""
s_add_u32 s{sCNT}, s{SW}, {p+1}
s_and_b32 s{sCNT}, s{sCNT}, 3
s_mul_i32 s{sCNT}, s{sCNT}, 15360
v_add_u32 v{vRW}, s{sCNT}, v{vW16}
"""))
        for jn in range(5):
            st_.at(k0 + 1 + jn, lambda jn=jn, p=p, ac=ac: A.l(f"ds_write_b128 v{vRW}, {V(ac+4*jn,4)} offset:{LDS_RED+5120*p+1024*jn}", "rw"))
    st_.at(33, L(f"""
v_bfe_u32 v{vOUT}, v0, 4, 2
v_mul_u32_u24 v{vOUT}, 5120, v{vOUT}
v_and_b32 v{GA}, 15, v0
v_lshl_add_u32 v{vOUT2}, v{GA}, 1, v{vOUT}
v_lshl_add_u32 v{vOUT}, v{GA}, 3, v{vOUT}
s_lshl_b32 s{sAT}, s{sWOFF}, 2
s_add_u32 s{sAT}, s{sAT}, s{sOWN}
s_mul_i32 s{sAT}, s{sAT}, 20480
s_mul_i32 s{sAF}, s{sCT}, 160
s_add_u32 s{sAT}, s{sAT}, s{sAF}
"""))
    KB_ = OPT.get("redbar", 84)
    st_.exact(KB_, lambda: (stamp("B", "rbw"), A.lwait_all(), A("s_barrier"), stamp("B", "rb")))
    red = []
    for jn in range(5):
        for q in (jn, 5 + jn, 10 + jn):
            red.append(lambda q=q, jn=jn: A.l(f"ds_read_b128 {V(OFR[q],4)}, v{vRR} offset:{1024*q}", f"rr{jn}"))
    st_.at(KB_ + 1, red)
    st_.run(mm, reserve=lambda k: 0)
    stamp("B", "fin")
    PK4 = OPT.get("pk4", 1)

    def add2(d, a_, b_):
        if PK4:
            A(f"v_pk_add_f32 {V(d,2)}, {V(a_,2)}, {V(b_,2)}")
        else:
            for n in range(2):
                A(f"v_add_f32 v{d+n}, v{a_+n}, v{b_+n}")
    for jn in range(5):
        A.lwait(f"rr{jn}")
        for h in range(2):
            r0, r1, r2 = OFR[jn] + 2 * h, OFR[5 + jn] + 2 * h, OFR[10 + jn] + 2 * h
            add2(r0, r0, r1)
            add2(r0, r0, r2)
    OSF = OPT.get("osf", "").replace("_", " ")
    for h in range(2):
        for jn in range(5):
            r0, g_ = OFR[jn] + 2 * h, GA + 4 * jn + 2 * h
            add2(r0, r0, AC1 + 4 * jn + 2 * h)
            if PK4:
                A(f"v_pk_fma_f32 {V(g_,2)}, {V(OMG+2*h,2)}, {V(r0,2)}, {V(g_,2)}")
            else:
                for n in range(2):
                    A(f"v_fma_f32 v{g_+n}, v{OMG+2*h+n}, v{r0+n}, v{g_+n}")
        for e in (2 * h, 2 * h + 1):
            A(f"v_cvt_pk_bf16_f32 v{AC0+4*e}, v{GA+e}, v{GA+4+e}")
            A(f"v_cvt_pk_bf16_f32 v{AC0+4*e+1}, v{GA+8+e}, v{GA+12+e}")
            A.v(f"buffer_store_dwordx2 {V(AC0+4*e,2)}, v{vOUT}, {S(R_M2,4)}, s{sAT} offen offset:{1280*e} {OSF}")
        A(f"v_cvt_pk_bf16_f32 v{AC0+8*h+2}, v{GA+16+2*h}, v{GA+17+2*h}")
        A.v(f"buffer_store_short v{AC0+8*h+2}, v{vOUT2}, {S(R_M2,4)}, s{sAT} offen offset:{2560*h+128} {OSF}")
        A.v(f"buffer_store_short_d16_hi v{AC0+8*h+2}, v{vOUT2}, {S(R_M2,4)}, s{sAT} offen offset:{2560*h+1280+128} {OSF}")
    finish("B")


def role_A():
    sAJ, sTB, sCB, sCH, sLB = 60, 61, 62, 63, 68
    ONE, CQ0, CQ1, CQ2, sUP, sUC, sAC, sGOT, sWC = 18, 20, 28, 40, 69, 48, 49, 50, 51
    sW0, sW1, sW2 = 73, 74, 75
    A.c("---- A prologue")
    A(f"""
s_sub_u32 s{sAJ}, s2, {ID_A}
s_lshl_b32 s{sCH}, s{sAJ}, 2
s_add_u32 s{sCH}, s{sCH}, s{SW}
s_mul_i32 s{sLB}, s{SW}, 20480
v_and_b32 v1, 63, v0
v_lshlrev_b32 v5, 2, v1
s_lshl_b32 s{sT0}, s{sCH}, 8
v_add_u32 v3, s{sT0}, v5
s_and_b32 s{sT3}, s{sCH}, 0xfffffffe
s_lshl_b32 s{sT3}, s{sT3}, 1
s_waitcnt lgkmcnt(0)
""")
    A(f"s_load_dword s70, {S(P_LOGDT,2)}, s{sT3}")
    A(f"s_load_dword s71, {S(P_DSK,2)}, s{sT3}")
    load_epoch()
    for i, p in enumerate((P_LOGA, P_AIM, P_CRE, P_CIM)):
        A.v(f"global_load_dword v{8+i}, v3, {S(p,2)}{' nt' if OPT.get('nt', 1) else ''}", "par")
    if OPT.get("ahead", 1):
        A("s_branch L_A2")
        k = A.lines.index("L_A:")
        head = A.lines[k:]
        del A.lines[k:]
        A.lines[A_HEAD:A_HEAD] = head
        A("L_A2:")
    A(f"""
s_mul_i32 s{sAC}, s{sCH}, 3277
s_lshr_b32 s{sAC}, s{sAC}, 16
s_lshl_b32 s{sAC}, s{sAC}, 8
s_add_u32 s{sAC}, s{sAC}, {C_AF}
s_lshr_b32 s{sUC}, s{sAJ}, 4
s_lshl_b32 s{sUC}, s{sUC}, 8
s_add_u32 s{sUC}, s{sUC}, {C_UT}
s_mov_b64 {S(ONE,2)}, 1
""")
    srd(R_WS, P_WS, WS_SIZE)
    A(f"""
s_lshl_b32 s{sT0}, s{sAJ}, 14
s_add_u32 s{sT0}, s{sT0}, {WS_UT}
s_add_u32 s{R_M1}, s{P_WS}, s{sT0}
s_addc_u32 s{R_M1+1}, s{P_WS+1}, 0
s_mov_b32 s{R_M1+2}, 16384
s_mov_b32 s{R_M1+3}, 0x20000
""")
    A("s_waitcnt lgkmcnt(0)")
    make_tag()
    BAND = {9: 224, 7: 228, 5: 232, 3: 236, 2: 240}
    A("""
v_and_b32 v12, 15, v1
v_lshrrev_b32 v13, 1, v1
v_and_b32 v13, 24, v13
""")
    for wd, first in ((9, 4), (7, 5), (5, 6), (3, 11), (2, 12)):
        A(f"""
v_mov_b32 v14, {((1 << wd) - 1) << first}
v_lshlrev_b32 v14, v12, v14
v_lshrrev_b32 v14, v13, v14
""")
        for p in range(4):
            r = BAND[wd] + p
            A(f"v_bfe_u32 v15, v14, {2*p+1}, 1")
            A(f"v_bfe_u32 v{r}, v14, {2*p}, 1")
            A(f"v_lshl_or_b32 v{r}, v15, 16, v{r}")
            if wd != 2:
                A(f"v_mul_u32_u24 v{r}, 0x3f80, v{r}")
    A.vwait("par")
    stamp("A", "par")
    A(f"s_setprio {OPT.get('prioK', 0)}")
    if OPT.get("fakea"):
        cnt_read(CQ1 + 2, sAC)
        A("s_waitcnt lgkmcnt(0)")
        cnt_claim(CQ1, sAC)
        for _ in range(OPT["fakea"]):
            A("s_sleep 100")
        A("s_branch L_cend")
    A.c("---- per-mode constants (two modes per lane)")
    A(f"""
s_bitcmp1_b32 s{sCH}, 0
s_cselect_b32 s{sT0}, 0, 16
s_lshl_b32 s70, s70, s{sT0}
s_and_b32 s70, s70, 0xffff0000
s_lshl_b32 s71, s71, s{sT0}
s_and_b32 s71, s71, 0xffff0000
v_mov_b32 v32, {LOG2E:#x}
v_mul_f32 v33, s70, v32
v_exp_f32 v33, v33
""")
    A.vwait("par")
    LA, AI, XR, XI = 34, 36, 38, 40
    for (src, dst) in ((8, LA), (9, AI), (10, XR), (11, XI)):
        A(f"v_lshlrev_b32 v{dst}, 16, v{src}")
        A(f"v_and_b32 v{dst+1}, 0xffff0000, v{src}")
    A(f"""
v_cvt_pk_bf16_f32 v33, v33, v33
v_and_b32 v33, 0xffff0000, v33
v_mul_f32 v{LA}, v32, v{LA}
v_mul_f32 v{LA+1}, v32, v{LA+1}
v_exp_f32 v{LA}, v{LA}
v_exp_f32 v{LA+1}, v{LA+1}
v_mul_f32 v{AI}, v33, v{AI}
v_mul_f32 v{AI+1}, v33, v{AI+1}
v_cvt_pk_bf16_f32 v{LA+1}, v{LA}, v{LA+1}
v_lshlrev_b32 v{LA}, 16, v{LA+1}
v_and_b32 v{LA+1}, 0xffff0000, v{LA+1}
v_mul_f32 v{LA}, v33, v{LA}
v_mul_f32 v{LA+1}, v33, v{LA+1}
v_mul_f32 v{LA}, v32, v{LA}
v_mul_f32 v{LA+1}, v32, v{LA+1}
v_mul_f32 v{AI}, {INV2PI:#x}, v{AI}
v_mul_f32 v{AI+1}, {INV2PI:#x}, v{AI+1}
v_add_f32 v33, v33, v33
v_mul_f32 v{XR}, v33, v{XR}
v_mul_f32 v{XR+1}, v33, v{XR+1}
v_mul_f32 v{XI}, v33, -v{XI}
v_mul_f32 v{XI+1}, v33, -v{XI+1}
""")
    W = {1: 44, 8: 48, 256: 52}
    for p, w in W.items():
        lit = {1: "1.0", 8: "0x41000000", 256: "0x43800000"}[p]
        for n in range(2):
            A(f"v_mul_f32 v{56+n}, {lit}, v{LA+n}")
            A(f"v_mul_f32 v{58+n}, {lit}, v{AI+n}")
        for n in range(2):
            A(f"v_exp_f32 v{56+n}, -v{56+n}")
            A(f"v_fract_f32 v{58+n}, v{58+n}")
        for n in range(2):
            A(f"v_cos_f32 v{w+n}, v{58+n}")
            A(f"v_sin_f32 v{w+2+n}, v{58+n}")
        A(f"v_pk_mul_f32 {V(w,2)}, {V(w,2)}, {V(56,2)}")
        A(f"v_pk_mul_f32 {V(w+2,2)}, {V(w+2,2)}, {V(56,2)}")
    vSW, vSR = 6, 7
    A(f"""
v_lshlrev_b32 v{vSW}, 3, v1
v_add_u32 v{vSW}, s{sLB}, v{vSW}
v_and_b32 v{vSR}, 31, v1
v_mul_u32_u24 v{vSR}, 528, v{vSR}
v_lshrrev_b32 v12, 5, v1
v_lshlrev_b32 v12, 4, v12
v_add3_u32 v{vSR}, v{vSR}, v12, s{sLB}
""")
    pk, pend = [0], []

    def put(reg, rows):
        pend.append((reg, rows))

    def flush(stage=None):
        if pend and stage in (0, None):
            pk[0] += 1
            t, reg = 80 + 2 * (pk[0] % 4), pend[0][0]
            A(f"v_cvt_pk_bf16_f32 v{t+1}, v{reg+2}, v{reg+3}")
            A(f"v_cvt_pk_bf16_f32 v{t}, v{reg}, v{reg+1}")
        if pend and stage in (1, None):
            for r in pend.pop(0)[1]:
                A.l(f"ds_write_b64 v{vSW}, {V(80+2*(pk[0]%4),2)} offset:{528*r}", "st")

    def cmul(d, s, w, conj):
        n1, n2 = ("", " neg_lo:[1,0,0] neg_hi:[1,0,0]") if conj else (" neg_lo:[0,0,1] neg_hi:[0,0,1]", "")
        A(f"v_pk_mul_f32 {V(56,2)}, {V(s+2,2)}, {V(w+2,2)}")
        A(f"v_pk_mul_f32 {V(58,2)}, {V(s+2,2)}, {V(w,2)}")
        flush(0)
        A(f"v_pk_fma_f32 {V(d+2,2)}, {V(s,2)}, {V(w+2,2)}, {V(58,2)}{n2}")
        A(f"v_pk_fma_f32 {V(d,2)}, {V(s,2)}, {V(w,2)}, {V(56,2)}{n1}")
        flush(1)

    A.c("---- X rows")
    g0 = [0, 1, 2, 3, 4, 5, 6, 7, 8, 516, 520, 1032, 1544]
    g1 = [256, 256, 258, 260, 260, 260, 262, 264, 264, 772, 776, 1288, 1800]
    rows = {}
    for g, lst in enumerate((g0, g1)):
        for i, p in enumerate(lst):
            rows.setdefault(p, []).append(8 * (i >> 2) + 4 * g + (i & 3))
    keep = {0: XR, 2: 60, 4: 64, 6: 68, 8: 72}
    put(XR, rows[0])
    cur = XR
    for p in range(1, 9):
        d = keep.get(p, 76)
        cmul(d, cur, W[1], True)
        put(d, rows[p])
        cur = d
    for step in range(1, 8):
        for off in (0, 2, 6, 8, 4):
            p = 256 * step + off
            if p in rows:
                cmul(keep[off], keep[off], W[256], True)
                put(keep[off], rows[p])
    XF, YA = 96, 60
    cmul(YA, W[8], W[8], False)
    assert not pend
    for ks in range(16):
        A.l(f"ds_read_b128 {V(XF+4*ks,4)}, v{vSR} offset:{32*ks}", "xf")
    A.c("---- Y rows")
    A(f"""
v_mov_b32 v24, 0x3f803f80
v_mov_b32 v25, 0
""")
    stamp("A", "xrows")
    A.l(f"ds_write_b64 v{vSW}, {V(24,2)}", "st")
    put(W[8], [1])
    flush()
    put(YA, [2])
    for c in range(3, 32):
        cmul(YA, YA, W[8], False)
        put(YA, [c])
    flush()
    stamp("A", "yrows")
    YF, KD = 160, 68
    L_KF, L_SQ = 4608, 4608 + 2432
    vKW, vKA, vSA, vS4, vS8, vUB, vUD = 3, 8, 10, 11, 12, 4, 2
    fl = L(f"""
v_and_b32 v13, 15, v1
v_and_b32 v14, 0x30, v1
v_lshl_add_u32 v{vUB}, v13, 5, v14
v_add_u32 v{vUB}, s{sLB}, v{vUB}
v_add_u32 v15, 1, v13
v_and_b32 v13, 1, v15
v_lshrrev_b32 v15, 1, v15
v_lshlrev_b32 v15, 2, v15
v_sub_u32 v15, s{sLB}, v15
v_mul_u32_u24 v{vKA}, 1216, v13
v_add3_u32 v{vKA}, v{vKA}, v15, v14
v_add_u32 v{vKA}, {L_KF+32}, v{vKA}
v_add_u32 v{vKA+1}, 64, v{vKA}
v_mul_u32_u24 v{vSA}, 832, v13
v_lshrrev_b32 v14, 1, v14
v_add3_u32 v{vSA}, v{vSA}, v15, v14
v_add_u32 v{vSA}, {L_SQ+32}, v{vSA}
v_and_b32 v13, 1, v1
v_and_b32 v14, 0x3e, v1
v_sub_u32 v14, s{sLB}, v14
v_add_u32 v14, {L_SQ+62}, v14
v_lshl_add_u32 v{vS4}, v13, 8, v14
v_mul_u32_u24 v13, 160, v13
v_add_u32 v{vS8}, v13, v14
v_lshlrev_b32 v13, 4, v1
v_sub_u32 v{vKW}, s{sLB}, v13
v_add_u32 v{vKW}, {L_KF+1072}, v{vKW}
v_add_u32 v13, s{sLB}, v13
s_lshl_b32 s{sT0}, s{SW}, 4
v_lshl_add_u32 v{vUD}, v1, 6, s{sT0}
v_mov_b32 v16, 0
v_mov_b32 v17, 0
v_mov_b32 v18, 0
v_mov_b32 v19, 0
""")
    for ks in range(16):
        A.l(f"ds_read_b128 {V(YF+4*ks,4)}, v{vSR} offset:{32*ks}", f"y{ks}")
        if ks >= 6:
            k2 = ks - 6
            A.lwait(f"y{k2}")
            A(f"v_mfma_f32_32x32x16_bf16 {V(KD,16)}, {V(XF+4*k2,4)}, {V(YF+4*k2,4)}, {'0' if k2==0 else V(KD,16)}")
            for _ in range(4):
                if fl:
                    fl.pop(0)()
    run(fl)
    zero = [lambda: A.l(f"ds_write_b64 v{vSW}, {V(16,2)}", "cv")]
    zero += [(lambda i=i: A.l(f"ds_write_b128 v13, {V(16,4)} offset:{L_KF+1024*i}", "cv")) for i in range(4)]
    for k2 in range(10, 16):
        A.lwait(f"y{k2}")
        A(f"v_mfma_f32_32x32x16_bf16 {V(KD,16)}, {V(XF+4*k2,4)}, {V(YF+4*k2,4)}, {V(KD,16)}")
        if zero:
            zero.pop(0)()
    A(f"""
s_mov_b64 exec, 1
v_add_f32 v{KD}, s71, v{KD}
s_mov_b64 exec, -1
""")
    for c_ in range(2):
        for p in range(4):
            A(f"v_cvt_pk_bf16_f32 v{84+4*c_+p}, v{KD+7+c_-2*p}, v{KD+6+c_-2*p}")
        A.l(f"ds_write_b128 v{vKW}, {V(84+4*c_,4)} offset:{1216*c_}", "cv")
    A(f"""
v_cvt_pk_bf16_f32 v92, v{KD+9}, v{KD+10}
v_cvt_pk_bf16_f32 v93, v{KD+11}, v{KD+12}
v_cvt_pk_bf16_f32 v21, v{KD+8}, v{KD+8}
v_lshrrev_b32 v22, 16, v87
v_and_b32 v20, 0xffff0000, v21
v_mov_b32 v23, s{sLB}
v_readlane_b32 s{sT0}, v92, 63
""")
    for c_ in range(2):
        A.l(f"ds_write_b16 v{vS4}, v92 offset:{32+834*c_}", "cv")
        A.l(f"ds_write_b16_d16_hi v{vS4}, v92 offset:{32+128+834*c_}", "cv")
        A.l(f"ds_write_b16 v{vS8}, v93 offset:{512+64+834*c_}", "cv")
        A.l(f"ds_write_b16_d16_hi v{vS8}, v93 offset:{512+834*c_}", "cv")
    A("s_mov_b64 exec, 1")
    A.l(f"ds_write_b32 v23, v22 offset:{L_KF+1216+1088}", "cv")
    A("s_mov_b32 exec_lo, 0")
    A("s_mov_b32 exec_hi, 0x80000000")
    A.l(f"ds_write_b64 v23, {V(20,2)} offset:{L_KF+56}", "cv")
    A.l(f"ds_write_b32 v23, v21 offset:{L_KF+1216+60}", "cv")
    A("s_mov_b64 exec, -1")
    A(f"s_lshr_b32 s{sT0}, s{sT0}, 16")
    for p in range(4):
        A(f"v_mul_u32_u24 v{BAND[2]+p}, s{sT0}, v{BAND[2]+p}")
    stamp("A", "kdone")
    cnt_read(CQ1 + 2, sAC)
    only_wave(0, lambda: cnt_read(CQ0, sUC))
    KF, SF = 96, 164
    for m in range(17):
        a_, o = (vKA + 1, 16 * (15 - m)) if m < 16 else (vKA, 0)
        for hh in range(2):
            A.l(f"ds_read2_b32 {V(KF+4*m+2*hh,2)}, v{a_} offset0:{o+2*hh} offset1:{o+2*hh+1}", "kf")
    SFR = {}
    for ty, seqs, ns in (("P", (0, 128), (2, 3, 4)), ("Q", (256, 384), (2, 3, 4)), ("E", (512, 672), (4, 5, 6, 7))):
        for n in ns:
            SFR[ty, n] = SF + 4 * len(SFR)
            for hh in range(2):
                o = (seqs[hh] + 32 * (ns[-1] - n)) // 4
                A.l(f"ds_read2_b32 {V(SFR[ty,n]+2*hh,2)}, v{vSA} offset0:{o} offset1:{o+1}", "kf")
    A.lwait_all()
    cnt_claim(CQ1, sAC)
    only_wave(0, lambda: cnt_wait(CQ0, sUC, 16, sCNT, nap=OPT.get("napu", 1)))
    A("s_barrier")
    A(f"s_setprio {OPT.get('prioR', 3)}")
    USC = ' sc1' if OPT.get('usc', 0) else ''
    for i in range(4):
        A(f"s_add_u32 m0, s{sLB}, {512+1024*i}")
        A(f"s_movk_i32 s{sT0}, {4096*i}")
        A.v(f"buffer_load_dwordx4 v{vUD}, {S(R_M1,4)}, s{sT0} offen{USC} lds", "u")
    stamp("A", "utseen")
    A(f"s_setprio {OPT.get('prioA', 0)}")
    A.vwait("u")
    stamp("A", "cstart")
    if OPT.get("noconv"):
        finish("A")
        return
    A.c("---- convolution. Lags < 515: Toeplitz tiles of K times input blocks. Beyond that K is constant over runs of")
    A.c("---- the rounded position: window sums of the input (0/1 band matrices) times the decimated K.")
    CA = 16
    UR, NUR, LOOK = 48, 8, 6
    GU = [80, 88]
    DD, ZZ = [204, 212], [220, 244]
    started = set()

    def mfma(d, a_, b_, key=None):
        c = "0" if key is None or key not in started else V(d, 4)
        started.add(key)
        A(f"v_mfma_f32_16x16x32_bf16 {V(d,4)}, {V(a_,4)}, {V(b_,4)}, {c}")

    ufr = [(r, n) for r in range(8) for n in range(8)]
    fine = []
    for i, (r, n) in enumerate(ufr):
        for mu, a_ in ((0, KF + 4 * r), (1, KF + 4 * (8 + r)), (2, KF + 64), (4, BAND[2])):
            if mu + n <= 7 and (mu < 2 or r == 0):
                fine.append((i, mu + n, a_))
    uread = lambda i: A.l(f"ds_read_b128 {V(UR+4*(i%NUR),4)}, v{vUB} offset:{32+512*ufr[i][1]+64*(7-ufr[i][0])}", f"u{i}")
    gread = lambda mu: [(lambda h=h: A.l(f"ds_read_b128 {V(GU[mu&1]+4*h,4)}, v{vUB} offset:{480+512*mu-16*h}", f"g{mu}")) for h in range(2)]
    ops = [(mu, ty) for mu in range(6) for ty in "PQE" if ty != "E" or mu < 4]
    HALF = {"P": ((0, 3), (0, 5)), "Q": ((1, 3), (1, 5)), "E": ((0, 7), (1, 9))}
    extra, fill = {}, {}
    for j, (mu, ty) in enumerate(ops):
        p = 2 + 8 * j
        d, z = DD[j & 1], ZZ[j & 1]

        def build(mu=mu, ty=ty, d=d):
            A.lwait(f"g{mu}")
            for h, (uf, wd) in enumerate(HALF[ty]):
                mfma(d + 4 * h, GU[mu & 1] + 4 * uf, BAND[wd])

        def use(mu=mu, ty=ty, z=z):
            for (t_, n), f_ in SFR.items():
                if t_ == ty and mu + n <= 7:
                    mfma(CA + 4 * (mu + n), z, f_, mu + n)
        extra.setdefault(p, []).append(build)
        extra.setdefault(min(p + 7, len(fine) - 1), []).insert(0, use)
        for q in range(4):
            fill.setdefault(p + 4 + q // 2, []).append(lambda q=q, d=d, z=z: A(f"v_cvt_pk_bf16_f32 v{z+q}, v{d+2*q}, v{d+2*q+1}"))
        if ty == "Q" and mu < 5:
            fill.setdefault(p + 1, []).extend(gread(mu + 1))
    for i in range(2):
        uread(i)
    run(gread(0))
    for i in range(2, LOOK):
        uread(i)
    nread = LOOK
    for k, (i, n, a_) in enumerate(fine):
        A.lwait(f"u{i}")
        mfma(CA + 4 * n, a_, UR + 4 * (i % NUR), n)
        if nread < len(ufr) and nread <= i + LOOK:
            uread(nread)
            nread += 1
        run(fill.pop(k, []))
        run(extra.pop(k, []))
    assert not fill and not extra and nread == 64
    A("L_cend:")
    A(f"s_setprio {OPT.get('prioR', 3)}")
    stamp("A", "cend")
    A(f"""
v_and_b32 v2, 15, v1
v_lshlrev_b32 v2, 5, v2
v_bfe_u32 v3, v1, 4, 1
v_lshl_add_u32 v2, v3, 9, v2
v_lshrrev_b32 v3, 5, v1
v_lshl_add_u32 v2, v3, 4, v2
s_lshl_b32 s{sT0}, s{sCH}, 12
s_add_u32 s{sT0}, s{sT0}, {WS_AT}
""")
    for q in range(640):
        assert (q * 3277) >> 16 == q // 20
    A.lwait_all()
    for n in range(0, 8, 2):
        d = 48 + 2 * n
        for i in range(4):
            A(f"v_cvt_pk_bf16_f32 v{d+i}, v{CA+4*n+2*i}, v{CA+4*n+2*i+1}")
    for n in range(0, 8, 2):
        d = 48 + 2 * n
        A(f"v_permlane16_swap_b32 v{d}, v{d+2}")
        A(f"v_permlane16_swap_b32 v{d+1}, v{d+3}")
        A.v(f"buffer_store_dwordx4 {V(d,4)}, v2, {S(R_WS,4)}, s{sT0} offen offset:{512*n} sc1", "ast")
    A.vwait("ast")
    cnt_add(ONE, sAC)
    finish("A")


def role_R():
    CQ0 = 20
    A("L_ep:")
    A("s_waitcnt lgkmcnt(0)")
    load_epoch()
    A("s_waitcnt lgkmcnt(0)")
    make_tag()
    srd(R_WS, P_WS, WS_SIZE)
    cnt_wait(CQ0, str(C_KV), 16, sCNT, probed=False, nap=32)
    cnt_wait(CQ0, str(C_AF), 20, sCNT, probed=False, nap=16)
    A(f"""
v_and_b32 v1, 63, v0
v_lshlrev_b32 v2, 8, v1
v_add_u32 v3, {C_AF}, v2
v_add_u32 v4, {C_WO-32*256}, v2
v_cmp_gt_u32 vcc, 32, v1
v_cndmask_b32 v3, v4, v3, vcc
v_lshlrev_b32 v4, 10, v1
v_add_u32 v4, {C_KV-40*1024}, v4
v_cmp_gt_u32 vcc, 40, v1
v_cndmask_b32 v3, v4, v3, vcc
v_cndmask_b32 v6, 16, 20, vcc
v_mov_b32 v7, s{TAG+1}
v_add_co_u32 v6, vcc, s{TAG}, v6
v_addc_co_u32 v7, vcc, 0, v7, vcc
s_mov_b32 exec_hi, 0xffffff
s_mov_b32 s{sCNT}, 0
L_epl:
v_mov_b32 v4, 0
v_mov_b32 v5, 0
buffer_atomic_add_x2 v[4:5], v3, {S(R_WS,4)}, 0 offen sc0 sc1
s_add_u32 s{sCNT}, s{sCNT}, 1
s_waitcnt vmcnt(0)
v_cmp_ne_u64 vcc, v[4:5], v[6:7]
s_cbranch_vccz L_epd
s_sleep 16
s_cmp_lt_u32 s{sCNT}, {SPIN}
s_cbranch_scc1 L_epl
L_epd:
""")
    A(f"s_atomic_swap_x2 {S(TAG,2)}, {S(P_WS,2)}, {WS_EPOCH}")
    A("s_endpgm")


if "B" in OPT["roles"]:
    role_B()
else:
    A("L_B:\ns_endpgm")
A("L_A:")
if "A" in OPT["roles"]:
    role_A()
else:
    A("s_endpgm")
role_R()
A("L_codeend:")
lines, nn = pad_hazards(A.lines, verbose=False)
if OPT.get("align", 1):
    lines, cnt_, cost_ = align8(lines)
    print("align:", cnt_, cost_, file=sys.stderr)
hdr = open("gated_mix__ssm_conv_s4d__linear_kernel_hedgehog__prompt.s.ref").read().split("; Override launch")[0]
print(hdr + f"; @launch grid=({ID_END},1,1) block=(256,1,1) lds=81920")
print("\n".join(lines))
print(f""".section .rodata,"a"
.p2align 6
.amdhsa_kernel {KN}
  .amdhsa_next_free_vgpr 256
  .amdhsa_next_free_sgpr 102
  .amdhsa_accum_offset 256
  .amdhsa_group_segment_fixed_size 0
  .amdhsa_kernarg_size 120
  .amdhsa_user_sgpr_count 2
  .amdhsa_user_sgpr_kernarg_segment_ptr 1
  .amdhsa_system_sgpr_workgroup_id_x 1
.end_amdhsa_kernel""")
json.dump(stampnames, open("stamps.json", "w"))
print(f"pad states inserted: {nn}", file=sys.stderr)
```

```python
import sys, json
from asmlib import *

KN = "gated_mix__ssm_conv_s4d__linear_kernel_hedgehog__prompt_kernel"
OPT = dict(stamps=0, dump=0, roles="RAB")
for a_ in sys.argv[1:]:
    k_, v_ = a_.split("=")
    OPT[k_] = int(v_) if v_.lstrip("-").isdigit() else v_

C_KW, C_WO, C_UT, C_AF, C_KV, C_O = [256 * n for n in (0, 48, 56, 80, 112, 176)]
WS_EPOCH = 0x20000
WS_WKV = 0xD00000
WS_WQ = 0xF00000
WS_WO = 0x100000
WS_KVP = 0x200000
WS_UT = 0x300000
WS_AT = 0x600000
WS_O = 0x900000
WS_STAMP = 0xC00000
WS_DUMP = 0x1000000
WS_SIZE = 0x4000000 if OPT["dump"] else 0x1000000

ID_A, ID_B, ID_END = 8, 168, 424
SPIN = 1 << 17
LOG2E = 0x3FB8AA3B
INV2PI = 0x3E22F983

P_U, P_LOGA, P_AIM, P_CRE, P_CIM, P_LOGDT, P_DSK = 4, 6, 8, 10, 12, 14, 16
P_WQKV, P_WPHI, P_WO, P_GATE, P_OUT, P_DBG, P_WS = 20, 22, 24, 26, 28, 30, 32
R_X, R_W, R_WS, R_DBG, R_M1, R_M2 = 36, 40, 44, 48, 52, 56
SW = 3
TAG = 34
ST0 = 76

A = Asm()
stampnames = {}
_lab = [0]


def srd(r, p, size):
    A(f"s_mov_b32 s{r}, s{p}")
    A(f"s_mov_b32 s{r+1}, s{p+1}")
    A(f"s_mov_b32 s{r+2}, {size}")
    A(f"s_mov_b32 s{r+3}, 0x20000")


def load_epoch():
    A(f"s_load_dwordx2 {S(TAG,2)}, {S(P_WS,2)}, {WS_EPOCH}")


def make_tag():
    A(f"s_add_u32 s{TAG}, s{TAG}, 0x7f4a7c15")
    A(f"s_addc_u32 s{TAG+1}, s{TAG+1}, 0x9e3779b9")


def cnt_read(r, soff):
    A(f"s_mov_b64 {S(r,2)}, 0")
    A(f"s_atomic_add_x2 {S(r,2)}, {S(P_WS,2)}, {soff if isinstance(soff, str) else 's%d' % soff} glc")


def cnt_peek(r, soff):
    A(f"s_load_dwordx2 {S(r,2)}, {S(P_WS,2)}, s{soff} glc")


def cnt_claim(q, soff):
    A(f"""
s_sub_u32 s{q}, s{q+2}, s{TAG}
s_subb_u32 s{q+1}, s{q+3}, s{TAG+1}
s_lshr_b32 s{q}, s{q}, 16
s_or_b32 s{q}, s{q}, s{q+1}
s_cselect_b64 {S(q,2)}, {S(TAG,2)}, {S(q+2,2)}
s_atomic_cmpswap_x2 {S(q,4)}, {S(P_WS,2)}, s{soff} glc
""")


def cnt_add(one, soff):
    A(f"s_atomic_add_x2 {S(one,2)}, {S(P_WS,2)}, s{soff}")


def cnt_init(soff):
    A(f"s_atomic_swap_x2 {S(TAG,2)}, {S(P_WS,2)}, s{soff}")


def cnt_test(r, n, low=False):
    A(f"s_sub_u32 s{r}, s{r}, s{TAG}")
    A(f"s_subb_u32 s{r+1}, s{r+1}, s{TAG+1}")
    if low:
        A(f"s_and_b32 s{r}, s{r}, 0xffff00ff")
    A(f"s_xor_b32 s{r}, s{r}, {n}")
    A(f"s_or_b32 s{r}, s{r}, s{r+1}")


def cnt_wait(r, soff, n, scnt, probed=True, low=False, nap=0):
    _lab[0] += 1
    k = _lab[0]
    if probed:
        cnt_test(r, n, low)
        A(f"s_cbranch_scc0 L_got{k}")
    A(f"s_mov_b32 s{scnt}, 0")
    A(f"L_spin{k}:")
    cnt_read(r, soff)
    A(f"""
s_add_u32 s{scnt}, s{scnt}, 1
s_cmp_ge_u32 s{scnt}, {SPIN}
s_waitcnt lgkmcnt(0)
s_cbranch_scc1 L_got{k}
""")
    cnt_test(r, n, low)
    if nap:
        A(f"s_cbranch_scc0 L_got{k}")
        A(f"s_sleep {nap}")
    A(f"s_cbranch_scc1 L_spin{k}")
    A(f"L_got{k}:")


def cnt_async(r, t, soff, n, scnt, **kw):
    _lab[0] += 1
    k = _lab[0]
    A(f"s_mov_b64 {S(t,2)}, {S(r,2)}")
    cnt_test(t, n, kw.get("low", False))
    A(f"s_cbranch_scc0 L_as{k}")
    A("s_waitcnt lgkmcnt(0)")
    cnt_wait(r, soff, n, scnt, **kw)
    A(f"L_as{k}:")


def cnt_probe(q, soff, first=False):
    if first:
        A(f"s_mov_b64 {S(q,2)}, 0")
    A(f"s_atomic_umax_x2 {S(q,2)}, {S(P_WS,2)}, s{soff} glc")


def cnt_poll2(r, t, soff, n, scnt, low=False):
    _lab[0] += 1
    k = _lab[0]

    def test(o):
        A(f"s_mov_b64 {S(t,2)}, {S(o,2)}")
        cnt_test(t, n, low)
        A(f"s_cbranch_scc0 L_p2e{k}")
    test(r)
    test(r + 2)
    A(f"s_mov_b32 s{scnt}, 0")
    A(f"L_p2{k}:")
    for q in (r, r + 2):
        A("s_waitcnt lgkmcnt(2)")
        test(q)
        cnt_probe(q, soff)
    A(f"""
s_add_u32 s{scnt}, s{scnt}, 1
s_cmp_lt_u32 s{scnt}, {SPIN}
s_cbranch_scc1 L_p2{k}
L_p2e{k}:
""")


def lwait_lds(vt, va, n=6):
    for _ in range(n):
        A(f"ds_read_b32 v{vt}, v{va}")
    A(f"s_waitcnt lgkmcnt({n})")
    A.lg = ["_"] * n


def only_wave(w, f):
    _lab[0] += 1
    k = _lab[0]
    A(f"s_cmp_lg_u32 s{SW}, {w}")
    A(f"s_cbranch_scc1 L_ow{k}")
    f()
    A(f"L_ow{k}:")


def stamp(role, name):
    if not OPT["stamps"]:
        return
    if OPT.get("only") and name not in ("end",) and name not in OPT["only"].split("+"):
        return
    l = stampnames.setdefault(role, [])
    assert len(l) < 12
    A(f"{'s_memtime' if OPT.get('cyc') else 's_memrealtime'} {S(ST0 + 2*len(l), 2)}")
    l.append(name)
    if OPT.get("both") and len(l) < 12:
        A(f"s_memtime {S(ST0 + 2*len(l), 2)}")
        l.append(name + "_c")


def finish(role):
    if OPT["stamps"]:
        stamp(role, "end")
        A("s_waitcnt lgkmcnt(0)")
        if OPT.get("leak") and role == "B":
            i_ = stampnames[role].index(OPT["leak"])
            e_ = ST0 + 2 * (len(stampnames[role]) - 1)
            A(f"""
s_cmp_lg_u32 s2, {ID_B + OPT.get('leakwg', 0)}
s_cbranch_scc1 L_noleak
s_sub_u32 s60, s{ST0+2*i_}, s{ST0+2*stampnames[role].index(OPT.get('leakfrom', 'start'))}
s_mul_i32 s60, s60, {OPT.get('leakmul', 1)}
s_min_u32 s60, s60, 20000
L_leak:
s_memrealtime s[62:63]
s_waitcnt lgkmcnt(0)
s_sub_u32 s62, s62, s{e_}
s_cmp_lt_u32 s62, s60
s_cbranch_scc1 L_leak
L_noleak:
s_endpgm
""")
        A("s_mov_b64 exec, -1")
        A("v_mov_b32 v1, 0")
        for i in range(len(stampnames[role])):
            A(f"v_writelane_b32 v1, s{ST0+2*i}, {i}")
        A("v_and_b32 v2, 63, v0")
        A("v_lshlrev_b32 v2, 2, v2")
        A("s_lshl_b32 s60, s2, 2")
        A(f"s_add_u32 s60, s60, s{SW}")
        A("s_lshl_b32 s60, s60, 6")
        A(f"s_add_u32 s60, s60, {WS_STAMP}")
        A("s_mov_b64 exec, 0xffff")
        A(f"buffer_store_dword v1, v2, {S(R_WS,4)}, s60 offen")
        if OPT.get("dbg") and role == "B":
            A(f"""
s_cmp_lg_u32 s{SW}, 0
s_cbranch_scc1 L_nodbg
s_load_dwordx2 s[60:61], s[0:1], 104
s_not_b32 s62, s{ST0}
v_writelane_b32 v1, s62, 15
s_waitcnt lgkmcnt(0)
global_atomic_umax v2, v1, s[60:61]
L_nodbg:
""")
    A("s_endpgm")
    A.vm, A.lg = [], []


def set_exec(mask):
    if mask == -1 or mask < (1 << 31):
        A(f"s_mov_b64 exec, {mask}")
    else:
        A(f"s_mov_b32 exec_lo, {mask & 0xffffffff:#x}")
        A(f"s_mov_b32 exec_hi, {mask >> 32:#x}")


def dump(regs, slot, vtmp):
    if not OPT["dump"]:
        return
    A(f"v_lshlrev_b32 v{vtmp}, 2, v0")
    A(f"s_sub_u32 s74, s2, {ID_B}")
    A(f"s_mul_i32 s74, s74, {32*1024}")
    A(f"s_add_u32 s74, s74, {WS_DUMP + slot*0x800000}")
    assert len(regs) <= 32
    for r in regs:
        A.v(f"buffer_store_dword v{r}, v{vtmp}, {S(R_WS,4)}, s74 offen", "dump")
        A("s_add_u32 s74, s74, 1024")
    A.vwait_all()


A(f"""
.amdgcn_target "amdgcn-amd-amdhsa--gfx950"
.text
.globl {KN}
.p2align 12
.type {KN},@function
{KN}:
s_load_dwordx16 s[4:19], s[0:1], 0
s_load_dwordx8 s[20:27], s[0:1], 64
s_load_dwordx4 s[28:31], s[0:1], 96
s_load_dwordx2 s[32:33], s[0:1], 112
""")
if OPT["stamps"]:
    A(f"{'s_memtime' if OPT.get('cyc') else 's_memrealtime'} {S(ST0,2)}")
    for r_ in ("B", "A"):
        stampnames[r_] = ["start"]
A(f"""
v_lshrrev_b32 v1, 6, v0
s_cmp_ge_u32 s2, {ID_B}
v_readfirstlane_b32 s{SW}, v1
s_cbranch_scc1 L_B
s_setprio {OPT.get('prioR', 3)}
s_cmp_ge_u32 s2, {ID_A}
s_cbranch_scc1 L_A
""")
A.c("---- code prefetch into L2 (one workgroup per die)")
A(f"""
s_getpc_b64 s[60:61]
L_pc:
v_lshlrev_b32 v2, 7, v0
v_min_u32 v2, L_codeend-L_pc-4, v2
""")
if OPT.get("pfc", 1):
    A("global_load_dword v3, v2, s[60:61]")
A(f"""
s_or_b32 s60, s2, s{SW}
s_cbranch_scc0 L_ep
L_exit:
s_endpgm
""")
A_HEAD = len(A.lines)

sST, sHP, sB, sCT = 60, 61, 62, 63
sT0, sT1, sT2, sT3 = 64, 65, 66, 67
sEV, sLO = 68, 70
sCNT, sWOFF = 72, 73
sL2E = 48
sJ, sOWN, sXL = 50, 51, 68
XB, ACC, WF, NWF = 96, 56, 16, 7
vXA, vXR = 8, 10
ONE, CQ0, CQ1, CQ2 = 6, 8, 12, 16
vGA, vKT, vOT, vOA, ID, vGW = 1, 3, 5, 6, 44, 48
vPA, vPA1, vPW, vVW, vKA, vL16, vL8 = 49, 50, 51, 52, 53, 54, 55
LDS_X = 40960
LDS_PV, LDS_WP, LDS_Z, LDS_GATE = 0, 77824, 79424, 80384
LDS_QA, LDS_QB = 40960, 16384
LDS_AT, LDS_KVT, LDS_RED = 0, 10240, 13824


def Xr(c, sg, j):
    return XB + 32 * c + 8 * j + 4 * sg


def L(text):
    return [(lambda l=l: A(l)) for l in (x.strip() for x in text.strip().split("\n")) if l]


def run(lst):
    while lst:
        lst.pop(0)()


class Stream:
    def __init__(self, budget=3):
        self.ev, self.now, self.q, self.budget = {}, {}, [], budget

    def at(self, k, fs):
        self.ev.setdefault(k, []).extend(fs if isinstance(fs, list) else [fs])

    def exact(self, k, f):
        self.now.setdefault(k, []).append(f)

    def run(self, mm, reserve=lambda k: k & 1):
        for k, m in enumerate(mm):
            m()
            j = max(i for i in range(len(A.lines)) if "v_mfma" in A.lines[i] and i >= len(A.lines) - 12)
            self.q += self.ev.pop(k, [])
            while self.q and len(A.lines) - 1 - j < self.budget - reserve(k):
                self.q.pop(0)()
            if k in self.now:
                run(self.q)
                run(self.now.pop(k))
        run(self.q)
        assert not self.ev and not self.now


def flat(items):
    o = []
    for pre, ld in items:
        o += L(pre) + [ld]
    return o


def dma_addr(v, i, div, fields, extra, t0, vl):
    t1, t2 = t0 + 1, t0 + 2
    magic = {10: 6554, 5: 13108}[div]
    for q in range(1280):
        assert (q * magic) >> 16 == q // div
    o = []
    if i:
        o.append(f"v_add_u32 v{t0}, {64*i}, v{vl}")
    q_ = t0 if i else vl
    o.append(f"v_mul_u32_u24 v{t1}, {magic}, v{q_}")
    o.append(f"v_lshrrev_b32 v{t1}, 16, v{t1}")
    o.append(f"v_mad_i32_i24 v{t0}, v{t1}, -{div}, v{q_}")
    for n, (sb, w, db) in enumerate(fields):
        if n == 0:
            assert db == 0
            o.append(f"v_bfe_u32 v{v}, v{t1}, {sb}, {w}")
        else:
            o.append(f"v_bfe_u32 v{t2}, v{t1}, {sb}, {w}")
            o.append(f"v_lshl_or_b32 v{v}, v{t2}, {db}, v{v}")
    o.append(f"v_mul_u32_u24 v{v}, 240, v{v}")
    if extra:
        o.append(f"v_add_u32 v{t2}, 3, v{t0}")
        o.append(f"v_lshrrev_b32 v{t2}, 3, v{t2}")
        o.append(f"v_mul_u32_u24 v{t2}, {extra//16}, v{t2}")
        o.append(f"v_add3_u32 v{v}, v{v}, v{t0}, v{t2}")
        o.append(f"v_lshlrev_b32 v{v}, 4, v{v}")
    else:
        o.append(f"v_add_lshl_u32 v{v}, v{v}, v{t0}, 4")
    return "\n".join(o)


def softmax(P, E, OUT, tm, hook, ratio=False):
    mx, mn, acc, keep = tm, tm + 1, tm + 2, tm + 4
    A(f"v_max3_f32 v{mx}, v{P[0]}, v{P[1]}, v{P[2]}")
    A(f"v_min3_f32 v{mn}, v{P[0]}, v{P[1]}, v{P[2]}")
    for i in range(3, 19, 2):
        A(f"v_max3_f32 v{mx}, v{mx}, v{P[i]}, v{P[i+1]}")
        A(f"v_min3_f32 v{mn}, v{mn}, v{P[i]}, v{P[i+1]}")
    A(f"v_max_f32 v{mx}, v{mx}, v{P[19]}")
    A(f"v_min_f32 v{mn}, v{mn}, v{P[19]}")
    A(f"v_mul_f32 v{mx}, s{sL2E}, v{mx}")
    A(f"v_mul_f32 v{mn}, s{sL2E}, v{mn}")
    for half in range(2):
        D = E if half == 0 else P
        for i in range(0, 20, 2):
            for n in range(2):
                if half == 0:
                    A(f"v_fma_f32 v{D[i+n]}, v{P[i+n]}, s{sL2E}, -v{mx}")
                else:
                    A(f"v_fma_f32 v{D[i+n]}, -v{P[i+n]}, s{sL2E}, v{mn}")
            if i >= 4:
                for n in range(2):
                    A(f"v_add_f32 v{acc+n}, v{D[n] if i==4 else acc+n}, v{D[i-2+n]}")
            for n in range(2):
                A(f"v_exp_f32 v{D[i+n]}, v{D[i+n]}")
                hook(30 * half + i + n)
        A(f"v_add_f32 v{acc}, v{acc}, v{acc+1}")
        A(f"v_add_f32 v{acc}, v{acc}, v{D[18]}")
        plain = ratio and half == 0
        A(f"v_add_f32 v{keep if plain else acc}, v{acc}, v{D[19]}")
        if not plain:
            A(f"v_rcp_f32 v{acc}, v{acc}")
            if ratio:
                A(f"v_mul_f32 v{acc}, v{keep}, v{acc}")
        for i in range(0, 20, 2):
            if not plain:
                for n in range(2):
                    A(f"v_mul_f32 v{D[i+n]}, v{acc}, v{D[i+n]}")
            A(f"v_cvt_pk_bf16_f32 v{OUT+10*half+i//2}, v{D[i]}, v{D[i+1]}")
            hook(30 * half + 20 + i // 2)


class Hooks:
    def __init__(self):
        self.ev, self.q = {}, []

    def at(self, n, fs, burst=False):
        fs = fs if isinstance(fs, list) else [fs]
        self.ev.setdefault(n, []).extend([lambda fs=fs: run(fs)] if burst else fs)

    def __call__(self, n):
        self.q += self.ev.pop(n, [])
        if self.q:
            self.q.pop(0)()
        if n == 59:
            run(self.q)
            assert not self.ev


def scale(d, r, pk):
    if pk:
        A(f"v_pk_mul_f32 {V(d,2)}, {V(d,2)}, {V(r,2)}")
    else:
        A(f"v_mul_f32 v{d}, v{r}, v{d}")
        A(f"v_mul_f32 v{d+1}, v{r}, v{d+1}")


PHI = 8


def phi_frags(pf, vaddr, tag):
    o = []
    for t in range(3):
        for h in range(2):
            r = pf + 4 * t + 2 * h
            if t == 2 and h == 1:
                o += L(f"v_mov_b32 v{r}, 0\nv_mov_b32 v{r+1}, 0")
            else:
                o.append(lambda r=r, t=t, h=h: A.l(f"ds_read_b64_tr_b16 {V(r,2)}, v{vaddr} offset:{320*t+160*h}", tag))
    return o


def phi_mfma(t, op, pf0, pf1, pk0, pk1):
    A(f"v_mfma_f32_16x16x32_bf16 {V(pk1,4)}, {V(pf1+4*t,4)}, {V(op,4)}, {'0' if t==0 else V(pk1,4)}")
    A(f"v_mfma_f32_32x32x16_bf16 {V(pk0,16)}, {V(pf0+4*t,4)}, {V(op,4)}, {'0' if t==0 else V(pk0,16)}")


class FragPipe:
    def __init__(self, vaddr, look=5, phase=0):
        self.vaddr, self.look, self.phase = vaddr, look, phase

    def stream(self, frags, acc):
        reads = [(lambda i=i, o=o: A.l(f"ds_read_b128 {V(WF+4*((i+self.phase)%NWF),4)}, v{self.vaddr} offset:{o}", f"f{i}")) for i, (ks, t, o) in enumerate(frags)]
        out = []
        for i, (ks, t, o) in enumerate(frags):
            for sg in range(2):
                def m(i=i, ks=ks, t=t, sg=sg):
                    if i == 0 and sg == 0:
                        for _ in range(self.look):
                            reads.pop(0)()
                    if sg == 0:
                        A.lwait(f"f{i}")
                    d = V(acc + 8 * t + 4 * sg, 4)
                    A(f"v_mfma_f32_16x16x32_bf16 {d}, {V(WF+4*((i+self.phase)%NWF),4)}, {V(Xr(ks//4,sg,ks%4),4)}, {'0' if ks==0 else d}")
                    if reads and sg == 0:
                        reads.pop(0)()
                out.append(m)
        return out


def role_B():
    A.c("---- B prologue")
    sXO, sWO2, sQO, sKW, sKF, sOF, sWC, sUT = 69, 70, 71, 74, 30, 31, 24, 25
    sKS, sRH, sUS, sKA, sUO, sROLE = 100, 101, 72, 18, 100, 49
    A(f"""
L_B:
s_cmp_ge_u32 s2, {ID_END}
s_cbranch_scc1 L_exit
s_setprio {OPT.get('prioB', 2)}
s_sub_u32 s{sT0}, s2, {ID_B}
s_bfe_u32 s{sB}, s{sT0}, 0x10002
s_and_b32 s{sST}, s{sT0}, 3
s_lshr_b32 s{sROLE}, s{sT0}, 3
s_lshl_b32 s{sT3}, s{SW}, 10
""")
    ASYM = OPT.get("asym", 0)
    NT = " nt" if OPT.get("nt", 1) else ""
    vU = 80
    if ASYM:
        A(f"s_mov_b32 s{sKS}, s{sROLE}\ns_lshl_b32 s{sT1}, s{sB}, 5\ns_add_u32 s{sROLE}, s{sROLE}, s{sT1}")
    else:
        A(f"s_lshr_b32 s{sKS}, s{sT0}, 2")
    IS_NOT_REPACKER = f"s_cmp_ge_u32 s{sROLE}, {20 if ASYM else 10}"
    IS_IDLE = f"s_cmp_eq_u32 s{sHP}, 15" if ASYM else f"s_cmp_lt_u32 s{sROLE}, 12"
    A(f"""
v_lshrrev_b32 v2, 3, v0
v_lshrrev_b32 v3, 4, v0
v_xor_b32 v3, v3, v0
v_and_b32 v3, 7, v3
v_mul_u32_u24 v2, 240, v2
v_add_lshl_u32 v{vU}, v2, v3, 4
{IS_NOT_REPACKER}
s_cbranch_scc1 L_e0
s_mul_i32 s{sUS}, s{sST}, 320
s_and_b32 s{sUS}, s{sUS}, 0xffffff80
s_mul_i32 s{sT1}, s{sKS}, {32*3840}
s_add_u32 s{sUS}, s{sUS}, s{sT1}
s_waitcnt lgkmcnt(0)
""")
    srd(R_W, P_WQKV, 2457600)

    def unit_load(sec, tag=None):
        for j_ in range(3):
            A(f"s_add_u32 m0, s{sT3}, {4096*(3*((sec+2)%3)+j_)}")
            A(f"s_add_u32 s{sT1}, s{sUS}, {1280*sec+128*j_}")
            (A if tag is None else lambda t: A.v(t, tag))(f"buffer_load_dwordx4 v{vU}, {S(R_W,4)}, s{sT1} offen{NT} lds")
    unit_load(1)
    unit_load(2)
    A(f"""
L_e0:
s_lshl_b32 s{sRH}, s{sST}, 2
s_add_u32 s{sRH}, s{sRH}, s{SW}
s_bfe_u32 s{sT1}, s{sT0}, 0x20003
s_lshr_b32 s{sCT}, s{sT0}, 5
s_sub_u32 s{sCT}, 7, s{sCT}
s_lshl_b32 s{sST}, s{sST}, 2
s_add_u32 s{sST}, s{sST}, s{sT1}
s_lshl_b32 s{sHP}, s{sB}, 3
s_add_u32 s{sHP}, s{sHP}, s{sCT}
s_cmp_eq_u32 s{sB}, 0
s_mov_b32 s{sJ}, {0x09875421 if ASYM else 0x95197531:#x}
s_cselect_b32 s{sJ}, {0x97418630 if ASYM else 0x84086420:#x}, s{sJ}
s_lshl_b32 s{sT2}, s{sCT}, 2
s_lshr_b32 s{sJ}, s{sJ}, s{sT2}
s_and_b32 s{sJ}, s{sJ}, 15
s_mul_i32 s{sT1}, s{sT1}, 3
s_add_u32 s{sJ}, s{sJ}, s{sT1}
s_sub_u32 s{sT1}, s{sJ}, 10
s_min_u32 s{sJ}, s{sJ}, s{sT1}
v_bfe_u32 v2, v0, 3, 3
v_lshl_add_u32 v2, v1, 5, v2
v_mul_u32_u24 v{vXA}, 1280, v2
v_bfe_u32 v2, v0, 4, 2
v_and_b32 v3, 7, v0
v_xor_b32 v2, v2, v3
s_mul_i32 s{sT1}, s{sST}, 163840
v_lshl_add_u32 v{vXA}, v2, 4, v{vXA}
v_add_u32 v{vXA}, s{sT1}, v{vXA}
v_xor_b32 v{vXA+1}, 64, v{vXA}
v_add_u32 v{vXA+1}, {10240-1024}, v{vXA+1}
s_lshl_b32 s{sXL}, s{SW}, 13
s_lshl_b32 s{sXO}, s{sJ}, 7
s_mul_i32 s{sWO2}, s{sJ}, 10240
s_add_u32 s{sWO2}, s{sWO2}, s{sT3}
s_mul_i32 s{sQO}, s{sJ}, 6144
s_add_u32 s{sQO}, s{sQO}, s{sT3}
s_mov_b32 s{sL2E}, {LOG2E:#x}
""")
    t0, t1, t2, t3 = 56, 57, 58, 59
    a0, a1, a2, a3 = 56, 57, 58, 59
    m0_, m1_ = S(56, 2), S(58, 2)
    setup = L(f"""
v_and_b32 v{vL8}, 63, v0
v_lshlrev_b32 v{vL16}, 4, v{vL8}
v_lshlrev_b32 v{vL8}, 3, v{vL8}
v_and_b32 v{t0}, 15, v0
v_lshrrev_b32 v{t1}, 1, v{t0}
v_bfe_u32 v{t2}, v0, 4, 2
v_xor_b32 v{t1}, v{t1}, v{t2}
v_lshlrev_b32 v{t1}, 4, v{t1}
v_lshl_add_u32 v{vXR}, v{t0}, 7, v{t1}
v_add_u32 v{vXR}, s{sXL}, v{vXR}
v_xor_b32 v{vXR+1}, 64, v{vXR}
v_lshrrev_b32 v{t1}, 5, v0
v_lshl_add_u32 v{vGW}, v{t1}, 4, v{t0}
v_lshlrev_b32 v{vGW}, 2, v{vGW}
v_add_u32 v{vGW}, {LDS_GATE}, v{vGW}
v_bfe_u32 v{t0}, v0, 5, 1
v_and_b32 v{t1}, 1, v0
v_bfe_u32 v{t2}, v0, 1, 1
v_cmp_eq_u32 {m0_}, v{t1}, v{t0}
v_mul_u32_u24 v{vPA1}, 800, v{t0}
v_bfe_u32 v{t1}, v0, 2, 2
v_mad_u32_u24 v{vPA1}, v{t1}, 40, v{vPA1}
v_add_u32 v{vPA1}, {LDS_WP}, v{vPA1}
v_lshl_add_u32 v{vPA}, v{t2}, 3, v{vPA1}
v_bfe_u32 v{t2}, v0, 4, 1
v_lshl_add_u32 v{vPA}, v{t2}, 4, v{vPA}
v_mov_b32 v{t3}, {LDS_Z}
v_cndmask_b32 v{vPA}, v{t3}, v{vPA}, {m0_}
v_lshlrev_b32 v{vKA}, 1, v{t0}
v_lshl_add_u32 v{vKA}, v{t1}, 2, v{vKA}
v_mul_u32_u24 v{vKA}, 272, v{vKA}
v_and_b32 v{t1}, 3, v0
v_lshl_add_u32 v{t2}, v{t2}, 2, v{t1}
v_lshl_add_u32 v{vKA}, v{t2}, 3, v{vKA}
v_bfe_u32 v{t2}, v0, 4, 2
v_cmp_eq_u32 {m0_}, v{t1}, v{t2}
v_add_u32 v{vPA1}, 32, v{vPA1}
v_and_b32 v{t1}, 31, v0
v_lshrrev_b32 v{t2}, 6, v0
v_cndmask_b32 v{vPA1}, v{t3}, v{vPA1}, {m0_}
v_lshl_add_u32 v{t1}, v{t2}, 5, v{t1}
v_mul_u32_u24 v{t1}, 272, v{t1}
v_mul_u32_u24 v{t3}, 80, v{t0}
v_add_u32 v{vPW}, v{t1}, v{t3}
v_mad_u32_u24 v{vVW}, v{t0}, 48, v{t1}
v_mad_u32_u24 v{vKA}, v{t2}, 40, v{vKA}
v_and_b32 v{vGA}, 31, v0
v_add_u32 v{vGA+1}, 32, v{vGA}
v_min_u32 v{vGA+1}, 54, v{vGA+1}
v_bfe_u32 v{a3}, v0, 5, 1
v_lshlrev_b32 v{a0}, 3, v{a3}
v_lshl_add_u32 v{vOT}, v{vGA}, 4, v{a0}
v_lshlrev_b32 v{a0}, 10, v{a3}
v_lshl_add_u32 v{vGA}, v{vGA}, 4, v{a0}
v_lshl_add_u32 v{vGA+1}, v{vGA+1}, 4, v{a0}
v_and_b32 v{a0}, 15, v0
v_bfe_u32 v{a1}, v0, 4, 1
v_mad_i32_i24 v{a2}, v{a1}, -8, v{a0}
v_lshl_add_u32 v{a0}, v{a3}, 4, v{a0}
v_and_b32 v{vKT}, 1, v{a2}
v_lshlrev_b32 v{vKT}, 4, v{vKT}
v_mov_b32 v{vKT+1}, 0x3f80
v_lshlrev_b32 v{vKT}, v{vKT}, v{vKT+1}
v_lshrrev_b32 v{a2}, 1, v{a2}
v_cmp_eq_u32 {m0_}, 0, v{a2}
v_cmp_eq_u32 {m1_}, 1, v{a2}
s_lshr_b32 s73, s{SW}, 1
v_cndmask_b32 v{ID}, 0, v{vKT}, {m0_}
v_cndmask_b32 v{ID+1}, 0, v{vKT}, {m1_}
v_cmp_eq_u32 {m0_}, 2, v{a2}
v_cmp_eq_u32 {m1_}, 3, v{a2}
s_mul_i32 s73, s73, 1680
v_cndmask_b32 v{ID+2}, 0, v{vKT}, {m0_}
v_cndmask_b32 v{ID+3}, 0, v{vKT}, {m1_}
s_mul_i32 s75, s{SW}, 40
s_add_u32 s73, s73, s75
s_add_u32 s73, s73, {LDS_KVT}
v_cmp_le_u32 {m0_}, 22, v{a0}
v_cmp_le_u32 {m1_}, 12, v{a0}
v_mul_u32_u24 v{vKT}, 80, v{a0}
v_mov_b32 v{a2}, {8-22*80}
v_cndmask_b32 v{a2}, 0, v{a2}, {m0_}
v_lshl_add_u32 v{vKT}, v{a1}, 4, v{vKT}
v_add_u32 v{vKT+1}, 808, v{vKT}
v_add3_u32 v{vKT}, v{vKT}, v{a2}, s73
v_lshl_add_u32 v{a2}, v{a0}, 1, v{a1}
v_mul_u32_u24 v{a2}, 80, v{a2}
v_subrev_u32 v{a2}, {24*80-32}, v{a2}
v_cndmask_b32 v{vKT+1}, v{vKT+1}, v{a2}, {m1_}
v_add_u32 v{vKT+1}, s73, v{vKT+1}
v_bfe_u32 v{a0}, v0, 2, 1
v_cmp_eq_u32 {m0_}, v{a0}, v{a3}
v_bfe_u32 v{a1}, v0, 3, 2
v_and_b32 v{a2}, 3, v0
v_lshl_add_u32 v{a1}, v{a1}, 2, v{a2}
v_mad_u32_u24 v{a1}, v{a0}, 22, v{a1}
v_mul_u32_u24 v{a1}, 80, v{a1}
v_add_u32 v{vOA}, {LDS_KVT}, v{a1}
v_add_u32 v{vOA+1}, {LDS_KVT+1280}, v{a1}
v_mov_b32 v{a2}, {LDS_Z}
v_cndmask_b32 v{vOA}, v{a2}, v{vOA}, {m0_}
v_cndmask_b32 v{vOA+1}, v{a2}, v{vOA+1}, {m0_}
v_lshlrev_b32 v{t1}, 2, v0
v_min_u32 v{t1}, 700, v{t1}
v_add_u32 v{t1}, {LDS_Z}, v{t1}
v_mov_b32 v{t2}, 0
""")
    setup.append(lambda a_=t1, b_=t2: A.l(f"ds_write_b32 v{a_}, v{b_}", "z"))
    def wrap(sreg, step, size):
        return f"s_add_u32 s{sreg}, s{sreg}, {step}\ns_sub_u32 s{sT2}, s{sreg}, {size}\ns_min_u32 s{sreg}, s{sreg}, s{sT2}\n"

    def xslot(u):
        return 2048 * (u & 3) + (0 if BORROW and 4 <= u < 8 else LDS_X)

    def issue_x(u):
        if u >= 20:
            return []
        pre = f"s_add_u32 m0, s{sXL}, {xslot(u)}\n"
        if u & 1:
            pre += f"s_add_u32 s{sT0}, s{sXO}, 20480\n" + wrap(sXO, 128, 1280)
        so = sT0 if u & 1 else sXO
        return [(pre if i == 0 else "", lambda i=i: A.v(f"buffer_load_dwordx4 v{vXA+i}, {S(R_X,4)}, s{so} offen offset:{1024*i} lds", f"x{u}")) for i in range(2)]

    def read_x(u):
        A.vwait(f"x{u}")
        for jj in range(2):
            A.l(f"ds_read_b128 {V(Xr(u//4,u&1,(u&2)+jj),4)}, v{vXR+jj} offset:{xslot(u)}", f"xr{u}")

    wround, qround = [0], [0]

    def issue_w(upto):
        o = []
        for i in range(wround[0], min(upto, 25)):
            pre = f"s_add_u32 m0, s{sT3}, {4096*(i%10)}\n" + (wrap(sWO2, 4096, 102400) if i else "")
            o.append((pre, lambda i=i: A.v(f"buffer_load_dwordx4 v{vL16}, {S(R_W,4)}, s{sWO2} offen sc1 lds", f"w{i}")))
        wround[0] = max(wround[0], min(upto, 25))
        return o

    def issue_q(upto):
        o = []
        for i in range(qround[0], upto):
            pre = f"s_add_u32 m0, s{sT3}, {LDS_QA+4096*i if i < 9 else LDS_QB+4096*(i-9)}\n" + (wrap(sQO, 4096, 61440) if i else "")
            o.append((pre, lambda i=i: A.v(f"buffer_load_dwordx4 v{vL16}, {S(R_M1,4)}, s{sQO} offen sc1 lds", f"q{i}")))
        qround[0] = upto
        return o
    NEED = lambda h: (10 * h + 9) // 4 + 1
    FREED = lambda h: (10 * h + 6) // 4 + 1

    U2, U3 = OPT.get("u2", 3), OPT.get("u3", 3)
    BORROW = False

    def guarded(cmp_, f):
        _lab[0] += 1
        k = _lab[0]
        A(cmp_)
        A(f"s_cbranch_scc1 L_rp{k}")
        f()
        A(f"L_rp{k}:")
    for _ in range(OPT.get("npre", 60)):
        setup.pop(0)()
    A("s_waitcnt lgkmcnt(0)")
    srd(R_W, P_WQKV, 2457600)
    srd(R_X, P_U, 2621440)
    A(f"""
s_lshl_b32 s{sKA}, s{sRH}, 8
s_mov_b32 s{sOWN}, 0
{IS_NOT_REPACKER}
s_cbranch_scc0 L_e1j
""")
    run(flat(issue_x(0) + issue_x(1)))
    A(f"""
s_lshl_b32 s{sKA}, s{sJ}, 8
s_add_u32 s{sKA}, s{sKA}, {C_UT}
{IS_IDLE}
s_cselect_b32 s{sOWN}, 5, 0
s_lshl_b32 s{sRH}, s{SW}, 3
s_add_u32 s{sOWN}, s{sOWN}, s{sRH}
s_sub_u32 s{sRH}, s{sOWN}, 24
""")
    IS_NOT_WO = f"s_cmp_ge_u32 s{sRH}, 5"
    sAJ, sW0, sW1, sW2, t0, t1, t2, t3 = 14, 15, 16, 17, 8, 9, 12, 13

    def wo_fetch():
        A(f"""
s_mul_i32 s{sAJ}, s{sST}, 10
s_add_u32 s{sAJ}, s{sAJ}, s{sJ}
s_mov_b32 s{sOWN}, 0
s_lshr_b32 s{t0}, s{sAJ}, 3
s_mul_i32 s{t1}, s{t0}, 52
s_lshr_b32 s{t1}, s{t1}, 8
s_and_b32 s{sKA}, s{sAJ}, 4
s_mul_i32 s{sW2}, s{sKA}, 102400
s_mul_i32 s{t3}, s{sKA}, 160
s_add_u32 s{sKA}, s{sKA}, s{t1}
s_lshl_b32 s{sKA}, s{sKA}, 8
s_add_u32 s{sKA}, s{sKA}, {C_WO}
s_mul_i32 s{t2}, s{t0}, 5120
s_add_u32 s{sW2}, s{sW2}, s{t2}
s_and_b32 s{t2}, s{sAJ}, 3
s_lshl_b32 s{sW0}, s{t2}, 8
s_add_u32 s{sW2}, s{sW2}, s{sW0}
s_add_u32 s{sW2}, s{sW2}, {WS_WO}
s_mul_i32 s{sW0}, s{t1}, 5
s_sub_u32 s{t0}, s{t0}, s{sW0}
s_and_b32 s{sW0}, s{t2}, 1
s_mul_i32 s{sW0}, s{sW0}, 20
s_lshr_b32 s{sW1}, s{t2}, 1
s_lshl_b32 s{sW1}, s{sW1}, 3
s_add_u32 s{sW0}, s{sW0}, s{sW1}
s_mul_i32 s{sW1}, s{t0}, 40
s_add_u32 s{sW0}, s{sW0}, s{sW1}
s_mul_i32 s{t2}, s{t2}, 40
s_add_u32 s{t2}, s{t2}, 16
s_cmp_eq_u32 s{t0}, 4
s_cselect_b32 s{sW0}, s{t2}, s{sW0}
s_cselect_b32 s{sW1}, 20, 4
s_mul_i32 s{t1}, s{t1}, 160
s_add_u32 s{sW0}, s{sW0}, s{t1}
s_add_u32 s{sW1}, s{sW1}, s{sW0}
s_mul_i32 s{sW0}, s{sW0}, 1280
s_mul_i32 s{sW1}, s{sW1}, 1280
s_add_u32 s{sW0}, s{sW0}, s{t3}
s_add_u32 s{sW1}, s{sW1}, s{t3}
s_sub_u32 s{sW1}, s{sW1}, 5120
v_and_b32 v95, 63, v0
""")
        srd(R_M1, P_WO, 819200)
        for i, so, ex in ((0, sW0, None), (1, sW0, None), (2, sW0, "exec_hi, 0"), (2, sW1, "not"), (3, sW1, None), (4, sW1, None)):
            if ex != "not":
                A(f"""
s_mov_b64 exec, -1
v_add_u32 v92, {64*i}, v95
v_mul_u32_u24 v93, 205, v92
v_lshrrev_b32 v93, 13, v93
v_mad_u32_u24 v92, v93, 40, v92
s_movk_i32 s{t0}, {1024*i}
s_mov_b32 m0, s{t0}
v_lshlrev_b32 v92, 4, v92
""")
            if ex:
                A("s_not_b64 exec, exec" if ex == "not" else f"s_mov_b32 {ex}")
            A(f"buffer_load_dwordx4 v92, {S(R_M1,4)}, s{so} offen{NT} lds")
    for q in range(320):
        assert (q * 205) >> 13 == q // 40
    guarded(IS_NOT_WO, wo_fetch)
    A("L_e1j:")
    assert sOWN == 51
    arriver = lambda f: guarded(f"s_cmp_ge_u32 s{sOWN}, 5", f)
    load_epoch()
    arriver(lambda: cnt_read(CQ0 + 2, sKA))
    stamp("B", "iss0")
    srd(R_WS, P_WS, WS_SIZE)
    A(f"""
s_mov_b64 {S(ONE,2)}, 1
s_mov_b64 {S(CQ1,2)}, 256
s_lshl_b32 s{sKF}, s{sHP}, 2
s_add_u32 s{sKF}, s{sKF}, s{SW}
s_lshl_b32 s{sKF}, s{sKF}, 8
s_add_u32 s{sKF}, s{sKF}, {C_KV}
s_lshl_b32 s{sOF}, s{sST}, 1
s_lshr_b32 s{sT1}, s{SW}, 1
s_add_u32 s{sOF}, s{sOF}, s{sT1}
s_lshl_b32 s{sOF}, s{sOF}, 2
s_lshr_b32 s{sT1}, s{sHP}, 2
s_add_u32 s{sOF}, s{sOF}, s{sT1}
s_lshl_b32 s{sOF}, s{sOF}, 8
s_add_u32 s{sOF}, s{sOF}, {C_O}
s_lshl_b32 s{sKW}, s{sHP}, 8
""")
    run(setup)
    srd(R_M2, P_OUT, 2621440)
    stamp("B", "setup")

    def claim():
        A.lwait_all()
        make_tag()
        arriver(lambda: cnt_claim(CQ0, sKA))
    A(IS_NOT_REPACKER)
    A("s_cbranch_scc1 L_e2x")
    A.c("---- repack")
    srd(R_M1, P_GATE, 1280)
    vT, vTq = 16, 26
    A(f"""
v_bfe_u32 v92, v0, 4, 2
v_bfe_u32 v93, v0, 2, 2
v_lshl_add_u32 v92, v92, 3, v93
v_bfe_u32 v93, v92, 1, 3
v_lshlrev_b32 v93, 4, v93
v_lshlrev_b32 v92, 7, v92
s_and_b32 s{sT1}, s{sRH}, 4
s_lshl_b32 s{sT1}, s{sT1}, 4
s_mul_i32 s{sT2}, s{SW}, 80
s_add_u32 s{sT1}, s{sT1}, s{sT2}
v_bfe_u32 v94, v0, 1, 1
v_mad_u32_u24 v94, v94, 40, s{sT1}
v_and_b32 v95, 1, v0
v_lshl_add_u32 v91, v95, 4, v94
v_mul_u32_u24 v95, 12288, v95
v_add_u32 v95, v95, v92
""")
    for n, (col, add, base) in enumerate([(94, 8 * t, 95) for t in range(5)] + [(91, o, 92) for o in (0, 8, 32)]):
        r = vT + 2 * n
        A(f"""
v_add_u32 v88, {add}, v{col}
v_lshrrev_b32 v89, 7, v88
v_and_b32 v88, 127, v88
v_xor_b32 v88, v88, v93
v_lshl_add_u32 v89, v89, 12, v{base}
v_add_u32 v{r}, v88, v89
v_xor_b32 v{r+1}, 32, v{r}
""")
    A(f"""
v_and_b32 v90, 0x30, v0
s_mul_i32 s73, s{sRH}, 20
s_add_u32 s73, s73, s{sKS}
s_mul_i32 s75, s73, 3072
s_add_u32 s75, s75, {WS_WQ}
s_mul_i32 s73, s73, 5120
s_add_u32 s73, s73, {WS_WKV}
s_lshl_b32 s16, s{sRH}, 2
s_add_u32 s16, s16, s{sKS}
s_lshl_b32 s16, s16, 8
s_add_u32 s16, s16, {C_KV}
s_lshl_b32 s17, s{sKS}, 1
s_add_u32 s17, s17, s{SW}
s_lshl_b32 s17, s17, 2
s_lshr_b32 s{sT1}, s{sRH}, 2
s_add_u32 s17, s17, s{sT1}
s_lshl_b32 s17, s17, 8
s_add_u32 s17, s17, {C_O}
s_lshl_b32 s19, s{SW}, 3
s_and_b32 s19, s19, 16
s_add_u32 s19, s19, s{sKS}
""")
    keep, A.vm = A.vm, []
    A("s_waitcnt vmcnt(0)")
    A("s_barrier")
    names = list(stampnames.get("B", []))
    stamp("B", "ukv")
    for t in range(5):
        for h in range(2):
            A(f"ds_read_b64_tr_b16 {V(56+4*t+2*h,2)}, v{vT+2*t+h} offset:{512*h}")
    lwait_lds(92, vL8, 5)
    for t in range(5):
        if t == 4:
            A("s_add_u32 s73, s73, 4096")
        A.v(f"buffer_store_dwordx4 {V(56+4*t,4)}, v{vL16}, {S(R_WS,4)}, s73 offen offset:{1024*(t%4)} sc1", "kst")
    A("s_barrier")

    def load_uq():
        unit_load(0, "uq")
        A(f"s_lshl_b32 s{sT1}, s{sKS}, 6")
        A.v(f"buffer_load_dwordx4 {V(76,4)}, v90, {S(R_M1,4)}, s{sT1} offen", "uq")
    if not OPT.get("quiet"):
        load_uq()
    claim()
    guarded(f"s_cmp_ge_u32 s{sKS}, 4", lambda: cnt_init(16))
    guarded(f"s_cmp_ge_u32 s19, 16", lambda: cnt_init(17))
    A.vwait("kst")
    A.lwait_all()
    A("s_barrier")
    cnt_add(ONE, sKA)
    stamp("B", "kflag")
    if OPT.get("quiet"):
        load_uq()
    QL = OPT.get("ql", 1)
    run(flat(issue_x(0) + issue_x(1) + (issue_x(2) + issue_x(3) if QL else [])))
    A("s_mov_b32 s16, 0xf0f0f0f0")
    A("s_mov_b32 s17, 0xf0f0f0f0")
    A.vwait("uq")
    A("s_barrier")
    for t in range(3):
        for h in range(2):
            A(f"ds_read_b64_tr_b16 {V(56+4*t+2*h,2)}, v{vTq+2*t+h} offset:{24576+512*h}")
    lwait_lds(92, vL8, 4)
    for p in range(4):
        A(f"v_cndmask_b32 v{64+p}, v{64+p}, v{76+p}, {S(16,2)}")

    def q_store():
        for t in range(3):
            A(f"buffer_store_dwordx4 {V(56+4*t,4)}, v{vL16}, {S(R_WS,4)}, s75 offen offset:{1024*t} sc1")
    if not QL:
        q_store()
        run(flat(issue_x(2) + issue_x(3)))
    A("s_branch L_e2j")
    A("L_e2x:")
    A.c("---- slice hand-over")
    A.vm = keep
    if OPT["stamps"]:
        stampnames["B"] = names
    A(f"""
v_bfe_u32 v81, v0, 4, 2
v_bfe_u32 v80, v0, 2, 2
v_lshl_add_u32 v81, v81, 3, v80
v_bfe_u32 v82, v81, 1, 3
v_bfe_u32 v83, v0, 1, 1
v_xor_b32 v82, v82, v83
v_lshlrev_b32 v82, 4, v82
v_lshl_add_u32 v81, v81, 7, v82
v_and_b32 v82, 1, v0
v_lshl_add_u32 v81, v82, 3, v81
v_add_u32 v81, s{sXL}, v81
v_bfe_u32 v82, v0, 2, 2
v_lshlrev_b32 v82, 14, v82
v_and_b32 v83, 3, v0
v_lshl_add_u32 v82, v83, 4, v82
v_and_b32 v83, 0x30, v0
v_lshl_add_u32 v82, v83, 2, v82
v_xor_b32 v93, 32, v81
v_xor_b32 v94, 64, v81
v_xor_b32 v95, 96, v81
s_lshl_b32 s{sT1}, s{sST}, 2
s_add_u32 s{sT1}, s{sT1}, s{SW}
s_lshl_b32 s{sT1}, s{sT1}, 8
s_lshl_b32 s73, s{sJ}, 18
s_add_u32 s{sT1}, s{sT1}, s73
s_add_u32 s{sUO}, s{sT1}, {WS_UT}
s_waitcnt vmcnt(0)
""")
    stamp("B", "ukv")
    TA_ = [81, 93, 94, 95]

    def hand_over():
        for it in range(4):
            for h in range(2):
                A(f"ds_read_b64_tr_b16 {V(60+4*it+2*h,2)}, v{TA_[it ^ h]} offset:{LDS_X+512*h}")
        lwait_lds(92, vL8, 4)
        for it in range(0 if OPT.get('nout') else 4):
            A(f"buffer_store_dwordx4 {V(60+4*it,4)}, v82, {S(R_WS,4)}, s{sUO} offen sc1")
            if it < 3:
                A(f"s_add_u32 s{sUO}, s{sUO}, 65536")

    def wo_put():
        WL, WU, WD = 16, 32, 224
        A(f"""
v_bfe_u32 v84, v0, 4, 2
v_and_b32 v85, 15, v0
v_mul_u32_u24 v86, 160, v84
v_lshl_add_u32 v87, v85, 1, v86
v_lshl_add_u32 v86, v85, 3, v86
v_mul_u32_u24 v84, 102400, v84
v_lshl_add_u32 v84, v85, 4, v84
s_mov_b32 s{sW0}, 0x05040100
s_mov_b32 s{sW1}, 0x07060302
""")
        for e in range(8):
            A(f"ds_read_b64 {V(WL+2*e,2)}, v86 offset:{640*e}")
            A(f"ds_read_u16 v{WU+e}, v87 offset:{640*e+128}")
        lwait_lds(92, vL8, 4)
        for jn in range(4):
            for p in range(4):
                A(f"v_perm_b32 v{WD+4*jn+p}, v{WL+2*(2*p+1)+(jn>>1)}, v{WL+2*(2*p)+(jn>>1)}, s{sW0+(jn&1)}")
            A(f"buffer_store_dwordx4 {V(WD+4*jn,4)}, v84, {S(R_WS,4)}, s{sW2} offen offset:{1024*jn} sc1")
        for p in range(4):
            A(f"v_lshl_or_b32 v{WD+16+p}, v{WU+2*p+1}, 16, v{WU+2*p}")
        A(f"s_add_u32 s{sW2}, s{sW2}, 4096")
        A(f"buffer_store_dwordx4 {V(WD+16,4)}, v84, {S(R_WS,4)}, s{sW2} offen sc1")
    guarded(IS_IDLE, hand_over)
    guarded(IS_NOT_WO, wo_put)
    if OPT.get("ordb", 1):
        A("s_barrier")
    run(flat(issue_x(2) + issue_x(3)))
    claim()
    A("s_waitcnt vmcnt(4) lgkmcnt(0)")
    A("s_barrier")
    arriver(lambda: cnt_add(ONE, sKA))
    stamp("B", "kflag")
    A("L_e2j:")
    assert A.vm == ["x0", "x0", "x1", "x1", "x2", "x2", "x3", "x3"]
    A.lg = ["_"] * 4
    srd(R_M1, P_WPHI, 25600)
    A(f"""
s_mul_i32 s{sT1}, s{SW}, 400
s_add_u32 m0, s{sT1}, {LDS_WP}
s_mul_i32 s{sT2}, s{sHP}, 1600
s_add_u32 s{sT1}, s{sT1}, s{sT2}
s_mov_b64 exec, 0x1ffffff
""")
    A.v(f"buffer_load_dwordx4 v{vL16}, {S(R_M1,4)}, s{sT1} offen lds", "wp")
    A(f"""
s_mov_b64 exec, -1
s_mul_i32 s{sT1}, s{sHP}, 102400
s_add_u32 s{sT1}, s{sT1}, {WS_WKV}
s_add_u32 s{R_W}, s{P_WS}, s{sT1}
s_addc_u32 s{R_W+1}, s{P_WS+1}, 0
s_mov_b32 s{R_W+2}, 102400
s_mul_i32 s{sT1}, s{sHP}, 61440
s_add_u32 s{sT1}, s{sT1}, {WS_WQ}
s_add_u32 s{R_M1}, s{P_WS}, s{sT1}
s_addc_u32 s{R_M1+1}, s{P_WS+1}, 0
s_mov_b32 s{R_M1+2}, 61440
""")
    stamp("B", "iss1")
    refill = lambda u: u + 4

    A.c("---- x tile -> registers")
    assert U3 >= 2
    U1 = OPT.get("u1", 99)
    for u in range(U3 + 1):
        read_x(u)
        ld = []
        if u == 2 and not QL:
            guarded(IS_NOT_REPACKER, lambda: cnt_add(CQ1, sKA))
        if u:
            A.lwait(f"xr{u-1}")
            ld += issue_x(refill(u - 1))
        if u == U2:
            run(flat(ld))
            ld = []
            if U1 < U2:
                only_wave(0, lambda: cnt_async(CQ0, 14, sKW, 20, sCNT, low=True, nap=OPT.get('napw', 0)))
            else:
                only_wave(0, lambda: cnt_wait(CQ0, sKW, 20, sCNT, probed=False, low=True, nap=OPT.get('napw', 0)))
            A("s_barrier")
            stamp("B", "kwseen")
        if u >= U2:
            run(flat(issue_w(min(10, wround[0] + (OPT.get("w1st", 10) if u == U2 else OPT.get("wper", 2))))))
        if u == U2 and QL:
            guarded(IS_NOT_REPACKER, q_store)
            A.vm.append("qs")
            QMARK = len(A.vm)
            A.vm.pop()
            UQ = U2 + 4
        run(flat(ld))
        if u == U1 < U2:
            only_wave(0, lambda: cnt_read(CQ0, sKW))

    def ready(h):
        A.vwait(f"w{NEED(h)-1}")
        A("s_barrier")
        stamp("B", f"w{h}")


    A.c("---- GEMM1a: k and v for two heads, 20 k-steps in one stream")
    run(flat(issue_w(NEED(1))))
    ready(0)
    pipe = FragPipe(vL16, phase=5)
    mm = pipe.stream([(n // 5, n % 5, 1024 * (n % 40)) for n in range(100)], ACC)
    st_ = Stream()
    st_.at(0, flat(issue_w(10)))
    u = U3 + 1
    assert not QL or UQ > U3
    lastx = [0]
    for h in range(10):
        k0 = 20 * h
        for kk in {2: (0, 12), 3: (0, 5, 14), 4: (0, 4, 11, 15)}[OPT.get("xper", 2)]:
            if u < 20:
                st_.at(k0 + kk, [lambda u=u: read_x(u), lambda u=u: A.lwait(f"xr{u-1}")] + flat(issue_x(refill(u - 1))))
                if QL and u == UQ:
                    st_.at(k0 + kk, lambda: guarded(IS_NOT_REPACKER, lambda: cnt_add(CQ1, sKA)))
                u += 1
                lastx[0] = k0 + kk
        if h < 9:
            st_.exact(k0 + 19 - 2 * pipe.look, lambda h=h: ready(h + 1))
            mm[k0 + 20] = (lambda f=mm[k0 + 20], h=h: (need_x(h + 1), f()))
        if h:
            st_.at(k0 + 20 - 2 * pipe.look, flat(issue_w(10 + FREED(h - 1))))

    def need_x(h):
        assert f"x{2*h+1}" not in A.vm
        A.lwait(f"xr{2*h}", f"xr{2*h+1}")

    HQ = OPT.get("hq", 8)
    assert u == 20 and lastx[0] < 20 * HQ
    st_.at(20 * HQ - 50, L(f"""
s_and_b32 s{sWC}, s{sCT}, 4
s_add_u32 s{sWC}, s{sWC}, s{SW}
s_lshl_b32 s{sWC}, s{sWC}, 8
s_add_u32 s{sWC}, s{sWC}, {C_WO}
""") + [lambda: only_wave(0, lambda: cnt_read(CQ0, sKW)), lambda: cnt_read(CQ0 + 2, sWC)])
    st_.at(20 * HQ + 2, [lambda: A.lwait("xr19"), lambda: only_wave(0, lambda: cnt_async(CQ0, 14, sKW, 20 * 257, sCNT, nap=2))])
    for h in range(HQ, 10 if OPT.get("qin", 1) else 0):
        st_.at(20 * h + 21 - 2 * pipe.look, flat(issue_q(9 if h == 9 else min(9, qround[0] + OPT.get("qper", 3)))))
    KP, VP = 8, 20
    PF0, PF1, PK0, PK1 = 56, 68, 80, 32

    def cvt_tile(acc, t, d0, d1):
        return [(lambda sg=sg, hh=hh: A(f"v_cvt_pk_bf16_f32 v{(d0 if sg==0 else d1)+2*t+hh}, v{acc+8*t+4*sg+2*hh}, v{acc+8*t+4*sg+2*hh+1}")) for sg in range(2) for hh in range(2)]
    st_.at(192, L(f"v_mov_b32 v{KP+10}, 0\nv_mov_b32 v{KP+11}, 0"))
    st_.at(195, cvt_tile(ACC, 0, KP, VP))
    st_.at(197, cvt_tile(ACC, 1, KP, VP))
    need_x(0)
    st_.run(mm)
    assert wround[0] == 25
    stamp("B", "g1a")
    if OPT.get("fine"):
        finish("B")
        return

    A.c("---- phi_k, kv partial")
    swap = lambda a_, b_, i0, i1: [A(f"v_permlane16_swap_b32 v{a_+i}, v{b_+i}") for i in range(i0, i1)]
    run(phi_frags(PF0, vPA, "pf"))
    run(cvt_tile(ACC, 2, KP, VP))
    run(phi_frags(PF1, vPA1, "pf"))
    run(cvt_tile(ACC, 3, KP, VP) + cvt_tile(ACC, 4, KP, VP))
    swap(KP, VP, 0, 4)
    A.lwait("pf")
    phi_mfma(0, KP, PF0, PF1, PK0, PK1)
    swap(KP, VP, 4, 8)
    A(f"v_mov_b32 v{VP+10}, 0x3f80")
    A(f"v_mov_b32 v{VP+11}, 0")
    phi_mfma(1, KP + 4, PF0, PF1, PK0, PK1)
    swap(KP, VP, 8, 10)
    phi_mfma(2, KP + 8, PF0, PF1, PK0, PK1)
    A("s_barrier")
    for i in range(3):
        A.l(f"ds_write_b128 v{vVW}, {V(VP+4*i,4)} offset:{LDS_PV+160+16*i}", "pv")
    stamp("B", "pmf")
    hk = Hooks()
    hk1 = {n: (lambda i=i: A.l(f"ds_write_b128 v{vPW}, {V(PHI+4*i,4)} offset:{LDS_PV+16*i}", "pv")) for i, n in enumerate((24, 28, 51, 55, 59))}
    sWO = 75
    hk.at(0, L(f"""
s_lshr_b32 s{sT0}, s{SW}, 1
s_mul_i32 s{sT0}, s{sT0}, 48
s_mul_i32 s{sT1}, s{SW}, 40
s_sub_u32 s{sT0}, s{sT0}, s{sT1}
s_add_u32 s{sT0}, s{sT0}, 160
v_add_u32 v{vVW}, s{sT0}, v{vKA}
s_mul_i32 s{sWO}, s{sCT}, 102400
s_mul_i32 s{sT1}, s{SW}, 25600
s_add_u32 s{sWO}, s{sWO}, s{sT1}
s_add_u32 s{sWO}, s{sWO}, {WS_WO}
s_lshl_b32 s{sT0}, s{sHP}, 2
s_add_u32 s{sT0}, s{sT0}, s{SW}
s_lshl_b32 s{sT0}, s{sT0}, 14
s_add_u32 s{sT0}, s{sT0}, {WS_KVP}
s_lshl_b32 s{sT1}, s{sST}, 10
s_add_u32 s{sT1}, s{sT1}, s{sT0}
"""))

    def wo_touch():
        if not OPT.get('abl'):
            cnt_async(CQ0 + 2, 14, sWC, 20, sCNT, nap=8)
        if OPT.get("wopf", 1):
            A(f"""
s_and_b32 s{sWC}, s{sST}, 3
s_mul_i32 s{sWC}, s{sWC}, 6400
s_add_u32 s{sWC}, s{sWC}, s{sWO}
v_lshlrev_b32 v41, 3, v{vL16}
s_mov_b32 m0, {LDS_GATE+512}
s_mov_b32 exec_hi, 0x3ffff
""")
            A.v(f"buffer_load_dword v41, {S(R_WS,4)}, s{sWC} offen sc1 lds", "pf")
            A("s_mov_b32 exec_hi, -1")
    qe_ = flat(issue_q(9))
    for _ in range(min(len(qe_), OPT.get("qpre", 7))):
        qe_.pop(0)()
    hk.at(1, qe_)
    hk.at(2, wo_touch)
    softmax([PK0 + i for i in range(16)] + [PK1 + i for i in range(4)], [56 + i for i in range(20)], PHI, 36,
            lambda n: (hk1.pop(n, lambda: None)(), hk(n)))
    stamp("B", "smx")
    vKB, vQR = vVW, vPW
    A.lwait_all()
    A("s_barrier")
    stamp("B", "phik")
    KD = 28
    FR = [56, 64, 72, 80]

    def kvreads(ks):
        for h in range(2):
            A.l(f"ds_read_b64_tr_b16 {V(FR[ks%4]+2*h,2)}, v{vKA} offset:{LDS_PV+ks*4352+h*272}", f"kv{ks}")
        for h in range(2):
            A.l(f"ds_read_b64_tr_b16 {V(FR[ks%4]+4+2*h,2)}, v{vKB} offset:{LDS_PV+ks*4352+h*272}", f"kv{ks}")
    for ks in range(3):
        kvreads(ks)
    fl = L(f"""
v_and_b32 v14, 31, v0
v_bfe_u32 v15, v0, 5, 1
v_mad_u32_u24 v15, v15, 22, v14
v_lshlrev_b32 v15, 4, v15
v_add_u32 v{vQR}, {LDS_QB}, v{vL16}
""")
    for ks in range(8):
        A.lwait(f"kv{ks}")
        A(f"v_mfma_f32_32x32x16_bf16 {V(KD,16)}, {V(FR[ks%4],4)}, {V(FR[ks%4]+4,4)}, {'0' if ks==0 else V(KD,16)}")
        if ks + 3 < 8:
            kvreads(ks + 3)
        else:
            for _ in range(5):
                if fl:
                    fl.pop(0)()
    run(fl)
    A.vwait("q8")
    A("s_barrier")
    for i in range(6):
        A(f"v_cvt_pk_bf16_f32 v{8+i}, v{KD+2*i}, v{KD+2*i+1}")
    set_exec(0x003FFFFF003FFFFF)
    A.v(f"buffer_store_dwordx4 {V(8,4)}, v15, {S(R_WS,4)}, s{sT1} offen sc1", "kvst")
    A("s_mov_b32 exec_hi, 0")
    A.v(f"buffer_store_dwordx2 {V(12,2)}, v{vL8}, {S(R_WS,4)}, s{sT1} offen offset:704 sc1", "kvst")
    A("s_mov_b64 exec, -1")
    stamp("B", "kvst")

    A.c("---- GEMM1b (q); wo fragments stream into the x registers as they die")
    QA = 56
    WOR = [XB + 4 * i for i in range(8)] + [Xr(3, 0, 0) + 4 * i for i in range(16)] + [92]
    G = Xr(1, 0, 0)
    pipe = FragPipe(vQR, phase=3)
    mm = pipe.stream([(n // 3, n % 3, LDS_QA - LDS_QB + 1024 * n if n < 36 else 1024 * (n - 36)) for n in range(60)], QA)

    def issue_wo(f0, f1):
        o = []
        for f in range(f0, f1):
            ii, jn = divmod(f, 5)
            pre = ""
            if jn == 0 and ii < 4:
                pre = f"s_add_u32 s{sWC}, s{sST}, {ii}\ns_and_b32 s{sWC}, s{sWC}, 3\ns_mul_i32 s{sWC}, s{sWC}, 5120\ns_add_u32 s{sWC}, s{sWC}, s{sWO}\n"
            elif jn == 0:
                pre = f"s_add_u32 s{sWC}, s{sWO}, 20480\n"
            elif jn == 4:
                pre = f"s_add_u32 s{sWC}, s{sWC}, 4096\n"
            o.append((pre, lambda f=f, jn=jn: A.v(f"buffer_load_dwordx4 {V(WOR[f],4)}, v{vL16}, {S(R_WS,4)}, s{sWC} offen offset:{1024*(jn%4)} sc1", "wo")))
        return o

    def kv_flag():
        stamp("B", "kvw")
        A.vwait("kvst")
        cnt_add(ONE, sKF)
        stamp("B", "kvadd")

    def q2_ready():
        stamp("B", "q2w")
        A.vwait("q14")
        A("s_barrier")
        stamp("B", "q2")

    gl = []
    for pp in range(8):
        for g2 in range(2):
            pre = ""
            if g2 == 0 and pp % 2 == 0:
                pre = f"s_add_u32 s{sT1}, s{sST}, {pp//2}\ns_and_b32 s{sT1}, s{sT1}, 3\ns_lshl_b32 s{sT1}, s{sT1}, 12\ns_add_u32 s{sT1}, s{sT1}, s{sT0}\n"
            gl.append((pre, lambda pp=pp, g2=g2: A.v(f"buffer_load_dwordx4 {V(G+8*pp+4*g2,4)}, v{vGA+g2}, {S(R_WS,4)}, s{sT1} offen offset:{2048*(pp&1)} sc1", f"g{pp}")))
    Q0, Q1 = 8, 16
    PF0, PF1, PK0, PK1 = 80, 192, 56, 72
    st_ = Stream()
    st_.at(0, flat(issue_q(15)))
    KVF, KVT = OPT.get("kvf", 40), OPT.get("kvt", 92)
    st_.exact(KVF, kv_flag)
    st_.at(KVF + OPT.get("kvp", 4), lambda: cnt_probe(CQ0, sKF, True))
    if OPT.get("p2k", 0):
        st_.at(KVF + OPT.get("kvp2", 26), lambda: cnt_probe(CQ0 + 2, sKF, True))
    wol = issue_wo(0, 25)
    NW0 = OPT.get("nw0", 8)
    for i, g_ in enumerate(wol[:NW0]):
        st_.at(OPT.get("wo0", 30) + OPT.get("wostep", 5) * i, flat([g_]))
    st_.exact(72 - 2 * pipe.look - 1, q2_ready)
    st_.at(70, phi_frags(PF0, vPA, "pf"))
    st_.at(85, phi_frags(PF1, vPA1, "pf"))
    st_.exact(KVT, lambda: (stamp("B", "kvtest"), (cnt_poll2(CQ0, 14, sKF, 16, sCNT) if OPT.get('p2k', 0) else cnt_async(CQ0, 14, sKF, 16, sCNT, nap=OPT.get('napk', 0))), stamp("B", "kvseen")))
    NG1 = OPT.get("ng1", 10)
    for i, g_ in enumerate(gl[:NG1]):
        st_.at(min(KVT + 1 + 2 * i, 119), flat([g_]))
    st_.at(110, L(f"v_mov_b32 v{Q0+6}, 0\nv_mov_b32 v{Q0+7}, 0"))
    st_.run(mm)
    stamp("B", "g1b")

    A.c("---- phi_q; the kv partials are summed on the way")
    NW1 = OPT.get("nw1", 16)
    run(flat(gl[NG1:NG1 + 2]))
    run(cvt_tile(QA, 0, Q0, Q1) + cvt_tile(QA, 1, Q0, Q1))
    swap(Q0, Q1, 0, 4)
    run(cvt_tile(QA, 2, Q0, Q1))
    A(f"""
v_mov_b32 v43, v{QA+16}
s_mov_b32 exec_lo, 0
v_mov_b32 v43, v{QA+20}
s_mov_b32 exec_lo, 0xffff0000
s_mov_b32 exec_hi, 0xffff0000
""")
    A.l(f"ds_write_b32 v{vGW}, v43", "gw")
    A("s_mov_b64 exec, -1")
    assert "pf" not in A.lg
    phi_mfma(0, Q0, PF0, PF1, PK0, PK1)
    swap(Q0, Q1, 4, 6)
    phi_mfma(1, Q1, PF0, PF1, PK0, PK1)
    phi_mfma(2, Q0 + 4, PF0, PF1, PK0, PK1)
    run(flat(gl[NG1 + 2:]))
    RD, OF_, OD = 244, G, 56
    assert NW1 <= 20
    hk = Hooks()
    hk.at(OPT.get('woh', 20), flat(wol[NW0:NW1]))

    def reduce_(pp):
        A.vwait(f"g{pp}")
        for g2 in range(2):
            d = V(RD + 4 * g2, 4)
            A(f"v_mfma_f32_16x16x32_bf16 {d}, {V(ID,4)}, {V(G+8*pp+4*g2,4)}, {'0' if pp==0 else d}")

    def kvt_write():
        for i in range(4):
            A(f"v_cvt_pk_bf16_f32 v{RD+8+i}, v{RD+2*i}, v{RD+2*i+1}")
        A.l(f"ds_write_b64 v{vKT}, {V(RD+8,2)}", "kt")
        A("s_mov_b32 exec_hi, 0x007f007f")
        A.l(f"ds_write_b64 v{vKT+1}, {V(RD+10,2)}", "kt")
        A("s_mov_b64 exec, -1")

    def kvt_read():
        A.lwait_all()
        A("s_barrier")
        stamp("B", "kvt")
        for T in (1, 0):
            for t in range(5):
                A.l(f"ds_read_b128 {V(OF_+8*t+4*T,4)}, v{vOA+T} offset:{16*t}", f"o{t}_{T}")
    RH = OPT.get("rh", 34)
    hk2 = {RH + pp: (lambda pp=pp: reduce_(pp)) for pp in range(8)}
    hk2[min(RH + 12, 58)] = kvt_write
    hk2[min(RH + 18, 59)] = kvt_read
    hk.at(40, L(f"""
s_lshl_b32 s{sT1}, s{sST}, 2
s_add_u32 s{sT1}, s{sT1}, s{SW}
s_lshl_b32 s{sT1}, s{sT1}, 4
s_add_u32 s{sT1}, s{sT1}, s{sHP}
s_mul_i32 s{sT1}, s{sT1}, 2560
s_add_u32 s{sT1}, s{sT1}, {WS_O}
"""))
    softmax([PK0 + i for i in range(20)], [76 + i for i in range(16)] + [28, 29, 30, 31], PHI, 38,
            lambda n: (hk(n), hk2.pop(n, lambda: None)()), ratio=True)
    stamp("B", "phiq")
    OP = 28
    tail = L(f"""
v_mul_f32 v42, 0x358637bd, v42
v_add_f32 v40, v42, v{OD+20}
v_rcp_f32 v40, v40
""")
    for i in (8, 9):
        tail += L(f"v_mul_f32 v{OD+2*i}, v40, v{OD+2*i}\nv_mul_f32 v{OD+2*i+1}, v40, v{OD+2*i+1}\nv_cvt_pk_bf16_f32 v{OP+i}, v{OD+2*i}, v{OD+2*i+1}")
    tail.append(lambda: A.v(f"buffer_store_dwordx2 {V(OP+8,2)}, v{vOT}, {S(R_WS,4)}, s{sT1} offen offset:2048 sc1", "ost"))
    for T in (1, 0):
        for t in range(5):
            A.lwait(f"o{t}_{T}")
            d = V(OD + 16 * T, 16)
            A(f"v_mfma_f32_32x32x16_bf16 {d}, {V(OF_+8*t+4*T,4)}, {V(PHI+4*t,4)}, {'0' if t==0 else d}")
            if T == 0 and t == 0:
                tail.pop(0)()
                A("s_nop 5")
            if T == 0 and t == 3:
                for _ in range(5):
                    tail.pop(0)()
    run(tail)
    for i in range(8):
        scale(OD + 2 * i, 40, 0)
        A(f"v_cvt_pk_bf16_f32 v{OP+i}, v{OD+2*i}, v{OD+2*i+1}")
        if i == 3:
            A.v(f"buffer_store_dwordx4 {V(OP,4)}, v{vL16}, {S(R_WS,4)}, s{sT1} offen sc1", "ost")
        if i == 7:
            A.v(f"buffer_store_dwordx4 {V(OP+4,4)}, v{vL16}, {S(R_WS,4)}, s{sT1} offen offset:1024 sc1", "ost")
    stamp("B", "ost")
    NW2 = OPT.get("nw2", 21)
    run(flat(wol[NW1:NW2]))

    A.c("---- final projection: the wave sums its K quarter for four row tiles and owns tile (wave + ct) & 3")
    vOM, vOR, vW16 = 2, 3, 7
    vOMS = [72, 73, 74, 75]
    vRW, vRR, vAR, vAR2, vOUT2, vOUT = 1, 4, 5, 6, 2, 3
    sOB = [64, 65, 66, 67]
    sAF, sAT, sOC = 74, 25, 30
    GT, OMG, GA, AC0, AC1, OX = 8, 12, 16, 36, 56, 76
    OFR = [G + 4 * i for i in range(16)] + [OX + 4 * i for i in range(4)]
    A(f"""
s_add_u32 s{sOWN}, s{SW}, s{sCT}
s_and_b32 s{sOWN}, s{sOWN}, 3
s_lshl_b32 s{sCNT}, s{sB}, 2
s_add_u32 s{sCNT}, s{sCNT}, s{sOWN}
s_lshl_b32 s{sCNT}, s{sCNT}, 6
s_add_u32 s{sCNT}, s{sCNT}, {LDS_GATE}
v_and_b32 v42, 0x30, v0
v_add_u32 v42, s{sCNT}, v42
""")
    A.l(f"ds_read_b128 {V(GT,4)}, v42", "gt")
    A(f"""
s_lshl_b32 s{sAF}, s{sCT}, 2
s_add_u32 s{sAF}, s{sAF}, s{SW}
s_mul_i32 s{sAT}, s{sAF}, {20*4096}
s_lshl_b32 s{sAF}, s{sAF}, 8
s_add_u32 s{sAF}, s{sAF}, {C_AF}
s_lshl_b32 s{sWOFF}, s{sST}, 1
s_add_u32 s{sWOFF}, s{sWOFF}, s{sB}
s_lshl_b32 s{sCNT}, s{sWOFF}, 7
s_add_u32 s{sAT}, s{sAT}, s{sCNT}
s_add_u32 s{sAT}, s{sAT}, {WS_AT}
s_lshl_b32 s{sOC}, s{sWOFF}, 2
s_add_u32 s{sOC}, s{sOC}, s{SW}
s_lshl_b32 s{sOC}, s{sOC}, 8
s_add_u32 s{sOC}, s{sOC}, {C_O}
""")
    A.lwait("gt")
    cnt_read(CQ1, sAF)
    sGOT, sAL = 100, 101

    def a_dma():
        A(f"s_mul_i32 s{sAL}, s{SW}, 2560")
        for i in range(3):
            A(f"s_add_u32 m0, s{sAL}, {LDS_AT+1024*i}")
            A("s_mov_b32 exec_hi, 0" if i == 2 else "s_nop 0")
            A(f"buffer_load_dwordx4 v{68+i}, {S(R_WS,4)}, s{sAT} offen sc1 lds")
        A("s_mov_b64 exec, -1")

    def a_try():
        A(f"s_mov_b64 {S(14,2)}, {S(CQ1,2)}")
        cnt_test(14, 20)
        A(f"s_cselect_b32 s{sGOT}, 0, 1")
        guarded("", a_dma)
    A(f"""
v_mov_b32 v{vW16}, v{vL16}
v_and_b32 v40, 15, v0
v_bfe_u32 v43, v0, 4, 2
v_lshlrev_b32 v{vOM}, 9, v43
v_lshl_add_u32 v{vOM}, v40, 4, v{vOM}
v_mul_u32_u24 v{vOR}, 2560, v43
v_lshl_add_u32 v{vOR}, v40, 4, v{vOR}
v_bfe_u32 v49, v0, 3, 3
v_and_b32 v48, 7, v0
s_mul_i32 s{sCNT}, s{SW}, 20
""")
    for i in range(3):
        A(f"""
v_add_u32 v42, {8*i}, v49
v_add_u32 v43, s{sCNT}, v42
v_bfe_u32 v43, v43, 2, 3
v_xor_b32 v43, v43, v48
v_lshlrev_b32 v42, 12, v42
v_lshl_add_u32 v{68+i}, v43, 4, v42
""")
    for e in range(4):
        A(f"v_mul_f32 v{GT+e}, s{sL2E}, v{GT+e}")
    for e in range(4):
        A(f"v_exp_f32 v{GT+e}, -v{GT+e}")
    for e in range(4):
        A(f"v_add_f32 v{GT+e}, 1.0, v{GT+e}")
    for e in range(4):
        A(f"v_rcp_f32 v{GT+e}, v{GT+e}")
    for p in range(4):
        A(f"""
s_add_u32 s{sCNT}, s{sOWN}, {p+1}
s_bfe_u32 s{sJ}, s{sCNT}, 0x10001
s_mul_i32 s{sOB[p]}, s{sJ}, 40960
s_and_b32 s{sJ}, s{sCNT}, 1
s_lshl_b32 s{sJ}, s{sJ}, 8
s_add_u32 s{sOB[p]}, s{sOB[p]}, s{sJ}
""")
    A(f"""
s_mul_i32 s{sCNT}, s{sWOFF}, 81920
s_mul_i32 s{sJ}, s{SW}, 10240
s_add_u32 s{sCNT}, s{sCNT}, s{sJ}
s_add_u32 s{sCNT}, s{sCNT}, {WS_O}
v_add_u32 v{vOM}, s{sCNT}, v{vOM}
v_add_u32 v{vOR}, s{sCNT}, v{vOR}
""")
    for e in range(4):
        A(f"v_sub_f32 v{OMG+e}, 1.0, v{GT+e}")
    A.vwait("ost")
    cnt_add(ONE, sOF)
    stamp("B", "oflag")
    cnt_probe(CQ0, sOC, True)
    a_try()
    run(flat(wol[NW2:]))
    for ii in range(4):
        A(f"""
s_add_u32 s{sCNT}, s{sST}, {ii}
s_and_b32 s{sCNT}, s{sCNT}, 3
s_mul_i32 s{sCNT}, s{sCNT}, 2560
v_add_u32 v{vOMS[ii]}, s{sCNT}, v{vOM}
""")
    A(f"""
v_bfe_u32 v41, v0, 5, 1
v_lshl_add_u32 v41, s{sOWN}, 1, v41
v_and_b32 v42, 7, v40
v_xor_b32 v42, v42, v41
v_lshlrev_b32 v42, 4, v42
v_bfe_u32 v43, v0, 4, 1
v_lshlrev_b32 v43, 3, v43
v_lshlrev_b32 v{vAR}, 9, v40
v_add3_u32 v{vAR}, v{vAR}, v42, v43
v_lshrrev_b32 v42, 2, v40
v_xor_b32 v42, v42, v41
v_lshlrev_b32 v42, 4, v42
v_lshlrev_b32 v{vAR2}, 7, v40
v_add3_u32 v{vAR2}, v{vAR2}, v42, v43
s_mul_i32 s{sCNT}, s{SW}, 15360
s_add_u32 s{sCNT}, s{sCNT}, {LDS_RED}
v_add_u32 v{vRR}, s{sCNT}, v{vW16}
""")
    if OPT.get("p2o", 0):
        cnt_probe(CQ0 + 2, sOC, True)
        cnt_poll2(CQ0, 14, sOC, 8, sCNT)
    else:
        cnt_async(CQ0, 14, sOC, 8, sCNT)
    stamp("B", "oseen")
    guarded(f"s_cmp_eq_u32 s{sGOT}, 1", lambda: cnt_read(16, sAF))
    old = []
    for p in range(4):
        for ii in range(5):
            def f(p=p, ii=ii):
                r = V(OFR[5 * p + ii], 4)
                if ii < 4:
                    A.v(f"buffer_load_dwordx4 {r}, v{vOMS[ii]}, {S(R_WS,4)}, s{sOB[p]} offen sc1", f"of{p}_{ii}")
                else:
                    A.v(f"buffer_load_dwordx4 {r}, v{vOR}, {S(R_WS,4)}, s{sOB[p]} offen offset:2048 sc1", f"of{p}_{ii}")
            old.append(f)
    for _ in range(OPT.get("npo", 10)):
        old.pop(0)()
    AR = OFR[0]

    def a_fetch():
        def late():
            if not OPT.get('abl'):
                cnt_async(16, 14, sAF, 20, sCNT, nap=OPT.get('napa', 1))
            a_dma()
        guarded(f"s_cmp_eq_u32 s{sGOT}, 1", late)
        stamp("B", "aseen")

    def a_read():
        stamp("B", "arw")
        A.vwait_all()
        A("s_barrier")
        stamp("B", "ar")
        for jn in range(4):
            A.l(f"ds_read_b64 {V(AR+2*jn,2)}, v{vAR} offset:{LDS_AT+128*jn}", "ar")
        A.l(f"ds_read_b64 {V(AR+8,2)}, v{vAR2} offset:{LDS_AT+8192}", "ar")
    mix = [lambda: A.lwait("ar")]
    for jn in range(5):
        for e in range(4):
            src = AR + 2 * jn + (e >> 1)
            mix += L(f"v_and_b32 v{GA+4*jn+e}, 0xffff0000, v{src}" if e & 1 else f"v_lshlrev_b32 v{GA+4*jn+e}, 16, v{src}")
    mix2 = [(lambda jn=jn, e=e: A(f"v_mul_f32 v{GA+4*jn+e}, v{GT+e}, v{GA+4*jn+e}")) for jn in range(5) for e in range(4)]
    mm = []
    for p in range(4):
        ac = AC0 if p % 2 == 0 else AC1
        for ii in range(5):
            for jn in range(5):
                def m(p=p, ac=ac, ii=ii, jn=jn):
                    if jn == 0:
                        A.vwait(f"of{p}_{ii}")
                        if p == 0 and ii == 0:
                            stamp("B", "o0")
                    d = V(ac + 4 * jn, 4)
                    A(f"v_mfma_f32_16x16x32_bf16 {d}, {V(OFR[5*p+ii],4)}, {V(WOR[5*ii+jn],4)}, {'0' if ii==0 else d}")
                mm.append(m)
    st_ = Stream(budget=2)
    for i, f in enumerate(old):
        st_.at(2 * i, f)
    st_.exact(22, a_fetch)
    KA_ = OPT.get("aread", 58)
    st_.exact(KA_, a_read)
    st_.at(KA_ + 4, mix + mix2)
    for p in range(3):
        ac = AC0 if p % 2 == 0 else AC1
        k0 = 25 * (p + 1)
        st_.at(k0 - 3, L(f"""
s_add_u32 s{sCNT}, s{SW}, {p+1}
s_and_b32 s{sCNT}, s{sCNT}, 3
s_mul_i32 s{sCNT}, s{sCNT}, 15360
v_add_u32 v{vRW}, s{sCNT}, v{vW16}
"""))
        for jn in range(5):
            st_.at(k0 + 1 + jn, lambda jn=jn, p=p, ac=ac: A.l(f"ds_write_b128 v{vRW}, {V(ac+4*jn,4)} offset:{LDS_RED+5120*p+1024*jn}", "rw"))
    st_.at(33, L(f"""
v_bfe_u32 v{vOUT}, v0, 4, 2
v_mul_u32_u24 v{vOUT}, 5120, v{vOUT}
v_and_b32 v{GA}, 15, v0
v_lshl_add_u32 v{vOUT2}, v{GA}, 1, v{vOUT}
v_lshl_add_u32 v{vOUT}, v{GA}, 3, v{vOUT}
s_lshl_b32 s{sAT}, s{sWOFF}, 2
s_add_u32 s{sAT}, s{sAT}, s{sOWN}
s_mul_i32 s{sAT}, s{sAT}, 20480
s_mul_i32 s{sAF}, s{sCT}, 160
s_add_u32 s{sAT}, s{sAT}, s{sAF}
"""))
    KB_ = OPT.get("redbar", 84)
    st_.exact(KB_, lambda: (stamp("B", "rbw"), A.lwait_all(), A("s_barrier"), stamp("B", "rb")))
    red = []
    for jn in range(5):
        for q in (jn, 5 + jn, 10 + jn):
            red.append(lambda q=q, jn=jn: A.l(f"ds_read_b128 {V(OFR[q],4)}, v{vRR} offset:{1024*q}", f"rr{jn}"))
    st_.at(KB_ + 1, red)
    st_.run(mm, reserve=lambda k: 0)
    stamp("B", "fin")
    PK4 = OPT.get("pk4", 1)

    def add2(d, a_, b_):
        if PK4:
            A(f"v_pk_add_f32 {V(d,2)}, {V(a_,2)}, {V(b_,2)}")
        else:
            for n in range(2):
                A(f"v_add_f32 v{d+n}, v{a_+n}, v{b_+n}")
    for jn in range(5):
        A.lwait(f"rr{jn}")
        for h in range(2):
            r0, r1, r2 = OFR[jn] + 2 * h, OFR[5 + jn] + 2 * h, OFR[10 + jn] + 2 * h
            add2(r0, r0, r1)
            add2(r0, r0, r2)
    OSF = OPT.get("osf", "").replace("_", " ")
    for h in range(2):
        for jn in range(5):
            r0, g_ = OFR[jn] + 2 * h, GA + 4 * jn + 2 * h
            add2(r0, r0, AC1 + 4 * jn + 2 * h)
            if PK4:
                A(f"v_pk_fma_f32 {V(g_,2)}, {V(OMG+2*h,2)}, {V(r0,2)}, {V(g_,2)}")
            else:
                for n in range(2):
                    A(f"v_fma_f32 v{g_+n}, v{OMG+2*h+n}, v{r0+n}, v{g_+n}")
        for e in (2 * h, 2 * h + 1):
            A(f"v_cvt_pk_bf16_f32 v{AC0+4*e}, v{GA+e}, v{GA+4+e}")
            A(f"v_cvt_pk_bf16_f32 v{AC0+4*e+1}, v{GA+8+e}, v{GA+12+e}")
            A.v(f"buffer_store_dwordx2 {V(AC0+4*e,2)}, v{vOUT}, {S(R_M2,4)}, s{sAT} offen offset:{1280*e} {OSF}")
        A(f"v_cvt_pk_bf16_f32 v{AC0+8*h+2}, v{GA+16+2*h}, v{GA+17+2*h}")
        A.v(f"buffer_store_short v{AC0+8*h+2}, v{vOUT2}, {S(R_M2,4)}, s{sAT} offen offset:{2560*h+128} {OSF}")
        A.v(f"buffer_store_short_d16_hi v{AC0+8*h+2}, v{vOUT2}, {S(R_M2,4)}, s{sAT} offen offset:{2560*h+1280+128} {OSF}")
    finish("B")


def role_A():
    sAJ, sTB, sCB, sCH, sLB = 60, 61, 62, 63, 68
    ONE, CQ0, CQ1, CQ2, sUP, sUC, sAC, sGOT, sWC = 18, 20, 28, 40, 69, 48, 49, 50, 51
    sW0, sW1, sW2 = 73, 74, 75
    A.c("---- A prologue")
    A(f"""
s_sub_u32 s{sAJ}, s2, {ID_A}
s_lshl_b32 s{sCH}, s{sAJ}, 2
s_add_u32 s{sCH}, s{sCH}, s{SW}
s_mul_i32 s{sLB}, s{SW}, 20480
v_and_b32 v1, 63, v0
v_lshlrev_b32 v5, 2, v1
s_lshl_b32 s{sT0}, s{sCH}, 8
v_add_u32 v3, s{sT0}, v5
s_and_b32 s{sT3}, s{sCH}, 0xfffffffe
s_lshl_b32 s{sT3}, s{sT3}, 1
s_waitcnt lgkmcnt(0)
""")
    A(f"s_load_dword s70, {S(P_LOGDT,2)}, s{sT3}")
    A(f"s_load_dword s71, {S(P_DSK,2)}, s{sT3}")
    load_epoch()
    for i, p in enumerate((P_LOGA, P_AIM, P_CRE, P_CIM)):
        A.v(f"global_load_dword v{8+i}, v3, {S(p,2)}{' nt' if OPT.get('nt', 1) else ''}", "par")
    if OPT.get("ahead", 1):
        A("s_branch L_A2")
        k = A.lines.index("L_A:")
        head = A.lines[k:]
        del A.lines[k:]
        A.lines[A_HEAD:A_HEAD] = head
        A("L_A2:")
    A(f"""
s_mul_i32 s{sAC}, s{sCH}, 3277
s_lshr_b32 s{sAC}, s{sAC}, 16
s_lshl_b32 s{sAC}, s{sAC}, 8
s_add_u32 s{sAC}, s{sAC}, {C_AF}
s_lshr_b32 s{sUC}, s{sAJ}, 4
s_lshl_b32 s{sUC}, s{sUC}, 8
s_add_u32 s{sUC}, s{sUC}, {C_UT}
s_mov_b64 {S(ONE,2)}, 1
""")
    srd(R_WS, P_WS, WS_SIZE)
    A(f"""
s_lshl_b32 s{sT0}, s{sAJ}, 14
s_add_u32 s{sT0}, s{sT0}, {WS_UT}
s_add_u32 s{R_M1}, s{P_WS}, s{sT0}
s_addc_u32 s{R_M1+1}, s{P_WS+1}, 0
s_mov_b32 s{R_M1+2}, 16384
s_mov_b32 s{R_M1+3}, 0x20000
""")
    A("s_waitcnt lgkmcnt(0)")
    make_tag()
    BAND = {9: 224, 7: 228, 5: 232, 3: 236, 2: 240}
    A("""
v_and_b32 v12, 15, v1
v_lshrrev_b32 v13, 1, v1
v_and_b32 v13, 24, v13
""")
    for wd, first in ((9, 4), (7, 5), (5, 6), (3, 11), (2, 12)):
        A(f"""
v_mov_b32 v14, {((1 << wd) - 1) << first}
v_lshlrev_b32 v14, v12, v14
v_lshrrev_b32 v14, v13, v14
""")
        for p in range(4):
            r = BAND[wd] + p
            A(f"v_bfe_u32 v15, v14, {2*p+1}, 1")
            A(f"v_bfe_u32 v{r}, v14, {2*p}, 1")
            A(f"v_lshl_or_b32 v{r}, v15, 16, v{r}")
            if wd != 2:
                A(f"v_mul_u32_u24 v{r}, 0x3f80, v{r}")
    A.vwait("par")
    stamp("A", "par")
    A(f"s_setprio {OPT.get('prioK', 0)}")
    if OPT.get("fakea"):
        cnt_read(CQ1 + 2, sAC)
        A("s_waitcnt lgkmcnt(0)")
        cnt_claim(CQ1, sAC)
        for _ in range(OPT["fakea"]):
            A("s_sleep 100")
        A("s_branch L_cend")
    A.c("---- per-mode constants (two modes per lane)")
    A(f"""
s_bitcmp1_b32 s{sCH}, 0
s_cselect_b32 s{sT0}, 0, 16
s_lshl_b32 s70, s70, s{sT0}
s_and_b32 s70, s70, 0xffff0000
s_lshl_b32 s71, s71, s{sT0}
s_and_b32 s71, s71, 0xffff0000
v_mov_b32 v32, {LOG2E:#x}
v_mul_f32 v33, s70, v32
v_exp_f32 v33, v33
""")
    A.vwait("par")
    LA, AI, XR, XI = 34, 36, 38, 40
    for (src, dst) in ((8, LA), (9, AI), (10, XR), (11, XI)):
        A(f"v_lshlrev_b32 v{dst}, 16, v{src}")
        A(f"v_and_b32 v{dst+1}, 0xffff0000, v{src}")
    A(f"""
v_cvt_pk_bf16_f32 v33, v33, v33
v_and_b32 v33, 0xffff0000, v33
v_mul_f32 v{LA}, v32, v{LA}
v_mul_f32 v{LA+1}, v32, v{LA+1}
v_exp_f32 v{LA}, v{LA}
v_exp_f32 v{LA+1}, v{LA+1}
v_mul_f32 v{AI}, v33, v{AI}
v_mul_f32 v{AI+1}, v33, v{AI+1}
v_cvt_pk_bf16_f32 v{LA+1}, v{LA}, v{LA+1}
v_lshlrev_b32 v{LA}, 16, v{LA+1}
v_and_b32 v{LA+1}, 0xffff0000, v{LA+1}
v_mul_f32 v{LA}, v33, v{LA}
v_mul_f32 v{LA+1}, v33, v{LA+1}
v_mul_f32 v{LA}, v32, v{LA}
v_mul_f32 v{LA+1}, v32, v{LA+1}
v_mul_f32 v{AI}, {INV2PI:#x}, v{AI}
v_mul_f32 v{AI+1}, {INV2PI:#x}, v{AI+1}
v_add_f32 v33, v33, v33
v_mul_f32 v{XR}, v33, v{XR}
v_mul_f32 v{XR+1}, v33, v{XR+1}
v_mul_f32 v{XI}, v33, -v{XI}
v_mul_f32 v{XI+1}, v33, -v{XI+1}
""")
    W = {1: 44, 8: 48, 256: 52}
    for p, w in W.items():
        lit = {1: "1.0", 8: "0x41000000", 256: "0x43800000"}[p]
        for n in range(2):
            A(f"v_mul_f32 v{56+n}, {lit}, v{LA+n}")
            A(f"v_mul_f32 v{58+n}, {lit}, v{AI+n}")
        for n in range(2):
            A(f"v_exp_f32 v{56+n}, -v{56+n}")
            A(f"v_fract_f32 v{58+n}, v{58+n}")
        for n in range(2):
            A(f"v_cos_f32 v{w+n}, v{58+n}")
            A(f"v_sin_f32 v{w+2+n}, v{58+n}")
        A(f"v_pk_mul_f32 {V(w,2)}, {V(w,2)}, {V(56,2)}")
        A(f"v_pk_mul_f32 {V(w+2,2)}, {V(w+2,2)}, {V(56,2)}")
    vSW, vSR = 6, 7
    A(f"""
v_lshlrev_b32 v{vSW}, 3, v1
v_add_u32 v{vSW}, s{sLB}, v{vSW}
v_and_b32 v{vSR}, 31, v1
v_mul_u32_u24 v{vSR}, 528, v{vSR}
v_lshrrev_b32 v12, 5, v1
v_lshlrev_b32 v12, 4, v12
v_add3_u32 v{vSR}, v{vSR}, v12, s{sLB}
""")
    pk, pend = [0], []

    def put(reg, rows):
        pend.append((reg, rows))

    def flush(stage=None):
        if pend and stage in (0, None):
            pk[0] += 1
            t, reg = 80 + 2 * (pk[0] % 4), pend[0][0]
            A(f"v_cvt_pk_bf16_f32 v{t+1}, v{reg+2}, v{reg+3}")
            A(f"v_cvt_pk_bf16_f32 v{t}, v{reg}, v{reg+1}")
        if pend and stage in (1, None):
            for r in pend.pop(0)[1]:
                A.l(f"ds_write_b64 v{vSW}, {V(80+2*(pk[0]%4),2)} offset:{528*r}", "st")

    def cmul(d, s, w, conj):
        n1, n2 = ("", " neg_lo:[1,0,0] neg_hi:[1,0,0]") if conj else (" neg_lo:[0,0,1] neg_hi:[0,0,1]", "")
        A(f"v_pk_mul_f32 {V(56,2)}, {V(s+2,2)}, {V(w+2,2)}")
        A(f"v_pk_mul_f32 {V(58,2)}, {V(s+2,2)}, {V(w,2)}")
        flush(0)
        A(f"v_pk_fma_f32 {V(d+2,2)}, {V(s,2)}, {V(w+2,2)}, {V(58,2)}{n2}")
        A(f"v_pk_fma_f32 {V(d,2)}, {V(s,2)}, {V(w,2)}, {V(56,2)}{n1}")
        flush(1)

    A.c("---- X rows")
    g0 = [0, 1, 2, 3, 4, 5, 6, 7, 8, 516, 520, 1032, 1544]
    g1 = [256, 256, 258, 260, 260, 260, 262, 264, 264, 772, 776, 1288, 1800]
    rows = {}
    for g, lst in enumerate((g0, g1)):
        for i, p in enumerate(lst):
            rows.setdefault(p, []).append(8 * (i >> 2) + 4 * g + (i & 3))
    keep = {0: XR, 2: 60, 4: 64, 6: 68, 8: 72}
    put(XR, rows[0])
    cur = XR
    for p in range(1, 9):
        d = keep.get(p, 76)
        cmul(d, cur, W[1], True)
        put(d, rows[p])
        cur = d
    for step in range(1, 8):
        for off in (0, 2, 6, 8, 4):
            p = 256 * step + off
            if p in rows:
                cmul(keep[off], keep[off], W[256], True)
                put(keep[off], rows[p])
    XF, YA = 96, 60
    cmul(YA, W[8], W[8], False)
    assert not pend
    for ks in range(16):
        A.l(f"ds_read_b128 {V(XF+4*ks,4)}, v{vSR} offset:{32*ks}", "xf")
    A.c("---- Y rows")
    A(f"""
v_mov_b32 v24, 0x3f803f80
v_mov_b32 v25, 0
""")
    stamp("A", "xrows")
    A.l(f"ds_write_b64 v{vSW}, {V(24,2)}", "st")
    put(W[8], [1])
    flush()
    put(YA, [2])
    for c in range(3, 32):
        cmul(YA, YA, W[8], False)
        put(YA, [c])
    flush()
    stamp("A", "yrows")
    YF, KD = 160, 68
    L_KF, L_SQ = 4608, 4608 + 2432
    vKW, vKA, vSA, vS4, vS8, vUB, vUD = 3, 8, 10, 11, 12, 4, 2
    fl = L(f"""
v_and_b32 v13, 15, v1
v_and_b32 v14, 0x30, v1
v_lshl_add_u32 v{vUB}, v13, 5, v14
v_add_u32 v{vUB}, s{sLB}, v{vUB}
v_add_u32 v15, 1, v13
v_and_b32 v13, 1, v15
v_lshrrev_b32 v15, 1, v15
v_lshlrev_b32 v15, 2, v15
v_sub_u32 v15, s{sLB}, v15
v_mul_u32_u24 v{vKA}, 1216, v13
v_add3_u32 v{vKA}, v{vKA}, v15, v14
v_add_u32 v{vKA}, {L_KF+32}, v{vKA}
v_add_u32 v{vKA+1}, 64, v{vKA}
v_mul_u32_u24 v{vSA}, 832, v13
v_lshrrev_b32 v14, 1, v14
v_add3_u32 v{vSA}, v{vSA}, v15, v14
v_add_u32 v{vSA}, {L_SQ+32}, v{vSA}
v_and_b32 v13, 1, v1
v_and_b32 v14, 0x3e, v1
v_sub_u32 v14, s{sLB}, v14
v_add_u32 v14, {L_SQ+62}, v14
v_lshl_add_u32 v{vS4}, v13, 8, v14
v_mul_u32_u24 v13, 160, v13
v_add_u32 v{vS8}, v13, v14
v_lshlrev_b32 v13, 4, v1
v_sub_u32 v{vKW}, s{sLB}, v13
v_add_u32 v{vKW}, {L_KF+1072}, v{vKW}
v_add_u32 v13, s{sLB}, v13
s_lshl_b32 s{sT0}, s{SW}, 4
v_lshl_add_u32 v{vUD}, v1, 6, s{sT0}
v_mov_b32 v16, 0
v_mov_b32 v17, 0
v_mov_b32 v18, 0
v_mov_b32 v19, 0
""")
    for ks in range(16):
        A.l(f"ds_read_b128 {V(YF+4*ks,4)}, v{vSR} offset:{32*ks}", f"y{ks}")
        if ks >= 6:
            k2 = ks - 6
            A.lwait(f"y{k2}")
            A(f"v_mfma_f32_32x32x16_bf16 {V(KD,16)}, {V(XF+4*k2,4)}, {V(YF+4*k2,4)}, {'0' if k2==0 else V(KD,16)}")
            for _ in range(4):
                if fl:
                    fl.pop(0)()
    run(fl)
    zero = [lambda: A.l(f"ds_write_b64 v{vSW}, {V(16,2)}", "cv")]
    zero += [(lambda i=i: A.l(f"ds_write_b128 v13, {V(16,4)} offset:{L_KF+1024*i}", "cv")) for i in range(4)]
    for k2 in range(10, 16):
        A.lwait(f"y{k2}")
        A(f"v_mfma_f32_32x32x16_bf16 {V(KD,16)}, {V(XF+4*k2,4)}, {V(YF+4*k2,4)}, {V(KD,16)}")
        if zero:
            zero.pop(0)()
    A(f"""
s_mov_b64 exec, 1
v_add_f32 v{KD}, s71, v{KD}
s_mov_b64 exec, -1
""")
    for c_ in range(2):
        for p in range(4):
            A(f"v_cvt_pk_bf16_f32 v{84+4*c_+p}, v{KD+7+c_-2*p}, v{KD+6+c_-2*p}")
        A.l(f"ds_write_b128 v{vKW}, {V(84+4*c_,4)} offset:{1216*c_}", "cv")
    A(f"""
v_cvt_pk_bf16_f32 v92, v{KD+9}, v{KD+10}
v_cvt_pk_bf16_f32 v93, v{KD+11}, v{KD+12}
v_cvt_pk_bf16_f32 v21, v{KD+8}, v{KD+8}
v_lshrrev_b32 v22, 16, v87
v_and_b32 v20, 0xffff0000, v21
v_mov_b32 v23, s{sLB}
v_readlane_b32 s{sT0}, v92, 63
""")
    for c_ in range(2):
        A.l(f"ds_write_b16 v{vS4}, v92 offset:{32+834*c_}", "cv")
        A.l(f"ds_write_b16_d16_hi v{vS4}, v92 offset:{32+128+834*c_}", "cv")
        A.l(f"ds_write_b16 v{vS8}, v93 offset:{512+64+834*c_}", "cv")
        A.l(f"ds_write_b16_d16_hi v{vS8}, v93 offset:{512+834*c_}", "cv")
    A("s_mov_b64 exec, 1")
    A.l(f"ds_write_b32 v23, v22 offset:{L_KF+1216+1088}", "cv")
    A("s_mov_b32 exec_lo, 0")
    A("s_mov_b32 exec_hi, 0x80000000")
    A.l(f"ds_write_b64 v23, {V(20,2)} offset:{L_KF+56}", "cv")
    A.l(f"ds_write_b32 v23, v21 offset:{L_KF+1216+60}", "cv")
    A("s_mov_b64 exec, -1")
    A(f"s_lshr_b32 s{sT0}, s{sT0}, 16")
    for p in range(4):
        A(f"v_mul_u32_u24 v{BAND[2]+p}, s{sT0}, v{BAND[2]+p}")
    stamp("A", "kdone")
    cnt_read(CQ1 + 2, sAC)
    only_wave(0, lambda: cnt_read(CQ0, sUC))
    KF, SF = 96, 164
    for m in range(17):
        a_, o = (vKA + 1, 16 * (15 - m)) if m < 16 else (vKA, 0)
        for hh in range(2):
            A.l(f"ds_read2_b32 {V(KF+4*m+2*hh,2)}, v{a_} offset0:{o+2*hh} offset1:{o+2*hh+1}", "kf")
    SFR = {}
    for ty, seqs, ns in (("P", (0, 128), (2, 3, 4)), ("Q", (256, 384), (2, 3, 4)), ("E", (512, 672), (4, 5, 6, 7))):
        for n in ns:
            SFR[ty, n] = SF + 4 * len(SFR)
            for hh in range(2):
                o = (seqs[hh] + 32 * (ns[-1] - n)) // 4
                A.l(f"ds_read2_b32 {V(SFR[ty,n]+2*hh,2)}, v{vSA} offset0:{o} offset1:{o+1}", "kf")
    A.lwait_all()
    cnt_claim(CQ1, sAC)
    only_wave(0, lambda: cnt_wait(CQ0, sUC, 16, sCNT, nap=OPT.get("napu", 1)))
    A("s_barrier")
    A(f"s_setprio {OPT.get('prioR', 3)}")
    USC = ' sc1' if OPT.get('usc', 0) else ''
    for i in range(4):
        A(f"s_add_u32 m0, s{sLB}, {512+1024*i}")
        A(f"s_movk_i32 s{sT0}, {4096*i}")
        A.v(f"buffer_load_dwordx4 v{vUD}, {S(R_M1,4)}, s{sT0} offen{USC} lds", "u")
    stamp("A", "utseen")
    A(f"s_setprio {OPT.get('prioA', 0)}")
    A.vwait("u")
    stamp("A", "cstart")
    if OPT.get("noconv"):
        finish("A")
        return
    A.c("---- convolution. Lags < 515: Toeplitz tiles of K times input blocks. Beyond that K is constant over runs of")
    A.c("---- the rounded position: window sums of the input (0/1 band matrices) times the decimated K.")
    CA = 16
    UR, NUR, LOOK = 48, 8, 6
    GU = [80, 88]
    DD, ZZ = [204, 212], [220, 244]
    started = set()

    def mfma(d, a_, b_, key=None):
        c = "0" if key is None or key not in started else V(d, 4)
        started.add(key)
        A(f"v_mfma_f32_16x16x32_bf16 {V(d,4)}, {V(a_,4)}, {V(b_,4)}, {c}")

    ufr = [(r, n) for r in range(8) for n in range(8)]
    fine = []
    for i, (r, n) in enumerate(ufr):
        for mu, a_ in ((0, KF + 4 * r), (1, KF + 4 * (8 + r)), (2, KF + 64), (4, BAND[2])):
            if mu + n <= 7 and (mu < 2 or r == 0):
                fine.append((i, mu + n, a_))
    uread = lambda i: A.l(f"ds_read_b128 {V(UR+4*(i%NUR),4)}, v{vUB} offset:{32+512*ufr[i][1]+64*(7-ufr[i][0])}", f"u{i}")
    gread = lambda mu: [(lambda h=h: A.l(f"ds_read_b128 {V(GU[mu&1]+4*h,4)}, v{vUB} offset:{480+512*mu-16*h}", f"g{mu}")) for h in range(2)]
    ops = [(mu, ty) for mu in range(6) for ty in "PQE" if ty != "E" or mu < 4]
    HALF = {"P": ((0, 3), (0, 5)), "Q": ((1, 3), (1, 5)), "E": ((0, 7), (1, 9))}
    extra, fill = {}, {}
    for j, (mu, ty) in enumerate(ops):
        p = 2 + 8 * j
        d, z = DD[j & 1], ZZ[j & 1]

        def build(mu=mu, ty=ty, d=d):
            A.lwait(f"g{mu}")
            for h, (uf, wd) in enumerate(HALF[ty]):
                mfma(d + 4 * h, GU[mu & 1] + 4 * uf, BAND[wd])

        def use(mu=mu, ty=ty, z=z):
            for (t_, n), f_ in SFR.items():
                if t_ == ty and mu + n <= 7:
                    mfma(CA + 4 * (mu + n), z, f_, mu + n)
        extra.setdefault(p, []).append(build)
        extra.setdefault(min(p + 7, len(fine) - 1), []).insert(0, use)
        for q in range(4):
            fill.setdefault(p + 4 + q // 2, []).append(lambda q=q, d=d, z=z: A(f"v_cvt_pk_bf16_f32 v{z+q}, v{d+2*q}, v{d+2*q+1}"))
        if ty == "Q" and mu < 5:
            fill.setdefault(p + 1, []).extend(gread(mu + 1))
    for i in range(2):
        uread(i)
    run(gread(0))
    for i in range(2, LOOK):
        uread(i)
    nread = LOOK
    for k, (i, n, a_) in enumerate(fine):
        A.lwait(f"u{i}")
        mfma(CA + 4 * n, a_, UR + 4 * (i % NUR), n)
        if nread < len(ufr) and nread <= i + LOOK:
            uread(nread)
            nread += 1
        run(fill.pop(k, []))
        run(extra.pop(k, []))
    assert not fill and not extra and nread == 64
    A("L_cend:")
    A(f"s_setprio {OPT.get('prioR', 3)}")
    stamp("A", "cend")
    A(f"""
v_and_b32 v2, 15, v1
v_lshlrev_b32 v2, 5, v2
v_bfe_u32 v3, v1, 4, 1
v_lshl_add_u32 v2, v3, 9, v2
v_lshrrev_b32 v3, 5, v1
v_lshl_add_u32 v2, v3, 4, v2
s_lshl_b32 s{sT0}, s{sCH}, 12
s_add_u32 s{sT0}, s{sT0}, {WS_AT}
""")
    for q in range(640):
        assert (q * 3277) >> 16 == q // 20
    A.lwait_all()
    for n in range(0, 8, 2):
        d = 48 + 2 * n
        for i in range(4):
            A(f"v_cvt_pk_bf16_f32 v{d+i}, v{CA+4*n+2*i}, v{CA+4*n+2*i+1}")
    for n in range(0, 8, 2):
        d = 48 + 2 * n
        A(f"v_permlane16_swap_b32 v{d}, v{d+2}")
        A(f"v_permlane16_swap_b32 v{d+1}, v{d+3}")
        A.v(f"buffer_store_dwordx4 {V(d,4)}, v2, {S(R_WS,4)}, s{sT0} offen offset:{512*n} sc1", "ast")
    A.vwait("ast")
    cnt_add(ONE, sAC)
    finish("A")


def role_R():
    CQ0 = 20
    A("L_ep:")
    A("s_waitcnt lgkmcnt(0)")
    load_epoch()
    A("s_waitcnt lgkmcnt(0)")
    make_tag()
    srd(R_WS, P_WS, WS_SIZE)
    cnt_wait(CQ0, str(C_KV), 16, sCNT, probed=False, nap=32)
    cnt_wait(CQ0, str(C_AF), 20, sCNT, probed=False, nap=16)
    A(f"""
v_and_b32 v1, 63, v0
v_lshlrev_b32 v2, 8, v1
v_add_u32 v3, {C_AF}, v2
v_add_u32 v4, {C_WO-32*256}, v2
v_cmp_gt_u32 vcc, 32, v1
v_cndmask_b32 v3, v4, v3, vcc
v_lshlrev_b32 v4, 10, v1
v_add_u32 v4, {C_KV-40*1024}, v4
v_cmp_gt_u32 vcc, 40, v1
v_cndmask_b32 v3, v4, v3, vcc
v_cndmask_b32 v6, 16, 20, vcc
v_mov_b32 v7, s{TAG+1}
v_add_co_u32 v6, vcc, s{TAG}, v6
v_addc_co_u32 v7, vcc, 0, v7, vcc
s_mov_b32 exec_hi, 0xffffff
s_mov_b32 s{sCNT}, 0
L_epl:
v_mov_b32 v4, 0
v_mov_b32 v5, 0
buffer_atomic_add_x2 v[4:5], v3, {S(R_WS,4)}, 0 offen sc0 sc1
s_add_u32 s{sCNT}, s{sCNT}, 1
s_waitcnt vmcnt(0)
v_cmp_ne_u64 vcc, v[4:5], v[6:7]
s_cbranch_vccz L_epd
s_sleep 16
s_cmp_lt_u32 s{sCNT}, {SPIN}
s_cbranch_scc1 L_epl
L_epd:
""")
    A(f"s_atomic_swap_x2 {S(TAG,2)}, {S(P_WS,2)}, {WS_EPOCH}")
    A("s_endpgm")


if "B" in OPT["roles"]:
    role_B()
else:
    A("L_B:\ns_endpgm")
A("L_A:")
if "A" in OPT["roles"]:
    role_A()
else:
    A("s_endpgm")
role_R()
A("L_codeend:")
lines, nn = pad_hazards(A.lines, verbose=False)
if OPT.get("align", 1):
    lines, cnt_, cost_ = align8(lines)
    print("align:", cnt_, cost_, file=sys.stderr)
hdr = open("gated_mix__ssm_conv_s4d__linear_kernel_hedgehog__prompt.s.ref").read().split("; Override launch")[0]
print(hdr + f"; @launch grid=({ID_END},1,1) block=(256,1,1) lds=81920")
print("\n".join(lines))
print(f""".section .rodata,"a"
.p2align 6
.amdhsa_kernel {KN}
  .amdhsa_next_free_vgpr 256
  .amdhsa_next_free_sgpr 102
  .amdhsa_accum_offset 256
  .amdhsa_group_segment_fixed_size 0
  .amdhsa_kernarg_size 120
  .amdhsa_user_sgpr_count 2
  .amdhsa_user_sgpr_kernarg_segment_ptr 1
  .amdhsa_system_sgpr_workgroup_id_x 1
.end_amdhsa_kernel""")
json.dump(stampnames, open("stamps.json", "w"))
print(f"pad states inserted: {nn}", file=sys.stderr)
```

```python
import re

TRANS = ("v_exp_f32", "v_log_f32", "v_rcp_f32", "v_rsq_f32", "v_sqrt_f32", "v_sin_f32", "v_cos_f32")


def _regs(tok):
    tok = tok.strip()
    tok = tok.lstrip("-")
    m = re.fullmatch(r"abs\((.*)\)|\|(.*)\|", tok)
    if m:
        tok = m.group(1) or m.group(2)
    m = re.fullmatch(r"([vs])(\d+)", tok)
    if m:
        return {(m.group(1), int(m.group(2)))}
    m = re.fullmatch(r"([vs])\[(\d+):(\d+)\]", tok)
    if m:
        return {(m.group(1), i) for i in range(int(m.group(2)), int(m.group(3)) + 1)}
    if tok in ("vcc", "vcc_lo", "vcc_hi"):
        return {("x", "vcc")}
    if tok in ("exec", "exec_lo", "exec_hi"):
        return {("x", "exec")}
    if tok == "m0":
        return {("x", "m0")}
    return set()


def _split(rest):
    out, depth, cur = [], 0, ""
    for ch in rest:
        if ch in "[(":
            depth += 1
        if ch in "])":
            depth -= 1
        if ch == "," and depth == 0:
            out.append(cur.strip())
            cur = ""
        else:
            cur += ch
    if cur.strip():
        out.append(cur.strip())
    return out


class Ins:
    def __init__(self, text):
        self.text = text
        t = text.split(";")[0].strip()
        self.label = None
        self.mn = None
        self.directive = False
        if not t:
            self.directive = True
            return
        if t.endswith(":"):
            self.label = t[:-1]
            return
        if t.startswith("."):
            self.directive = True
            return
        parts = t.split(None, 1)
        mn = parts[0]
        for suf in ("_e32", "_e64"):
            if mn.endswith(suf):
                mn = mn[: -len(suf)]
        self.mn = mn
        ops = _split(parts[1]) if len(parts) > 1 else []
        mods = ""
        if ops:
            last = ops[-1].split(None, 1)
            ops[-1] = last[0]
            mods = last[1] if len(last) > 1 else ""
        self.ops, self.mods = ops, mods
        R = [_regs(o) for o in ops]
        allr = set().union(*R) if R else set()
        self.valu = mn.startswith("v_") and not mn.startswith("v_mfma")
        self.mfma = mn.startswith("v_mfma")
        self.dpp = "_dpp" in mn
        self.trans = mn in TRANS
        self.perml = mn.startswith("v_permlane")
        self.rdlane = mn.startswith("v_readlane") or mn.startswith("v_readfirstlane")
        self.dot = mn.startswith("v_dot")
        self.vmem = mn.startswith("buffer_") or mn.startswith("global_")
        self.ds = mn.startswith("ds_")
        self.salu = mn.startswith("s_")
        self.ldsdma = self.vmem and re.search(r"\blds\b", mods) is not None
        self.w, self.r = set(), set()
        self.srcA = self.srcB = self.srcC = set()
        self.storedata = set()
        if self.mfma:
            self.w = R[0]
            self.srcA, self.srcB, self.srcC = R[1], R[2], R[3]
            self.r = R[1] | R[2] | R[3]
            self.passes = 8 if "32x32" in mn else 4
        elif self.perml:
            self.w = self.r = allr
        elif self.valu:
            if mn == "v_nop":
                pass
            else:
                self.w = set(R[0])
                self.r = set().union(*R[1:]) if len(R) > 1 else set()
                if re.match(r"v_(add|sub|subrev|addc|subb)_co_", mn):
                    self.w |= R[1]
                if mn.startswith(("v_fmac", "v_dot2c", "v_writelane")) or self.dpp:
                    self.r |= R[0]
        elif self.ds:
            if mn.startswith("ds_read"):
                self.w, self.r = R[0], set().union(*R[1:])
            else:
                self.r = allr
        elif self.vmem:
            if "load" in mn and not self.ldsdma:
                self.w, self.r = R[0], set().union(*R[1:])
            else:
                self.r = allr
                if re.search(r"store_dwordx[34]", mn):
                    self.storedata = R[0] if mn.startswith("buffer_") else R[1]
            if self.ldsdma:
                self.r = self.r | {("x", "m0")}
        elif self.salu:
            if mn.startswith(("s_cmp", "s_waitcnt", "s_barrier", "s_nop", "s_cbranch", "s_branch", "s_endpgm", "s_setprio", "s_sleep", "s_bitcmp")):
                self.r = allr
            else:
                self.w = set(R[0]) if R else set()
                self.r = set().union(*R[1:]) if len(R) > 1 else set()
                if "saveexec" in mn:
                    self.w |= {("x", "exec")}
        self.states = 1
        if mn == "s_nop":
            self.states = int(ops[0]) + 1
        self.target = ops[0] if mn.startswith(("s_cbranch", "s_branch")) else None


def isv(s):
    return {x for x in s if x[0] == "v"}


def iss(s):
    return {x for x in s if x[0] == "s" or x == ("x", "vcc")}


def need(p, c):
    n = 0
    if p.valu:
        wv, ws = isv(p.w), iss(p.w)
        if c.mfma and wv & c.r:
            n = max(n, 2)
        if (c.dpp or c.perml) and wv & c.r:
            n = max(n, 2)
        if c.rdlane and wv & c.r:
            n = max(n, 1)
        if p.trans and c.valu and not c.trans and wv & c.r:
            n = max(n, 1)
        if p.trans and (c.vmem or c.ds) and wv & c.r:
            n = max(n, 1)
        if p.dot and (c.valu or c.vmem or c.ds or c.mfma) and wv & (c.r | c.w):
            same_c = c.mn == p.mn and not (wv & set().union(*[_regs(o) for o in c.ops[1:3]]))
            if not same_c:
                n = max(n, 3)
        if ws:
            if c.valu and ws & c.r:
                n = max(n, 4 if c.mn.startswith(("v_readlane", "v_writelane")) else 2)
            if c.vmem and ws & c.r:
                n = max(n, 5)
            if c.salu and (ws & c.r or (("x", "vcc") in ws and "vcc" in c.mn)):
                n = max(n, 1)
    if p.mfma:
        big = {4: 8, 8: 12}[p.passes]
        if c.mfma:
            if p.w & (c.srcA | c.srcB):
                n = max(n, big)
            if p.w & c.srcC and not (c.srcC == p.w and c.mn == p.mn):
                n = max(n, big - 2)
            if p.w & c.w and not (c.w == p.w and c.mn == p.mn):
                n = max(n, big - 2)
        elif (c.valu or c.vmem or c.ds) and p.w & (c.r | c.w):
            n = max(n, big)
        if c.valu and p.srcC & c.w:
            n = max(n, p.passes - 1)
    if p.salu and ("x", "m0") in p.w and c.ldsdma:
        n = max(n, 1)
    if p.storedata and p.storedata & c.w:
        n = max(n, 2)
    return n


def pad_hazards(lines, verbose=False):
    total = 0
    while True:
        ins = [Ins(l) for l in lines]
        labels = {i.label: k for k, i in enumerate(ins) if i.label}
        fix = {}
        for k, p in enumerate(ins):
            if p.mn is None or not (p.valu or p.mfma or p.storedata or (p.salu and ("x", "m0") in p.w)):
                continue
            stack, seen = [(k + 1, 0)], {}
            while stack:
                j, d = stack.pop()
                while j < len(ins) and d < 13:
                    if seen.get(j, 99) <= d:
                        break
                    seen[j] = d
                    c = ins[j]
                    if c.mn is None:
                        j += 1
                        continue
                    n = need(p, c)
                    if n > d:
                        fix[j] = max(fix.get(j, 0), n - d)
                    if c.mn == "s_endpgm":
                        break
                    d += c.states
                    if c.target is not None:
                        stack.append((labels[c.target], d))
                        if c.mn == "s_branch":
                            break
                    j += 1
        if not fix:
            return lines, total
        j = min(fix)
        applied, last = [], -99
        for j in sorted(fix):
            if j - last > 16:
                applied.append(j)
                last = j
        for j in reversed(applied):
            if verbose:
                print("pad", fix[j], "before:", lines[j].strip())
            lines = lines[:j] + [f"    s_nop {fix[j]-1}"] + lines[j:]
            total += fix[j]


class Asm:
    def __init__(self):
        self.lines = []
        self.vm = []
        self.lg = []
        self.mark_next = self.mark_tag = None

    def marked_done(self):
        return self.mark_tag is not None and self.mark_tag not in self.vm

    def __call__(self, s):
        for l in s.strip("\n").split("\n"):
            l = l.strip()
            if not l:
                continue
            self.lines.append(l if l.endswith(":") or l.startswith(".") else "    " + l)

    def c(self, s):
        self.lines.append("    ; " + s)

    def v(self, s, tag="_"):
        self(s)
        if self.mark_next:
            self.mark_next, self.mark_tag = None, tag
        self.vm.append(tag)
        assert len(self.vm) <= 63, "vmcnt overflow"

    def vwait(self, *tags):
        idx = [i for i, t in enumerate(self.vm) if t in tags]
        if not idx:
            return
        n = len(self.vm) - 1 - max(idx)
        self(f"s_waitcnt vmcnt({n})")
        self.vm = self.vm[max(idx) + 1:]

    def vwait_n(self, tag, count):
        idx = [i for i, t in enumerate(self.vm) if t == tag][:count]
        n = len(self.vm) - 1 - max(idx)
        self(f"s_waitcnt vmcnt({n})")
        self.vm = self.vm[max(idx) + 1:]

    def vwait_all(self):
        self("s_waitcnt vmcnt(0)")
        self.vm = []

    def l(self, s, tag="_"):
        self(s)
        self.lg.append(tag)

    def lwait(self, *tags):
        idx = [i for i, t in enumerate(self.lg) if t in tags]
        if not idx:
            return
        n = min(len(self.lg) - 1 - max(idx), 15)
        self(f"s_waitcnt lgkmcnt({n})")
        self.lg = self.lg[len(self.lg) - n:] if n else []

    def lwait_all(self):
        self("s_waitcnt lgkmcnt(0)")
        self.lg = []


def V(a, n=1):
    return f"v{a}" if n == 1 else f"v[{a}:{a+n-1}]"


def S(a, n=1):
    return f"s{a}" if n == 1 else f"s[{a}:{a+n-1}]"


import subprocess, tempfile, os

_PROMOTE = re.compile(r"v_(mov_b32|add_f32|sub_f32|mul_f32|max_f32|min_f32|add_u32|sub_u32|subrev_u32|and_b32|or_b32|xor_b32|lshlrev_b32|lshrrev_b32|exp_f32|rcp_f32|sin_f32|cos_f32|fract_f32|mul_u32_u24|min_u32|not_b32|cndmask_b32|cmp_\w+)$")


def sizes(lines):
    d = tempfile.mkdtemp()
    src, obj = os.path.join(d, "a.s"), os.path.join(d, "a.o")
    open(src, "w").write("\n".join(lines) + "\n")
    subprocess.run(["clang", "-x", "assembler", "-target", "amdgcn-amd-amdhsa", "-mcpu=gfx950", "-c", src, "-o", obj], check=True)
    dis = subprocess.run(["llvm-objdump", "-d", "--mcpu=gfx950", obj], capture_output=True, text=True, check=True).stdout
    out = []
    for l in dis.split("\n"):
        m = re.search(r"// [0-9A-F]+: ((?:[0-9A-F]{8} ?)+)", l)
        if m:
            out.append(4 * len(m.group(1).split()))
    return out


def align8(lines, nop_cost=4):
    ins = [Ins(l) for l in lines]
    idx = [k for k, i in enumerate(ins) if i.mn is not None]
    sz = sizes(lines)
    assert len(sz) == len(idx), (len(sz), len(idx))
    n = len(idx)
    INF = 10 ** 9
    best = [[INF, INF] for _ in range(n + 1)]
    back = [[None, None] for _ in range(n + 1)]
    best[0][0] = 0
    for p in range(n):
        i = ins[idx[p]]
        four = sz[p] % 8 == 4
        for par in range(2):
            c0 = best[p][par]
            if c0 >= INF:
                continue
            opts = []
            if sz[p] == 4:
                opts.append(("keep", par ^ 1, 0))
                if _PROMOTE.match(i.mn) and "_e64" not in i.text:
                    opts.append(("wide", par, par * 10 + 1))
                if i.mn == "s_nop" and i.states >= 2:
                    opts.append(("split", par, 1))
                if not i.mn.startswith(("s_endpgm", "s_branch")):
                    opts.append(("nop", par, 10 * nop_cost))
                else:
                    opts.append(("nop", par, 0))
            else:
                opts.append(("keep", par ^ (1 if four else 0), par * 10))
            for name, np_, c in opts:
                if c0 + c < best[p + 1][np_]:
                    best[p + 1][np_] = c0 + c
                    back[p + 1][np_] = (par, name)
    par = 0 if best[n][0] <= best[n][1] else 1
    total = best[n][par]
    choice = [None] * n
    for p in range(n, 0, -1):
        par, choice[p - 1] = back[p][par]
    out = list(lines)
    cnt = {}
    for p in range(n):
        k, ch = idx[p], choice[p]
        cnt[ch] = cnt.get(ch, 0) + 1
        if ch == "wide":
            t = out[k].strip().split(None, 1)
            out[k] = f"    {t[0].replace('_e32','')}_e64 {t[1]}"
        elif ch == "split":
            out[k] = f"    s_nop {ins[k].states-2}\n    s_nop 0"
        elif ch == "nop":
            out[k] = out[k] + "\n    s_nop 0"
    return "\n".join(out).split("\n"), cnt, total / 10
```

```python
import sys, json
from asmlib import *

KN = "gated_mix__ssm_conv_s4d__linear_kernel_hedgehog__prompt_kernel"
OPT = dict(stamps=0, dump=0, roles="RAB")
for a_ in sys.argv[1:]:
    k_, v_ = a_.split("=")
    OPT[k_] = int(v_) if v_.lstrip("-").isdigit() else v_

C_KW, C_QW, C_WO, C_UT, C_AF, C_KV, C_O = [256 * n for n in (0, 32, 48, 56, 80, 112, 176)]
C_GO = 256 * 304
WS_EPOCH = 0x30000
WS_WKV = 0xD00000
WS_WQ = 0xF00000
WS_WO = 0x100000
WS_KVP = 0x200000
WS_UT = 0x300000
WS_AT = 0x600000
WS_O = 0x900000
WS_STAMP = 0xC00000
WS_DUMP = 0x1000000
WS_SIZE = 0x4000000 if OPT["dump"] else 0x1000000

ID_A, ID_B, ID_END = 8, 168, 424
SPIN = 1 << 17
LOG2E = 0x3FB8AA3B
INV2PI = 0x3E22F983

P_U, P_LOGA, P_AIM, P_CRE, P_CIM, P_LOGDT, P_DSK = 4, 6, 8, 10, 12, 14, 16
P_WQKV, P_WPHI, P_WO, P_GATE, P_OUT, P_DBG, P_WS = 20, 22, 24, 26, 28, 30, 32
R_X, R_W, R_WS, R_DBG, R_M1, R_M2 = 36, 40, 44, 48, 52, 56
SW = 3
TAG = 34
ST0 = 76

A = Asm()
stampnames = {}
_lab = [0]


def srd(r, p, size):
    A(f"s_mov_b32 s{r}, s{p}")
    A(f"s_mov_b32 s{r+1}, s{p+1}")
    A(f"s_mov_b32 s{r+2}, {size}")
    A(f"s_mov_b32 s{r+3}, 0x20000")


def load_epoch():
    A(f"s_load_dwordx2 {S(TAG,2)}, {S(P_WS,2)}, {WS_EPOCH}")


def make_tag():
    A(f"s_add_u32 s{TAG}, s{TAG}, 0x7f4a7c15")
    A(f"s_addc_u32 s{TAG+1}, s{TAG+1}, 0x9e3779b9")


def cnt_read(r, soff):
    A(f"s_mov_b64 {S(r,2)}, 0")
    A(f"s_atomic_add_x2 {S(r,2)}, {S(P_WS,2)}, {soff if isinstance(soff, str) else 's%d' % soff} glc")


def cnt_peek(r, soff):
    A(f"s_load_dwordx2 {S(r,2)}, {S(P_WS,2)}, s{soff} glc")


def cnt_claim(q, soff):
    A(f"""
s_sub_u32 s{q}, s{q+2}, s{TAG}
s_subb_u32 s{q+1}, s{q+3}, s{TAG+1}
s_lshr_b32 s{q}, s{q}, 16
s_or_b32 s{q}, s{q}, s{q+1}
s_cselect_b64 {S(q,2)}, {S(TAG,2)}, {S(q+2,2)}
s_atomic_cmpswap_x2 {S(q,4)}, {S(P_WS,2)}, s{soff} glc
""")


TAIL = []


def rare(f):
    _lab[0] += 1
    k = _lab[0]
    A(f"s_cbranch_scc1 L_slow{k}")
    A(f"L_back{k}:")
    main, A.lines = A.lines, []
    A(f"L_slow{k}:")
    f()
    A(f"s_branch L_back{k}")
    TAIL.extend(A.lines)
    A.lines = main


def cnt_arrive(r, soff):
    A(f"s_mov_b64 {S(r,2)}, 1")
    A(f"s_atomic_add_x2 {S(r,2)}, {S(P_WS,2)}, s{soff} glc")


def cnt_verify(r, soff, scnt):
    def untagged():
        A(f"""
s_sub_u32 s{r}, s{r}, s{TAG}
s_subb_u32 s{r+1}, s{r+1}, s{TAG+1}
s_lshr_b32 s{r}, s{r}, 8
s_or_b32 s{r}, s{r}, s{r+1}
""")

    def again():
        _lab[0] += 1
        k = _lab[0]
        A(f"s_mov_b32 s{scnt}, 0")
        A(f"L_ag{k}:")
        A("s_sleep 2")
        cnt_arrive(r, soff)
        A(f"""
s_add_u32 s{scnt}, s{scnt}, 1
s_cmp_ge_u32 s{scnt}, {SPIN}
s_waitcnt lgkmcnt(0)
s_cbranch_scc1 L_agd{k}
""")
        untagged()
        A(f"s_cbranch_scc1 L_ag{k}")
        A(f"L_agd{k}:")
    untagged()
    rare(again)


def cnt_add(one, soff):
    A(f"s_atomic_add_x2 {S(one,2)}, {S(P_WS,2)}, s{soff}")


def cnt_init(soff):
    A(f"s_atomic_swap_x2 {S(TAG,2)}, {S(P_WS,2)}, s{soff}")


def cnt_test(r, n, low=False):
    A(f"s_sub_u32 s{r}, s{r}, s{TAG}")
    A(f"s_subb_u32 s{r+1}, s{r+1}, s{TAG+1}")
    if low:
        A(f"s_and_b32 s{r}, s{r}, 0xffff00ff")
    A(f"s_xor_b32 s{r}, s{r}, {n}")
    A(f"s_or_b32 s{r}, s{r}, s{r+1}")


def cnt_wait(r, soff, n, scnt, probed=True, low=False, nap=0):
    _lab[0] += 1
    k = _lab[0]
    if probed:
        cnt_test(r, n, low)
        A(f"s_cbranch_scc0 L_got{k}")
    A(f"s_mov_b32 s{scnt}, 0")
    A(f"L_spin{k}:")
    cnt_read(r, soff)
    A(f"""
s_add_u32 s{scnt}, s{scnt}, 1
s_cmp_ge_u32 s{scnt}, {SPIN}
s_waitcnt lgkmcnt(0)
s_cbranch_scc1 L_got{k}
""")
    cnt_test(r, n, low)
    if nap:
        A(f"s_cbranch_scc0 L_got{k}")
        A(f"s_sleep {nap}")
    A(f"s_cbranch_scc1 L_spin{k}")
    A(f"L_got{k}:")


def cnt_async(r, t, soff, n, scnt, **kw):
    A(f"s_sub_u32 s{t}, s{r}, s{TAG}")
    A(f"s_subb_u32 s{t+1}, s{r+1}, s{TAG+1}")
    A(f"s_xor_b32 s{t}, s{t}, {n}")
    A(f"s_or_b32 s{t}, s{t}, s{t+1}")
    rare(lambda: (A("s_waitcnt lgkmcnt(0)"), cnt_wait(r, soff, n, scnt, **kw)))


def cnt_probe(q, soff, first=False):
    if first:
        A(f"s_mov_b64 {S(q,2)}, 0")
    A(f"s_atomic_umax_x2 {S(q,2)}, {S(P_WS,2)}, s{soff} glc")


def cnt_poll2(r, t, soff, n, scnt, low=False):
    _lab[0] += 1
    k = _lab[0]

    def test(o):
        A(f"s_mov_b64 {S(t,2)}, {S(o,2)}")
        cnt_test(t, n, low)
        A(f"s_cbranch_scc0 L_p2e{k}")
    test(r)
    test(r + 2)
    A(f"s_mov_b32 s{scnt}, 0")
    A(f"L_p2{k}:")
    for q in (r, r + 2):
        A("s_waitcnt lgkmcnt(2)")
        test(q)
        cnt_probe(q, soff)
    A(f"""
s_add_u32 s{scnt}, s{scnt}, 1
s_cmp_lt_u32 s{scnt}, {SPIN}
s_cbranch_scc1 L_p2{k}
L_p2e{k}:
""")


def lwait_lds(vt, va, n=6):
    for _ in range(n):
        A(f"ds_read_b32 v{vt}, v{va}")
    A(f"s_waitcnt lgkmcnt({n})")
    A.lg = ["_"] * n


def only_wave(w, f):
    _lab[0] += 1
    k = _lab[0]
    A(f"s_cmp_lg_u32 s{SW}, {w}")
    A(f"s_cbranch_scc1 L_ow{k}")
    f()
    A(f"L_ow{k}:")


def stamp(role, name):
    if not OPT["stamps"]:
        return
    if OPT.get("only") and name not in ("end",) and name not in OPT["only"].split("+"):
        return
    l = stampnames.setdefault(role, [])
    assert len(l) < 12
    A(f"{'s_memtime' if OPT.get('cyc') else 's_memrealtime'} {S(ST0 + 2*len(l), 2)}")
    l.append(name)
    if OPT.get("both") and len(l) < 12:
        A(f"s_memtime {S(ST0 + 2*len(l), 2)}")
        l.append(name + "_c")


def finish(role):
    if OPT["stamps"]:
        stamp(role, "end")
        A("s_waitcnt lgkmcnt(0)")
        if OPT.get("leak") and role == "B":
            i_ = stampnames[role].index(OPT["leak"])
            e_ = ST0 + 2 * (len(stampnames[role]) - 1)
            A(f"""
s_cmp_lg_u32 s2, {ID_B + OPT.get('leakwg', 0)}
s_cbranch_scc1 L_noleak
s_sub_u32 s60, s{ST0+2*i_}, s{ST0+2*stampnames[role].index(OPT.get('leakfrom', 'start'))}
s_mul_i32 s60, s60, {OPT.get('leakmul', 1)}
s_min_u32 s60, s60, 20000
L_leak:
s_memrealtime s[62:63]
s_waitcnt lgkmcnt(0)
s_sub_u32 s62, s62, s{e_}
s_cmp_lt_u32 s62, s60
s_cbranch_scc1 L_leak
L_noleak:
s_endpgm
""")
        A("s_mov_b64 exec, -1")
        A("v_mov_b32 v1, 0")
        for i in range(len(stampnames[role])):
            A(f"v_writelane_b32 v1, s{ST0+2*i}, {i}")
        A("v_and_b32 v2, 63, v0")
        A("v_lshlrev_b32 v2, 2, v2")
        A("s_lshl_b32 s60, s2, 2")
        A(f"s_add_u32 s60, s60, s{SW}")
        A("s_lshl_b32 s60, s60, 6")
        A(f"s_add_u32 s60, s60, {WS_STAMP}")
        A("s_mov_b64 exec, 0xffff")
        A(f"buffer_store_dword v1, v2, {S(R_WS,4)}, s60 offen")
        if OPT.get("dbg") and role == "B":
            A(f"""
s_cmp_lg_u32 s{SW}, 0
s_cbranch_scc1 L_nodbg
s_load_dwordx2 s[60:61], s[0:1], 104
s_not_b32 s62, s{ST0}
v_writelane_b32 v1, s62, 15
s_waitcnt lgkmcnt(0)
global_atomic_umax v2, v1, s[60:61]
L_nodbg:
""")
    A("s_endpgm")
    A.vm, A.lg = [], []


def set_exec(mask):
    if mask == -1 or mask < (1 << 31):
        A(f"s_mov_b64 exec, {mask}")
    else:
        A(f"s_mov_b32 exec_lo, {mask & 0xffffffff:#x}")
        A(f"s_mov_b32 exec_hi, {mask >> 32:#x}")


def dump(regs, slot, vtmp):
    if not OPT["dump"]:
        return
    A(f"v_lshlrev_b32 v{vtmp}, 2, v0")
    A(f"s_sub_u32 s74, s2, {ID_B}")
    A(f"s_mul_i32 s74, s74, {32*1024}")
    A(f"s_add_u32 s74, s74, {WS_DUMP + slot*0x800000}")
    assert len(regs) <= 32
    for r in regs:
        A.v(f"buffer_store_dword v{r}, v{vtmp}, {S(R_WS,4)}, s74 offen", "dump")
        A("s_add_u32 s74, s74, 1024")
    A.vwait_all()


A(f"""
.amdgcn_target "amdgcn-amd-amdhsa--gfx950"
.text
.globl {KN}
.p2align 12
.type {KN},@function
{KN}:
s_load_dwordx16 s[4:19], s[0:1], 0
s_load_dwordx8 s[20:27], s[0:1], 64
s_load_dwordx4 s[28:31], s[0:1], 96
s_load_dwordx2 s[32:33], s[0:1], 112
""")
if OPT["stamps"]:
    A(f"{'s_memtime' if OPT.get('cyc') else 's_memrealtime'} {S(ST0,2)}")
    for r_ in ("B", "A"):
        stampnames[r_] = ["start"]
A(f"""
v_lshrrev_b32 v1, 6, v0
s_cmp_ge_u32 s2, {ID_B}
v_readfirstlane_b32 s{SW}, v1
s_cbranch_scc1 L_B
s_setprio {OPT.get('prioR', 3)}
s_cmp_ge_u32 s2, {ID_A}
s_cbranch_scc1 L_A
""")
A.c("---- code prefetch into L2 (one workgroup per die)")
A(f"""
s_getpc_b64 s[60:61]
L_pc:
v_lshlrev_b32 v2, 7, v0
v_min_u32 v2, L_codeend-L_pc-4, v2
""")
if OPT.get("pfc", 1):
    A("global_load_dword v3, v2, s[60:61]")
A(f"""
s_or_b32 s60, s2, s{SW}
s_cbranch_scc0 L_ep
L_exit:
s_endpgm
""")
A_HEAD = len(A.lines)

sST, sHP, sB, sCT = 60, 61, 62, 63
sT0, sT1, sT2, sT3 = 64, 65, 66, 67
sEV, sLO = 68, 70
sCNT, sWOFF = 72, 73
sL2E = 48
sJ, sOWN, sXL = 50, 51, 68
XB, ACC, WF, NWF = 96, 56, 16, 7
vXA, vXR = 8, 10
ONE, CQ0, CQ1, CQ2 = 6, 8, 12, 16
vGA, vKT, vOT, vOA, ID, vGW = 1, 3, 5, 6, 44, 48
vPA, vPA1, vPW, vVW, vKA, vL16, vL8 = 49, 50, 51, 52, 53, 54, 55
LDS_X = 40960
LDS_PV, LDS_WP, LDS_Z, LDS_GATE = 0, 77824, 79424, 80384
LDS_QA, LDS_QB = 40960, 16384
LDS_AT, LDS_KVT, LDS_RED = 0, 10240, 13824


def Xr(c, sg, j):
    return XB + 32 * c + 8 * j + 4 * sg


def L(text):
    return [(lambda l=l: A(l)) for l in (x.strip() for x in text.strip().split("\n")) if l]


def run(lst):
    while lst:
        lst.pop(0)()


class Stream:
    def __init__(self, budget=3):
        self.ev, self.now, self.q, self.budget = {}, {}, [], budget

    def at(self, k, fs):
        self.ev.setdefault(k, []).extend(fs if isinstance(fs, list) else [fs])

    def exact(self, k, f):
        self.now.setdefault(k, []).append(f)

    def run(self, mm, reserve=lambda k: k & 1):
        for k, m in enumerate(mm):
            m()
            j = max(i for i in range(len(A.lines)) if "v_mfma" in A.lines[i] and i >= len(A.lines) - 12)
            self.q += self.ev.pop(k, [])
            while self.q and len(A.lines) - 1 - j < self.budget - reserve(k):
                self.q.pop(0)()
            if k in self.now:
                run(self.q)
                run(self.now.pop(k))
        run(self.q)
        assert not self.ev and not self.now


def flat(items):
    o = []
    for pre, ld in items:
        o += L(pre) + [ld]
    return o


def dma_addr(v, i, div, fields, extra, t0, vl):
    t1, t2 = t0 + 1, t0 + 2
    magic = {10: 6554, 5: 13108}[div]
    for q in range(1280):
        assert (q * magic) >> 16 == q // div
    o = []
    if i:
        o.append(f"v_add_u32 v{t0}, {64*i}, v{vl}")
    q_ = t0 if i else vl
    o.append(f"v_mul_u32_u24 v{t1}, {magic}, v{q_}")
    o.append(f"v_lshrrev_b32 v{t1}, 16, v{t1}")
    o.append(f"v_mad_i32_i24 v{t0}, v{t1}, -{div}, v{q_}")
    for n, (sb, w, db) in enumerate(fields):
        if n == 0:
            assert db == 0
            o.append(f"v_bfe_u32 v{v}, v{t1}, {sb}, {w}")
        else:
            o.append(f"v_bfe_u32 v{t2}, v{t1}, {sb}, {w}")
            o.append(f"v_lshl_or_b32 v{v}, v{t2}, {db}, v{v}")
    o.append(f"v_mul_u32_u24 v{v}, 240, v{v}")
    if extra:
        o.append(f"v_add_u32 v{t2}, 3, v{t0}")
        o.append(f"v_lshrrev_b32 v{t2}, 3, v{t2}")
        o.append(f"v_mul_u32_u24 v{t2}, {extra//16}, v{t2}")
        o.append(f"v_add3_u32 v{v}, v{v}, v{t0}, v{t2}")
        o.append(f"v_lshlrev_b32 v{v}, 4, v{v}")
    else:
        o.append(f"v_add_lshl_u32 v{v}, v{v}, v{t0}, 4")
    return "\n".join(o)


def softmax(P, E, OUT, tm, hook, ratio=False):
    mx, mn, acc, keep = tm, tm + 1, tm + 2, tm + 4
    A(f"v_max3_f32 v{mx}, v{P[0]}, v{P[1]}, v{P[2]}")
    A(f"v_min3_f32 v{mn}, v{P[0]}, v{P[1]}, v{P[2]}")
    for i in range(3, 19, 2):
        A(f"v_max3_f32 v{mx}, v{mx}, v{P[i]}, v{P[i+1]}")
        A(f"v_min3_f32 v{mn}, v{mn}, v{P[i]}, v{P[i+1]}")
    A(f"v_max_f32 v{mx}, v{mx}, v{P[19]}")
    A(f"v_min_f32 v{mn}, v{mn}, v{P[19]}")
    A(f"v_mul_f32 v{mx}, s{sL2E}, v{mx}")
    A(f"v_mul_f32 v{mn}, s{sL2E}, v{mn}")
    for half in range(2):
        D = E if half == 0 else P
        for i in range(0, 20, 2):
            for n in range(2):
                if half == 0:
                    A(f"v_fma_f32 v{D[i+n]}, v{P[i+n]}, s{sL2E}, -v{mx}")
                else:
                    A(f"v_fma_f32 v{D[i+n]}, -v{P[i+n]}, s{sL2E}, v{mn}")
            if i >= 4:
                for n in range(2):
                    A(f"v_add_f32 v{acc+n}, v{D[n] if i==4 else acc+n}, v{D[i-2+n]}")
            for n in range(2):
                A(f"v_exp_f32 v{D[i+n]}, v{D[i+n]}")
                hook(30 * half + i + n)
        A(f"v_add_f32 v{acc}, v{acc}, v{acc+1}")
        A(f"v_add_f32 v{acc}, v{acc}, v{D[18]}")
        plain = ratio and half == 0
        A(f"v_add_f32 v{keep if plain else acc}, v{acc}, v{D[19]}")
        if not plain:
            A(f"v_rcp_f32 v{acc}, v{acc}")
            if ratio:
                A(f"v_mul_f32 v{acc}, v{keep}, v{acc}")
        for i in range(0, 20, 2):
            if not plain:
                for n in range(2):
                    A(f"v_mul_f32 v{D[i+n]}, v{acc}, v{D[i+n]}")
            A(f"v_cvt_pk_bf16_f32 v{OUT+10*half+i//2}, v{D[i]}, v{D[i+1]}")
            hook(30 * half + 20 + i // 2)


class Hooks:
    def __init__(self):
        self.ev, self.q = {}, []

    def at(self, n, fs, burst=False):
        fs = fs if isinstance(fs, list) else [fs]
        self.ev.setdefault(n, []).extend([lambda fs=fs: run(fs)] if burst else fs)

    def __call__(self, n):
        self.q += self.ev.pop(n, [])
        if self.q:
            self.q.pop(0)()
        if n == 59:
            run(self.q)
            assert not self.ev


def scale(d, r, pk):
    if pk:
        A(f"v_pk_mul_f32 {V(d,2)}, {V(d,2)}, {V(r,2)}")
    else:
        A(f"v_mul_f32 v{d}, v{r}, v{d}")
        A(f"v_mul_f32 v{d+1}, v{r}, v{d+1}")


PHI = 8


def phi_frags(pf, vaddr, tag):
    o = []
    for t in range(3):
        for h in range(2):
            r = pf + 4 * t + 2 * h
            if t == 2 and h == 1:
                o += L(f"v_mov_b32 v{r}, 0\nv_mov_b32 v{r+1}, 0")
            else:
                o.append(lambda r=r, t=t, h=h: A.l(f"ds_read_b64_tr_b16 {V(r,2)}, v{vaddr} offset:{320*t+160*h}", tag))
    return o


def phi_mfma(t, op, pf0, pf1, pk0, pk1):
    A(f"v_mfma_f32_16x16x32_bf16 {V(pk1,4)}, {V(pf1+4*t,4)}, {V(op,4)}, {'0' if t==0 else V(pk1,4)}")
    A(f"v_mfma_f32_32x32x16_bf16 {V(pk0,16)}, {V(pf0+4*t,4)}, {V(op,4)}, {'0' if t==0 else V(pk0,16)}")


class FragPipe:
    def __init__(self, vaddr, look=OPT.get('look', 5), phase=0):
        self.vaddr, self.look, self.phase = vaddr, look, phase

    def stream(self, frags, acc):
        reads = [(lambda i=i, o=o: A.l(f"ds_read_b128 {V(WF+4*((i+self.phase)%NWF),4)}, v{self.vaddr} offset:{o}", f"f{i}")) for i, (ks, t, o) in enumerate(frags)]
        out = []
        for i, (ks, t, o) in enumerate(frags):
            for sg in range(2):
                def m(i=i, ks=ks, t=t, sg=sg):
                    if i == 0 and sg == 0:
                        for _ in range(self.look):
                            reads.pop(0)()
                    if sg == 0:
                        A.lwait(f"f{i}")
                    d = V(acc + 8 * t + 4 * sg, 4)
                    A(f"v_mfma_f32_16x16x32_bf16 {d}, {V(WF+4*((i+self.phase)%NWF),4)}, {V(Xr(ks//4,sg,ks%4),4)}, {'0' if ks==0 else d}")
                    if reads and sg == 0:
                        reads.pop(0)()
                out.append(m)
        return out


def role_B():
    A.c("---- B prologue")
    sXO, sWO2, sQO, sKW, sKF, sOF, sWC, sUT = 69, 70, 71, 74, 30, 31, 24, 25
    sKS, sRH, sUS, sKA, sUO, sROLE = 100, 101, 72, 18, 20, 49
    A(f"""
L_B:
s_cmp_ge_u32 s2, {ID_END}
s_cbranch_scc1 L_exit
s_setprio {OPT.get('prioB', 2)}
s_sub_u32 s{sT0}, s2, {ID_B}
s_bfe_u32 s{sB}, s{sT0}, 0x10002
s_and_b32 s{sST}, s{sT0}, 3
s_lshl_b32 s{sT3}, s{SW}, 10
""")
    NT = " nt" if OPT.get("nt", 0) else ""
    vU = 80
    IS_Q, IS_IDLE = f"s_cmp_ge_u32 s{sROLE}, 20", f"s_cmp_ge_u32 s{sROLE}, 30"
    A(f"""
s_add_u32 s{sKS}, s{sT0}, 160
s_bfe_u32 s{sROLE}, s{sKS}, 0x50003
s_bfe_u32 s{sKS}, s{sKS}, 0x60002
s_mul_i32 s{sUS}, s{sKS}, {16*3840}
s_add_u32 s{sUS}, s{sUS}, 1280
s_sub_u32 s{sT1}, s{sKS}, 40
s_mul_i32 s{sT2}, s{sT1}, {32*3840}
s_movk_i32 s{sJ}, 80
{IS_Q}
s_cselect_b32 s{sKS}, s{sT1}, s{sKS}
s_cselect_b32 s{sUS}, s{sT2}, s{sUS}
s_cselect_b32 s{sT2}, 3840, s{sJ}
v_bfe_u32 v2, v0, 3, 4
v_lshrrev_b32 v3, 4, v0
v_xor_b32 v3, v3, v0
v_and_b32 v3, 7, v3
v_mul_u32_u24 v2, 240, v2
v_lshrrev_b32 v4, 7, v0
v_mad_u32_u24 v2, v4, s{sT2}, v2
v_add_lshl_u32 v{vU}, v2, v3, 4
s_mul_i32 s{sT1}, s{sST}, 320
s_and_b32 s{sT1}, s{sT1}, 0xffffff80
s_add_u32 s{sUS}, s{sUS}, s{sT1}
s_waitcnt lgkmcnt(0)
""")
    srd(R_W, P_WQKV, 2457600)
    A(IS_IDLE)
    A("s_cbranch_scc1 L_e0")
    for j_ in range(3):
        A(f"s_add_u32 m0, s{sT3}, {4096*j_}")
        A(f"s_add_u32 s{sT1}, s{sUS}, {128*j_}")
        A.v(f"buffer_load_dwordx4 v{vU}, {S(R_W,4)}, s{sT1} offen{NT} lds", "uk")
    A(f"""
L_e0:
s_lshl_b32 s{sRH}, s{sST}, 2
s_add_u32 s{sRH}, s{sRH}, s{SW}
s_bfe_u32 s{sT1}, s{sT0}, 0x20003
s_lshr_b32 s{sCT}, s{sT0}, 5
s_sub_u32 s{sCT}, 7, s{sCT}
s_lshl_b32 s{sST}, s{sST}, 2
s_add_u32 s{sST}, s{sST}, s{sT1}
s_lshl_b32 s{sHP}, s{sB}, 3
s_add_u32 s{sHP}, s{sHP}, s{sCT}
s_cmp_eq_u32 s{sB}, 0
s_mov_b32 s{sJ}, 0x75319951
s_cselect_b32 s{sJ}, 0x64208840, s{sJ}
s_lshl_b32 s{sT2}, s{sCT}, 2
s_lshr_b32 s{sJ}, s{sJ}, s{sT2}
s_and_b32 s{sJ}, s{sJ}, 15
s_mul_i32 s{sT1}, s{sT1}, 3
s_add_u32 s{sJ}, s{sJ}, s{sT1}
s_sub_u32 s{sT1}, s{sJ}, 10
s_min_u32 s{sJ}, s{sJ}, s{sT1}
v_bfe_u32 v2, v0, 3, 3
v_lshl_add_u32 v2, v1, 5, v2
v_mul_u32_u24 v{vXA}, 1280, v2
v_bfe_u32 v2, v0, 4, 2
v_and_b32 v3, 7, v0
v_xor_b32 v2, v2, v3
s_mul_i32 s{sT1}, s{sST}, 163840
v_lshl_add_u32 v{vXA}, v2, 4, v{vXA}
v_add_u32 v{vXA}, s{sT1}, v{vXA}
v_xor_b32 v{vXA+1}, 64, v{vXA}
v_add_u32 v{vXA+1}, {10240-1024}, v{vXA+1}
s_lshl_b32 s{sXL}, s{SW}, 13
s_lshl_b32 s{sXO}, s{sJ}, 7
s_mul_i32 s{sWO2}, s{sJ}, 10240
s_add_u32 s{sWO2}, s{sWO2}, s{sT3}
s_mul_i32 s{sQO}, s{sJ}, 6144
s_add_u32 s{sQO}, s{sQO}, s{sT3}
s_mov_b32 s{sL2E}, {LOG2E:#x}
""")
    t0, t1, t2, t3 = 56, 57, 58, 59
    a0, a1, a2, a3 = 56, 57, 58, 59
    m0_, m1_ = S(56, 2), S(58, 2)
    setup = L(f"""
v_and_b32 v{vL8}, 63, v0
v_lshlrev_b32 v{vL16}, 4, v{vL8}
v_lshlrev_b32 v{vL8}, 3, v{vL8}
v_and_b32 v{t0}, 15, v0
v_lshrrev_b32 v{t1}, 1, v{t0}
v_bfe_u32 v{t2}, v0, 4, 2
v_xor_b32 v{t1}, v{t1}, v{t2}
v_lshlrev_b32 v{t1}, 4, v{t1}
v_lshl_add_u32 v{vXR}, v{t0}, 7, v{t1}
v_add_u32 v{vXR}, s{sXL}, v{vXR}
v_xor_b32 v{vXR+1}, 64, v{vXR}
v_lshrrev_b32 v{t1}, 5, v0
v_lshl_add_u32 v{vGW}, v{t1}, 4, v{t0}
v_lshlrev_b32 v{vGW}, 2, v{vGW}
v_add_u32 v{vGW}, {LDS_GATE}, v{vGW}
v_bfe_u32 v{t0}, v0, 5, 1
v_and_b32 v{t1}, 1, v0
v_bfe_u32 v{t2}, v0, 1, 1
v_cmp_eq_u32 {m0_}, v{t1}, v{t0}
v_mul_u32_u24 v{vPA1}, 800, v{t0}
v_bfe_u32 v{t1}, v0, 2, 2
v_mad_u32_u24 v{vPA1}, v{t1}, 40, v{vPA1}
v_add_u32 v{vPA1}, {LDS_WP}, v{vPA1}
v_lshl_add_u32 v{vPA}, v{t2}, 3, v{vPA1}
v_bfe_u32 v{t2}, v0, 4, 1
v_lshl_add_u32 v{vPA}, v{t2}, 4, v{vPA}
v_mov_b32 v{t3}, {LDS_Z}
v_cndmask_b32 v{vPA}, v{t3}, v{vPA}, {m0_}
v_lshlrev_b32 v{vKA}, 1, v{t0}
v_lshl_add_u32 v{vKA}, v{t1}, 2, v{vKA}
v_mul_u32_u24 v{vKA}, 272, v{vKA}
v_and_b32 v{t1}, 3, v0
v_lshl_add_u32 v{t2}, v{t2}, 2, v{t1}
v_lshl_add_u32 v{vKA}, v{t2}, 3, v{vKA}
v_bfe_u32 v{t2}, v0, 4, 2
v_cmp_eq_u32 {m0_}, v{t1}, v{t2}
v_add_u32 v{vPA1}, 32, v{vPA1}
v_and_b32 v{t1}, 31, v0
v_lshrrev_b32 v{t2}, 6, v0
v_cndmask_b32 v{vPA1}, v{t3}, v{vPA1}, {m0_}
v_lshl_add_u32 v{t1}, v{t2}, 5, v{t1}
v_mul_u32_u24 v{t1}, 272, v{t1}
v_mul_u32_u24 v{t3}, 80, v{t0}
v_add_u32 v{vPW}, v{t1}, v{t3}
v_mad_u32_u24 v{vVW}, v{t0}, 48, v{t1}
v_mad_u32_u24 v{vKA}, v{t2}, 40, v{vKA}
v_and_b32 v{vGA}, 31, v0
v_add_u32 v{vGA+1}, 32, v{vGA}
v_min_u32 v{vGA+1}, 54, v{vGA+1}
v_bfe_u32 v{a3}, v0, 5, 1
v_lshlrev_b32 v{a0}, 3, v{a3}
v_lshl_add_u32 v{vOT}, v{vGA}, 4, v{a0}
v_lshlrev_b32 v{a0}, 10, v{a3}
v_lshl_add_u32 v{vGA}, v{vGA}, 4, v{a0}
v_lshl_add_u32 v{vGA+1}, v{vGA+1}, 4, v{a0}
v_and_b32 v{a0}, 15, v0
v_bfe_u32 v{a1}, v0, 4, 1
v_mad_i32_i24 v{a2}, v{a1}, -8, v{a0}
v_lshl_add_u32 v{a0}, v{a3}, 4, v{a0}
v_and_b32 v{vKT}, 1, v{a2}
v_lshlrev_b32 v{vKT}, 4, v{vKT}
v_mov_b32 v{vKT+1}, 0x3f80
v_lshlrev_b32 v{vKT}, v{vKT}, v{vKT+1}
v_lshrrev_b32 v{a2}, 1, v{a2}
v_cmp_eq_u32 {m0_}, 0, v{a2}
v_cmp_eq_u32 {m1_}, 1, v{a2}
s_lshr_b32 s73, s{SW}, 1
v_cndmask_b32 v{ID}, 0, v{vKT}, {m0_}
v_cndmask_b32 v{ID+1}, 0, v{vKT}, {m1_}
v_cmp_eq_u32 {m0_}, 2, v{a2}
v_cmp_eq_u32 {m1_}, 3, v{a2}
s_mul_i32 s73, s73, 1680
v_cndmask_b32 v{ID+2}, 0, v{vKT}, {m0_}
v_cndmask_b32 v{ID+3}, 0, v{vKT}, {m1_}
s_mul_i32 s75, s{SW}, 40
s_add_u32 s73, s73, s75
s_add_u32 s73, s73, {LDS_KVT}
v_cmp_le_u32 {m0_}, 22, v{a0}
v_cmp_le_u32 {m1_}, 12, v{a0}
v_mul_u32_u24 v{vKT}, 80, v{a0}
v_mov_b32 v{a2}, {8-22*80}
v_cndmask_b32 v{a2}, 0, v{a2}, {m0_}
v_lshl_add_u32 v{vKT}, v{a1}, 4, v{vKT}
v_add_u32 v{vKT+1}, 808, v{vKT}
v_add3_u32 v{vKT}, v{vKT}, v{a2}, s73
v_lshl_add_u32 v{a2}, v{a0}, 1, v{a1}
v_mul_u32_u24 v{a2}, 80, v{a2}
v_subrev_u32 v{a2}, {24*80-32}, v{a2}
v_cndmask_b32 v{vKT+1}, v{vKT+1}, v{a2}, {m1_}
v_add_u32 v{vKT+1}, s73, v{vKT+1}
v_bfe_u32 v{a0}, v0, 2, 1
v_cmp_eq_u32 {m0_}, v{a0}, v{a3}
v_bfe_u32 v{a1}, v0, 3, 2
v_and_b32 v{a2}, 3, v0
v_lshl_add_u32 v{a1}, v{a1}, 2, v{a2}
v_mad_u32_u24 v{a1}, v{a0}, 22, v{a1}
v_mul_u32_u24 v{a1}, 80, v{a1}
v_add_u32 v{vOA}, {LDS_KVT}, v{a1}
v_add_u32 v{vOA+1}, {LDS_KVT+1280}, v{a1}
v_mov_b32 v{a2}, {LDS_Z}
v_cndmask_b32 v{vOA}, v{a2}, v{vOA}, {m0_}
v_cndmask_b32 v{vOA+1}, v{a2}, v{vOA+1}, {m0_}
v_lshlrev_b32 v{t1}, 2, v0
v_min_u32 v{t1}, 700, v{t1}
v_add_u32 v{t1}, {LDS_Z}, v{t1}
v_mov_b32 v{t2}, 0
""")
    setup.append(lambda a_=t1, b_=t2: A.l(f"ds_write_b32 v{a_}, v{b_}", "z"))
    def wrap(sreg, step, size):
        return f"s_add_u32 s{sreg}, s{sreg}, {step}\ns_sub_u32 s{sT2}, s{sreg}, {size}\ns_min_u32 s{sreg}, s{sreg}, s{sT2}\n"

    xissued = set()

    def xslot(u):
        return 2048 * (u & 3) + (0 if BORROW and 4 <= u < 8 else LDS_X)

    def issue_x(u):
        if u >= 20:
            return []
        pre = f"s_add_u32 m0, s{sXL}, {xslot(u)}\n"
        if u & 1:
            pre += f"s_add_u32 s{sT0}, s{sXO}, 20480\n" + wrap(sXO, 128, 1280)
        so = sT0 if u & 1 else sXO
        return [(pre if i == 0 else "", lambda i=i: (A.v(f"buffer_load_dwordx4 v{vXA+i}, {S(R_X,4)}, s{so} offen offset:{1024*i} lds", f"x{u}"), i and xissued.add(u))) for i in range(2)]

    def read_x(u):
        assert u in xissued
        A.vwait(f"x{u}")
        for jj in range(2):
            A.l(f"ds_read_b128 {V(Xr(u//4,u&1,(u&2)+jj),4)}, v{vXR+jj} offset:{xslot(u)}", f"xr{u}")

    wround, qround, wissued = [0], [0], [0]

    def issue_w(upto):
        o = []
        for i in range(wround[0], min(upto, 25)):
            pre = f"s_add_u32 m0, s{sT3}, {4096*(i%10)}\n" + (wrap(sWO2, 4096, 102400) if i else "")
            o.append((pre, lambda i=i: (A.v(f"buffer_load_dwordx4 v{vL16}, {S(R_W,4)}, s{sWO2} offen sc1 lds", f"w{i}"), wissued.__setitem__(0, i + 1))))
        wround[0] = max(wround[0], min(upto, 25))
        return o

    def issue_q(upto):
        o = []
        for i in range(qround[0], upto):
            pre = f"s_add_u32 m0, s{sT3}, {LDS_QA+4096*i if i < 9 else LDS_QB+4096*(i-9)}\n" + (wrap(sQO, 4096, 61440) if i else "")
            o.append((pre, lambda i=i: A.v(f"buffer_load_dwordx4 v{vL16}, {S(R_M1,4)}, s{sQO} offen sc1 lds", f"q{i}")))
        qround[0] = upto
        return o
    NEED = lambda h: (10 * h + 9) // 4 + 1
    FREED = lambda h: (10 * h + 6) // 4 + 1

    U2 = OPT.get("u2", 6)
    U3 = OPT.get("u3", U2)
    BORROW = U2 >= 8
    NXR = 8 if BORROW else 4
    NX0, NX1 = OPT.get("nx0", 0), OPT.get("nx1", 2)
    HS = 0

    def guarded(cmp_, f):
        _lab[0] += 1
        k = _lab[0]
        A(cmp_)
        A(f"s_cbranch_scc1 L_rp{k}")
        f()
        A(f"L_rp{k}:")
    for _ in range(3):
        setup.pop(0)()
    srd(R_X, P_U, 2621440)
    srd(R_M1, P_WO, 819200)
    for u in range(NX0):
        run(flat(issue_x(u)))
    A(f"""
s_and_b32 s{sT1}, s{sKS}, 1
s_lshl_b32 s{sT1}, s{sT1}, 4
{IS_Q}
s_cselect_b32 s{sT1}, 32, s{sT1}
s_add_u32 s{sKA}, s{sRH}, s{sT1}
s_lshl_b32 s{sKA}, s{sKA}, 8
s_add_u32 s{sUO}, s{sJ}, {HS}
s_sub_u32 s{sT1}, s{sUO}, 10
s_min_u32 s{sUO}, s{sUO}, s{sT1}
s_lshl_b32 s{sUT}, s{sUO}, 8
s_add_u32 s{sUT}, s{sUT}, {C_UT}
s_lshl_b32 s{sOWN}, s{SW}, 3
s_sub_u32 s{sOWN}, s{sOWN}, s{sCT}
s_add_u32 s{sOWN}, s{sOWN}, 7
s_cmp_ge_u32 s{sOWN}, 5
s_cselect_b32 s15, 1, s{sST}
""")
    A(f"""
s_sub_u32 s21, s{sROLE}, 20
s_cmp_lt_u32 s{SW}, 2
s_cselect_b32 s21, 99, s21
""")
    IS_NOT_WO = "s_cmp_ge_u32 s21, 10"
    sAJ, sW0, sW1, sW2, t0, t1, t2, t3 = 14, 4, 5, 72, 8, 9, 12, 13

    def wo_fetch():
        A(f"""
s_sub_u32 s{sAJ}, s2, {ID_B+1}
s_lshl_b32 s{sAJ}, s{sAJ}, 1
s_add_u32 s{sAJ}, s{sAJ}, s{SW}
s_lshr_b32 s{t0}, s{sAJ}, 3
s_mul_i32 s{t1}, s{t0}, 52
s_lshr_b32 s{t1}, s{t1}, 8
s_and_b32 s{sUT}, s{sAJ}, 4
s_mul_i32 s{sW2}, s{sUT}, 102400
s_mul_i32 s{t3}, s{sUT}, 160
s_add_u32 s{sUT}, s{sUT}, s{t1}
s_lshl_b32 s{sUT}, s{sUT}, 8
s_add_u32 s{sUT}, s{sUT}, {C_WO}
s_mul_i32 s{t2}, s{t0}, 5120
s_add_u32 s{sW2}, s{sW2}, s{t2}
s_and_b32 s{t2}, s{sAJ}, 3
s_lshl_b32 s{sW0}, s{t2}, 8
s_add_u32 s{sW2}, s{sW2}, s{sW0}
s_add_u32 s{sW2}, s{sW2}, {WS_WO}
s_mul_i32 s{sW0}, s{t1}, 5
s_sub_u32 s{t0}, s{t0}, s{sW0}
s_or_b32 s15, s{t0}, s{t2}
s_and_b32 s{sW0}, s{t2}, 1
s_mul_i32 s{sW0}, s{sW0}, 20
s_lshr_b32 s{sW1}, s{t2}, 1
s_lshl_b32 s{sW1}, s{sW1}, 3
s_add_u32 s{sW0}, s{sW0}, s{sW1}
s_mul_i32 s{sW1}, s{t0}, 40
s_add_u32 s{sW0}, s{sW0}, s{sW1}
s_mul_i32 s{t2}, s{t2}, 40
s_add_u32 s{t2}, s{t2}, 16
s_cmp_eq_u32 s{t0}, 4
s_cselect_b32 s{sW0}, s{t2}, s{sW0}
s_cselect_b32 s{sW1}, 20, 4
s_mul_i32 s{t1}, s{t1}, 160
s_add_u32 s{sW0}, s{sW0}, s{t1}
s_add_u32 s{sW1}, s{sW1}, s{sW0}
s_mul_i32 s{sW0}, s{sW0}, 1280
s_mul_i32 s{sW1}, s{sW1}, 1280
s_add_u32 s{sW0}, s{sW0}, s{t3}
s_add_u32 s{sW1}, s{sW1}, s{t3}
s_sub_u32 s{sW1}, s{sW1}, 5120
v_and_b32 v95, 63, v0
""")
        for i, so, ex in ((0, sW0, None), (1, sW0, None), (2, sW0, "exec_hi, 0"), (2, sW1, "not"), (3, sW1, None), (4, sW1, None)):
            if ex != "not":
                A(f"""
s_mov_b64 exec, -1
v_add_u32 v92, {64*i}, v95
v_mul_u32_u24 v93, 205, v92
v_lshrrev_b32 v93, 13, v93
v_mad_u32_u24 v92, v93, 40, v92
s_add_u32 m0, s{sXL}, {1024*i}
v_lshlrev_b32 v92, 4, v92
""")
            if ex:
                A("s_not_b64 exec, exec" if ex == "not" else f"s_mov_b32 {ex}")
            A(f"buffer_load_dwordx4 v92, {S(R_M1,4)}, s{so} offen{NT} lds")
    for q in range(320):
        assert (q * 205) >> 13 == q // 40
    guarded(IS_NOT_WO, wo_fetch)
    NO_SLICE = f"s_cmp_lt_u32 s{sCT}, 3"
    reporter = lambda f: guarded(f"s_cmp_ge_u32 s{sOWN}, 5", f)
    load_epoch()
    stamp("B", "iss0")
    srd(R_WS, P_WS, WS_SIZE)
    srd(R_M1, P_GATE, 1280)
    vT, vS = 16, 24
    A(f"""
s_and_b32 s{sT1}, s{sRH}, 4
s_lshl_b32 s{sT1}, s{sT1}, 4
s_mul_i32 s{sT2}, s{SW}, 80
s_add_u32 s{sT1}, s{sT1}, s{sT2}
v_bfe_u32 v94, v0, 1, 1
v_mad_u32_u24 v94, v94, 40, s{sT1}
v_and_b32 v95, 1, v0
v_bfe_u32 v92, v0, 4, 1
v_bfe_u32 v93, v0, 2, 2
v_lshl_add_u32 v92, v92, 3, v93
v_bfe_u32 v91, v0, 5, 1
v_and_b32 v90, 0x30, v0
s_lshl_b32 s{sT1}, s{sKS}, 6
s_mov_b64 {S(16,2)}, 0
{IS_Q}
s_cbranch_scc1 L_jq
v_lshl_add_u32 v92, v95, 4, v92
v_and_b32 v93, 0x1f0, v{vL16}
v_lshl_add_u32 v84, v91, 3, v94
v_add_u32 v85, 16, v84
v_add_u32 v86, 32, v94
v_lshl_add_u32 v{vS}, v91, 10, v93
v_add_u32 v{vS+1}, 2048, v{vS}
v_add_u32 v{vS+2}, 4096, v93
s_lshr_b32 s{sT1}, s{sKS}, 1
s_mul_i32 s19, s{sRH}, 20
s_add_u32 s19, s19, s{sT1}
s_mul_i32 s19, s19, 5120
s_and_b32 s{sT1}, s{sKS}, 1
s_lshl_b32 s{sT1}, s{sT1}, 9
s_add_u32 s19, s19, s{sT1}
s_add_u32 s19, s19, {WS_WKV}
s_branch L_jj
L_jq:
buffer_load_dwordx4 {V(76,4)}, v90, {S(R_M1,4)}, s{sT1} offen
v_lshl_add_u32 v92, v91, 4, v92
v_lshl_add_u32 v84, v95, 4, v94
v_add_u32 v85, 8, v84
v_add_u32 v86, 32, v84
v_mov_b32 v{vS}, v{vL16}
v_add_u32 v{vS+1}, 1024, v{vL16}
v_add_u32 v{vS+2}, 2048, v{vL16}
s_mul_i32 s19, s{sRH}, 20
s_add_u32 s19, s19, s{sKS}
s_mul_i32 s19, s19, 3072
s_add_u32 s19, s19, {WS_WQ}
s_mov_b32 s16, 0xf0f0f0f0
s_mov_b32 s17, 0xf0f0f0f0
L_jj:
v_bfe_u32 v93, v92, 1, 3
v_lshlrev_b32 v93, 4, v93
v_lshlrev_b32 v92, 7, v92
""")
    for n in range(3):
        A(f"""
v_lshrrev_b32 v89, 7, v{84+n}
v_and_b32 v88, 127, v{84+n}
v_xor_b32 v88, v88, v93
v_lshl_add_u32 v89, v89, 12, v92
v_add_u32 v{vT+2*n}, v88, v89
v_xor_b32 v{vT+2*n+1}, 32, v{vT+2*n}
""")
    A(f"""
s_mov_b64 {S(ONE,2)}, 1
s_lshl_b32 s{sKF}, s{sHP}, 2
s_add_u32 s{sKF}, s{sKF}, s{SW}
s_lshl_b32 s{sKF}, s{sKF}, 8
s_add_u32 s{sKF}, s{sKF}, {C_KV}
s_lshl_b32 s{sOF}, s{sST}, 1
s_lshr_b32 s{sT1}, s{SW}, 1
s_add_u32 s{sOF}, s{sOF}, s{sT1}
s_lshl_b32 s{sOF}, s{sOF}, 2
s_lshr_b32 s{sT1}, s{sHP}, 2
s_add_u32 s{sOF}, s{sOF}, s{sT1}
s_lshl_b32 s{sOF}, s{sOF}, 8
s_add_u32 s{sOF}, s{sOF}, {C_O}
s_lshl_b32 s{sKW}, s{SW}, 4
s_add_u32 s{sKW}, s{sKW}, s{sHP}
s_lshl_b32 s{sKW}, s{sKW}, 8
""")
    for _ in range(OPT.get("npre", 60)):
        setup.pop(0)()
    A("s_waitcnt lgkmcnt(0)")
    make_tag()
    A(f"""
s_lshl_b32 s8, s{sRH}, 2
s_add_u32 s8, s8, s{sKS}
s_lshl_b32 s8, s8, 8
s_add_u32 s8, s8, {C_KV}
s_sub_u32 s9, s2, {ID_B-160}
s_and_b32 s9, s9, 255
s_lshl_b32 s{sT1}, s{SW}, 8
s_add_u32 s{sT1}, s{sT1}, s9
s_lshl_b32 s9, s9, 8
s_add_u32 s9, s9, {C_O}
""")
    guarded(f"s_cmp_ge_u32 s{sROLE}, 2", lambda: cnt_init(8))
    guarded(f"s_cmp_ge_u32 s{sT1}, 128", lambda: cnt_init(9))
    A(f"""
{IS_Q}
s_cselect_b32 s{sT1}, 0, 1
""")
    guarded(f"s_cmp_gt_u32 s{sKS}, s{sT1}", lambda: cnt_init(sKA))
    guarded(f"s_cmp_lg_u32 s15, 0", lambda: cnt_init(sUT))
    A(f"s_mov_b64 {S(CQ0+2,2)}, {S(TAG,2)}")
    A(f"s_mov_b64 {S(CQ1,2)}, {S(TAG,2)}")
    stamp("B", "setup")
    A(f"""
{IS_Q}
s_waitcnt vmcnt({2*NX0})
s_cbranch_scc0 L_jw
s_waitcnt vmcnt(0)
L_jw:
s_barrier
""")
    stamp("B", "ukv")

    def job():
        for n in range(3):
            for h in range(2):
                A(f"ds_read_b64_tr_b16 {V(60+4*n+2*h,2)}, v{vT+2*n+h} offset:{512*h}")
        lwait_lds(92, vL8, 6)
        for n in range(3):
            if n == 2:
                for p in range(4):
                    A(f"v_cndmask_b32 v{68+p}, v{68+p}, v{76+p}, {S(16,2)}")
            A.v(f"buffer_store_dwordx4 {V(60+4*n,4)}, v{vS+n}, {S(R_WS,4)}, s19 offen sc1", "kst")

    def wo_put():
        WL, WU, WD = 192, 208, 224
        A(f"""
v_bfe_u32 v84, v0, 4, 2
v_and_b32 v85, 15, v0
v_mul_u32_u24 v86, 160, v84
v_add_u32 v86, s{sXL}, v86
v_lshl_add_u32 v87, v85, 1, v86
v_lshl_add_u32 v86, v85, 3, v86
v_mul_u32_u24 v84, 102400, v84
v_lshl_add_u32 v84, v85, 4, v84
s_mov_b32 s{sW0}, 0x05040100
s_mov_b32 s{sW1}, 0x07060302
""")
        for e in range(8):
            A(f"ds_read_b64 {V(WL+2*e,2)}, v86 offset:{640*e}")
            A(f"ds_read_u16 v{WU+e}, v87 offset:{640*e+128}")
        lwait_lds(92, vL8, 4)
        for jn in range(4):
            for p in range(4):
                A(f"v_perm_b32 v{WD+4*jn+p}, v{WL+2*(2*p+1)+(jn>>1)}, v{WL+2*(2*p)+(jn>>1)}, s{sW0+(jn&1)}")
            A(f"buffer_store_dwordx4 {V(WD+4*jn,4)}, v84, {S(R_WS,4)}, s{sW2} offen offset:{1024*jn} sc1")
        for p in range(4):
            A(f"v_lshl_or_b32 v{WD+16+p}, v{WU+2*p+1}, 16, v{WU+2*p}")
        A(f"s_add_u32 s{sW2}, s{sW2}, 4096")
        A(f"buffer_store_dwordx4 {V(WD+16,4)}, v84, {S(R_WS,4)}, s{sW2} offen sc1")
    guarded(IS_IDLE, job)
    guarded(IS_NOT_WO, wo_put)
    stamp("B", "j1")
    A("s_barrier")
    for u in range(NX0, NX1):
        run(flat(issue_x(u)))
    run(setup)
    srd(R_M2, P_OUT, 2621440)
    stamp("B", "j4")
    A.vwait("kst")
    stamp("B", "j5")
    A.lwait_all()
    stamp("B", "j6")
    A("s_barrier")
    guarded(IS_IDLE, lambda: cnt_arrive(CQ0 + 2, sKA))
    guarded(IS_NOT_WO, lambda: cnt_arrive(CQ1, sUT))
    stamp("B", "kflag")
    for u in range(max(NX0, NX1), NXR):
        run(flat(issue_x(u)))
    srd(R_M1, P_WPHI, 25600)
    A(f"""
s_mul_i32 s{sT1}, s{SW}, 400
s_add_u32 m0, s{sT1}, {LDS_WP}
s_mul_i32 s{sT2}, s{sHP}, 1600
s_add_u32 s{sT1}, s{sT1}, s{sT2}
s_mov_b64 exec, 0x1ffffff
""")
    A.v(f"buffer_load_dwordx4 v{vL16}, {S(R_M1,4)}, s{sT1} offen lds", "wp")
    A(f"""
s_mov_b64 exec, -1
s_mul_i32 s{sT1}, s{sHP}, 102400
s_add_u32 s{sT1}, s{sT1}, {WS_WKV}
s_add_u32 s{R_W}, s{P_WS}, s{sT1}
s_addc_u32 s{R_W+1}, s{P_WS+1}, 0
s_mov_b32 s{R_W+2}, 102400
s_mul_i32 s{sT1}, s{sHP}, 61440
s_add_u32 s{sT1}, s{sT1}, {WS_WQ}
s_add_u32 s{R_M1}, s{P_WS}, s{sT1}
s_addc_u32 s{R_M1+1}, s{P_WS+1}, 0
s_mov_b32 s{R_M1+2}, 61440
""")
    A(f"""
v_bfe_u32 v81, v0, 4, 2
v_bfe_u32 v80, v0, 2, 2
v_lshl_add_u32 v81, v81, 3, v80
v_bfe_u32 v82, v81, 1, 3
v_bfe_u32 v83, v0, 1, 1
v_xor_b32 v82, v82, v83
v_lshlrev_b32 v82, 4, v82
v_lshl_add_u32 v81, v81, 7, v82
v_and_b32 v82, 1, v0
v_lshl_add_u32 v81, v82, 3, v81
v_add_u32 v81, s{sXL}, v81
v_lshlrev_b32 v80, 14, v80
v_and_b32 v82, 3, v0
v_lshl_add_u32 v80, v82, 4, v80
v_and_b32 v82, 0x30, v0
v_lshl_add_u32 v80, v82, 2, v80
s_lshl_b32 s{sT1}, s{sST}, 2
s_add_u32 s{sT1}, s{sT1}, s{SW}
s_lshl_b32 s{sT1}, s{sT1}, 8
s_lshl_b32 s{sUO}, s{sUO}, 18
s_add_u32 s{sUO}, s{sUO}, s{sT1}
s_add_u32 s{sUO}, s{sUO}, {WS_UT}
v_xor_b32 v82, 32, v81
v_xor_b32 v83, 64, v81
v_xor_b32 v84, 96, v81
""")

    def ut_read():
        for it in range(4):
            for h in range(2):
                A.l(f"ds_read_b64_tr_b16 {V(60+4*it+2*h,2)}, v{81+(it^h)} offset:{LDS_X+512*h}", "xr0")

    def ut_store():
        for it in range(0 if OPT.get("nout") else 4):
            A(f"buffer_store_dwordx4 {V(60+4*it,4)}, v80, {S(R_WS,4)}, s{sUO} offen sc1")
            if it < 3:
                A(f"s_add_u32 s{sUO}, s{sUO}, 65536")
    umark = []
    stamp("B", "iss1")
    refill = lambda u: u + 4 if not BORROW or u >= 8 else (u + 8 if u < 4 else 99)
    pollers = lambda f: guarded(f"s_cmp_ge_u32 s{SW}, 2", f)

    A.c("---- x tile -> registers")
    assert U3 >= 2
    U1 = OPT.get("u1", U2 - 4)
    assert U1 < U2
    UST = OPT.get("ust", 1)

    def side():
        guarded(NO_SLICE, ut_store)
        A.mark_next = True
        umark.append(1)

    def ut_flag():
        umark.pop()
        reporter(lambda: cnt_arrive(CQ1, sUT))
        stamp("B", "utflag")
    for u in range(U3 + 1):
        read_x(u)
        ld = []
        if u == 1:
            ut_read()
        if u:
            A.lwait(f"xr{u-1}")
            ld += issue_x(refill(u - 1))
        if u == UST < U2:
            side()
        if u > UST and umark and A.marked_done():
            A("s_barrier")
            ut_flag()
        if u == U2:
            run(flat(ld))
            ld = []
            if U1 < U2:
                pollers(lambda: cnt_async(CQ0, 14, sKW, 20, sCNT, nap=OPT.get('napw', 0)))
            else:
                pollers(lambda: cnt_wait(CQ0, sKW, 20, sCNT, probed=False, nap=OPT.get('napw', 0)))
            A("s_barrier")
            stamp("B", "kwseen")
        if u == U2:
            run(flat(issue_w(OPT.get("w1st", 10))))
            if UST == U2:
                side()
            run(flat(issue_w(OPT.get("w2nd", 10))))
        run(flat(ld))
        if u == U1:
            A.lwait_all()
            cnt_verify(CQ0 + 2, sKA, sCNT)
            if U1 < U2:
                pollers(lambda: cnt_read(CQ0, sKW))

    def ready(h):
        A.vwait(f"w{NEED(h)-1}")
        if not (OPT.get("nobar") and h):
            A("s_barrier")
        stamp("B", f"w{h}")
        if umark and A.marked_done():
            ut_flag()

    A.c("---- GEMM1a: k and v for two heads, 20 k-steps in one stream")
    run(flat(issue_w(NEED(1))))
    ready(0)
    pipe = FragPipe(vL16, phase=5)
    mm = pipe.stream([(n // 5, n % 5, 1024 * (n % 40)) for n in range(100)], ACC)
    st_ = Stream()
    st_.at(0, [lambda: A.lwait(f"xr{U3}")] + flat(issue_x(refill(U3)) + issue_w(10)))
    u = U3 + 1
    lastx = [0]
    for h in range(10):
        k0 = 20 * h
        for kk in {1: (2,), 2: (2, 12), 3: (0, 6, 14), 4: (0, 4, 11, 15)}[OPT.get("xper", 2)]:
            if u < 20:
                st_.at(k0 + kk, lambda u=u: read_x(u))
                st_.at(k0 + kk + OPT.get("xlag", 12), [lambda u=u: A.lwait(f"xr{u}")] + flat(issue_x(refill(u))))
                u += 1
                lastx[0] = k0 + kk
        if h < 9:
            st_.exact(k0 + 19 - 2 * pipe.look, lambda h=h: ready(h + 1))
            mm[k0 + 20] = (lambda f=mm[k0 + 20], h=h: (need_x(h + 1), f()))
        if h:
            st_.at(k0 + 20 - 2 * pipe.look, flat(issue_w(10 + FREED(h - 1))))

    def need_x(h):
        assert f"x{2*h+1}" not in A.vm
        A.lwait(f"xr{2*h}", f"xr{2*h+1}")

    HQ = OPT.get("hq", 8)
    assert u == 20 and lastx[0] + 14 < 20 * HQ
    st_.at(20 * HQ - 50, L(f"""
s_and_b32 s{sWC}, s{sCT}, 4
s_add_u32 s{sWC}, s{sWC}, s{SW}
s_lshl_b32 s{sWC}, s{sWC}, 8
s_add_u32 s{sWC}, s{sWC}, {C_WO}
s_lshl_b32 s{sKW}, s{sHP}, 8
s_add_u32 s{sKW}, s{sKW}, {C_QW}
""") + [lambda: cnt_read(CQ0, sKW), lambda: cnt_read(CQ0 + 2, sWC)])
    st_.at(20 * HQ + 2, [lambda: cnt_async(CQ0, 14, sKW, 20, sCNT, nap=4)])
    for h in range(HQ, 10 if OPT.get("qin", 1) else 0):
        st_.at(20 * h + 21 - 2 * pipe.look, flat(issue_q(9 if h == 9 else min(9, qround[0] + OPT.get("qper", 3)))))
    KP, VP = 8, 20
    PF0, PF1, PK0, PK1 = 56, 68, 80, 32

    def cvt_tile(acc, t, d0, d1):
        return [(lambda sg=sg, hh=hh: A(f"v_cvt_pk_bf16_f32 v{(d0 if sg==0 else d1)+2*t+hh}, v{acc+8*t+4*sg+2*hh}, v{acc+8*t+4*sg+2*hh+1}")) for sg in range(2) for hh in range(2)]
    st_.at(192, L(f"v_mov_b32 v{KP+10}, 0\nv_mov_b32 v{KP+11}, 0"))
    st_.at(195, cvt_tile(ACC, 0, KP, VP))
    st_.at(197, cvt_tile(ACC, 1, KP, VP))
    need_x(0)
    st_.run(mm)
    assert wround[0] == 25
    stamp("B", "g1a")
    if OPT.get("fine"):
        finish("B")
        return

    A.c("---- phi_k, kv partial")
    swap = lambda a_, b_, i0, i1: [A(f"v_permlane16_swap_b32 v{a_+i}, v{b_+i}") for i in range(i0, i1)]
    run(phi_frags(PF0, vPA, "pf"))
    run(cvt_tile(ACC, 2, KP, VP))
    run(phi_frags(PF1, vPA1, "pf"))
    run(cvt_tile(ACC, 3, KP, VP) + cvt_tile(ACC, 4, KP, VP))
    swap(KP, VP, 0, 4)
    A.lwait_all()
    phi_mfma(0, KP, PF0, PF1, PK0, PK1)
    cnt_verify(CQ1, sUT, sCNT)
    swap(KP, VP, 4, 8)
    A(f"v_mov_b32 v{VP+10}, 0x3f80")
    A(f"v_mov_b32 v{VP+11}, 0")
    phi_mfma(1, KP + 4, PF0, PF1, PK0, PK1)
    swap(KP, VP, 8, 10)
    phi_mfma(2, KP + 8, PF0, PF1, PK0, PK1)
    A("s_barrier")
    for i in range(3):
        A.l(f"ds_write_b128 v{vVW}, {V(VP+4*i,4)} offset:{LDS_PV+160+16*i}", "pv")
    stamp("B", "pmf")
    hk = Hooks()
    hk1 = {n: (lambda i=i: A.l(f"ds_write_b128 v{vPW}, {V(PHI+4*i,4)} offset:{LDS_PV+16*i}", "pv")) for i, n in enumerate((24, 28, 51, 55, 59))}
    sWO = 75
    hk.at(0, L(f"""
s_lshr_b32 s{sT0}, s{SW}, 1
s_mul_i32 s{sT0}, s{sT0}, 48
s_mul_i32 s{sT1}, s{SW}, 40
s_sub_u32 s{sT0}, s{sT0}, s{sT1}
s_add_u32 s{sT0}, s{sT0}, 160
v_add_u32 v{vVW}, s{sT0}, v{vKA}
s_mul_i32 s{sWO}, s{sCT}, 102400
s_mul_i32 s{sT1}, s{SW}, 25600
s_add_u32 s{sWO}, s{sWO}, s{sT1}
s_add_u32 s{sWO}, s{sWO}, {WS_WO}
s_lshl_b32 s{sT0}, s{sHP}, 2
s_add_u32 s{sT0}, s{sT0}, s{SW}
s_lshl_b32 s{sT0}, s{sT0}, 14
s_add_u32 s{sT0}, s{sT0}, {WS_KVP}
s_lshl_b32 s{sT1}, s{sST}, 10
s_add_u32 s{sT1}, s{sT1}, s{sT0}
"""))

    def wo_touch():
        if not OPT.get('abl'):
            cnt_async(CQ0 + 2, 14, sWC, 20, sCNT, nap=8)
        if OPT.get("wopf", 1):
            A(f"""
s_and_b32 s{sWC}, s{sST}, 3
s_mul_i32 s{sWC}, s{sWC}, 6400
s_add_u32 s{sWC}, s{sWC}, s{sWO}
v_lshlrev_b32 v41, 3, v{vL16}
s_mov_b32 m0, {LDS_GATE+512}
s_mov_b32 exec_hi, 0x3ffff
""")
            A.v(f"buffer_load_dword v41, {S(R_WS,4)}, s{sWC} offen sc1 lds", "pf")
            A("s_mov_b32 exec_hi, -1")
    qe_ = flat(issue_q(9))
    for _ in range(min(len(qe_), OPT.get("qpre", 7))):
        qe_.pop(0)()
    hk.at(1, qe_)
    hk.at(2, wo_touch)
    softmax([PK0 + i for i in range(16)] + [PK1 + i for i in range(4)], [56 + i for i in range(20)], PHI, 36,
            lambda n: (hk1.pop(n, lambda: None)(), hk(n)))
    stamp("B", "smx")
    vKB, vQR = vVW, vPW
    A.lwait_all()
    A("s_barrier")
    stamp("B", "phik")
    KD = 28
    FR = [56, 64, 72, 80]

    def kvreads(ks):
        for h in range(2):
            A.l(f"ds_read_b64_tr_b16 {V(FR[ks%4]+2*h,2)}, v{vKA} offset:{LDS_PV+ks*4352+h*272}", f"kv{ks}")
        for h in range(2):
            A.l(f"ds_read_b64_tr_b16 {V(FR[ks%4]+4+2*h,2)}, v{vKB} offset:{LDS_PV+ks*4352+h*272}", f"kv{ks}")
    for ks in range(3):
        kvreads(ks)
    fl = L(f"""
v_and_b32 v14, 31, v0
v_bfe_u32 v15, v0, 5, 1
v_mad_u32_u24 v15, v15, 22, v14
v_lshlrev_b32 v15, 4, v15
v_add_u32 v{vQR}, {LDS_QB}, v{vL16}
""")
    for ks in range(8):
        A.lwait(f"kv{ks}")
        A(f"v_mfma_f32_32x32x16_bf16 {V(KD,16)}, {V(FR[ks%4],4)}, {V(FR[ks%4]+4,4)}, {'0' if ks==0 else V(KD,16)}")
        if ks + 3 < 8:
            kvreads(ks + 3)
        else:
            for _ in range(5):
                if fl:
                    fl.pop(0)()
    run(fl)
    A.vwait("q8")
    A("s_barrier")
    for i in range(6):
        A(f"v_cvt_pk_bf16_f32 v{8+i}, v{KD+2*i}, v{KD+2*i+1}")
    set_exec(0x003FFFFF003FFFFF)
    A.v(f"buffer_store_dwordx4 {V(8,4)}, v15, {S(R_WS,4)}, s{sT1} offen sc1", "kvst")
    A("s_mov_b32 exec_hi, 0")
    A.v(f"buffer_store_dwordx2 {V(12,2)}, v{vL8}, {S(R_WS,4)}, s{sT1} offen offset:704 sc1", "kvst")
    A("s_mov_b64 exec, -1")
    stamp("B", "kvst")

    A.c("---- GEMM1b (q); wo fragments stream into the x registers as they die")
    QA = 56
    WOR = [XB + 4 * i for i in range(8)] + [Xr(3, 0, 0) + 4 * i for i in range(16)] + [92]
    G = Xr(1, 0, 0)
    pipe = FragPipe(vQR, phase=3)
    mm = pipe.stream([(n // 3, n % 3, LDS_QA - LDS_QB + 1024 * n if n < 36 else 1024 * (n - 36)) for n in range(60)], QA)

    def issue_wo(f0, f1):
        o = []
        for f in range(f0, f1):
            ii, jn = divmod(f, 5)
            pre = ""
            if jn == 0 and ii < 4:
                pre = f"s_add_u32 s{sWC}, s{sST}, {ii}\ns_and_b32 s{sWC}, s{sWC}, 3\ns_mul_i32 s{sWC}, s{sWC}, 5120\ns_add_u32 s{sWC}, s{sWC}, s{sWO}\n"
            elif jn == 0:
                pre = f"s_add_u32 s{sWC}, s{sWO}, 20480\n"
            elif jn == 4:
                pre = f"s_add_u32 s{sWC}, s{sWC}, 4096\n"
            o.append((pre, lambda f=f, jn=jn: A.v(f"buffer_load_dwordx4 {V(WOR[f],4)}, v{vL16}, {S(R_WS,4)}, s{sWC} offen offset:{1024*(jn%4)} sc1", "wo")))
        return o

    def kv_flag():
        stamp("B", "kvw")
        A.vwait("kvst")
        cnt_add(ONE, sKF)
        stamp("B", "kvadd")

    def q2_ready():
        stamp("B", "q2w")
        A.vwait("q14")
        A("s_barrier")
        stamp("B", "q2")

    gl = []
    for pp in range(8):
        for g2 in range(2):
            pre = ""
            if g2 == 0 and pp % 2 == 0:
                pre = f"s_add_u32 s{sT1}, s{sST}, {pp//2}\ns_and_b32 s{sT1}, s{sT1}, 3\ns_lshl_b32 s{sT1}, s{sT1}, 12\ns_add_u32 s{sT1}, s{sT1}, s{sT0}\n"
            gl.append((pre, lambda pp=pp, g2=g2: A.v(f"buffer_load_dwordx4 {V(G+8*pp+4*g2,4)}, v{vGA+g2}, {S(R_WS,4)}, s{sT1} offen offset:{2048*(pp&1)} sc1", f"g{pp}")))
    Q0, Q1 = 8, 16
    PF0, PF1, PK0, PK1 = 80, 192, 56, 72
    st_ = Stream()
    st_.at(0, flat(issue_q(15)))
    KVF, KVT = OPT.get("kvf", 40), OPT.get("kvt", 92)
    st_.exact(KVF, kv_flag)
    st_.at(KVF + OPT.get("kvp", 4), lambda: cnt_probe(CQ0, sKF, True))
    if OPT.get("p2k", 0):
        st_.at(KVF + OPT.get("kvp2", 26), lambda: cnt_probe(CQ0 + 2, sKF, True))
    wol = issue_wo(0, 25)
    NW0 = OPT.get("nw0", 8)
    for i, g_ in enumerate(wol[:NW0]):
        st_.at(OPT.get("wo0", 30) + OPT.get("wostep", 5) * i, flat([g_]))
    st_.exact(72 - 2 * pipe.look - 1, q2_ready)
    st_.at(70, phi_frags(PF0, vPA, "pf"))
    st_.at(85, phi_frags(PF1, vPA1, "pf"))
    st_.exact(KVT, lambda: (stamp("B", "kvtest"), (cnt_poll2(CQ0, 14, sKF, 16, sCNT) if OPT.get('p2k', 0) else cnt_async(CQ0, 14, sKF, 16, sCNT, nap=OPT.get('napk', 0))), stamp("B", "kvseen")))
    NG1 = OPT.get("ng1", 10)
    for i, g_ in enumerate(gl[:NG1]):
        st_.at(min(KVT + 1 + 2 * i, 119), flat([g_]))
    st_.at(110, L(f"v_mov_b32 v{Q0+6}, 0\nv_mov_b32 v{Q0+7}, 0"))
    st_.run(mm)
    stamp("B", "g1b")

    A.c("---- phi_q; the kv partials are summed on the way")
    NW1 = OPT.get("nw1", 16)
    run(flat(gl[NG1:NG1 + 2]))
    run(cvt_tile(QA, 0, Q0, Q1) + cvt_tile(QA, 1, Q0, Q1))
    swap(Q0, Q1, 0, 4)
    run(cvt_tile(QA, 2, Q0, Q1))
    A(f"""
v_mov_b32 v43, v{QA+16}
s_mov_b32 exec_lo, 0
v_mov_b32 v43, v{QA+20}
s_mov_b32 exec_lo, 0xffff0000
s_mov_b32 exec_hi, 0xffff0000
""")
    A.l(f"ds_write_b32 v{vGW}, v43", "gw")
    A("s_mov_b64 exec, -1")
    assert "pf" not in A.lg
    phi_mfma(0, Q0, PF0, PF1, PK0, PK1)
    swap(Q0, Q1, 4, 6)
    phi_mfma(1, Q1, PF0, PF1, PK0, PK1)
    phi_mfma(2, Q0 + 4, PF0, PF1, PK0, PK1)
    run(flat(gl[NG1 + 2:]))
    RD, OF_, OD = 244, G, 56
    assert NW1 <= 20
    hk = Hooks()
    hk.at(OPT.get('woh', 20), flat(wol[NW0:NW1]))

    def reduce_(pp):
        A.vwait(f"g{pp}")
        for g2 in range(2):
            d = V(RD + 4 * g2, 4)
            A(f"v_mfma_f32_16x16x32_bf16 {d}, {V(ID,4)}, {V(G+8*pp+4*g2,4)}, {'0' if pp==0 else d}")

    def kvt_write():
        for i in range(4):
            A(f"v_cvt_pk_bf16_f32 v{RD+8+i}, v{RD+2*i}, v{RD+2*i+1}")
        A.l(f"ds_write_b64 v{vKT}, {V(RD+8,2)}", "kt")
        A("s_mov_b32 exec_hi, 0x007f007f")
        A.l(f"ds_write_b64 v{vKT+1}, {V(RD+10,2)}", "kt")
        A("s_mov_b64 exec, -1")

    def kvt_read():
        lwait_lds(RD, vL8, 2)
        A("s_barrier")
        stamp("B", "kvt")
        for T in (1, 0):
            for t in range(5):
                A.l(f"ds_read_b128 {V(OF_+8*t+4*T,4)}, v{vOA+T} offset:{16*t}", f"o{t}_{T}")
        for _ in range(2):
            A.l(f"ds_read_b32 v{RD}, v{vL8}", "_")
    if OPT.get("go", 0):
        hk.at(OPT.get("goh", 46), L(f"""
s_sub_u32 s{sJ}, s2, {ID_B}
s_lshl_b32 s{sJ}, s{sJ}, 8
s_add_u32 s{sJ}, s{sJ}, {C_GO}
""") + [lambda: cnt_init(sJ)])
    RH = OPT.get("rh", 34)
    hk2 = {RH + pp: (lambda pp=pp: reduce_(pp)) for pp in range(8)}
    hk2[min(RH + 12, 58)] = kvt_write
    hk2[min(RH + 18, 59)] = kvt_read
    hk.at(40, L(f"""
s_lshl_b32 s{sT1}, s{sST}, 2
s_add_u32 s{sT1}, s{sT1}, s{SW}
s_lshl_b32 s{sT1}, s{sT1}, 4
s_add_u32 s{sT1}, s{sT1}, s{sHP}
s_mul_i32 s{sT1}, s{sT1}, 2560
s_add_u32 s{sT1}, s{sT1}, {WS_O}
"""))
    softmax([PK0 + i for i in range(20)], [76 + i for i in range(16)] + [28, 29, 30, 31], PHI, 38,
            lambda n: (hk(n), hk2.pop(n, lambda: None)()), ratio=True)
    stamp("B", "phiq")
    OP = 28
    tail = L(f"""
v_mul_f32 v42, 0x358637bd, v42
v_add_f32 v40, v42, v{OD+20}
v_rcp_f32 v40, v40
""")
    for i in (8, 9):
        tail += L(f"v_mul_f32 v{OD+2*i}, v40, v{OD+2*i}\nv_mul_f32 v{OD+2*i+1}, v40, v{OD+2*i+1}\nv_cvt_pk_bf16_f32 v{OP+i}, v{OD+2*i}, v{OD+2*i+1}")
    tail.append(lambda: A.v(f"buffer_store_dwordx2 {V(OP+8,2)}, v{vOT}, {S(R_WS,4)}, s{sT1} offen offset:2048 sc1", "ost"))
    for T in (1, 0):
        for t in range(5):
            A.lwait(f"o{t}_{T}")
            d = V(OD + 16 * T, 16)
            A(f"v_mfma_f32_32x32x16_bf16 {d}, {V(OF_+8*t+4*T,4)}, {V(PHI+4*t,4)}, {'0' if t==0 else d}")
            if T == 0 and t == 0:
                tail.pop(0)()
                A("s_nop 5")
            if T == 0 and t == 3:
                for _ in range(5):
                    tail.pop(0)()
    run(tail)
    for i in range(8):
        scale(OD + 2 * i, 40, 0)
        A(f"v_cvt_pk_bf16_f32 v{OP+i}, v{OD+2*i}, v{OD+2*i+1}")
        if i == 3:
            A.v(f"buffer_store_dwordx4 {V(OP,4)}, v{vL16}, {S(R_WS,4)}, s{sT1} offen sc1", "ost")
        if i == 7:
            A.v(f"buffer_store_dwordx4 {V(OP+4,4)}, v{vL16}, {S(R_WS,4)}, s{sT1} offen offset:1024 sc1", "ost")
    stamp("B", "ost")
    NW2 = OPT.get("nw2", 21)
    run(flat(wol[NW1:NW2]))

    A.c("---- final projection: the wave sums its K quarter for four row tiles and owns tile (wave + ct) & 3")
    vOM, vOR, vW16 = 2, 3, 7
    vOMS = [72, 73, 74, 75]
    vRW, vRR, vAR, vAR2, vOUT2, vOUT = 1, 4, 5, 6, 2, 3
    sOB = [64, 65, 66, 67]
    sAF, sAT, sOC = 74, 25, 30
    GT, OMG, GA, AC0, AC1, OX = 8, 12, 16, 36, 56, 76
    OFR = [G + 4 * i for i in range(16)] + [OX + 4 * i for i in range(4)]
    A(f"""
s_add_u32 s{sOWN}, s{SW}, s{sCT}
s_and_b32 s{sOWN}, s{sOWN}, 3
s_lshl_b32 s{sCNT}, s{sB}, 2
s_add_u32 s{sCNT}, s{sCNT}, s{sOWN}
s_lshl_b32 s{sCNT}, s{sCNT}, 6
s_add_u32 s{sCNT}, s{sCNT}, {LDS_GATE}
v_and_b32 v42, 0x30, v0
v_add_u32 v42, s{sCNT}, v42
""")
    A.l(f"ds_read_b128 {V(GT,4)}, v42", "gt")
    A(f"""
s_lshl_b32 s{sAF}, s{sCT}, 2
s_add_u32 s{sAF}, s{sAF}, s{SW}
s_mul_i32 s{sAT}, s{sAF}, {20*4096}
s_lshl_b32 s{sAF}, s{sAF}, 8
s_add_u32 s{sAF}, s{sAF}, {C_AF}
s_lshl_b32 s{sWOFF}, s{sST}, 1
s_add_u32 s{sWOFF}, s{sWOFF}, s{sB}
s_lshl_b32 s{sCNT}, s{sWOFF}, 7
s_add_u32 s{sAT}, s{sAT}, s{sCNT}
s_add_u32 s{sAT}, s{sAT}, {WS_AT}
s_lshl_b32 s{sOC}, s{sWOFF}, 2
s_add_u32 s{sOC}, s{sOC}, s{SW}
s_lshl_b32 s{sOC}, s{sOC}, 8
s_add_u32 s{sOC}, s{sOC}, {C_O}
""")
    A.lwait("gt")
    cnt_read(CQ1, sAF)
    sGOT, sAL, sOU = 100, 101, 70

    def a_dma():
        A(f"s_mul_i32 s{sAL}, s{SW}, 2560")
        for i in range(3):
            A(f"s_add_u32 m0, s{sAL}, {LDS_AT+1024*i}")
            A("s_mov_b32 exec_hi, 0" if i == 2 else "s_nop 0")
            A(f"buffer_load_dwordx4 v{GA+1+i}, {S(R_WS,4)}, s{sAT} offen sc1 lds")
        A("s_mov_b64 exec, -1")

    def a_try():
        A(f"s_mov_b64 {S(14,2)}, {S(CQ1,2)}")
        cnt_test(14, 20)
        A(f"s_cselect_b32 s{sGOT}, 0, 1")
        guarded("", a_dma)
    A(f"""
v_mov_b32 v{vW16}, v{vL16}
v_and_b32 v40, 15, v0
v_bfe_u32 v43, v0, 4, 2
v_lshlrev_b32 v{vOM}, 9, v43
v_lshl_add_u32 v{vOM}, v40, 4, v{vOM}
v_mul_u32_u24 v{vOR}, 2560, v43
v_lshl_add_u32 v{vOR}, v40, 4, v{vOR}
v_bfe_u32 v49, v0, 3, 3
v_and_b32 v48, 7, v0
s_mul_i32 s{sCNT}, s{SW}, 20
""")
    for i in range(3):
        A(f"""
v_add_u32 v42, {8*i}, v49
v_add_u32 v43, s{sCNT}, v42
v_bfe_u32 v43, v43, 2, 3
v_xor_b32 v43, v43, v48
v_lshlrev_b32 v42, 12, v42
v_lshl_add_u32 v{GA+1+i}, v43, 4, v42
""")
    for e in range(4):
        A(f"v_mul_f32 v{GT+e}, s{sL2E}, v{GT+e}")
    for e in range(4):
        A(f"v_exp_f32 v{GT+e}, -v{GT+e}")
    for e in range(4):
        A(f"v_add_f32 v{GT+e}, 1.0, v{GT+e}")
    for e in range(4):
        A(f"v_rcp_f32 v{GT+e}, v{GT+e}")
    for p in range(4):
        A(f"""
s_add_u32 s{sCNT}, s{sOWN}, {p+1}
s_bfe_u32 s{sJ}, s{sCNT}, 0x10001
s_mul_i32 s{sOB[p]}, s{sJ}, 40960
s_and_b32 s{sJ}, s{sCNT}, 1
s_lshl_b32 s{sJ}, s{sJ}, 8
s_add_u32 s{sOB[p]}, s{sOB[p]}, s{sJ}
""")
    A(f"""
s_mul_i32 s{sCNT}, s{sWOFF}, 81920
s_mul_i32 s{sJ}, s{SW}, 10240
s_add_u32 s{sCNT}, s{sCNT}, s{sJ}
s_add_u32 s{sCNT}, s{sCNT}, {WS_O}
v_add_u32 v{vOM}, s{sCNT}, v{vOM}
v_add_u32 v{vOR}, s{sCNT}, v{vOR}
""")
    for e in range(4):
        A(f"v_sub_f32 v{OMG+e}, 1.0, v{GT+e}")
    A.vwait("ost")
    cnt_add(ONE, sOF)
    stamp("B", "oflag")
    cnt_probe(CQ0, sOC, True)
    a_try()
    run(flat(wol[NW2:]))
    for ii in range(4):
        A(f"""
s_add_u32 s{sCNT}, s{sST}, {ii}
s_and_b32 s{sCNT}, s{sCNT}, 3
s_mul_i32 s{sCNT}, s{sCNT}, 2560
v_add_u32 v{vOMS[ii]}, s{sCNT}, v{vOM}
""")
    A(f"""
v_bfe_u32 v41, v0, 5, 1
v_lshl_add_u32 v41, s{sOWN}, 1, v41
v_and_b32 v42, 7, v40
v_xor_b32 v42, v42, v41
v_lshlrev_b32 v42, 4, v42
v_bfe_u32 v43, v0, 4, 1
v_lshlrev_b32 v43, 3, v43
v_lshlrev_b32 v{vAR}, 9, v40
v_add3_u32 v{vAR}, v{vAR}, v42, v43
v_lshrrev_b32 v42, 2, v40
v_xor_b32 v42, v42, v41
v_lshlrev_b32 v42, 4, v42
v_lshlrev_b32 v{vAR2}, 7, v40
v_add3_u32 v{vAR2}, v{vAR2}, v42, v43
s_mul_i32 s{sCNT}, s{SW}, 15360
s_add_u32 s{sCNT}, s{sCNT}, {LDS_RED}
v_add_u32 v{vRR}, s{sCNT}, v{vW16}
""")
    if OPT.get("p2o", 0):
        cnt_probe(CQ0 + 2, sOC, True)
        cnt_poll2(CQ0, 14, sOC, 8, sCNT)
    else:
        cnt_async(CQ0, 14, sOC, 8, sCNT)
    stamp("B", "oseen")
    old = []
    for p in range(4):
        for ii in range(5):
            def f(p=p, ii=ii):
                r = V(OFR[5 * p + ii], 4)
                if ii < 4:
                    A.v(f"buffer_load_dwordx4 {r}, v{vOMS[ii]}, {S(R_WS,4)}, s{sOB[p]} offen sc1", f"of{p}_{ii}")
                else:
                    A.v(f"buffer_load_dwordx4 {r}, v{vOR}, {S(R_WS,4)}, s{sOB[p]} offen offset:2048 sc1", f"of{p}_{ii}")
            old.append(f)
    for _ in range(OPT.get("npo", 10)):
        old.pop(0)()
    AR = OFR[0] if OPT.get("aread", 58) != OPT.get("redbar", 84) else AC0

    def a_fetch():
        def late():
            if not OPT.get('abl'):
                cnt_async(16, 14, sAF, 20, sCNT, nap=OPT.get('napa', 1))
            a_dma()
        guarded(f"s_cmp_eq_u32 s{sGOT}, 1", late)
        stamp("B", "aseen")

    def a_read():
        stamp("B", "arw")
        A.vwait_all()
        A("s_barrier")
        stamp("B", "ar")
        for jn in range(4):
            A.l(f"ds_read_b64 {V(AR+2*jn,2)}, v{vAR} offset:{LDS_AT+128*jn}", "ar")
        A.l(f"ds_read_b64 {V(AR+8,2)}, v{vAR2} offset:{LDS_AT+8192}", "ar")
    mix = [lambda: A.lwait("ar")]
    for jn in range(5):
        for e in range(4):
            src = AR + 2 * jn + (e >> 1)
            mix += L(f"v_and_b32 v{GA+4*jn+e}, 0xffff0000, v{src}" if e & 1 else f"v_lshlrev_b32 v{GA+4*jn+e}, 16, v{src}")
    mix2 = [(lambda jn=jn, e=e: A(f"v_mul_f32 v{GA+4*jn+e}, v{GT+e}, v{GA+4*jn+e}")) for jn in range(5) for e in range(4)]
    mm = []
    for p in range(4):
        ac = AC0 if p % 2 == 0 else AC1
        for ii in range(5):
            for jn in range(5):
                def m(p=p, ac=ac, ii=ii, jn=jn):
                    if jn == 0:
                        A.vwait(f"of{p}_{ii}")
                        if p == 0 and ii == 0:
                            stamp("B", "o0")
                    d = V(ac + 4 * jn, 4)
                    A(f"v_mfma_f32_16x16x32_bf16 {d}, {V(OFR[5*p+ii],4)}, {V(WOR[5*ii+jn],4)}, {'0' if ii==0 else d}")
                mm.append(m)
    st_ = Stream(budget=2)
    for i, f in enumerate(old):
        st_.at(2 * i, f)
    AFET = OPT.get('afet', 22)
    st_.at(max(0, AFET - 40), lambda: cnt_read(16, sAF))
    st_.exact(AFET, a_fetch)
    KA_ = OPT.get("aread", 58)
    KB_ = OPT.get("redbar", 84)
    if KA_ != KB_:
        st_.exact(KA_, a_read)
        st_.at(KA_ + 4, mix + mix2)
    for p in range(3):
        ac = AC0 if p % 2 == 0 else AC1
        k0 = 25 * (p + 1)
        st_.at(k0 - 3, L(f"""
s_add_u32 s{sCNT}, s{SW}, {p+1}
s_and_b32 s{sCNT}, s{sCNT}, 3
s_mul_i32 s{sCNT}, s{sCNT}, 15360
v_add_u32 v{vRW}, s{sCNT}, v{vW16}
"""))
        for jn in range(5):
            st_.at(k0 + 1 + jn, lambda jn=jn, p=p, ac=ac: A.l(f"ds_write_b128 v{vRW}, {V(ac+4*jn,4)} offset:{LDS_RED+5120*p+1024*jn}", "rw"))
    st_.at(33, L(f"""
v_bfe_u32 v{vOUT}, v0, 4, 2
v_mul_u32_u24 v{vOUT}, 5120, v{vOUT}
v_and_b32 v{GA}, 15, v0
v_lshl_add_u32 v{vOUT2}, v{GA}, 1, v{vOUT}
v_lshl_add_u32 v{vOUT}, v{GA}, 3, v{vOUT}
s_lshl_b32 s{sOU}, s{sWOFF}, 2
s_add_u32 s{sOU}, s{sOU}, s{sOWN}
s_mul_i32 s{sOU}, s{sOU}, 20480
s_mul_i32 s{sJ}, s{sCT}, 160
s_add_u32 s{sOU}, s{sOU}, s{sJ}
"""))
    if KA_ != KB_:
        st_.exact(KB_, lambda: (stamp("B", "rbw"), A.lwait_all(), A("s_barrier"), stamp("B", "rb")))
    else:
        st_.exact(KB_, lambda: (A.lwait_all(), a_read()))
    red = []
    for jn in range(5):
        for q in (jn, 5 + jn, 10 + jn):
            red.append(lambda q=q, jn=jn: A.l(f"ds_read_b128 {V(OFR[q],4)}, v{vRR} offset:{1024*q}", f"rr{jn}"))
    if KA_ == KB_:
        red = red[:8] + [x for pr in zip(mix[:7], red[8:]) for x in pr] + mix[7:] + mix2
    st_.at(KB_ + 1, red)
    st_.run(mm, reserve=lambda k: 0)
    stamp("B", "fin")
    PK4 = OPT.get("pk4", 1)

    def add2(d, a_, b_):
        if PK4:
            A(f"v_pk_add_f32 {V(d,2)}, {V(a_,2)}, {V(b_,2)}")
        else:
            for n in range(2):
                A(f"v_add_f32 v{d+n}, v{a_+n}, v{b_+n}")
    for jn in range(5):
        A.lwait(f"rr{jn}")
        for h in range(2):
            r0, r1, r2 = OFR[jn] + 2 * h, OFR[5 + jn] + 2 * h, OFR[10 + jn] + 2 * h
            add2(r0, r0, r1)
            add2(r0, r0, r2)
    OSF = OPT.get("osf", "").replace("_", " ")
    for h in range(2):
        for jn in range(5):
            r0, g_ = OFR[jn] + 2 * h, GA + 4 * jn + 2 * h
            add2(r0, r0, AC1 + 4 * jn + 2 * h)
            if PK4:
                A(f"v_pk_fma_f32 {V(g_,2)}, {V(OMG+2*h,2)}, {V(r0,2)}, {V(g_,2)}")
            else:
                for n in range(2):
                    A(f"v_fma_f32 v{g_+n}, v{OMG+2*h+n}, v{r0+n}, v{g_+n}")
        for e in (2 * h, 2 * h + 1):
            A(f"v_cvt_pk_bf16_f32 v{AC0+4*e}, v{GA+e}, v{GA+4+e}")
            A(f"v_cvt_pk_bf16_f32 v{AC0+4*e+1}, v{GA+8+e}, v{GA+12+e}")
            A.v(f"buffer_store_dwordx2 {V(AC0+4*e,2)}, v{vOUT}, {S(R_M2,4)}, s{sOU} offen offset:{1280*e} {OSF}")
        A(f"v_cvt_pk_bf16_f32 v{AC0+8*h+2}, v{GA+16+2*h}, v{GA+17+2*h}")
        A.v(f"buffer_store_short v{AC0+8*h+2}, v{vOUT2}, {S(R_M2,4)}, s{sOU} offen offset:{2560*h+128} {OSF}")
        A.v(f"buffer_store_short_d16_hi v{AC0+8*h+2}, v{vOUT2}, {S(R_M2,4)}, s{sOU} offen offset:{2560*h+1280+128} {OSF}")
    finish("B")


def role_A():
    sAJ, sTB, sCB, sCH, sLB = 60, 61, 62, 63, 68
    ONE, CQ0, CQ1, CQ2, sUP, sUC, sAC, sGOT, sWC = 18, 20, 28, 40, 69, 48, 49, 50, 51
    sW0, sW1, sW2 = 73, 74, 75
    A.c("---- A prologue")
    A(f"""
s_sub_u32 s{sAJ}, s2, {ID_A}
s_lshl_b32 s{sCH}, s{sAJ}, 2
s_add_u32 s{sCH}, s{sCH}, s{SW}
s_mul_i32 s{sLB}, s{SW}, 20480
v_and_b32 v1, 63, v0
v_lshlrev_b32 v5, 2, v1
s_lshl_b32 s{sT0}, s{sCH}, 8
v_add_u32 v3, s{sT0}, v5
s_and_b32 s{sT3}, s{sCH}, 0xfffffffe
s_lshl_b32 s{sT3}, s{sT3}, 1
s_waitcnt lgkmcnt(0)
""")
    A(f"s_load_dword s70, {S(P_LOGDT,2)}, s{sT3}")
    A(f"s_load_dword s71, {S(P_DSK,2)}, s{sT3}")
    load_epoch()
    for i, p in enumerate((P_LOGA, P_AIM, P_CRE, P_CIM)):
        A.v(f"global_load_dword v{8+i}, v3, {S(p,2)}{' nt' if OPT.get('nt', 1) else ''}", "par")
    if OPT.get("ahead", 1):
        A("s_branch L_A2")
        k = A.lines.index("L_A:")
        head = A.lines[k:]
        del A.lines[k:]
        A.lines[A_HEAD:A_HEAD] = head
        A("L_A2:")
    stamp("A", "a2")
    stamp("A", "a3")
    A("s_waitcnt lgkmcnt(0)")
    stamp("A", "a4")

    def late_setup():
        A(f"""
s_mul_i32 s{sAC}, s{sCH}, 3277
s_lshr_b32 s{sAC}, s{sAC}, 16
s_mul_i32 s{sGOT}, s{sAC}, 20
s_lshl_b32 s{sAC}, s{sAC}, 8
s_add_u32 s{sAC}, s{sAC}, {C_AF}
s_lshr_b32 s{sUC}, s{sAJ}, 4
s_lshl_b32 s{sUC}, s{sUC}, 8
s_add_u32 s{sUC}, s{sUC}, {C_UT}
s_mov_b64 {S(ONE,2)}, 1
""")
        srd(R_WS, P_WS, WS_SIZE)
        A(f"""
s_lshl_b32 s{sT0}, s{sAJ}, 14
s_add_u32 s{sT0}, s{sT0}, {WS_UT}
s_add_u32 s{R_M1}, s{P_WS}, s{sT0}
s_addc_u32 s{R_M1+1}, s{P_WS+1}, 0
s_mov_b32 s{R_M1+2}, 16384
s_mov_b32 s{R_M1+3}, 0x20000
""")
        make_tag()
        A(f"s_cmp_eq_u32 s{sGOT}, s{sCH}")
        rare(lambda: cnt_init(sAC))
        A("""
v_and_b32 v24, 15, v1
v_lshrrev_b32 v25, 1, v1
v_and_b32 v25, 24, v25
""")
        for wd, first in ((9, 4), (7, 5), (5, 6), (3, 11), (2, 12)):
            A(f"""
v_mov_b32 v26, {((1 << wd) - 1) << first}
v_lshlrev_b32 v26, v24, v26
v_lshrrev_b32 v26, v25, v26
""")
            for p in range(4):
                r = BAND[wd] + p
                A(f"v_bfe_u32 v27, v26, {2*p+1}, 1")
                A(f"v_bfe_u32 v{r}, v26, {2*p}, 1")
                A(f"v_lshl_or_b32 v{r}, v27, 16, v{r}")
                if wd != 2:
                    A(f"v_mul_u32_u24 v{r}, 0x3f80, v{r}")

    BAND = {9: 224, 7: 228, 5: 232, 3: 236, 2: 240}
    stamp("A", "a5")
    A.vwait("par")
    stamp("A", "a6")
    stamp("A", "par")
    A(f"s_setprio {OPT.get('prioK', 0)}")
    if OPT.get("fakea"):
        late_setup()
        for _ in range(OPT["fakea"]):
            A("s_sleep 100")
        A("s_branch L_cend")
    A.c("---- per-mode constants (two modes per lane)")
    A(f"""
s_bitcmp1_b32 s{sCH}, 0
s_cselect_b32 s{sT0}, 0, 16
s_lshl_b32 s70, s70, s{sT0}
s_and_b32 s70, s70, 0xffff0000
s_lshl_b32 s71, s71, s{sT0}
s_and_b32 s71, s71, 0xffff0000
v_mov_b32 v32, {LOG2E:#x}
v_mul_f32 v33, s70, v32
v_exp_f32 v33, v33
""")
    A.vwait("par")
    LA, AI, XR, XI = 34, 36, 38, 40
    for (src, dst) in ((8, LA), (9, AI), (10, XR), (11, XI)):
        A(f"v_lshlrev_b32 v{dst}, 16, v{src}")
        A(f"v_and_b32 v{dst+1}, 0xffff0000, v{src}")
    A(f"""
v_cvt_pk_bf16_f32 v33, v33, v33
v_and_b32 v33, 0xffff0000, v33
v_mul_f32 v{LA}, v32, v{LA}
v_mul_f32 v{LA+1}, v32, v{LA+1}
v_exp_f32 v{LA}, v{LA}
v_exp_f32 v{LA+1}, v{LA+1}
v_mul_f32 v{AI}, v33, v{AI}
v_mul_f32 v{AI+1}, v33, v{AI+1}
v_cvt_pk_bf16_f32 v{LA+1}, v{LA}, v{LA+1}
v_lshlrev_b32 v{LA}, 16, v{LA+1}
v_and_b32 v{LA+1}, 0xffff0000, v{LA+1}
v_mul_f32 v{LA}, v33, v{LA}
v_mul_f32 v{LA+1}, v33, v{LA+1}
v_mul_f32 v{LA}, v32, v{LA}
v_mul_f32 v{LA+1}, v32, v{LA+1}
v_mul_f32 v{AI}, {INV2PI:#x}, v{AI}
v_mul_f32 v{AI+1}, {INV2PI:#x}, v{AI+1}
v_add_f32 v33, v33, v33
v_mul_f32 v{XR}, v33, v{XR}
v_mul_f32 v{XR+1}, v33, v{XR+1}
v_mul_f32 v{XI}, v33, -v{XI}
v_mul_f32 v{XI+1}, v33, -v{XI+1}
""")
    W = {1: 44, 8: 48, 256: 52}
    for p, w in W.items():
        lit = {1: "1.0", 8: "0x41000000", 256: "0x43800000"}[p]
        for n in range(2):
            A(f"v_mul_f32 v{56+n}, {lit}, v{LA+n}")
            A(f"v_mul_f32 v{58+n}, {lit}, v{AI+n}")
        for n in range(2):
            A(f"v_exp_f32 v{56+n}, -v{56+n}")
            A(f"v_fract_f32 v{58+n}, v{58+n}")
        for n in range(2):
            A(f"v_cos_f32 v{w+n}, v{58+n}")
            A(f"v_sin_f32 v{w+2+n}, v{58+n}")
        A(f"v_pk_mul_f32 {V(w,2)}, {V(w,2)}, {V(56,2)}")
        A(f"v_pk_mul_f32 {V(w+2,2)}, {V(w+2,2)}, {V(56,2)}")
    vSW, vSR = 6, 7
    A(f"""
v_lshlrev_b32 v{vSW}, 3, v1
v_add_u32 v{vSW}, s{sLB}, v{vSW}
v_and_b32 v{vSR}, 31, v1
v_mul_u32_u24 v{vSR}, 528, v{vSR}
v_lshrrev_b32 v12, 5, v1
v_lshlrev_b32 v12, 4, v12
v_add3_u32 v{vSR}, v{vSR}, v12, s{sLB}
""")
    pk, pend = [0], []

    def put(reg, rows):
        pend.append((reg, rows))

    def flush(stage=None):
        if pend and stage in (0, None):
            pk[0] += 1
            t, reg = 80 + 2 * (pk[0] % 4), pend[0][0]
            A(f"v_cvt_pk_bf16_f32 v{t+1}, v{reg+2}, v{reg+3}")
            A(f"v_cvt_pk_bf16_f32 v{t}, v{reg}, v{reg+1}")
        if pend and stage in (1, None):
            for r in pend.pop(0)[1]:
                A.l(f"ds_write_b64 v{vSW}, {V(80+2*(pk[0]%4),2)} offset:{528*r}", "st")

    def cmul(d, s, w, conj):
        n1, n2 = ("", " neg_lo:[1,0,0] neg_hi:[1,0,0]") if conj else (" neg_lo:[0,0,1] neg_hi:[0,0,1]", "")
        A(f"v_pk_mul_f32 {V(56,2)}, {V(s+2,2)}, {V(w+2,2)}")
        A(f"v_pk_mul_f32 {V(58,2)}, {V(s+2,2)}, {V(w,2)}")
        flush(0)
        A(f"v_pk_fma_f32 {V(d+2,2)}, {V(s,2)}, {V(w+2,2)}, {V(58,2)}{n2}")
        A(f"v_pk_fma_f32 {V(d,2)}, {V(s,2)}, {V(w,2)}, {V(56,2)}{n1}")
        flush(1)

    A.c("---- X rows")
    g0 = [0, 1, 2, 3, 4, 5, 6, 7, 8, 516, 520, 1032, 1544]
    g1 = [256, 256, 258, 260, 260, 260, 262, 264, 264, 772, 776, 1288, 1800]
    rows = {}
    for g, lst in enumerate((g0, g1)):
        for i, p in enumerate(lst):
            rows.setdefault(p, []).append(8 * (i >> 2) + 4 * g + (i & 3))
    keep = {0: XR, 2: 60, 4: 64, 6: 68, 8: 72}
    put(XR, rows[0])
    cur = XR
    for p in range(1, 9):
        d = keep.get(p, 76)
        cmul(d, cur, W[1], True)
        put(d, rows[p])
        cur = d
    for step in range(1, 8):
        for off in (0, 2, 6, 8, 4):
            p = 256 * step + off
            if p in rows:
                cmul(keep[off], keep[off], W[256], True)
                put(keep[off], rows[p])
    XF, YA = 96, 60
    cmul(YA, W[8], W[8], False)
    assert not pend
    for ks in range(16):
        A.l(f"ds_read_b128 {V(XF+4*ks,4)}, v{vSR} offset:{32*ks}", "xf")
    A.c("---- Y rows")
    A(f"""
v_mov_b32 v24, 0x3f803f80
v_mov_b32 v25, 0
""")
    stamp("A", "xrows")
    A.l(f"ds_write_b64 v{vSW}, {V(24,2)}", "st")
    put(W[8], [1])
    flush()
    put(YA, [2])
    for c in range(3, 32):
        cmul(YA, YA, W[8], False)
        put(YA, [c])
    flush()
    stamp("A", "yrows")
    YF, KD = 160, 68
    L_KF, L_SQ = 4608, 4608 + 2432
    vKW, vKA, vSA, vS4, vS8, vUB, vUD = 3, 8, 10, 11, 12, 4, 2
    fl = L(f"""
v_and_b32 v13, 15, v1
v_and_b32 v14, 0x30, v1
v_lshl_add_u32 v{vUB}, v13, 5, v14
v_add_u32 v{vUB}, s{sLB}, v{vUB}
v_add_u32 v15, 1, v13
v_and_b32 v13, 1, v15
v_lshrrev_b32 v15, 1, v15
v_lshlrev_b32 v15, 2, v15
v_sub_u32 v15, s{sLB}, v15
v_mul_u32_u24 v{vKA}, 1216, v13
v_add3_u32 v{vKA}, v{vKA}, v15, v14
v_add_u32 v{vKA}, {L_KF+32}, v{vKA}
v_add_u32 v{vKA+1}, 64, v{vKA}
v_mul_u32_u24 v{vSA}, 832, v13
v_lshrrev_b32 v14, 1, v14
v_add3_u32 v{vSA}, v{vSA}, v15, v14
v_add_u32 v{vSA}, {L_SQ+32}, v{vSA}
v_and_b32 v13, 1, v1
v_and_b32 v14, 0x3e, v1
v_sub_u32 v14, s{sLB}, v14
v_add_u32 v14, {L_SQ+62}, v14
v_lshl_add_u32 v{vS4}, v13, 8, v14
v_mul_u32_u24 v13, 160, v13
v_add_u32 v{vS8}, v13, v14
v_lshlrev_b32 v13, 4, v1
v_sub_u32 v{vKW}, s{sLB}, v13
v_add_u32 v{vKW}, {L_KF+1072}, v{vKW}
v_add_u32 v13, s{sLB}, v13
s_lshl_b32 s{sT0}, s{SW}, 4
v_lshl_add_u32 v{vUD}, v1, 6, s{sT0}
v_mov_b32 v16, 0
v_mov_b32 v17, 0
v_mov_b32 v18, 0
v_mov_b32 v19, 0
""")
    for ks in range(16):
        A.l(f"ds_read_b128 {V(YF+4*ks,4)}, v{vSR} offset:{32*ks}", f"y{ks}")
        if ks >= 6:
            k2 = ks - 6
            A.lwait(f"y{k2}")
            A(f"v_mfma_f32_32x32x16_bf16 {V(KD,16)}, {V(XF+4*k2,4)}, {V(YF+4*k2,4)}, {'0' if k2==0 else V(KD,16)}")
            for _ in range(4):
                if fl:
                    fl.pop(0)()
    run(fl)
    zero = [lambda: A.l(f"ds_write_b64 v{vSW}, {V(16,2)}", "cv")]
    zero += [(lambda i=i: A.l(f"ds_write_b128 v13, {V(16,4)} offset:{L_KF+1024*i}", "cv")) for i in range(4)]
    for k2 in range(10, 16):
        A.lwait(f"y{k2}")
        A(f"v_mfma_f32_32x32x16_bf16 {V(KD,16)}, {V(XF+4*k2,4)}, {V(YF+4*k2,4)}, {V(KD,16)}")
        if zero:
            zero.pop(0)()
    A(f"""
s_mov_b64 exec, 1
v_add_f32 v{KD}, s71, v{KD}
s_mov_b64 exec, -1
""")
    for c_ in range(2):
        for p in range(4):
            A(f"v_cvt_pk_bf16_f32 v{84+4*c_+p}, v{KD+7+c_-2*p}, v{KD+6+c_-2*p}")
        A.l(f"ds_write_b128 v{vKW}, {V(84+4*c_,4)} offset:{1216*c_}", "cv")
    A(f"""
v_cvt_pk_bf16_f32 v92, v{KD+9}, v{KD+10}
v_cvt_pk_bf16_f32 v93, v{KD+11}, v{KD+12}
v_cvt_pk_bf16_f32 v21, v{KD+8}, v{KD+8}
v_lshrrev_b32 v22, 16, v87
v_and_b32 v20, 0xffff0000, v21
v_mov_b32 v23, s{sLB}
v_readlane_b32 s{sT0}, v92, 63
""")
    for c_ in range(2):
        A.l(f"ds_write_b16 v{vS4}, v92 offset:{32+834*c_}", "cv")
        A.l(f"ds_write_b16_d16_hi v{vS4}, v92 offset:{32+128+834*c_}", "cv")
        A.l(f"ds_write_b16 v{vS8}, v93 offset:{512+64+834*c_}", "cv")
        A.l(f"ds_write_b16_d16_hi v{vS8}, v93 offset:{512+834*c_}", "cv")
    A("s_mov_b64 exec, 1")
    A.l(f"ds_write_b32 v23, v22 offset:{L_KF+1216+1088}", "cv")
    A("s_mov_b32 exec_lo, 0")
    A("s_mov_b32 exec_hi, 0x80000000")
    A.l(f"ds_write_b64 v23, {V(20,2)} offset:{L_KF+56}", "cv")
    A.l(f"ds_write_b32 v23, v21 offset:{L_KF+1216+60}", "cv")
    A("s_mov_b64 exec, -1")
    A(f"s_lshr_b32 s{sT1}, s{sT0}, 16")
    stamp("A", "kdone")
    A(f"s_setprio {OPT.get('prioA', 0)}")
    late_setup()
    for p in range(4):
        A(f"v_mul_u32_u24 v{BAND[2]+p}, s{sT1}, v{BAND[2]+p}")
    only_wave(0, lambda: cnt_read(CQ0, sUC))
    KF, SF = 96, 164
    for m in range(17):
        a_, o = (vKA + 1, 16 * (15 - m)) if m < 16 else (vKA, 0)
        for hh in range(2):
            A.l(f"ds_read2_b32 {V(KF+4*m+2*hh,2)}, v{a_} offset0:{o+2*hh} offset1:{o+2*hh+1}", "kf")
    SFR = {}
    for ty, seqs, ns in (("P", (0, 128), (2, 3, 4)), ("Q", (256, 384), (2, 3, 4)), ("E", (512, 672), (4, 5, 6, 7))):
        for n in ns:
            SFR[ty, n] = SF + 4 * len(SFR)
            for hh in range(2):
                o = (seqs[hh] + 32 * (ns[-1] - n)) // 4
                A.l(f"ds_read2_b32 {V(SFR[ty,n]+2*hh,2)}, v{vSA} offset0:{o} offset1:{o+1}", "kf")
    A.lwait_all()
    only_wave(0, lambda: cnt_wait(CQ0, sUC, 16, sCNT, nap=OPT.get("napu", 4)))
    A("s_barrier")
    A(f"s_setprio {OPT.get('prioR', 3)}")
    USC = ' sc1' if OPT.get('usc', 0) else ''
    for i in range(4):
        A(f"s_add_u32 m0, s{sLB}, {512+1024*i}")
        A(f"s_movk_i32 s{sT0}, {4096*i}")
        A.v(f"buffer_load_dwordx4 v{vUD}, {S(R_M1,4)}, s{sT0} offen{USC} lds", "u")
    stamp("A", "utseen")
    A(f"s_setprio {OPT.get('prioA', 0)}")
    A.vwait("u")
    stamp("A", "cstart")
    if OPT.get("noconv"):
        finish("A")
        return
    A.c("---- convolution. Lags < 515: Toeplitz tiles of K times input blocks. Beyond that K is constant over runs of")
    A.c("---- the rounded position: window sums of the input (0/1 band matrices) times the decimated K.")
    CA = 16
    UR, NUR, LOOK = 48, 8, 6
    GU = [80, 88]
    DD, ZZ = [204, 212], [220, 244]
    started = set()

    def mfma(d, a_, b_, key=None):
        c = "0" if key is None or key not in started else V(d, 4)
        started.add(key)
        A(f"v_mfma_f32_16x16x32_bf16 {V(d,4)}, {V(a_,4)}, {V(b_,4)}, {c}")

    ufr = [(r, n) for r in range(8) for n in range(8)]
    fine = []
    for i, (r, n) in enumerate(ufr):
        for mu, a_ in ((0, KF + 4 * r), (1, KF + 4 * (8 + r)), (2, KF + 64), (4, BAND[2])):
            if mu + n <= 7 and (mu < 2 or r == 0):
                fine.append((i, mu + n, a_))
    uread = lambda i: A.l(f"ds_read_b128 {V(UR+4*(i%NUR),4)}, v{vUB} offset:{32+512*ufr[i][1]+64*(7-ufr[i][0])}", f"u{i}")
    gread = lambda mu: [(lambda h=h: A.l(f"ds_read_b128 {V(GU[mu&1]+4*h,4)}, v{vUB} offset:{480+512*mu-16*h}", f"g{mu}")) for h in range(2)]
    ops = [(mu, ty) for mu in range(6) for ty in "PQE" if ty != "E" or mu < 4]
    HALF = {"P": ((0, 3), (0, 5)), "Q": ((1, 3), (1, 5)), "E": ((0, 7), (1, 9))}
    extra, fill = {}, {}
    for j, (mu, ty) in enumerate(ops):
        p = 2 + 8 * j
        d, z = DD[j & 1], ZZ[j & 1]

        def build(mu=mu, ty=ty, d=d):
            A.lwait(f"g{mu}")
            for h, (uf, wd) in enumerate(HALF[ty]):
                mfma(d + 4 * h, GU[mu & 1] + 4 * uf, BAND[wd])

        def use(mu=mu, ty=ty, z=z):
            for (t_, n), f_ in SFR.items():
                if t_ == ty and mu + n <= 7:
                    mfma(CA + 4 * (mu + n), z, f_, mu + n)
        extra.setdefault(p, []).append(build)
        extra.setdefault(min(p + 7, len(fine) - 1), []).insert(0, use)
        for q in range(4):
            fill.setdefault(p + 4 + q // 2, []).append(lambda q=q, d=d, z=z: A(f"v_cvt_pk_bf16_f32 v{z+q}, v{d+2*q}, v{d+2*q+1}"))
        if ty == "Q" and mu < 5:
            fill.setdefault(p + 1, []).extend(gread(mu + 1))
    for i in range(2):
        uread(i)
    run(gread(0))
    for i in range(2, LOOK):
        uread(i)
    nread = LOOK
    for k, (i, n, a_) in enumerate(fine):
        A.lwait(f"u{i}")
        mfma(CA + 4 * n, a_, UR + 4 * (i % NUR), n)
        if nread < len(ufr) and nread <= i + LOOK:
            uread(nread)
            nread += 1
        run(fill.pop(k, []))
        run(extra.pop(k, []))
        if OPT.get("go", 0) and k == OPT.get("gok", 40):
            A(f"s_lshl_b32 s{sT0}, s{sAJ}, 8")
            A(f"s_add_u32 s{sT0}, s{sT0}, {C_GO+96*256}")
            stamp("A", "pause")
            cnt_wait(CQ0, sT0, 0, sCNT, probed=False, nap=OPT.get("napg", 2))
            stamp("A", "go")
    assert not fill and not extra and nread == 64
    A("L_cend:")
    A(f"s_setprio {OPT.get('prioR', 3)}")
    stamp("A", "cend")
    A(f"""
v_and_b32 v2, 15, v1
v_lshlrev_b32 v2, 5, v2
v_bfe_u32 v3, v1, 4, 1
v_lshl_add_u32 v2, v3, 9, v2
v_lshrrev_b32 v3, 5, v1
v_lshl_add_u32 v2, v3, 4, v2
s_lshl_b32 s{sT0}, s{sCH}, 12
s_add_u32 s{sT0}, s{sT0}, {WS_AT}
""")
    for q in range(640):
        assert (q * 3277) >> 16 == q // 20
    A.lwait_all()
    for n in range(0, 8, 2):
        d = 48 + 2 * n
        for i in range(4):
            A(f"v_cvt_pk_bf16_f32 v{d+i}, v{CA+4*n+2*i}, v{CA+4*n+2*i+1}")
    for n in range(0, 8, 2):
        d = 48 + 2 * n
        A(f"v_permlane16_swap_b32 v{d}, v{d+2}")
        A(f"v_permlane16_swap_b32 v{d+1}, v{d+3}")
        A.v(f"buffer_store_dwordx4 {V(d,4)}, v2, {S(R_WS,4)}, s{sT0} offen offset:{512*n} sc1", "ast")
    A.vwait("ast")
    cnt_arrive(CQ1, sAC)
    A("s_waitcnt lgkmcnt(0)")
    cnt_verify(CQ1, sAC, sCNT)
    finish("A")


def role_R():
    CQ0 = 20
    A("L_ep:")
    A("s_waitcnt lgkmcnt(0)")
    load_epoch()
    A("s_waitcnt lgkmcnt(0)")
    make_tag()
    srd(R_WS, P_WS, WS_SIZE)
    cnt_wait(CQ0, str(C_KV), 16, sCNT, probed=False, nap=32)
    cnt_wait(CQ0, str(C_AF), 20, sCNT, probed=False, nap=16)
    A(f"""
v_and_b32 v1, 63, v0
v_lshlrev_b32 v2, 8, v1
v_add_u32 v3, {C_AF}, v2
v_add_u32 v4, {C_WO-32*256}, v2
v_cmp_gt_u32 vcc, 32, v1
v_cndmask_b32 v3, v4, v3, vcc
v_lshlrev_b32 v4, 10, v1
v_add_u32 v4, {C_KV-40*1024}, v4
v_cmp_gt_u32 vcc, 40, v1
v_cndmask_b32 v3, v4, v3, vcc
v_cndmask_b32 v6, 16, 20, vcc
v_mov_b32 v7, s{TAG+1}
v_add_co_u32 v6, vcc, s{TAG}, v6
v_addc_co_u32 v7, vcc, 0, v7, vcc
s_mov_b32 exec_hi, 0xffffff
s_mov_b32 s{sCNT}, 0
L_epl:
v_mov_b32 v4, 0
v_mov_b32 v5, 0
buffer_atomic_add_x2 v[4:5], v3, {S(R_WS,4)}, 0 offen sc0 sc1
s_add_u32 s{sCNT}, s{sCNT}, 1
s_waitcnt vmcnt(0)
v_cmp_ne_u64 vcc, v[4:5], v[6:7]
s_cbranch_vccz L_epd
s_sleep 16
s_cmp_lt_u32 s{sCNT}, {SPIN}
s_cbranch_scc1 L_epl
L_epd:
""")
    A(f"s_atomic_swap_x2 {S(TAG,2)}, {S(P_WS,2)}, {WS_EPOCH}")
    A("s_endpgm")


if "B" in OPT["roles"]:
    role_B()
else:
    A("L_B:\ns_endpgm")
A("L_A:")
if "A" in OPT["roles"]:
    role_A()
else:
    A("s_endpgm")
role_R()
A.lines += TAIL
A("L_codeend:")
lines, nn = pad_hazards(A.lines, verbose=False)
if OPT.get("align", 1):
    lines, cnt_, cost_ = align8(lines)
    print("align:", cnt_, cost_, file=sys.stderr)
hdr = open("gated_mix__ssm_conv_s4d__linear_kernel_hedgehog__prompt.s.ref").read().split("; Override launch")[0]
print(hdr + f"; @launch grid=({ID_END},1,1) block=(256,1,1) lds=81920")
print("\n".join(lines))
print(f""".section .rodata,"a"
.p2align 6
.amdhsa_kernel {KN}
  .amdhsa_next_free_vgpr 256
  .amdhsa_next_free_sgpr 102
  .amdhsa_accum_offset 256
  .amdhsa_group_segment_fixed_size 0
  .amdhsa_kernarg_size 120
  .amdhsa_user_sgpr_count 2
  .amdhsa_user_sgpr_kernarg_segment_ptr 1
  .amdhsa_system_sgpr_workgroup_id_x 1
.end_amdhsa_kernel""")
json.dump(stampnames, open("stamps.json", "w"))
print(f"pad states inserted: {nn}", file=sys.stderr)
```

```python
import sys, json
from asmlib import *

KN = "gated_mix__ssm_conv_s4d__linear_kernel_hedgehog__prompt_kernel"
OPT = dict(stamps=0, dump=0, roles="RAB")
for a_ in sys.argv[1:]:
    k_, v_ = a_.split("=")
    OPT[k_] = int(v_) if v_.lstrip("-").isdigit() else v_

C_KW, C_QW, C_WO, C_UT, C_AF, C_KV, C_O = [256 * n for n in (0, 32, 48, 56, 80, 112, 176)]
C_GO = 256 * 304
WS_EPOCH = 0x30000
WS_WKV = 0xD00000
WS_WQ = 0xF00000
WS_WO = 0x100000
WS_KVP = 0x200000
WS_UT = 0x300000
WS_AT = 0x600000
WS_O = 0x900000
WS_STAMP = 0xC00000
WS_DUMP = 0x1000000
WS_SIZE = 0x4000000 if OPT["dump"] else 0x1000000

ID_A, ID_B, ID_END = 8, 168, 424
SPIN = 1 << 17
LOG2E = 0x3FB8AA3B
INV2PI = 0x3E22F983

P_U, P_LOGA, P_AIM, P_CRE, P_CIM, P_LOGDT, P_DSK = 4, 6, 8, 10, 12, 14, 16
P_WQKV, P_WPHI, P_WO, P_GATE, P_OUT, P_DBG, P_WS = 20, 22, 24, 26, 28, 30, 32
R_X, R_W, R_WS, R_DBG, R_M1, R_M2 = 36, 40, 44, 48, 52, 56
SW = 3
TAG = 34
ST0 = 76

A = Asm()
stampnames = {}
_lab = [0]


def srd(r, p, size):
    A(f"s_mov_b32 s{r}, s{p}")
    A(f"s_mov_b32 s{r+1}, s{p+1}")
    A(f"s_mov_b32 s{r+2}, {size}")
    A(f"s_mov_b32 s{r+3}, 0x20000")


def load_epoch():
    A(f"s_load_dwordx2 {S(TAG,2)}, {S(P_WS,2)}, {WS_EPOCH}")


def make_tag():
    A(f"s_add_u32 s{TAG}, s{TAG}, 0x7f4a7c15")
    A(f"s_addc_u32 s{TAG+1}, s{TAG+1}, 0x9e3779b9")


def cnt_read(r, soff):
    A(f"s_mov_b64 {S(r,2)}, 0")
    A(f"s_atomic_add_x2 {S(r,2)}, {S(P_WS,2)}, {soff if isinstance(soff, str) else 's%d' % soff} glc")


def cnt_peek(r, soff):
    A(f"s_load_dwordx2 {S(r,2)}, {S(P_WS,2)}, s{soff} glc")


def cnt_claim(q, soff):
    A(f"""
s_sub_u32 s{q}, s{q+2}, s{TAG}
s_subb_u32 s{q+1}, s{q+3}, s{TAG+1}
s_lshr_b32 s{q}, s{q}, 16
s_or_b32 s{q}, s{q}, s{q+1}
s_cselect_b64 {S(q,2)}, {S(TAG,2)}, {S(q+2,2)}
s_atomic_cmpswap_x2 {S(q,4)}, {S(P_WS,2)}, s{soff} glc
""")


TAIL = []


def rare(f):
    _lab[0] += 1
    k = _lab[0]
    A(f"s_cbranch_scc1 L_slow{k}")
    A(f"L_back{k}:")
    main, A.lines = A.lines, []
    A(f"L_slow{k}:")
    f()
    A(f"s_branch L_back{k}")
    TAIL.extend(A.lines)
    A.lines = main


def cnt_arrive(r, soff):
    A(f"s_mov_b64 {S(r,2)}, 1")
    A(f"s_atomic_add_x2 {S(r,2)}, {S(P_WS,2)}, s{soff} glc")


def cnt_verify(r, soff, scnt):
    def untagged():
        A(f"""
s_sub_u32 s{r}, s{r}, s{TAG}
s_subb_u32 s{r+1}, s{r+1}, s{TAG+1}
s_lshr_b32 s{r}, s{r}, 8
s_or_b32 s{r}, s{r}, s{r+1}
""")

    def again():
        _lab[0] += 1
        k = _lab[0]
        A(f"s_mov_b32 s{scnt}, 0")
        A(f"L_ag{k}:")
        A("s_sleep 2")
        cnt_arrive(r, soff)
        A(f"""
s_add_u32 s{scnt}, s{scnt}, 1
s_cmp_ge_u32 s{scnt}, {SPIN}
s_waitcnt lgkmcnt(0)
s_cbranch_scc1 L_agd{k}
""")
        untagged()
        A(f"s_cbranch_scc1 L_ag{k}")
        A(f"L_agd{k}:")
    untagged()
    rare(again)


def cnt_add(one, soff):
    A(f"s_atomic_add_x2 {S(one,2)}, {S(P_WS,2)}, s{soff}")


def cnt_init(soff):
    A(f"s_atomic_swap_x2 {S(TAG,2)}, {S(P_WS,2)}, s{soff}")


def cnt_test(r, n, low=False):
    A(f"s_sub_u32 s{r}, s{r}, s{TAG}")
    A(f"s_subb_u32 s{r+1}, s{r+1}, s{TAG+1}")
    if low:
        A(f"s_and_b32 s{r}, s{r}, 0xffff00ff")
    A(f"s_xor_b32 s{r}, s{r}, {n}")
    A(f"s_or_b32 s{r}, s{r}, s{r+1}")


def cnt_wait(r, soff, n, scnt, probed=True, low=False, nap=0):
    _lab[0] += 1
    k = _lab[0]
    if probed:
        cnt_test(r, n, low)
        A(f"s_cbranch_scc0 L_got{k}")
    A(f"s_mov_b32 s{scnt}, 0")
    A(f"L_spin{k}:")
    cnt_read(r, soff)
    A(f"""
s_add_u32 s{scnt}, s{scnt}, 1
s_cmp_ge_u32 s{scnt}, {SPIN}
s_waitcnt lgkmcnt(0)
s_cbranch_scc1 L_got{k}
""")
    cnt_test(r, n, low)
    if nap:
        A(f"s_cbranch_scc0 L_got{k}")
        A(f"s_sleep {nap}")
    A(f"s_cbranch_scc1 L_spin{k}")
    A(f"L_got{k}:")


def cnt_async(r, t, soff, n, scnt, outline=False, **kw):
    A(f"s_sub_u32 s{t}, s{r}, s{TAG}")
    A(f"s_subb_u32 s{t+1}, s{r+1}, s{TAG+1}")
    A(f"s_xor_b32 s{t}, s{t}, {n}")
    A(f"s_or_b32 s{t}, s{t}, s{t+1}")
    slow = lambda: (A("s_waitcnt lgkmcnt(0)"), cnt_wait(r, soff, n, scnt, **kw))
    if outline:
        rare(slow)
    else:
        _lab[0] += 1
        k = _lab[0]
        A(f"s_cbranch_scc0 L_as{k}")
        slow()
        A(f"L_as{k}:")


def cnt_probe(q, soff, first=False):
    if first:
        A(f"s_mov_b64 {S(q,2)}, 0")
    A(f"s_atomic_umax_x2 {S(q,2)}, {S(P_WS,2)}, s{soff} glc")


def cnt_poll2(r, t, soff, n, scnt, low=False):
    _lab[0] += 1
    k = _lab[0]

    def test(o):
        A(f"s_mov_b64 {S(t,2)}, {S(o,2)}")
        cnt_test(t, n, low)
        A(f"s_cbranch_scc0 L_p2e{k}")
    test(r)
    test(r + 2)
    A(f"s_mov_b32 s{scnt}, 0")
    A(f"L_p2{k}:")
    for q in (r, r + 2):
        A("s_waitcnt lgkmcnt(2)")
        test(q)
        cnt_probe(q, soff)
    A(f"""
s_add_u32 s{scnt}, s{scnt}, 1
s_cmp_lt_u32 s{scnt}, {SPIN}
s_cbranch_scc1 L_p2{k}
L_p2e{k}:
""")


def lwait_lds(vt, va, n=6):
    for _ in range(n):
        A(f"ds_read_b32 v{vt}, v{va}")
    A(f"s_waitcnt lgkmcnt({n})")
    A.lg = ["_"] * n


def only_wave(w, f):
    _lab[0] += 1
    k = _lab[0]
    A(f"s_cmp_lg_u32 s{SW}, {w}")
    A(f"s_cbranch_scc1 L_ow{k}")
    f()
    A(f"L_ow{k}:")


def stamp(role, name):
    if not OPT["stamps"]:
        return
    if OPT.get("only") and name not in ("end",) and name not in OPT["only"].split("+"):
        return
    l = stampnames.setdefault(role, [])
    assert len(l) < 12
    A(f"{'s_memtime' if OPT.get('cyc') else 's_memrealtime'} {S(ST0 + 2*len(l), 2)}")
    l.append(name)
    if OPT.get("both") and len(l) < 12:
        A(f"s_memtime {S(ST0 + 2*len(l), 2)}")
        l.append(name + "_c")


def finish(role):
    if OPT["stamps"]:
        stamp(role, "end")
        A("s_waitcnt lgkmcnt(0)")
        if OPT.get("leak") and role == "B":
            i_ = stampnames[role].index(OPT["leak"])
            e_ = ST0 + 2 * (len(stampnames[role]) - 1)
            A(f"""
s_cmp_lg_u32 s2, {ID_B + OPT.get('leakwg', 0)}
s_cbranch_scc1 L_noleak
s_sub_u32 s60, s{ST0+2*i_}, s{ST0+2*stampnames[role].index(OPT.get('leakfrom', 'start'))}
s_mul_i32 s60, s60, {OPT.get('leakmul', 1)}
s_min_u32 s60, s60, 20000
L_leak:
s_memrealtime s[62:63]
s_waitcnt lgkmcnt(0)
s_sub_u32 s62, s62, s{e_}
s_cmp_lt_u32 s62, s60
s_cbranch_scc1 L_leak
L_noleak:
s_endpgm
""")
        A("s_mov_b64 exec, -1")
        A("v_mov_b32 v1, 0")
        for i in range(len(stampnames[role])):
            A(f"v_writelane_b32 v1, s{ST0+2*i}, {i}")
        A("v_and_b32 v2, 63, v0")
        A("v_lshlrev_b32 v2, 2, v2")
        A("s_lshl_b32 s60, s2, 2")
        A(f"s_add_u32 s60, s60, s{SW}")
        A("s_lshl_b32 s60, s60, 6")
        A(f"s_add_u32 s60, s60, {WS_STAMP}")
        A("s_mov_b64 exec, 0xffff")
        A(f"buffer_store_dword v1, v2, {S(R_WS,4)}, s60 offen")
        if OPT.get("dbg") and role == "B":
            A(f"""
s_cmp_lg_u32 s{SW}, 0
s_cbranch_scc1 L_nodbg
s_load_dwordx2 s[60:61], s[0:1], 104
s_not_b32 s62, s{ST0}
v_writelane_b32 v1, s62, 15
s_waitcnt lgkmcnt(0)
global_atomic_umax v2, v1, s[60:61]
L_nodbg:
""")
    A("s_endpgm")
    A.vm, A.lg = [], []


def set_exec(mask):
    if mask == -1 or mask < (1 << 31):
        A(f"s_mov_b64 exec, {mask}")
    else:
        A(f"s_mov_b32 exec_lo, {mask & 0xffffffff:#x}")
        A(f"s_mov_b32 exec_hi, {mask >> 32:#x}")


def dump(regs, slot, vtmp):
    if not OPT["dump"]:
        return
    A(f"v_lshlrev_b32 v{vtmp}, 2, v0")
    A(f"s_sub_u32 s74, s2, {ID_B}")
    A(f"s_mul_i32 s74, s74, {32*1024}")
    A(f"s_add_u32 s74, s74, {WS_DUMP + slot*0x800000}")
    assert len(regs) <= 32
    for r in regs:
        A.v(f"buffer_store_dword v{r}, v{vtmp}, {S(R_WS,4)}, s74 offen", "dump")
        A("s_add_u32 s74, s74, 1024")
    A.vwait_all()


A(f"""
.amdgcn_target "amdgcn-amd-amdhsa--gfx950"
.text
.globl {KN}
.p2align 12
.type {KN},@function
{KN}:
s_load_dwordx16 s[4:19], s[0:1], 0
s_load_dwordx8 s[20:27], s[0:1], 64
s_load_dwordx4 s[28:31], s[0:1], 96
s_load_dwordx2 s[32:33], s[0:1], 112
""")
if OPT["stamps"]:
    A(f"{'s_memtime' if OPT.get('cyc') else 's_memrealtime'} {S(ST0,2)}")
    for r_ in ("B", "A"):
        stampnames[r_] = ["start"]
if OPT.get("rot8"):
    A(f"s_add_u32 s60, s2, {OPT['rot8']}\ns_and_b32 s60, s60, 7\ns_andn2_b32 s2, s2, 7\ns_or_b32 s2, s2, s60")
A(f"""
v_lshrrev_b32 v1, 6, v0
s_cmp_ge_u32 s2, {ID_B}
v_readfirstlane_b32 s{SW}, v1
s_cbranch_scc1 L_B
s_setprio {OPT.get('prioR', 3)}
s_cmp_ge_u32 s2, {ID_A}
s_cbranch_scc1 L_A
""")
A.c("---- code prefetch into L2 (one workgroup per die)")
A(f"""
s_getpc_b64 s[60:61]
L_pc:
v_lshlrev_b32 v2, 7, v0
v_min_u32 v2, L_codeend-L_pc-4, v2
""")
if OPT.get("pfc", 1):
    A("global_load_dword v3, v2, s[60:61]")
A(f"""
s_or_b32 s60, s2, s{SW}
s_cbranch_scc0 L_ep
L_exit:
s_endpgm
""")
A_HEAD = len(A.lines)

sST, sHP, sB, sCT = 60, 61, 62, 63
sT0, sT1, sT2, sT3 = 64, 65, 66, 67
sEV, sLO = 68, 70
sCNT, sWOFF = 72, 73
sL2E = 48
sJ, sOWN, sXL = 50, 51, 68
XB, ACC, WF, NWF = 96, 56, 16, 7
vXA, vXR = 8, 10
ONE, CQ0, CQ1, CQ2 = 6, 8, 12, 16
vGA, vKT, vOT, vOA, ID, vGW = 1, 3, 5, 6, 44, 48
vPA, vPA1, vPW, vVW, vKA, vL16, vL8 = 49, 50, 51, 52, 53, 54, 55
LDS_X = 40960
LDS_PV, LDS_WP, LDS_Z, LDS_GATE = 0, 77824, 79424, 80384
LDS_QA, LDS_QB = 40960, 16384
LDS_AT, LDS_KVT, LDS_RED = 0, 10240, 13824


def Xr(c, sg, j):
    return XB + 32 * c + 8 * j + 4 * sg


def L(text):
    return [(lambda l=l: A(l)) for l in (x.strip() for x in text.strip().split("\n")) if l]


def run(lst):
    while lst:
        lst.pop(0)()


class Stream:
    def __init__(self, budget=3):
        self.ev, self.now, self.q, self.budget = {}, {}, [], budget

    def at(self, k, fs):
        self.ev.setdefault(k, []).extend(fs if isinstance(fs, list) else [fs])

    def exact(self, k, f):
        self.now.setdefault(k, []).append(f)

    def run(self, mm, reserve=lambda k: k & 1):
        for k, m in enumerate(mm):
            m()
            j = max(i for i in range(len(A.lines)) if "v_mfma" in A.lines[i] and i >= len(A.lines) - 12)
            self.q += self.ev.pop(k, [])
            while self.q and len(A.lines) - 1 - j < self.budget - reserve(k):
                self.q.pop(0)()
            if k in self.now:
                run(self.q)
                run(self.now.pop(k))
        run(self.q)
        assert not self.ev and not self.now


def flat(items):
    o = []
    for pre, ld in items:
        o += L(pre) + [ld]
    return o


def dma_addr(v, i, div, fields, extra, t0, vl):
    t1, t2 = t0 + 1, t0 + 2
    magic = {10: 6554, 5: 13108}[div]
    for q in range(1280):
        assert (q * magic) >> 16 == q // div
    o = []
    if i:
        o.append(f"v_add_u32 v{t0}, {64*i}, v{vl}")
    q_ = t0 if i else vl
    o.append(f"v_mul_u32_u24 v{t1}, {magic}, v{q_}")
    o.append(f"v_lshrrev_b32 v{t1}, 16, v{t1}")
    o.append(f"v_mad_i32_i24 v{t0}, v{t1}, -{div}, v{q_}")
    for n, (sb, w, db) in enumerate(fields):
        if n == 0:
            assert db == 0
            o.append(f"v_bfe_u32 v{v}, v{t1}, {sb}, {w}")
        else:
            o.append(f"v_bfe_u32 v{t2}, v{t1}, {sb}, {w}")
            o.append(f"v_lshl_or_b32 v{v}, v{t2}, {db}, v{v}")
    o.append(f"v_mul_u32_u24 v{v}, 240, v{v}")
    if extra:
        o.append(f"v_add_u32 v{t2}, 3, v{t0}")
        o.append(f"v_lshrrev_b32 v{t2}, 3, v{t2}")
        o.append(f"v_mul_u32_u24 v{t2}, {extra//16}, v{t2}")
        o.append(f"v_add3_u32 v{v}, v{v}, v{t0}, v{t2}")
        o.append(f"v_lshlrev_b32 v{v}, 4, v{v}")
    else:
        o.append(f"v_add_lshl_u32 v{v}, v{v}, v{t0}, 4")
    return "\n".join(o)


def softmax(P, E, OUT, tm, hook, ratio=False):
    mx, mn, acc, keep = tm, tm + 1, tm + 2, tm + 4
    A(f"v_max3_f32 v{mx}, v{P[0]}, v{P[1]}, v{P[2]}")
    A(f"v_min3_f32 v{mn}, v{P[0]}, v{P[1]}, v{P[2]}")
    for i in range(3, 19, 2):
        A(f"v_max3_f32 v{mx}, v{mx}, v{P[i]}, v{P[i+1]}")
        A(f"v_min3_f32 v{mn}, v{mn}, v{P[i]}, v{P[i+1]}")
    A(f"v_max_f32 v{mx}, v{mx}, v{P[19]}")
    A(f"v_min_f32 v{mn}, v{mn}, v{P[19]}")
    A(f"v_mul_f32 v{mx}, s{sL2E}, v{mx}")
    A(f"v_mul_f32 v{mn}, s{sL2E}, v{mn}")
    for half in range(2):
        D = E if half == 0 else P
        for i in range(0, 20, 2):
            for n in range(2):
                if half == 0:
                    A(f"v_fma_f32 v{D[i+n]}, v{P[i+n]}, s{sL2E}, -v{mx}")
                else:
                    A(f"v_fma_f32 v{D[i+n]}, -v{P[i+n]}, s{sL2E}, v{mn}")
            if i >= 4:
                for n in range(2):
                    A(f"v_add_f32 v{acc+n}, v{D[n] if i==4 else acc+n}, v{D[i-2+n]}")
            for n in range(2):
                A(f"v_exp_f32 v{D[i+n]}, v{D[i+n]}")
                hook(30 * half + i + n)
        A(f"v_add_f32 v{acc}, v{acc}, v{acc+1}")
        A(f"v_add_f32 v{acc}, v{acc}, v{D[18]}")
        plain = ratio and half == 0
        A(f"v_add_f32 v{keep if plain else acc}, v{acc}, v{D[19]}")
        if not plain:
            A(f"v_rcp_f32 v{acc}, v{acc}")
            if ratio:
                A(f"v_mul_f32 v{acc}, v{keep}, v{acc}")
        for i in range(0, 20, 2):
            if not plain:
                for n in range(2):
                    A(f"v_mul_f32 v{D[i+n]}, v{acc}, v{D[i+n]}")
            A(f"v_cvt_pk_bf16_f32 v{OUT+10*half+i//2}, v{D[i]}, v{D[i+1]}")
            hook(30 * half + 20 + i // 2)


class Hooks:
    def __init__(self):
        self.ev, self.q = {}, []

    def at(self, n, fs, burst=False):
        fs = fs if isinstance(fs, list) else [fs]
        self.ev.setdefault(n, []).extend([lambda fs=fs: run(fs)] if burst else fs)

    def __call__(self, n):
        self.q += self.ev.pop(n, [])
        if self.q:
            self.q.pop(0)()
        if n == 59:
            run(self.q)
            assert not self.ev


def scale(d, r, pk):
    if pk:
        A(f"v_pk_mul_f32 {V(d,2)}, {V(d,2)}, {V(r,2)}")
    else:
        A(f"v_mul_f32 v{d}, v{r}, v{d}")
        A(f"v_mul_f32 v{d+1}, v{r}, v{d+1}")


PHI = 8


def phi_frags(pf, vaddr, tag):
    o = []
    for t in range(3):
        for h in range(2):
            r = pf + 4 * t + 2 * h
            if t == 2 and h == 1:
                o += L(f"v_mov_b32 v{r}, 0\nv_mov_b32 v{r+1}, 0")
            else:
                o.append(lambda r=r, t=t, h=h: A.l(f"ds_read_b64_tr_b16 {V(r,2)}, v{vaddr} offset:{320*t+160*h}", tag))
    return o


def phi_mfma(t, op, pf0, pf1, pk0, pk1):
    A(f"v_mfma_f32_16x16x32_bf16 {V(pk1,4)}, {V(pf1+4*t,4)}, {V(op,4)}, {'0' if t==0 else V(pk1,4)}")
    A(f"v_mfma_f32_32x32x16_bf16 {V(pk0,16)}, {V(pf0+4*t,4)}, {V(op,4)}, {'0' if t==0 else V(pk0,16)}")


class FragPipe:
    def __init__(self, vaddr, look=OPT.get('look', 5), phase=0):
        self.vaddr, self.look, self.phase = vaddr, look, phase

    def stream(self, frags, acc):
        reads = [(lambda i=i, o=o: A.l(f"ds_read_b128 {V(WF+4*((i+self.phase)%NWF),4)}, v{self.vaddr} offset:{o}", f"f{i}")) for i, (ks, t, o) in enumerate(frags)]
        out = []
        for i, (ks, t, o) in enumerate(frags):
            for sg in range(2):
                def m(i=i, ks=ks, t=t, sg=sg):
                    if i == 0 and sg == 0:
                        for _ in range(self.look):
                            reads.pop(0)()
                    if sg == 0:
                        A.lwait(f"f{i}")
                    d = V(acc + 8 * t + 4 * sg, 4)
                    A(f"v_mfma_f32_16x16x32_bf16 {d}, {V(WF+4*((i+self.phase)%NWF),4)}, {V(Xr(ks//4,sg,ks%4),4)}, {'0' if ks==0 else d}")
                    if reads and sg == 0:
                        reads.pop(0)()
                out.append(m)
        return out


def role_B():
    A.c("---- B prologue")
    sXO, sWO2, sQO, sKW, sKF, sOF, sWC, sUT = 69, 70, 71, 74, 30, 31, 24, 25
    sKS, sRH, sUS, sKA, sUO, sROLE = 100, 101, 72, 18, 20, 49
    A(f"""
L_B:
s_cmp_ge_u32 s2, {ID_END}
s_cbranch_scc1 L_exit
s_setprio {OPT.get('prioB', 2)}
s_sub_u32 s{sT0}, s2, {ID_B}
s_bfe_u32 s{sB}, s{sT0}, 0x10002
s_and_b32 s{sST}, s{sT0}, 3
s_lshl_b32 s{sT3}, s{SW}, 10
""")
    NT = " nt" if OPT.get("nt", 0) else ""
    vU = 80
    IS_Q, IS_IDLE = f"s_cmp_ge_u32 s{sROLE}, 20", f"s_cmp_ge_u32 s{sROLE}, 30"
    A(f"""
s_add_u32 s{sKS}, s{sT0}, 160
s_bfe_u32 s{sROLE}, s{sKS}, 0x50003
s_bfe_u32 s{sKS}, s{sKS}, 0x60002
s_mul_i32 s{sUS}, s{sKS}, {16*3840}
s_add_u32 s{sUS}, s{sUS}, 1280
s_sub_u32 s{sT1}, s{sKS}, 40
s_mul_i32 s{sT2}, s{sT1}, {32*3840}
s_movk_i32 s{sJ}, 80
{IS_Q}
s_cselect_b32 s{sKS}, s{sT1}, s{sKS}
s_cselect_b32 s{sUS}, s{sT2}, s{sUS}
s_cselect_b32 s{sT2}, 3840, s{sJ}
v_bfe_u32 v2, v0, 3, 4
v_lshrrev_b32 v3, 4, v0
v_xor_b32 v3, v3, v0
v_and_b32 v3, 7, v3
v_mul_u32_u24 v2, 240, v2
v_lshrrev_b32 v4, 7, v0
v_mad_u32_u24 v2, v4, s{sT2}, v2
v_add_lshl_u32 v{vU}, v2, v3, 4
s_mul_i32 s{sT1}, s{sST}, 320
s_and_b32 s{sT1}, s{sT1}, 0xffffff80
s_add_u32 s{sUS}, s{sUS}, s{sT1}
s_waitcnt lgkmcnt(0)
""")
    srd(R_W, P_WQKV, 2457600)
    A(IS_IDLE)
    A("s_cbranch_scc1 L_e0")
    for j_ in range(3):
        A(f"s_add_u32 m0, s{sT3}, {4096*j_}")
        A(f"s_add_u32 s{sT1}, s{sUS}, {128*j_}")
        A.v(f"buffer_load_dwordx4 v{vU}, {S(R_W,4)}, s{sT1} offen{NT} lds", "uk")
    A(f"""
L_e0:
s_lshl_b32 s{sRH}, s{sST}, 2
s_add_u32 s{sRH}, s{sRH}, s{SW}
s_bfe_u32 s{sT1}, s{sT0}, 0x20003
s_lshr_b32 s{sCT}, s{sT0}, 5
s_sub_u32 s{sCT}, 7, s{sCT}
s_lshl_b32 s{sST}, s{sST}, 2
s_add_u32 s{sST}, s{sST}, s{sT1}
s_lshl_b32 s{sHP}, s{sB}, 3
s_add_u32 s{sHP}, s{sHP}, s{sCT}
s_cmp_eq_u32 s{sB}, 0
s_mov_b32 s{sJ}, 0x75319951
s_cselect_b32 s{sJ}, 0x64208840, s{sJ}
s_lshl_b32 s{sT2}, s{sCT}, 2
s_lshr_b32 s{sJ}, s{sJ}, s{sT2}
s_and_b32 s{sJ}, s{sJ}, 15
s_mul_i32 s{sT1}, s{sT1}, 3
s_add_u32 s{sJ}, s{sJ}, s{sT1}
s_sub_u32 s{sT1}, s{sJ}, 10
s_min_u32 s{sJ}, s{sJ}, s{sT1}
v_bfe_u32 v2, v0, 3, 3
v_lshl_add_u32 v2, v1, 5, v2
v_mul_u32_u24 v{vXA}, 1280, v2
v_bfe_u32 v2, v0, 4, 2
v_and_b32 v3, 7, v0
v_xor_b32 v2, v2, v3
s_mul_i32 s{sT1}, s{sST}, 163840
v_lshl_add_u32 v{vXA}, v2, 4, v{vXA}
v_add_u32 v{vXA}, s{sT1}, v{vXA}
v_xor_b32 v{vXA+1}, 64, v{vXA}
v_add_u32 v{vXA+1}, {10240-1024}, v{vXA+1}
s_lshl_b32 s{sXL}, s{SW}, 13
s_lshl_b32 s{sXO}, s{sJ}, 7
s_mul_i32 s{sWO2}, s{sJ}, 10240
s_add_u32 s{sWO2}, s{sWO2}, s{sT3}
s_mul_i32 s{sQO}, s{sJ}, 6144
s_add_u32 s{sQO}, s{sQO}, s{sT3}
s_mov_b32 s{sL2E}, {LOG2E:#x}
""")
    t0, t1, t2, t3 = 56, 57, 58, 59
    a0, a1, a2, a3 = 56, 57, 58, 59
    m0_, m1_ = S(56, 2), S(58, 2)
    setup = L(f"""
v_and_b32 v{vL8}, 63, v0
v_lshlrev_b32 v{vL16}, 4, v{vL8}
v_lshlrev_b32 v{vL8}, 3, v{vL8}
v_and_b32 v{t0}, 15, v0
v_lshrrev_b32 v{t1}, 1, v{t0}
v_bfe_u32 v{t2}, v0, 4, 2
v_xor_b32 v{t1}, v{t1}, v{t2}
v_lshlrev_b32 v{t1}, 4, v{t1}
v_lshl_add_u32 v{vXR}, v{t0}, 7, v{t1}
v_add_u32 v{vXR}, s{sXL}, v{vXR}
v_xor_b32 v{vXR+1}, 64, v{vXR}
v_lshrrev_b32 v{t1}, 5, v0
v_lshl_add_u32 v{vGW}, v{t1}, 4, v{t0}
v_lshlrev_b32 v{vGW}, 2, v{vGW}
v_add_u32 v{vGW}, {LDS_GATE}, v{vGW}
v_bfe_u32 v{t0}, v0, 5, 1
v_and_b32 v{t1}, 1, v0
v_bfe_u32 v{t2}, v0, 1, 1
v_cmp_eq_u32 {m0_}, v{t1}, v{t0}
v_mul_u32_u24 v{vPA1}, 800, v{t0}
v_bfe_u32 v{t1}, v0, 2, 2
v_mad_u32_u24 v{vPA1}, v{t1}, 40, v{vPA1}
v_add_u32 v{vPA1}, {LDS_WP}, v{vPA1}
v_lshl_add_u32 v{vPA}, v{t2}, 3, v{vPA1}
v_bfe_u32 v{t2}, v0, 4, 1
v_lshl_add_u32 v{vPA}, v{t2}, 4, v{vPA}
v_mov_b32 v{t3}, {LDS_Z}
v_cndmask_b32 v{vPA}, v{t3}, v{vPA}, {m0_}
v_lshlrev_b32 v{vKA}, 1, v{t0}
v_lshl_add_u32 v{vKA}, v{t1}, 2, v{vKA}
v_mul_u32_u24 v{vKA}, 272, v{vKA}
v_and_b32 v{t1}, 3, v0
v_lshl_add_u32 v{t2}, v{t2}, 2, v{t1}
v_lshl_add_u32 v{vKA}, v{t2}, 3, v{vKA}
v_bfe_u32 v{t2}, v0, 4, 2
v_cmp_eq_u32 {m0_}, v{t1}, v{t2}
v_add_u32 v{vPA1}, 32, v{vPA1}
v_and_b32 v{t1}, 31, v0
v_lshrrev_b32 v{t2}, 6, v0
v_cndmask_b32 v{vPA1}, v{t3}, v{vPA1}, {m0_}
v_lshl_add_u32 v{t1}, v{t2}, 5, v{t1}
v_mul_u32_u24 v{t1}, 272, v{t1}
v_mul_u32_u24 v{t3}, 80, v{t0}
v_add_u32 v{vPW}, v{t1}, v{t3}
v_mad_u32_u24 v{vVW}, v{t0}, 48, v{t1}
v_mad_u32_u24 v{vKA}, v{t2}, 40, v{vKA}
v_and_b32 v{vGA}, 31, v0
v_add_u32 v{vGA+1}, 32, v{vGA}
v_min_u32 v{vGA+1}, 54, v{vGA+1}
v_bfe_u32 v{a3}, v0, 5, 1
v_lshlrev_b32 v{a0}, 3, v{a3}
v_lshl_add_u32 v{vOT}, v{vGA}, 4, v{a0}
v_lshlrev_b32 v{a0}, 10, v{a3}
v_lshl_add_u32 v{vGA}, v{vGA}, 4, v{a0}
v_lshl_add_u32 v{vGA+1}, v{vGA+1}, 4, v{a0}
v_and_b32 v{a0}, 15, v0
v_bfe_u32 v{a1}, v0, 4, 1
v_mad_i32_i24 v{a2}, v{a1}, -8, v{a0}
v_lshl_add_u32 v{a0}, v{a3}, 4, v{a0}
v_and_b32 v{vKT}, 1, v{a2}
v_lshlrev_b32 v{vKT}, 4, v{vKT}
v_mov_b32 v{vKT+1}, 0x3f80
v_lshlrev_b32 v{vKT}, v{vKT}, v{vKT+1}
v_lshrrev_b32 v{a2}, 1, v{a2}
v_cmp_eq_u32 {m0_}, 0, v{a2}
v_cmp_eq_u32 {m1_}, 1, v{a2}
s_lshr_b32 s73, s{SW}, 1
v_cndmask_b32 v{ID}, 0, v{vKT}, {m0_}
v_cndmask_b32 v{ID+1}, 0, v{vKT}, {m1_}
v_cmp_eq_u32 {m0_}, 2, v{a2}
v_cmp_eq_u32 {m1_}, 3, v{a2}
s_mul_i32 s73, s73, 1680
v_cndmask_b32 v{ID+2}, 0, v{vKT}, {m0_}
v_cndmask_b32 v{ID+3}, 0, v{vKT}, {m1_}
s_mul_i32 s75, s{SW}, 40
s_add_u32 s73, s73, s75
s_add_u32 s73, s73, {LDS_KVT}
v_cmp_le_u32 {m0_}, 22, v{a0}
v_cmp_le_u32 {m1_}, 12, v{a0}
v_mul_u32_u24 v{vKT}, 80, v{a0}
v_mov_b32 v{a2}, {8-22*80}
v_cndmask_b32 v{a2}, 0, v{a2}, {m0_}
v_lshl_add_u32 v{vKT}, v{a1}, 4, v{vKT}
v_add_u32 v{vKT+1}, 808, v{vKT}
v_add3_u32 v{vKT}, v{vKT}, v{a2}, s73
v_lshl_add_u32 v{a2}, v{a0}, 1, v{a1}
v_mul_u32_u24 v{a2}, 80, v{a2}
v_subrev_u32 v{a2}, {24*80-32}, v{a2}
v_cndmask_b32 v{vKT+1}, v{vKT+1}, v{a2}, {m1_}
v_add_u32 v{vKT+1}, s73, v{vKT+1}
v_bfe_u32 v{a0}, v0, 2, 1
v_cmp_eq_u32 {m0_}, v{a0}, v{a3}
v_bfe_u32 v{a1}, v0, 3, 2
v_and_b32 v{a2}, 3, v0
v_lshl_add_u32 v{a1}, v{a1}, 2, v{a2}
v_mad_u32_u24 v{a1}, v{a0}, 22, v{a1}
v_mul_u32_u24 v{a1}, 80, v{a1}
v_add_u32 v{vOA}, {LDS_KVT}, v{a1}
v_add_u32 v{vOA+1}, {LDS_KVT+1280}, v{a1}
v_mov_b32 v{a2}, {LDS_Z}
v_cndmask_b32 v{vOA}, v{a2}, v{vOA}, {m0_}
v_cndmask_b32 v{vOA+1}, v{a2}, v{vOA+1}, {m0_}
v_lshlrev_b32 v{t1}, 2, v0
v_min_u32 v{t1}, 700, v{t1}
v_add_u32 v{t1}, {LDS_Z}, v{t1}
v_mov_b32 v{t2}, 0
""")
    setup.append(lambda a_=t1, b_=t2: A.l(f"ds_write_b32 v{a_}, v{b_}", "z"))
    def wrap(sreg, step, size):
        return f"s_add_u32 s{sreg}, s{sreg}, {step}\ns_sub_u32 s{sT2}, s{sreg}, {size}\ns_min_u32 s{sreg}, s{sreg}, s{sT2}\n"

    xissued = set()

    def xslot(u):
        return 2048 * (u & 3) + (0 if BORROW and 4 <= u < 8 else LDS_X)

    def issue_x(u):
        if u >= 20:
            return []
        pre = f"s_add_u32 m0, s{sXL}, {xslot(u)}\n"
        if u & 1:
            pre += f"s_add_u32 s{sT0}, s{sXO}, 20480\n" + wrap(sXO, 128, 1280)
        so = sT0 if u & 1 else sXO
        return [(pre if i == 0 else "", lambda i=i: (A.v(f"buffer_load_dwordx4 v{vXA+i}, {S(R_X,4)}, s{so} offen offset:{1024*i} lds", f"x{u}"), i and xissued.add(u))) for i in range(2)]

    def read_x(u):
        assert u in xissued
        A.vwait(f"x{u}")
        for jj in range(2):
            A.l(f"ds_read_b128 {V(Xr(u//4,u&1,(u&2)+jj),4)}, v{vXR+jj} offset:{xslot(u)}", f"xr{u}")

    wround, qround, wissued = [0], [0], [0]

    def issue_w(upto):
        o = []
        for i in range(wround[0], min(upto, 25)):
            pre = f"s_add_u32 m0, s{sT3}, {4096*(i%10)}\n" + (wrap(sWO2, 4096, 102400) if i else "")
            o.append((pre, lambda i=i: (A.v(f"buffer_load_dwordx4 v{vL16}, {S(R_W,4)}, s{sWO2} offen sc1 lds", f"w{i}"), wissued.__setitem__(0, i + 1))))
        wround[0] = max(wround[0], min(upto, 25))
        return o

    def issue_q(upto):
        o = []
        for i in range(qround[0], upto):
            pre = f"s_add_u32 m0, s{sT3}, {LDS_QA+4096*i if i < 9 else LDS_QB+4096*(i-9)}\n" + (wrap(sQO, 4096, 61440) if i else "")
            o.append((pre, lambda i=i: A.v(f"buffer_load_dwordx4 v{vL16}, {S(R_M1,4)}, s{sQO} offen sc1 lds", f"q{i}")))
        qround[0] = upto
        return o
    NEED = lambda h: (10 * h + 9) // 4 + 1
    FREED = lambda h: (10 * h + 6) // 4 + 1

    U2 = OPT.get("u2", 6)
    U3 = OPT.get("u3", U2)
    BORROW = U2 >= 8
    NXR = 8 if BORROW else 4
    NX0, NX1 = OPT.get("nx0", 0), OPT.get("nx1", 2)
    HS = 0

    def guarded(cmp_, f):
        _lab[0] += 1
        k = _lab[0]
        A(cmp_)
        A(f"s_cbranch_scc1 L_rp{k}")
        f()
        A(f"L_rp{k}:")
    for _ in range(3):
        setup.pop(0)()
    srd(R_X, P_U, 2621440)
    srd(R_M1, P_WO, 819200)
    for u in range(NX0):
        run(flat(issue_x(u)))
    A(f"""
s_and_b32 s{sT1}, s{sKS}, 1
s_lshl_b32 s{sT1}, s{sT1}, 4
{IS_Q}
s_cselect_b32 s{sT1}, 32, s{sT1}
s_add_u32 s{sKA}, s{sRH}, s{sT1}
s_lshl_b32 s{sKA}, s{sKA}, 8
s_add_u32 s{sUO}, s{sJ}, {HS}
s_sub_u32 s{sT1}, s{sUO}, 10
s_min_u32 s{sUO}, s{sUO}, s{sT1}
s_lshl_b32 s{sUT}, s{sUO}, 8
s_add_u32 s{sUT}, s{sUT}, {C_UT}
s_lshl_b32 s{sOWN}, s{SW}, 3
s_sub_u32 s{sOWN}, s{sOWN}, s{sCT}
s_add_u32 s{sOWN}, s{sOWN}, 7
s_cmp_ge_u32 s{sOWN}, 5
s_cselect_b32 s15, 1, s{sST}
""")
    A(f"""
s_sub_u32 s21, s{sROLE}, 20
s_cmp_lt_u32 s{SW}, 2
s_cselect_b32 s21, 99, s21
""")
    IS_NOT_WO = "s_cmp_ge_u32 s21, 10"
    sAJ, sW0, sW1, sW2, t0, t1, t2, t3 = 14, 4, 5, 72, 8, 9, 12, 13

    def wo_fetch():
        A(f"""
s_sub_u32 s{sAJ}, s2, {ID_B+1}
s_lshl_b32 s{sAJ}, s{sAJ}, 1
s_add_u32 s{sAJ}, s{sAJ}, s{SW}
s_lshr_b32 s{t0}, s{sAJ}, 3
s_mul_i32 s{t1}, s{t0}, 52
s_lshr_b32 s{t1}, s{t1}, 8
s_and_b32 s{sUT}, s{sAJ}, 4
s_mul_i32 s{sW2}, s{sUT}, 102400
s_mul_i32 s{t3}, s{sUT}, 160
s_add_u32 s{sUT}, s{sUT}, s{t1}
s_lshl_b32 s{sUT}, s{sUT}, 8
s_add_u32 s{sUT}, s{sUT}, {C_WO}
s_mul_i32 s{t2}, s{t0}, 5120
s_add_u32 s{sW2}, s{sW2}, s{t2}
s_and_b32 s{t2}, s{sAJ}, 3
s_lshl_b32 s{sW0}, s{t2}, 8
s_add_u32 s{sW2}, s{sW2}, s{sW0}
s_add_u32 s{sW2}, s{sW2}, {WS_WO}
s_mul_i32 s{sW0}, s{t1}, 5
s_sub_u32 s{t0}, s{t0}, s{sW0}
s_or_b32 s15, s{t0}, s{t2}
s_and_b32 s{sW0}, s{t2}, 1
s_mul_i32 s{sW0}, s{sW0}, 20
s_lshr_b32 s{sW1}, s{t2}, 1
s_lshl_b32 s{sW1}, s{sW1}, 3
s_add_u32 s{sW0}, s{sW0}, s{sW1}
s_mul_i32 s{sW1}, s{t0}, 40
s_add_u32 s{sW0}, s{sW0}, s{sW1}
s_mul_i32 s{t2}, s{t2}, 40
s_add_u32 s{t2}, s{t2}, 16
s_cmp_eq_u32 s{t0}, 4
s_cselect_b32 s{sW0}, s{t2}, s{sW0}
s_cselect_b32 s{sW1}, 20, 4
s_mul_i32 s{t1}, s{t1}, 160
s_add_u32 s{sW0}, s{sW0}, s{t1}
s_add_u32 s{sW1}, s{sW1}, s{sW0}
s_mul_i32 s{sW0}, s{sW0}, 1280
s_mul_i32 s{sW1}, s{sW1}, 1280
s_add_u32 s{sW0}, s{sW0}, s{t3}
s_add_u32 s{sW1}, s{sW1}, s{t3}
s_sub_u32 s{sW1}, s{sW1}, 5120
v_and_b32 v95, 63, v0
""")
        for i, so, ex in ((0, sW0, None), (1, sW0, None), (2, sW0, "exec_hi, 0"), (2, sW1, "not"), (3, sW1, None), (4, sW1, None)):
            if ex != "not":
                A(f"""
s_mov_b64 exec, -1
v_add_u32 v92, {64*i}, v95
v_mul_u32_u24 v93, 205, v92
v_lshrrev_b32 v93, 13, v93
v_mad_u32_u24 v92, v93, 40, v92
s_add_u32 m0, s{sXL}, {1024*i}
v_lshlrev_b32 v92, 4, v92
""")
            if ex:
                A("s_not_b64 exec, exec" if ex == "not" else f"s_mov_b32 {ex}")
            A(f"buffer_load_dwordx4 v92, {S(R_M1,4)}, s{so} offen{NT} lds")
    for q in range(320):
        assert (q * 205) >> 13 == q // 40
    guarded(IS_NOT_WO, wo_fetch)
    NO_SLICE = f"s_cmp_lt_u32 s{sCT}, 3"
    reporter = lambda f: guarded(f"s_cmp_ge_u32 s{sOWN}, 5", f)
    load_epoch()
    stamp("B", "iss0")
    srd(R_WS, P_WS, WS_SIZE)
    srd(R_M1, P_GATE, 1280)
    vT, vS = 16, 24
    A(f"""
s_and_b32 s{sT1}, s{sRH}, 4
s_lshl_b32 s{sT1}, s{sT1}, 4
s_mul_i32 s{sT2}, s{SW}, 80
s_add_u32 s{sT1}, s{sT1}, s{sT2}
v_bfe_u32 v94, v0, 1, 1
v_mad_u32_u24 v94, v94, 40, s{sT1}
v_and_b32 v95, 1, v0
v_bfe_u32 v92, v0, 4, 1
v_bfe_u32 v93, v0, 2, 2
v_lshl_add_u32 v92, v92, 3, v93
v_bfe_u32 v91, v0, 5, 1
v_and_b32 v90, 0x30, v0
s_lshl_b32 s{sT1}, s{sKS}, 6
s_mov_b64 {S(16,2)}, 0
{IS_Q}
s_cbranch_scc1 L_jq
v_lshl_add_u32 v92, v95, 4, v92
v_and_b32 v93, 0x1f0, v{vL16}
v_lshl_add_u32 v84, v91, 3, v94
v_add_u32 v85, 16, v84
v_add_u32 v86, 32, v94
v_lshl_add_u32 v{vS}, v91, 10, v93
v_add_u32 v{vS+1}, 2048, v{vS}
v_add_u32 v{vS+2}, 4096, v93
s_lshr_b32 s{sT1}, s{sKS}, 1
s_mul_i32 s19, s{sRH}, 20
s_add_u32 s19, s19, s{sT1}
s_mul_i32 s19, s19, 5120
s_and_b32 s{sT1}, s{sKS}, 1
s_lshl_b32 s{sT1}, s{sT1}, 9
s_add_u32 s19, s19, s{sT1}
s_add_u32 s19, s19, {WS_WKV}
s_branch L_jj
L_jq:
buffer_load_dwordx4 {V(76,4)}, v90, {S(R_M1,4)}, s{sT1} offen
v_lshl_add_u32 v92, v91, 4, v92
v_lshl_add_u32 v84, v95, 4, v94
v_add_u32 v85, 8, v84
v_add_u32 v86, 32, v84
v_mov_b32 v{vS}, v{vL16}
v_add_u32 v{vS+1}, 1024, v{vL16}
v_add_u32 v{vS+2}, 2048, v{vL16}
s_mul_i32 s19, s{sRH}, 20
s_add_u32 s19, s19, s{sKS}
s_mul_i32 s19, s19, 3072
s_add_u32 s19, s19, {WS_WQ}
s_mov_b32 s16, 0xf0f0f0f0
s_mov_b32 s17, 0xf0f0f0f0
L_jj:
v_bfe_u32 v93, v92, 1, 3
v_lshlrev_b32 v93, 4, v93
v_lshlrev_b32 v92, 7, v92
""")
    for n in range(3):
        A(f"""
v_lshrrev_b32 v89, 7, v{84+n}
v_and_b32 v88, 127, v{84+n}
v_xor_b32 v88, v88, v93
v_lshl_add_u32 v89, v89, 12, v92
v_add_u32 v{vT+2*n}, v88, v89
v_xor_b32 v{vT+2*n+1}, 32, v{vT+2*n}
""")
    A(f"""
s_mov_b64 {S(ONE,2)}, 1
s_lshl_b32 s{sKF}, s{sHP}, 2
s_add_u32 s{sKF}, s{sKF}, s{SW}
s_lshl_b32 s{sKF}, s{sKF}, 8
s_add_u32 s{sKF}, s{sKF}, {C_KV}
s_lshl_b32 s{sOF}, s{sST}, 1
s_lshr_b32 s{sT1}, s{SW}, 1
s_add_u32 s{sOF}, s{sOF}, s{sT1}
s_lshl_b32 s{sOF}, s{sOF}, 2
s_lshr_b32 s{sT1}, s{sHP}, 2
s_add_u32 s{sOF}, s{sOF}, s{sT1}
s_lshl_b32 s{sOF}, s{sOF}, 8
s_add_u32 s{sOF}, s{sOF}, {C_O}
s_lshl_b32 s{sKW}, s{SW}, 4
s_add_u32 s{sKW}, s{sKW}, s{sHP}
s_lshl_b32 s{sKW}, s{sKW}, 8
""")
    for _ in range(OPT.get("npre", 60)):
        setup.pop(0)()
    A("s_waitcnt lgkmcnt(0)")
    make_tag()
    A(f"""
s_lshl_b32 s8, s{sRH}, 2
s_add_u32 s8, s8, s{sKS}
s_lshl_b32 s8, s8, 8
s_add_u32 s8, s8, {C_KV}
s_sub_u32 s9, s2, {ID_B-160}
s_and_b32 s9, s9, 255
s_lshl_b32 s{sT1}, s{SW}, 8
s_add_u32 s{sT1}, s{sT1}, s9
s_lshl_b32 s9, s9, 8
s_add_u32 s9, s9, {C_O}
""")
    guarded(f"s_cmp_ge_u32 s{sROLE}, 2", lambda: cnt_init(8))
    guarded(f"s_cmp_ge_u32 s{sT1}, 128", lambda: cnt_init(9))
    A(f"""
{IS_Q}
s_cselect_b32 s{sT1}, 0, 1
""")
    if OPT.get("kclaim"):
        guarded(IS_IDLE, lambda: cnt_claim(CQ2, sKA))
    else:
        guarded(f"s_cmp_gt_u32 s{sKS}, s{sT1}", lambda: cnt_init(sKA))
    guarded(f"s_cmp_lg_u32 s15, 0", lambda: cnt_init(sUT))
    A(f"s_mov_b64 {S(CQ0+2,2)}, {S(TAG,2)}")
    A(f"s_mov_b64 {S(CQ1,2)}, {S(TAG,2)}")
    stamp("B", "setup")
    A(f"""
{IS_Q}
s_waitcnt vmcnt({2*NX0})
s_cbranch_scc0 L_jw
s_waitcnt vmcnt(0)
L_jw:
s_barrier
""")
    stamp("B", "ukv")

    def job():
        for n in range(3):
            for h in range(2):
                A(f"ds_read_b64_tr_b16 {V(60+4*n+2*h,2)}, v{vT+2*n+h} offset:{512*h}")
        lwait_lds(92, vL8, 6)
        for n in range(3):
            if n == 2:
                for p in range(4):
                    A(f"v_cndmask_b32 v{68+p}, v{68+p}, v{76+p}, {S(16,2)}")
            A.v(f"buffer_store_dwordx4 {V(60+4*n,4)}, v{vS+n}, {S(R_WS,4)}, s19 offen sc1", "kst")

    def wo_put():
        WL, WU, WD = 192, 208, 224
        A(f"""
v_bfe_u32 v84, v0, 4, 2
v_and_b32 v85, 15, v0
v_mul_u32_u24 v86, 160, v84
v_add_u32 v86, s{sXL}, v86
v_lshl_add_u32 v87, v85, 1, v86
v_lshl_add_u32 v86, v85, 3, v86
v_mul_u32_u24 v84, 102400, v84
v_lshl_add_u32 v84, v85, 4, v84
s_mov_b32 s{sW0}, 0x05040100
s_mov_b32 s{sW1}, 0x07060302
""")
        for e in range(8):
            A(f"ds_read_b64 {V(WL+2*e,2)}, v86 offset:{640*e}")
            A(f"ds_read_u16 v{WU+e}, v87 offset:{640*e+128}")
        lwait_lds(92, vL8, 4)
        for jn in range(4):
            for p in range(4):
                A(f"v_perm_b32 v{WD+4*jn+p}, v{WL+2*(2*p+1)+(jn>>1)}, v{WL+2*(2*p)+(jn>>1)}, s{sW0+(jn&1)}")
            A(f"buffer_store_dwordx4 {V(WD+4*jn,4)}, v84, {S(R_WS,4)}, s{sW2} offen offset:{1024*jn} sc1")
        for p in range(4):
            A(f"v_lshl_or_b32 v{WD+16+p}, v{WU+2*p+1}, 16, v{WU+2*p}")
        A(f"s_add_u32 s{sW2}, s{sW2}, 4096")
        A(f"buffer_store_dwordx4 {V(WD+16,4)}, v84, {S(R_WS,4)}, s{sW2} offen sc1")
    guarded(IS_IDLE, job)
    guarded(IS_NOT_WO, wo_put)
    stamp("B", "j1")
    A("s_barrier")
    for u in range(NX0, NX1):
        run(flat(issue_x(u)))
    run(setup)
    srd(R_M2, P_OUT, 2621440)
    stamp("B", "j4")
    A.vwait("kst")
    stamp("B", "j5")
    A.lwait_all()
    stamp("B", "j6")
    A("s_barrier")
    guarded(IS_IDLE, lambda: cnt_arrive(CQ0 + 2, sKA))
    guarded(IS_NOT_WO, lambda: cnt_arrive(CQ1, sUT))
    stamp("B", "kflag")
    for u in range(max(NX0, NX1), NXR):
        run(flat(issue_x(u)))
    srd(R_M1, P_WPHI, 25600)
    A(f"""
s_mul_i32 s{sT1}, s{SW}, 400
s_add_u32 m0, s{sT1}, {LDS_WP}
s_mul_i32 s{sT2}, s{sHP}, 1600
s_add_u32 s{sT1}, s{sT1}, s{sT2}
s_mov_b64 exec, 0x1ffffff
""")
    A.v(f"buffer_load_dwordx4 v{vL16}, {S(R_M1,4)}, s{sT1} offen lds", "wp")
    A(f"""
s_mov_b64 exec, -1
s_mul_i32 s{sT1}, s{sHP}, 102400
s_add_u32 s{sT1}, s{sT1}, {WS_WKV}
s_add_u32 s{R_W}, s{P_WS}, s{sT1}
s_addc_u32 s{R_W+1}, s{P_WS+1}, 0
s_mov_b32 s{R_W+2}, 102400
s_mul_i32 s{sT1}, s{sHP}, 61440
s_add_u32 s{sT1}, s{sT1}, {WS_WQ}
s_add_u32 s{R_M1}, s{P_WS}, s{sT1}
s_addc_u32 s{R_M1+1}, s{P_WS+1}, 0
s_mov_b32 s{R_M1+2}, 61440
""")
    A(f"""
v_bfe_u32 v81, v0, 4, 2
v_bfe_u32 v80, v0, 2, 2
v_lshl_add_u32 v81, v81, 3, v80
v_bfe_u32 v82, v81, 1, 3
v_bfe_u32 v83, v0, 1, 1
v_xor_b32 v82, v82, v83
v_lshlrev_b32 v82, 4, v82
v_lshl_add_u32 v81, v81, 7, v82
v_and_b32 v82, 1, v0
v_lshl_add_u32 v81, v82, 3, v81
v_add_u32 v81, s{sXL}, v81
v_lshlrev_b32 v80, 14, v80
v_and_b32 v82, 3, v0
v_lshl_add_u32 v80, v82, 4, v80
v_and_b32 v82, 0x30, v0
v_lshl_add_u32 v80, v82, 2, v80
s_lshl_b32 s{sT1}, s{sST}, 2
s_add_u32 s{sT1}, s{sT1}, s{SW}
s_lshl_b32 s{sT1}, s{sT1}, 8
s_lshl_b32 s{sUO}, s{sUO}, 18
s_add_u32 s{sUO}, s{sUO}, s{sT1}
s_add_u32 s{sUO}, s{sUO}, {WS_UT}
v_xor_b32 v82, 32, v81
v_xor_b32 v83, 64, v81
v_xor_b32 v84, 96, v81
""")

    def ut_read():
        for it in range(4):
            for h in range(2):
                A.l(f"ds_read_b64_tr_b16 {V(60+4*it+2*h,2)}, v{81+(it^h)} offset:{LDS_X+512*h}", "xr0")

    def ut_store():
        for it in range(0 if OPT.get("nout") else 4):
            A(f"buffer_store_dwordx4 {V(60+4*it,4)}, v80, {S(R_WS,4)}, s{sUO} offen sc1")
            if it < 3:
                A(f"s_add_u32 s{sUO}, s{sUO}, 65536")
    umark = []
    stamp("B", "iss1")
    refill = lambda u: u + 4 if not BORROW or u >= 8 else (u + 8 if u < 4 else 99)
    pollers = lambda f: guarded(f"s_cmp_ge_u32 s{SW}, 2", f)

    A.c("---- x tile -> registers")
    assert U3 >= 2
    U1 = OPT.get("u1", U2 - 4)
    assert U1 < U2
    UST = OPT.get("ust", 1)

    def side():
        guarded(NO_SLICE, ut_store)
        A.mark_next = True
        umark.append(1)

    def ut_flag():
        umark.pop()
        reporter(lambda: cnt_arrive(CQ1, sUT))
        stamp("B", "utflag")
    for u in range(U3 + 1):
        read_x(u)
        ld = []
        if u == 1:
            ut_read()
        if u:
            A.lwait(f"xr{u-1}")
            ld += issue_x(refill(u - 1))
        if u == UST < U2:
            side()
        if u > UST and umark and A.marked_done():
            A("s_barrier")
            ut_flag()
        if u == U2:
            run(flat(ld))
            ld = []
            if U1 < U2:
                pollers(lambda: cnt_async(CQ0, 14, sKW, 20, sCNT, nap=OPT.get('napw', 0)))
            else:
                pollers(lambda: cnt_wait(CQ0, sKW, 20, sCNT, probed=False, nap=OPT.get('napw', 0)))
            A("s_barrier")
            stamp("B", "kwseen")
        if u == U2:
            run(flat(issue_w(OPT.get("w1st", 10))))
            if UST == U2:
                side()
            run(flat(issue_w(OPT.get("w2nd", 10))))
        run(flat(ld))
        if u == U1:
            A.lwait_all()
            cnt_verify(CQ0 + 2, sKA, sCNT)
            if U1 < U2:
                pollers(lambda: cnt_read(CQ0, sKW))

    def ready(h):
        A.vwait(f"w{NEED(h)-1}")
        if not (OPT.get("nobar") and h):
            A("s_barrier")
        stamp("B", f"w{h}")
        if umark and A.marked_done():
            ut_flag()

    A.c("---- GEMM1a: k and v for two heads, 20 k-steps in one stream")
    run(flat(issue_w(NEED(1))))
    ready(0)
    pipe = FragPipe(vL16, phase=5)
    mm = pipe.stream([(n // 5, n % 5, 1024 * (n % 40)) for n in range(100)], ACC)
    st_ = Stream()
    st_.at(0, [lambda: A.lwait(f"xr{U3}")] + flat(issue_x(refill(U3)) + issue_w(10)))
    u = U3 + 1
    lastx = [0]
    for h in range(10):
        k0 = 20 * h
        for kk in {1: (2,), 2: (2, 12), 3: (0, 6, 14), 4: (0, 4, 11, 15)}[OPT.get("xper", 2)]:
            if u < 20:
                st_.at(k0 + kk, lambda u=u: read_x(u))
                st_.at(k0 + kk + OPT.get("xlag", 12), [lambda u=u: A.lwait(f"xr{u}")] + flat(issue_x(refill(u))))
                u += 1
                lastx[0] = k0 + kk
        if h < 9:
            st_.exact(k0 + 19 - 2 * pipe.look, lambda h=h: ready(h + 1))
            mm[k0 + 20] = (lambda f=mm[k0 + 20], h=h: (need_x(h + 1), f()))
        if h:
            st_.at(k0 + 20 - 2 * pipe.look, flat(issue_w(10 + FREED(h - 1))))

    def need_x(h):
        assert f"x{2*h+1}" not in A.vm
        A.lwait(f"xr{2*h}", f"xr{2*h+1}")

    HQ = OPT.get("hq", 8)
    assert u == 20 and lastx[0] + 14 < 20 * HQ
    st_.at(20 * HQ - 50, L(f"""
s_and_b32 s{sWC}, s{sCT}, 4
s_add_u32 s{sWC}, s{sWC}, s{SW}
s_lshl_b32 s{sWC}, s{sWC}, 8
s_add_u32 s{sWC}, s{sWC}, {C_WO}
s_lshl_b32 s{sKW}, s{sHP}, 8
s_add_u32 s{sKW}, s{sKW}, {C_QW}
""") + [lambda: cnt_read(CQ0, sKW), lambda: cnt_read(CQ0 + 2, sWC)])
    st_.at(20 * HQ + 2, [lambda: cnt_async(CQ0, 14, sKW, 20, sCNT, outline=True, nap=4)])
    for h in range(HQ, 10 if OPT.get("qin", 1) else 0):
        st_.at(20 * h + 21 - 2 * pipe.look, flat(issue_q(9 if h == 9 else min(9, qround[0] + OPT.get("qper", 3)))))
    KP, VP = 8, 20
    PF0, PF1, PK0, PK1 = 56, 68, 80, 32

    def cvt_tile(acc, t, d0, d1):
        return [(lambda sg=sg, hh=hh: A(f"v_cvt_pk_bf16_f32 v{(d0 if sg==0 else d1)+2*t+hh}, v{acc+8*t+4*sg+2*hh}, v{acc+8*t+4*sg+2*hh+1}")) for sg in range(2) for hh in range(2)]
    st_.at(192, L(f"v_mov_b32 v{KP+10}, 0\nv_mov_b32 v{KP+11}, 0"))
    st_.at(195, cvt_tile(ACC, 0, KP, VP))
    st_.at(197, cvt_tile(ACC, 1, KP, VP))
    need_x(0)
    st_.run(mm)
    assert wround[0] == 25
    stamp("B", "g1a")
    if OPT.get("fine"):
        finish("B")
        return

    A.c("---- phi_k, kv partial")
    swap = lambda a_, b_, i0, i1: [A(f"v_permlane16_swap_b32 v{a_+i}, v{b_+i}") for i in range(i0, i1)]
    run(phi_frags(PF0, vPA, "pf"))
    run(cvt_tile(ACC, 2, KP, VP))
    run(phi_frags(PF1, vPA1, "pf"))
    run(cvt_tile(ACC, 3, KP, VP) + cvt_tile(ACC, 4, KP, VP))
    swap(KP, VP, 0, 4)
    A.lwait_all()
    phi_mfma(0, KP, PF0, PF1, PK0, PK1)
    cnt_verify(CQ1, sUT, sCNT)
    swap(KP, VP, 4, 8)
    A(f"v_mov_b32 v{VP+10}, 0x3f80")
    A(f"v_mov_b32 v{VP+11}, 0")
    phi_mfma(1, KP + 4, PF0, PF1, PK0, PK1)
    swap(KP, VP, 8, 10)
    phi_mfma(2, KP + 8, PF0, PF1, PK0, PK1)
    A("s_barrier")
    for i in range(3):
        A.l(f"ds_write_b128 v{vVW}, {V(VP+4*i,4)} offset:{LDS_PV+160+16*i}", "pv")
    stamp("B", "pmf")
    hk = Hooks()
    hk1 = {n: (lambda i=i: A.l(f"ds_write_b128 v{vPW}, {V(PHI+4*i,4)} offset:{LDS_PV+16*i}", "pv")) for i, n in enumerate((24, 28, 51, 55, 59))}
    sWO = 75
    hk.at(0, L(f"""
s_lshr_b32 s{sT0}, s{SW}, 1
s_mul_i32 s{sT0}, s{sT0}, 48
s_mul_i32 s{sT1}, s{SW}, 40
s_sub_u32 s{sT0}, s{sT0}, s{sT1}
s_add_u32 s{sT0}, s{sT0}, 160
v_add_u32 v{vVW}, s{sT0}, v{vKA}
s_mul_i32 s{sWO}, s{sCT}, 102400
s_mul_i32 s{sT1}, s{SW}, 25600
s_add_u32 s{sWO}, s{sWO}, s{sT1}
s_add_u32 s{sWO}, s{sWO}, {WS_WO}
s_lshl_b32 s{sT0}, s{sHP}, 2
s_add_u32 s{sT0}, s{sT0}, s{SW}
s_lshl_b32 s{sT0}, s{sT0}, 14
s_add_u32 s{sT0}, s{sT0}, {WS_KVP}
s_lshl_b32 s{sT1}, s{sST}, 10
s_add_u32 s{sT1}, s{sT1}, s{sT0}
"""))

    def wo_touch():
        if not OPT.get('abl'):
            cnt_async(CQ0 + 2, 14, sWC, 20, sCNT, outline=True, nap=8)
        if OPT.get("wopf", 1):
            A(f"""
s_and_b32 s{sWC}, s{sST}, 3
s_mul_i32 s{sWC}, s{sWC}, 6400
s_add_u32 s{sWC}, s{sWC}, s{sWO}
v_lshlrev_b32 v41, 3, v{vL16}
s_mov_b32 m0, {LDS_GATE+512}
s_mov_b32 exec_hi, 0x3ffff
""")
            A.v(f"buffer_load_dword v41, {S(R_WS,4)}, s{sWC} offen sc1 lds", "pf")
            A("s_mov_b32 exec_hi, -1")
    qe_ = flat(issue_q(9))
    for _ in range(min(len(qe_), OPT.get("qpre", 7))):
        qe_.pop(0)()
    hk.at(1, qe_)
    hk.at(2, wo_touch)
    softmax([PK0 + i for i in range(16)] + [PK1 + i for i in range(4)], [56 + i for i in range(20)], PHI, 36,
            lambda n: (hk1.pop(n, lambda: None)(), hk(n)))
    stamp("B", "smx")
    vKB, vQR = vVW, vPW
    A.lwait_all()
    A("s_barrier")
    stamp("B", "phik")
    KD = 28
    FR = [56, 64, 72, 80]

    def kvreads(ks):
        for h in range(2):
            A.l(f"ds_read_b64_tr_b16 {V(FR[ks%4]+2*h,2)}, v{vKA} offset:{LDS_PV+ks*4352+h*272}", f"kv{ks}")
        for h in range(2):
            A.l(f"ds_read_b64_tr_b16 {V(FR[ks%4]+4+2*h,2)}, v{vKB} offset:{LDS_PV+ks*4352+h*272}", f"kv{ks}")
    for ks in range(3):
        kvreads(ks)
    fl = L(f"""
v_and_b32 v14, 31, v0
v_bfe_u32 v15, v0, 5, 1
v_mad_u32_u24 v15, v15, 22, v14
v_lshlrev_b32 v15, 4, v15
v_add_u32 v{vQR}, {LDS_QB}, v{vL16}
""")
    for ks in range(8):
        A.lwait(f"kv{ks}")
        A(f"v_mfma_f32_32x32x16_bf16 {V(KD,16)}, {V(FR[ks%4],4)}, {V(FR[ks%4]+4,4)}, {'0' if ks==0 else V(KD,16)}")
        if ks + 3 < 8:
            kvreads(ks + 3)
        else:
            for _ in range(5):
                if fl:
                    fl.pop(0)()
    run(fl)
    A.vwait("q8")
    A("s_barrier")
    for i in range(6):
        A(f"v_cvt_pk_bf16_f32 v{8+i}, v{KD+2*i}, v{KD+2*i+1}")
    set_exec(0x003FFFFF003FFFFF)
    A.v(f"buffer_store_dwordx4 {V(8,4)}, v15, {S(R_WS,4)}, s{sT1} offen sc1", "kvst")
    A("s_mov_b32 exec_hi, 0")
    A.v(f"buffer_store_dwordx2 {V(12,2)}, v{vL8}, {S(R_WS,4)}, s{sT1} offen offset:704 sc1", "kvst")
    A("s_mov_b64 exec, -1")
    stamp("B", "kvst")

    A.c("---- GEMM1b (q); wo fragments stream into the x registers as they die")
    QA = 56
    WOR = [XB + 4 * i for i in range(8)] + [Xr(3, 0, 0) + 4 * i for i in range(16)] + [92]
    G = Xr(1, 0, 0)
    pipe = FragPipe(vQR, phase=3)
    mm = pipe.stream([(n // 3, n % 3, LDS_QA - LDS_QB + 1024 * n if n < 36 else 1024 * (n - 36)) for n in range(60)], QA)

    def issue_wo(f0, f1):
        o = []
        for f in range(f0, f1):
            ii, jn = divmod(f, 5)
            pre = ""
            if jn == 0 and ii < 4:
                pre = f"s_add_u32 s{sWC}, s{sST}, {ii}\ns_and_b32 s{sWC}, s{sWC}, 3\ns_mul_i32 s{sWC}, s{sWC}, 5120\ns_add_u32 s{sWC}, s{sWC}, s{sWO}\n"
            elif jn == 0:
                pre = f"s_add_u32 s{sWC}, s{sWO}, 20480\n"
            elif jn == 4:
                pre = f"s_add_u32 s{sWC}, s{sWC}, 4096\n"
            o.append((pre, lambda f=f, jn=jn: A.v(f"buffer_load_dwordx4 {V(WOR[f],4)}, v{vL16}, {S(R_WS,4)}, s{sWC} offen offset:{1024*(jn%4)} sc1", "wo")))
        return o

    def kv_flag():
        stamp("B", "kvw")
        A.vwait("kvst")
        cnt_add(ONE, sKF)
        stamp("B", "kvadd")

    def q2_ready():
        stamp("B", "q2w")
        A.vwait("q14")
        A("s_barrier")
        stamp("B", "q2")

    gl = []
    for pp in range(8):
        for g2 in range(2):
            pre = ""
            if g2 == 0 and pp % 2 == 0:
                pre = f"s_add_u32 s{sT1}, s{sST}, {pp//2}\ns_and_b32 s{sT1}, s{sT1}, 3\ns_lshl_b32 s{sT1}, s{sT1}, 12\ns_add_u32 s{sT1}, s{sT1}, s{sT0}\n"
            gl.append((pre, lambda pp=pp, g2=g2: A.v(f"buffer_load_dwordx4 {V(G+8*pp+4*g2,4)}, v{vGA+g2}, {S(R_WS,4)}, s{sT1} offen offset:{2048*(pp&1)} sc1", f"g{pp}")))
    Q0, Q1 = 8, 16
    PF0, PF1, PK0, PK1 = 80, 192, 56, 72
    st_ = Stream()
    st_.at(0, flat(issue_q(15)))
    KVF, KVT = OPT.get("kvf", 40), OPT.get("kvt", 92)
    st_.exact(KVF, kv_flag)
    st_.at(KVF + OPT.get("kvp", 4), lambda: cnt_probe(CQ0, sKF, True))
    if OPT.get("p2k", 0):
        st_.at(KVF + OPT.get("kvp2", 26), lambda: cnt_probe(CQ0 + 2, sKF, True))
    wol = issue_wo(0, 25)
    NW0 = OPT.get("nw0", 8)
    for i, g_ in enumerate(wol[:NW0]):
        st_.at(OPT.get("wo0", 30) + OPT.get("wostep", 5) * i, flat([g_]))
    st_.exact(72 - 2 * pipe.look - 1, q2_ready)
    st_.at(70, phi_frags(PF0, vPA, "pf"))
    st_.at(85, phi_frags(PF1, vPA1, "pf"))
    st_.exact(KVT, lambda: (stamp("B", "kvtest"), (cnt_poll2(CQ0, 14, sKF, 16, sCNT) if OPT.get('p2k', 0) else cnt_async(CQ0, 14, sKF, 16, sCNT, nap=OPT.get('napk', 0))), stamp("B", "kvseen")))
    NG1 = OPT.get("ng1", 10)
    for i, g_ in enumerate(gl[:NG1]):
        st_.at(min(KVT + 1 + 2 * i, 119), flat([g_]))
    st_.at(110, L(f"v_mov_b32 v{Q0+6}, 0\nv_mov_b32 v{Q0+7}, 0"))
    st_.run(mm)
    stamp("B", "g1b")

    A.c("---- phi_q; the kv partials are summed on the way")
    NW1 = OPT.get("nw1", 16)
    run(flat(gl[NG1:NG1 + 2]))
    run(cvt_tile(QA, 0, Q0, Q1) + cvt_tile(QA, 1, Q0, Q1))
    swap(Q0, Q1, 0, 4)
    run(cvt_tile(QA, 2, Q0, Q1))
    A(f"""
v_mov_b32 v43, v{QA+16}
s_mov_b32 exec_lo, 0
v_mov_b32 v43, v{QA+20}
s_mov_b32 exec_lo, 0xffff0000
s_mov_b32 exec_hi, 0xffff0000
""")
    A.l(f"ds_write_b32 v{vGW}, v43", "gw")
    A("s_mov_b64 exec, -1")
    assert "pf" not in A.lg
    phi_mfma(0, Q0, PF0, PF1, PK0, PK1)
    swap(Q0, Q1, 4, 6)
    phi_mfma(1, Q1, PF0, PF1, PK0, PK1)
    phi_mfma(2, Q0 + 4, PF0, PF1, PK0, PK1)
    run(flat(gl[NG1 + 2:]))
    RD, OF_, OD = 244, G, 56
    assert NW1 <= 20
    hk = Hooks()
    hk.at(OPT.get('woh', 20), flat(wol[NW0:NW1]))

    def reduce_(pp):
        A.vwait(f"g{pp}")
        for g2 in range(2):
            d = V(RD + 4 * g2, 4)
            A(f"v_mfma_f32_16x16x32_bf16 {d}, {V(ID,4)}, {V(G+8*pp+4*g2,4)}, {'0' if pp==0 else d}")

    def kvt_write():
        for i in range(4):
            A(f"v_cvt_pk_bf16_f32 v{RD+8+i}, v{RD+2*i}, v{RD+2*i+1}")
        A.l(f"ds_write_b64 v{vKT}, {V(RD+8,2)}", "kt")
        A("s_mov_b32 exec_hi, 0x007f007f")
        A.l(f"ds_write_b64 v{vKT+1}, {V(RD+10,2)}", "kt")
        A("s_mov_b64 exec, -1")

    def kvt_read():
        lwait_lds(RD, vL8, 2)
        A("s_barrier")
        stamp("B", "kvt")
        for T in (1, 0):
            for t in range(5):
                A.l(f"ds_read_b128 {V(OF_+8*t+4*T,4)}, v{vOA+T} offset:{16*t}", f"o{t}_{T}")
        for _ in range(2):
            A.l(f"ds_read_b32 v{RD}, v{vL8}", "_")
    if OPT.get("go", 0):
        hk.at(OPT.get("goh", 46), L(f"""
s_sub_u32 s{sJ}, s2, {ID_B}
s_lshl_b32 s{sJ}, s{sJ}, 8
s_add_u32 s{sJ}, s{sJ}, {C_GO}
""") + [lambda: cnt_init(sJ)])
    RH = OPT.get("rh", 34)
    hk2 = {RH + pp: (lambda pp=pp: reduce_(pp)) for pp in range(8)}
    hk2[min(RH + 12, 58)] = kvt_write
    hk2[min(RH + 18, 59)] = kvt_read
    hk.at(40, L(f"""
s_lshl_b32 s{sT1}, s{sST}, 2
s_add_u32 s{sT1}, s{sT1}, s{SW}
s_lshl_b32 s{sT1}, s{sT1}, 4
s_add_u32 s{sT1}, s{sT1}, s{sHP}
s_mul_i32 s{sT1}, s{sT1}, 2560
s_add_u32 s{sT1}, s{sT1}, {WS_O}
"""))
    softmax([PK0 + i for i in range(20)], [76 + i for i in range(16)] + [28, 29, 30, 31], PHI, 38,
            lambda n: (hk(n), hk2.pop(n, lambda: None)()), ratio=True)
    stamp("B", "phiq")
    OP = 28
    tail = L(f"""
v_mul_f32 v42, 0x358637bd, v42
v_add_f32 v40, v42, v{OD+20}
v_rcp_f32 v40, v40
""")
    for i in (8, 9):
        tail += L(f"v_mul_f32 v{OD+2*i}, v40, v{OD+2*i}\nv_mul_f32 v{OD+2*i+1}, v40, v{OD+2*i+1}\nv_cvt_pk_bf16_f32 v{OP+i}, v{OD+2*i}, v{OD+2*i+1}")
    tail.append(lambda: A.v(f"buffer_store_dwordx2 {V(OP+8,2)}, v{vOT}, {S(R_WS,4)}, s{sT1} offen offset:2048 sc1", "ost"))
    for T in (1, 0):
        for t in range(5):
            A.lwait(f"o{t}_{T}")
            d = V(OD + 16 * T, 16)
            A(f"v_mfma_f32_32x32x16_bf16 {d}, {V(OF_+8*t+4*T,4)}, {V(PHI+4*t,4)}, {'0' if t==0 else d}")
            if T == 0 and t == 0:
                tail.pop(0)()
                A("s_nop 5")
            if T == 0 and t == 3:
                for _ in range(5):
                    tail.pop(0)()
    run(tail)
    for i in range(8):
        scale(OD + 2 * i, 40, 0)
        A(f"v_cvt_pk_bf16_f32 v{OP+i}, v{OD+2*i}, v{OD+2*i+1}")
        if i == 3:
            A.v(f"buffer_store_dwordx4 {V(OP,4)}, v{vL16}, {S(R_WS,4)}, s{sT1} offen sc1", "ost")
        if i == 7:
            A.v(f"buffer_store_dwordx4 {V(OP+4,4)}, v{vL16}, {S(R_WS,4)}, s{sT1} offen offset:1024 sc1", "ost")
    stamp("B", "ost")
    NW2 = OPT.get("nw2", 21)
    run(flat(wol[NW1:NW2]))

    A.c("---- final projection: the wave sums its K quarter for four row tiles and owns tile (wave + ct) & 3")
    vOM, vOR, vW16 = 2, 3, 7
    vOMS = [72, 73, 74, 75]
    vRW, vRR, vAR, vAR2, vOUT2, vOUT = 1, 4, 5, 6, 2, 3
    sOB = [64, 65, 66, 67]
    sAF, sAT, sOC = 74, 25, 30
    GT, OMG, GA, AC0, AC1, OX = 8, 12, 16, 36, 56, 76
    OFR = [G + 4 * i for i in range(16)] + [OX + 4 * i for i in range(4)]
    A(f"""
s_add_u32 s{sOWN}, s{SW}, s{sCT}
s_and_b32 s{sOWN}, s{sOWN}, 3
s_lshl_b32 s{sCNT}, s{sB}, 2
s_add_u32 s{sCNT}, s{sCNT}, s{sOWN}
s_lshl_b32 s{sCNT}, s{sCNT}, 6
s_add_u32 s{sCNT}, s{sCNT}, {LDS_GATE}
v_and_b32 v42, 0x30, v0
v_add_u32 v42, s{sCNT}, v42
""")
    A.l(f"ds_read_b128 {V(GT,4)}, v42", "gt")
    A(f"""
s_lshl_b32 s{sAF}, s{sCT}, 2
s_add_u32 s{sAF}, s{sAF}, s{SW}
s_mul_i32 s{sAT}, s{sAF}, {20*4096}
s_lshl_b32 s{sAF}, s{sAF}, 8
s_add_u32 s{sAF}, s{sAF}, {C_AF}
s_lshl_b32 s{sWOFF}, s{sST}, 1
s_add_u32 s{sWOFF}, s{sWOFF}, s{sB}
s_lshl_b32 s{sCNT}, s{sWOFF}, 7
s_add_u32 s{sAT}, s{sAT}, s{sCNT}
s_add_u32 s{sAT}, s{sAT}, {WS_AT}
s_lshl_b32 s{sOC}, s{sWOFF}, 2
s_add_u32 s{sOC}, s{sOC}, s{SW}
s_lshl_b32 s{sOC}, s{sOC}, 8
s_add_u32 s{sOC}, s{sOC}, {C_O}
""")
    A.lwait("gt")
    cnt_read(CQ1, sAF)
    sGOT, sAL, sOU = 100, 101, 70

    def a_dma():
        A(f"s_mul_i32 s{sAL}, s{SW}, 2560")
        for i in range(3):
            A(f"s_add_u32 m0, s{sAL}, {LDS_AT+1024*i}")
            A("s_mov_b32 exec_hi, 0" if i == 2 else "s_nop 0")
            A(f"buffer_load_dwordx4 v{GA+1+i}, {S(R_WS,4)}, s{sAT} offen sc1 lds")
        A("s_mov_b64 exec, -1")

    def a_try():
        A(f"s_mov_b64 {S(14,2)}, {S(CQ1,2)}")
        cnt_test(14, 20)
        A(f"s_cselect_b32 s{sGOT}, 0, 1")
        guarded("", a_dma)
    A(f"""
v_mov_b32 v{vW16}, v{vL16}
v_and_b32 v40, 15, v0
v_bfe_u32 v43, v0, 4, 2
v_lshlrev_b32 v{vOM}, 9, v43
v_lshl_add_u32 v{vOM}, v40, 4, v{vOM}
v_mul_u32_u24 v{vOR}, 2560, v43
v_lshl_add_u32 v{vOR}, v40, 4, v{vOR}
v_bfe_u32 v49, v0, 3, 3
v_and_b32 v48, 7, v0
s_mul_i32 s{sCNT}, s{SW}, 20
""")
    for i in range(3):
        A(f"""
v_add_u32 v42, {8*i}, v49
v_add_u32 v43, s{sCNT}, v42
v_bfe_u32 v43, v43, 2, 3
v_xor_b32 v43, v43, v48
v_lshlrev_b32 v42, 12, v42
v_lshl_add_u32 v{GA+1+i}, v43, 4, v42
""")
    for e in range(4):
        A(f"v_mul_f32 v{GT+e}, s{sL2E}, v{GT+e}")
    for e in range(4):
        A(f"v_exp_f32 v{GT+e}, -v{GT+e}")
    for e in range(4):
        A(f"v_add_f32 v{GT+e}, 1.0, v{GT+e}")
    for e in range(4):
        A(f"v_rcp_f32 v{GT+e}, v{GT+e}")
    for p in range(4):
        A(f"""
s_add_u32 s{sCNT}, s{sOWN}, {p+1}
s_bfe_u32 s{sJ}, s{sCNT}, 0x10001
s_mul_i32 s{sOB[p]}, s{sJ}, 40960
s_and_b32 s{sJ}, s{sCNT}, 1
s_lshl_b32 s{sJ}, s{sJ}, 8
s_add_u32 s{sOB[p]}, s{sOB[p]}, s{sJ}
""")
    A(f"""
s_mul_i32 s{sCNT}, s{sWOFF}, 81920
s_mul_i32 s{sJ}, s{SW}, 10240
s_add_u32 s{sCNT}, s{sCNT}, s{sJ}
s_add_u32 s{sCNT}, s{sCNT}, {WS_O}
v_add_u32 v{vOM}, s{sCNT}, v{vOM}
v_add_u32 v{vOR}, s{sCNT}, v{vOR}
""")
    for e in range(4):
        A(f"v_sub_f32 v{OMG+e}, 1.0, v{GT+e}")
    A.vwait("ost")
    cnt_add(ONE, sOF)
    stamp("B", "oflag")
    cnt_probe(CQ0, sOC, True)
    a_try()
    run(flat(wol[NW2:]))
    for ii in range(4):
        A(f"""
s_add_u32 s{sCNT}, s{sST}, {ii}
s_and_b32 s{sCNT}, s{sCNT}, 3
s_mul_i32 s{sCNT}, s{sCNT}, 2560
v_add_u32 v{vOMS[ii]}, s{sCNT}, v{vOM}
""")
    A(f"""
v_bfe_u32 v41, v0, 5, 1
v_lshl_add_u32 v41, s{sOWN}, 1, v41
v_and_b32 v42, 7, v40
v_xor_b32 v42, v42, v41
v_lshlrev_b32 v42, 4, v42
v_bfe_u32 v43, v0, 4, 1
v_lshlrev_b32 v43, 3, v43
v_lshlrev_b32 v{vAR}, 9, v40
v_add3_u32 v{vAR}, v{vAR}, v42, v43
v_lshrrev_b32 v42, 2, v40
v_xor_b32 v42, v42, v41
v_lshlrev_b32 v42, 4, v42
v_lshlrev_b32 v{vAR2}, 7, v40
v_add3_u32 v{vAR2}, v{vAR2}, v42, v43
s_mul_i32 s{sCNT}, s{SW}, 15360
s_add_u32 s{sCNT}, s{sCNT}, {LDS_RED}
v_add_u32 v{vRR}, s{sCNT}, v{vW16}
""")
    if OPT.get("p2o", 0):
        cnt_probe(CQ0 + 2, sOC, True)
        cnt_poll2(CQ0, 14, sOC, 8, sCNT)
    else:
        cnt_async(CQ0, 14, sOC, 8, sCNT)
    stamp("B", "oseen")
    old = []
    for p in range(4):
        for ii in range(5):
            def f(p=p, ii=ii):
                r = V(OFR[5 * p + ii], 4)
                if ii < 4:
                    A.v(f"buffer_load_dwordx4 {r}, v{vOMS[ii]}, {S(R_WS,4)}, s{sOB[p]} offen sc1", f"of{p}_{ii}")
                else:
                    A.v(f"buffer_load_dwordx4 {r}, v{vOR}, {S(R_WS,4)}, s{sOB[p]} offen offset:2048 sc1", f"of{p}_{ii}")
            old.append(f)
    for _ in range(OPT.get("npo", 10)):
        old.pop(0)()
    AR = OFR[0] if OPT.get("aread", 58) != OPT.get("redbar", 84) else AC0

    def a_fetch():
        def late():
            if not OPT.get('abl'):
                cnt_async(16, 14, sAF, 20, sCNT, nap=OPT.get('napa', 1))
            a_dma()
        guarded(f"s_cmp_eq_u32 s{sGOT}, 1", late)
        stamp("B", "aseen")

    def a_read():
        stamp("B", "arw")
        A.vwait_all()
        A("s_barrier")
        stamp("B", "ar")
        for jn in range(4):
            A.l(f"ds_read_b64 {V(AR+2*jn,2)}, v{vAR} offset:{LDS_AT+128*jn}", "ar")
        A.l(f"ds_read_b64 {V(AR+8,2)}, v{vAR2} offset:{LDS_AT+8192}", "ar")
    mix = [lambda: A.lwait("ar")]
    for jn in range(5):
        for e in range(4):
            src = AR + 2 * jn + (e >> 1)
            mix += L(f"v_and_b32 v{GA+4*jn+e}, 0xffff0000, v{src}" if e & 1 else f"v_lshlrev_b32 v{GA+4*jn+e}, 16, v{src}")
    mix2 = [(lambda jn=jn, e=e: A(f"v_mul_f32 v{GA+4*jn+e}, v{GT+e}, v{GA+4*jn+e}")) for jn in range(5) for e in range(4)]
    mm = []
    for p in range(4):
        ac = AC0 if p % 2 == 0 else AC1
        for ii in range(5):
            for jn in range(5):
                def m(p=p, ac=ac, ii=ii, jn=jn):
                    if jn == 0:
                        A.vwait(f"of{p}_{ii}")
                        if p == 0 and ii == 0:
                            stamp("B", "o0")
                    d = V(ac + 4 * jn, 4)
                    A(f"v_mfma_f32_16x16x32_bf16 {d}, {V(OFR[5*p+ii],4)}, {V(WOR[5*ii+jn],4)}, {'0' if ii==0 else d}")
                mm.append(m)
    st_ = Stream(budget=2)
    for i, f in enumerate(old):
        st_.at(2 * i, f)
    AFET = OPT.get('afet', 22)
    st_.at(max(0, AFET - 40), lambda: cnt_read(16, sAF))
    st_.exact(AFET, a_fetch)
    KA_ = OPT.get("aread", 58)
    KB_ = OPT.get("redbar", 84)
    if KA_ != KB_:
        st_.exact(KA_, a_read)
        st_.at(KA_ + 4, mix + mix2)
    for p in range(3):
        ac = AC0 if p % 2 == 0 else AC1
        k0 = 25 * (p + 1)
        st_.at(k0 - 3, L(f"""
s_add_u32 s{sCNT}, s{SW}, {p+1}
s_and_b32 s{sCNT}, s{sCNT}, 3
s_mul_i32 s{sCNT}, s{sCNT}, 15360
v_add_u32 v{vRW}, s{sCNT}, v{vW16}
"""))
        for jn in range(5):
            st_.at(k0 + 1 + jn, lambda jn=jn, p=p, ac=ac: A.l(f"ds_write_b128 v{vRW}, {V(ac+4*jn,4)} offset:{LDS_RED+5120*p+1024*jn}", "rw"))
    st_.at(33, L(f"""
v_bfe_u32 v{vOUT}, v0, 4, 2
v_mul_u32_u24 v{vOUT}, 5120, v{vOUT}
v_and_b32 v{GA}, 15, v0
v_lshl_add_u32 v{vOUT2}, v{GA}, 1, v{vOUT}
v_lshl_add_u32 v{vOUT}, v{GA}, 3, v{vOUT}
s_lshl_b32 s{sOU}, s{sWOFF}, 2
s_add_u32 s{sOU}, s{sOU}, s{sOWN}
s_mul_i32 s{sOU}, s{sOU}, 20480
s_mul_i32 s{sJ}, s{sCT}, 160
s_add_u32 s{sOU}, s{sOU}, s{sJ}
"""))
    if KA_ != KB_:
        st_.exact(KB_, lambda: (stamp("B", "rbw"), A.lwait_all(), A("s_barrier"), stamp("B", "rb")))
    else:
        st_.exact(KB_, lambda: (A.lwait_all(), a_read()))
    red = []
    for jn in range(5):
        for q in (jn, 5 + jn, 10 + jn):
            red.append(lambda q=q, jn=jn: A.l(f"ds_read_b128 {V(OFR[q],4)}, v{vRR} offset:{1024*q}", f"rr{jn}"))
    if KA_ == KB_:
        red = red[:8] + [x for pr in zip(mix[:7], red[8:]) for x in pr] + mix[7:] + mix2
    st_.at(KB_ + 1, red)
    st_.run(mm, reserve=lambda k: 0)
    stamp("B", "fin")
    PK4 = OPT.get("pk4", 1)

    def add2(d, a_, b_):
        if PK4:
            A(f"v_pk_add_f32 {V(d,2)}, {V(a_,2)}, {V(b_,2)}")
        else:
            for n in range(2):
                A(f"v_add_f32 v{d+n}, v{a_+n}, v{b_+n}")
    for jn in range(5):
        A.lwait(f"rr{jn}")
        for h in range(2):
            r0, r1, r2 = OFR[jn] + 2 * h, OFR[5 + jn] + 2 * h, OFR[10 + jn] + 2 * h
            add2(r0, r0, r1)
            add2(r0, r0, r2)
    OSF = OPT.get("osf", "").replace("_", " ")
    for h in range(2):
        for jn in range(5):
            r0, g_ = OFR[jn] + 2 * h, GA + 4 * jn + 2 * h
            add2(r0, r0, AC1 + 4 * jn + 2 * h)
            if PK4:
                A(f"v_pk_fma_f32 {V(g_,2)}, {V(OMG+2*h,2)}, {V(r0,2)}, {V(g_,2)}")
            else:
                for n in range(2):
                    A(f"v_fma_f32 v{g_+n}, v{OMG+2*h+n}, v{r0+n}, v{g_+n}")
        for e in (2 * h, 2 * h + 1):
            A(f"v_cvt_pk_bf16_f32 v{AC0+4*e}, v{GA+e}, v{GA+4+e}")
            A(f"v_cvt_pk_bf16_f32 v{AC0+4*e+1}, v{GA+8+e}, v{GA+12+e}")
            A.v(f"buffer_store_dwordx2 {V(AC0+4*e,2)}, v{vOUT}, {S(R_M2,4)}, s{sOU} offen offset:{1280*e} {OSF}")
        A(f"v_cvt_pk_bf16_f32 v{AC0+8*h+2}, v{GA+16+2*h}, v{GA+17+2*h}")
        A.v(f"buffer_store_short v{AC0+8*h+2}, v{vOUT2}, {S(R_M2,4)}, s{sOU} offen offset:{2560*h+128} {OSF}")
        A.v(f"buffer_store_short_d16_hi v{AC0+8*h+2}, v{vOUT2}, {S(R_M2,4)}, s{sOU} offen offset:{2560*h+1280+128} {OSF}")
    finish("B")


def role_A():
    sAJ, sTB, sCB, sCH, sLB = 60, 61, 62, 63, 68
    ONE, CQ0, CQ1, CQ2, sUP, sUC, sAC, sGOT, sWC = 18, 20, 28, 40, 69, 48, 49, 50, 51
    sW0, sW1, sW2 = 73, 74, 75
    A.c("---- A prologue")
    A(f"""
s_sub_u32 s{sAJ}, s2, {ID_A}
s_lshl_b32 s{sCH}, s{sAJ}, 2
s_add_u32 s{sCH}, s{sCH}, s{SW}
s_mul_i32 s{sLB}, s{SW}, 20480
v_and_b32 v1, 63, v0
v_lshlrev_b32 v5, 2, v1
s_lshl_b32 s{sT0}, s{sCH}, 8
v_add_u32 v3, s{sT0}, v5
s_and_b32 s{sT3}, s{sCH}, 0xfffffffe
s_lshl_b32 s{sT3}, s{sT3}, 1
s_waitcnt lgkmcnt(0)
""")
    A(f"s_load_dword s70, {S(P_LOGDT,2)}, s{sT3}")
    A(f"s_load_dword s71, {S(P_DSK,2)}, s{sT3}")
    load_epoch()
    for i, p in enumerate((P_LOGA, P_AIM, P_CRE, P_CIM)):
        A.v(f"global_load_dword v{8+i}, v3, {S(p,2)}{' nt' if OPT.get('nt', 1) else ''}", "par")
    if OPT.get("ahead", 1):
        A("s_branch L_A2")
        k = A.lines.index("L_A:")
        head = A.lines[k:]
        del A.lines[k:]
        A.lines[A_HEAD:A_HEAD] = head
        A("L_A2:")
    stamp("A", "a2")
    stamp("A", "a3")
    A("s_waitcnt lgkmcnt(0)")
    stamp("A", "a4")

    def late_setup():
        A(f"""
s_mul_i32 s{sAC}, s{sCH}, 3277
s_lshr_b32 s{sAC}, s{sAC}, 16
s_mul_i32 s{sGOT}, s{sAC}, 20
s_lshl_b32 s{sAC}, s{sAC}, 8
s_add_u32 s{sAC}, s{sAC}, {C_AF}
s_lshr_b32 s{sUC}, s{sAJ}, 4
s_lshl_b32 s{sUC}, s{sUC}, 8
s_add_u32 s{sUC}, s{sUC}, {C_UT}
s_mov_b64 {S(ONE,2)}, 1
""")
        srd(R_WS, P_WS, WS_SIZE)
        A(f"""
s_lshl_b32 s{sT0}, s{sAJ}, 14
s_add_u32 s{sT0}, s{sT0}, {WS_UT}
s_add_u32 s{R_M1}, s{P_WS}, s{sT0}
s_addc_u32 s{R_M1+1}, s{P_WS+1}, 0
s_mov_b32 s{R_M1+2}, 16384
s_mov_b32 s{R_M1+3}, 0x20000
""")
        make_tag()
        A(f"s_cmp_eq_u32 s{sGOT}, s{sCH}")
        rare(lambda: cnt_init(sAC))
        A("""
v_and_b32 v24, 15, v1
v_lshrrev_b32 v25, 1, v1
v_and_b32 v25, 24, v25
""")
        for wd, first in ((9, 4), (7, 5), (5, 6), (3, 11), (2, 12)):
            A(f"""
v_mov_b32 v26, {((1 << wd) - 1) << first}
v_lshlrev_b32 v26, v24, v26
v_lshrrev_b32 v26, v25, v26
""")
            for p in range(4):
                r = BAND[wd] + p
                A(f"v_bfe_u32 v27, v26, {2*p+1}, 1")
                A(f"v_bfe_u32 v{r}, v26, {2*p}, 1")
                A(f"v_lshl_or_b32 v{r}, v27, 16, v{r}")
                if wd != 2:
                    A(f"v_mul_u32_u24 v{r}, 0x3f80, v{r}")

    BAND = {9: 224, 7: 228, 5: 232, 3: 236, 2: 240}
    stamp("A", "a5")
    A.vwait("par")
    stamp("A", "a6")
    stamp("A", "par")
    A(f"s_setprio {OPT.get('prioK', 0)}")
    if OPT.get("fakea"):
        late_setup()
        for _ in range(OPT["fakea"]):
            A("s_sleep 100")
        A("s_branch L_cend")
    A.c("---- per-mode constants (two modes per lane)")
    A(f"""
s_bitcmp1_b32 s{sCH}, 0
s_cselect_b32 s{sT0}, 0, 16
s_lshl_b32 s70, s70, s{sT0}
s_and_b32 s70, s70, 0xffff0000
s_lshl_b32 s71, s71, s{sT0}
s_and_b32 s71, s71, 0xffff0000
v_mov_b32 v32, {LOG2E:#x}
v_mul_f32 v33, s70, v32
v_exp_f32 v33, v33
""")
    A.vwait("par")
    LA, AI, XR, XI = 34, 36, 38, 40
    for (src, dst) in ((8, LA), (9, AI), (10, XR), (11, XI)):
        A(f"v_lshlrev_b32 v{dst}, 16, v{src}")
        A(f"v_and_b32 v{dst+1}, 0xffff0000, v{src}")
    A(f"""
v_cvt_pk_bf16_f32 v33, v33, v33
v_and_b32 v33, 0xffff0000, v33
v_mul_f32 v{LA}, v32, v{LA}
v_mul_f32 v{LA+1}, v32, v{LA+1}
v_exp_f32 v{LA}, v{LA}
v_exp_f32 v{LA+1}, v{LA+1}
v_mul_f32 v{AI}, v33, v{AI}
v_mul_f32 v{AI+1}, v33, v{AI+1}
v_cvt_pk_bf16_f32 v{LA+1}, v{LA}, v{LA+1}
v_lshlrev_b32 v{LA}, 16, v{LA+1}
v_and_b32 v{LA+1}, 0xffff0000, v{LA+1}
v_mul_f32 v{LA}, v33, v{LA}
v_mul_f32 v{LA+1}, v33, v{LA+1}
v_mul_f32 v{LA}, v32, v{LA}
v_mul_f32 v{LA+1}, v32, v{LA+1}
v_mul_f32 v{AI}, {INV2PI:#x}, v{AI}
v_mul_f32 v{AI+1}, {INV2PI:#x}, v{AI+1}
v_add_f32 v33, v33, v33
v_mul_f32 v{XR}, v33, v{XR}
v_mul_f32 v{XR+1}, v33, v{XR+1}
v_mul_f32 v{XI}, v33, -v{XI}
v_mul_f32 v{XI+1}, v33, -v{XI+1}
""")
    W = {1: 44, 8: 48, 256: 52}
    for p, w in W.items():
        lit = {1: "1.0", 8: "0x41000000", 256: "0x43800000"}[p]
        for n in range(2):
            A(f"v_mul_f32 v{56+n}, {lit}, v{LA+n}")
            A(f"v_mul_f32 v{58+n}, {lit}, v{AI+n}")
        for n in range(2):
            A(f"v_exp_f32 v{56+n}, -v{56+n}")
            A(f"v_fract_f32 v{58+n}, v{58+n}")
        for n in range(2):
            A(f"v_cos_f32 v{w+n}, v{58+n}")
            A(f"v_sin_f32 v{w+2+n}, v{58+n}")
        A(f"v_pk_mul_f32 {V(w,2)}, {V(w,2)}, {V(56,2)}")
        A(f"v_pk_mul_f32 {V(w+2,2)}, {V(w+2,2)}, {V(56,2)}")
    vSW, vSR = 6, 7
    A(f"""
v_lshlrev_b32 v{vSW}, 3, v1
v_add_u32 v{vSW}, s{sLB}, v{vSW}
v_and_b32 v{vSR}, 31, v1
v_mul_u32_u24 v{vSR}, 528, v{vSR}
v_lshrrev_b32 v12, 5, v1
v_lshlrev_b32 v12, 4, v12
v_add3_u32 v{vSR}, v{vSR}, v12, s{sLB}
""")
    pk, pend = [0], []

    def put(reg, rows):
        pend.append((reg, rows))

    def flush(stage=None):
        if pend and stage in (0, None):
            pk[0] += 1
            t, reg = 80 + 2 * (pk[0] % 4), pend[0][0]
            A(f"v_cvt_pk_bf16_f32 v{t+1}, v{reg+2}, v{reg+3}")
            A(f"v_cvt_pk_bf16_f32 v{t}, v{reg}, v{reg+1}")
        if pend and stage in (1, None):
            for r in pend.pop(0)[1]:
                A.l(f"ds_write_b64 v{vSW}, {V(80+2*(pk[0]%4),2)} offset:{528*r}", "st")

    def cmul(d, s, w, conj):
        n1, n2 = ("", " neg_lo:[1,0,0] neg_hi:[1,0,0]") if conj else (" neg_lo:[0,0,1] neg_hi:[0,0,1]", "")
        A(f"v_pk_mul_f32 {V(56,2)}, {V(s+2,2)}, {V(w+2,2)}")
        A(f"v_pk_mul_f32 {V(58,2)}, {V(s+2,2)}, {V(w,2)}")
        flush(0)
        A(f"v_pk_fma_f32 {V(d+2,2)}, {V(s,2)}, {V(w+2,2)}, {V(58,2)}{n2}")
        A(f"v_pk_fma_f32 {V(d,2)}, {V(s,2)}, {V(w,2)}, {V(56,2)}{n1}")
        flush(1)

    A.c("---- X rows")
    g0 = [0, 1, 2, 3, 4, 5, 6, 7, 8, 516, 520, 1032, 1544]
    g1 = [256, 256, 258, 260, 260, 260, 262, 264, 264, 772, 776, 1288, 1800]
    rows = {}
    for g, lst in enumerate((g0, g1)):
        for i, p in enumerate(lst):
            rows.setdefault(p, []).append(8 * (i >> 2) + 4 * g + (i & 3))
    keep = {0: XR, 2: 60, 4: 64, 6: 68, 8: 72}
    put(XR, rows[0])
    cur = XR
    for p in range(1, 9):
        d = keep.get(p, 76)
        cmul(d, cur, W[1], True)
        put(d, rows[p])
        cur = d
    for step in range(1, 8):
        for off in (0, 2, 6, 8, 4):
            p = 256 * step + off
            if p in rows:
                cmul(keep[off], keep[off], W[256], True)
                put(keep[off], rows[p])
    XF, YA = 96, 60
    cmul(YA, W[8], W[8], False)
    assert not pend
    for ks in range(16):
        A.l(f"ds_read_b128 {V(XF+4*ks,4)}, v{vSR} offset:{32*ks}", "xf")
    A.c("---- Y rows")
    A(f"""
v_mov_b32 v24, 0x3f803f80
v_mov_b32 v25, 0
""")
    stamp("A", "xrows")
    A.l(f"ds_write_b64 v{vSW}, {V(24,2)}", "st")
    put(W[8], [1])
    flush()
    put(YA, [2])
    for c in range(3, 32):
        cmul(YA, YA, W[8], False)
        put(YA, [c])
    flush()
    stamp("A", "yrows")
    YF, KD = 160, 68
    L_KF, L_SQ = 4608, 4608 + 2432
    vKW, vKA, vSA, vS4, vS8, vUB, vUD = 3, 8, 10, 11, 12, 4, 2
    fl = L(f"""
v_and_b32 v13, 15, v1
v_and_b32 v14, 0x30, v1
v_lshl_add_u32 v{vUB}, v13, 5, v14
v_add_u32 v{vUB}, s{sLB}, v{vUB}
v_add_u32 v15, 1, v13
v_and_b32 v13, 1, v15
v_lshrrev_b32 v15, 1, v15
v_lshlrev_b32 v15, 2, v15
v_sub_u32 v15, s{sLB}, v15
v_mul_u32_u24 v{vKA}, 1216, v13
v_add3_u32 v{vKA}, v{vKA}, v15, v14
v_add_u32 v{vKA}, {L_KF+32}, v{vKA}
v_add_u32 v{vKA+1}, 64, v{vKA}
v_mul_u32_u24 v{vSA}, 832, v13
v_lshrrev_b32 v14, 1, v14
v_add3_u32 v{vSA}, v{vSA}, v15, v14
v_add_u32 v{vSA}, {L_SQ+32}, v{vSA}
v_and_b32 v13, 1, v1
v_and_b32 v14, 0x3e, v1
v_sub_u32 v14, s{sLB}, v14
v_add_u32 v14, {L_SQ+62}, v14
v_lshl_add_u32 v{vS4}, v13, 8, v14
v_mul_u32_u24 v13, 160, v13
v_add_u32 v{vS8}, v13, v14
v_lshlrev_b32 v13, 4, v1
v_sub_u32 v{vKW}, s{sLB}, v13
v_add_u32 v{vKW}, {L_KF+1072}, v{vKW}
v_add_u32 v13, s{sLB}, v13
s_lshl_b32 s{sT0}, s{SW}, 4
v_lshl_add_u32 v{vUD}, v1, 6, s{sT0}
v_mov_b32 v16, 0
v_mov_b32 v17, 0
v_mov_b32 v18, 0
v_mov_b32 v19, 0
""")
    for ks in range(16):
        A.l(f"ds_read_b128 {V(YF+4*ks,4)}, v{vSR} offset:{32*ks}", f"y{ks}")
        if ks >= 6:
            k2 = ks - 6
            A.lwait(f"y{k2}")
            A(f"v_mfma_f32_32x32x16_bf16 {V(KD,16)}, {V(XF+4*k2,4)}, {V(YF+4*k2,4)}, {'0' if k2==0 else V(KD,16)}")
            for _ in range(4):
                if fl:
                    fl.pop(0)()
    run(fl)
    zero = [lambda: A.l(f"ds_write_b64 v{vSW}, {V(16,2)}", "cv")]
    zero += [(lambda i=i: A.l(f"ds_write_b128 v13, {V(16,4)} offset:{L_KF+1024*i}", "cv")) for i in range(4)]
    for k2 in range(10, 16):
        A.lwait(f"y{k2}")
        A(f"v_mfma_f32_32x32x16_bf16 {V(KD,16)}, {V(XF+4*k2,4)}, {V(YF+4*k2,4)}, {V(KD,16)}")
        if zero:
            zero.pop(0)()
    A(f"""
s_mov_b64 exec, 1
v_add_f32 v{KD}, s71, v{KD}
s_mov_b64 exec, -1
""")
    for c_ in range(2):
        for p in range(4):
            A(f"v_cvt_pk_bf16_f32 v{84+4*c_+p}, v{KD+7+c_-2*p}, v{KD+6+c_-2*p}")
        A.l(f"ds_write_b128 v{vKW}, {V(84+4*c_,4)} offset:{1216*c_}", "cv")
    A(f"""
v_cvt_pk_bf16_f32 v92, v{KD+9}, v{KD+10}
v_cvt_pk_bf16_f32 v93, v{KD+11}, v{KD+12}
v_cvt_pk_bf16_f32 v21, v{KD+8}, v{KD+8}
v_lshrrev_b32 v22, 16, v87
v_and_b32 v20, 0xffff0000, v21
v_mov_b32 v23, s{sLB}
v_readlane_b32 s{sT0}, v92, 63
""")
    for c_ in range(2):
        A.l(f"ds_write_b16 v{vS4}, v92 offset:{32+834*c_}", "cv")
        A.l(f"ds_write_b16_d16_hi v{vS4}, v92 offset:{32+128+834*c_}", "cv")
        A.l(f"ds_write_b16 v{vS8}, v93 offset:{512+64+834*c_}", "cv")
        A.l(f"ds_write_b16_d16_hi v{vS8}, v93 offset:{512+834*c_}", "cv")
    A("s_mov_b64 exec, 1")
    A.l(f"ds_write_b32 v23, v22 offset:{L_KF+1216+1088}", "cv")
    A("s_mov_b32 exec_lo, 0")
    A("s_mov_b32 exec_hi, 0x80000000")
    A.l(f"ds_write_b64 v23, {V(20,2)} offset:{L_KF+56}", "cv")
    A.l(f"ds_write_b32 v23, v21 offset:{L_KF+1216+60}", "cv")
    A("s_mov_b64 exec, -1")
    A(f"s_lshr_b32 s{sT1}, s{sT0}, 16")
    stamp("A", "kdone")
    A(f"s_setprio {OPT.get('prioA', 0)}")
    late_setup()
    for p in range(4):
        A(f"v_mul_u32_u24 v{BAND[2]+p}, s{sT1}, v{BAND[2]+p}")
    only_wave(0, lambda: cnt_read(CQ0, sUC))
    KF, SF = 96, 164
    for m in range(17):
        a_, o = (vKA + 1, 16 * (15 - m)) if m < 16 else (vKA, 0)
        for hh in range(2):
            A.l(f"ds_read2_b32 {V(KF+4*m+2*hh,2)}, v{a_} offset0:{o+2*hh} offset1:{o+2*hh+1}", "kf")
    SFR = {}
    for ty, seqs, ns in (("P", (0, 128), (2, 3, 4)), ("Q", (256, 384), (2, 3, 4)), ("E", (512, 672), (4, 5, 6, 7))):
        for n in ns:
            SFR[ty, n] = SF + 4 * len(SFR)
            for hh in range(2):
                o = (seqs[hh] + 32 * (ns[-1] - n)) // 4
                A.l(f"ds_read2_b32 {V(SFR[ty,n]+2*hh,2)}, v{vSA} offset0:{o} offset1:{o+1}", "kf")
    A.lwait_all()
    only_wave(0, lambda: cnt_wait(CQ0, sUC, 16, sCNT, nap=OPT.get("napu", 4)))
    A("s_barrier")
    A(f"s_setprio {OPT.get('prioR', 3)}")
    USC = ' sc1' if OPT.get('usc', 0) else ''
    for i in range(4):
        A(f"s_add_u32 m0, s{sLB}, {512+1024*i}")
        A(f"s_movk_i32 s{sT0}, {4096*i}")
        A.v(f"buffer_load_dwordx4 v{vUD}, {S(R_M1,4)}, s{sT0} offen{USC} lds", "u")
    stamp("A", "utseen")
    A(f"s_setprio {OPT.get('prioA', 0)}")
    A.vwait("u")
    stamp("A", "cstart")
    if OPT.get("noconv"):
        finish("A")
        return
    A.c("---- convolution. Lags < 515: Toeplitz tiles of K times input blocks. Beyond that K is constant over runs of")
    A.c("---- the rounded position: window sums of the input (0/1 band matrices) times the decimated K.")
    CA = 16
    UR, NUR, LOOK = 48, 8, 6
    GU = [80, 88]
    DD, ZZ = [204, 212], [220, 244]
    started = set()

    def mfma(d, a_, b_, key=None):
        c = "0" if key is None or key not in started else V(d, 4)
        started.add(key)
        A(f"v_mfma_f32_16x16x32_bf16 {V(d,4)}, {V(a_,4)}, {V(b_,4)}, {c}")

    ufr = [(r, n) for r in range(8) for n in range(8)]
    fine = []
    for i, (r, n) in enumerate(ufr):
        for mu, a_ in ((0, KF + 4 * r), (1, KF + 4 * (8 + r)), (2, KF + 64), (4, BAND[2])):
            if mu + n <= 7 and (mu < 2 or r == 0):
                fine.append((i, mu + n, a_))
    uread = lambda i: A.l(f"ds_read_b128 {V(UR+4*(i%NUR),4)}, v{vUB} offset:{32+512*ufr[i][1]+64*(7-ufr[i][0])}", f"u{i}")
    gread = lambda mu: [(lambda h=h: A.l(f"ds_read_b128 {V(GU[mu&1]+4*h,4)}, v{vUB} offset:{480+512*mu-16*h}", f"g{mu}")) for h in range(2)]
    ops = [(mu, ty) for mu in range(6) for ty in "PQE" if ty != "E" or mu < 4]
    HALF = {"P": ((0, 3), (0, 5)), "Q": ((1, 3), (1, 5)), "E": ((0, 7), (1, 9))}
    extra, fill = {}, {}
    for j, (mu, ty) in enumerate(ops):
        p = 2 + 8 * j
        d, z = DD[j & 1], ZZ[j & 1]

        def build(mu=mu, ty=ty, d=d):
            A.lwait(f"g{mu}")
            for h, (uf, wd) in enumerate(HALF[ty]):
                mfma(d + 4 * h, GU[mu & 1] + 4 * uf, BAND[wd])

        def use(mu=mu, ty=ty, z=z):
            for (t_, n), f_ in SFR.items():
                if t_ == ty and mu + n <= 7:
                    mfma(CA + 4 * (mu + n), z, f_, mu + n)
        extra.setdefault(p, []).append(build)
        extra.setdefault(min(p + 7, len(fine) - 1), []).insert(0, use)
        for q in range(4):
            fill.setdefault(p + 4 + q // 2, []).append(lambda q=q, d=d, z=z: A(f"v_cvt_pk_bf16_f32 v{z+q}, v{d+2*q}, v{d+2*q+1}"))
        if ty == "Q" and mu < 5:
            fill.setdefault(p + 1, []).extend(gread(mu + 1))
    for i in range(2):
        uread(i)
    run(gread(0))
    for i in range(2, LOOK):
        uread(i)
    nread = LOOK
    for k, (i, n, a_) in enumerate(fine):
        A.lwait(f"u{i}")
        mfma(CA + 4 * n, a_, UR + 4 * (i % NUR), n)
        if nread < len(ufr) and nread <= i + LOOK:
            uread(nread)
            nread += 1
        run(fill.pop(k, []))
        run(extra.pop(k, []))
        if OPT.get("go", 0) and k == OPT.get("gok", 40):
            A(f"s_lshl_b32 s{sT0}, s{sAJ}, 8")
            A(f"s_add_u32 s{sT0}, s{sT0}, {C_GO+96*256}")
            stamp("A", "pause")
            cnt_wait(CQ0, sT0, 0, sCNT, probed=False, nap=OPT.get("napg", 2))
            stamp("A", "go")
    assert not fill and not extra and nread == 64
    A("L_cend:")
    A(f"s_setprio {OPT.get('prioR', 3)}")
    stamp("A", "cend")
    A(f"""
v_and_b32 v2, 15, v1
v_lshlrev_b32 v2, 5, v2
v_bfe_u32 v3, v1, 4, 1
v_lshl_add_u32 v2, v3, 9, v2
v_lshrrev_b32 v3, 5, v1
v_lshl_add_u32 v2, v3, 4, v2
s_lshl_b32 s{sT0}, s{sCH}, 12
s_add_u32 s{sT0}, s{sT0}, {WS_AT}
""")
    for q in range(640):
        assert (q * 3277) >> 16 == q // 20
    A.lwait_all()
    for n in range(0, 8, 2):
        d = 48 + 2 * n
        for i in range(4):
            A(f"v_cvt_pk_bf16_f32 v{d+i}, v{CA+4*n+2*i}, v{CA+4*n+2*i+1}")
    for n in range(0, 8, 2):
        d = 48 + 2 * n
        A(f"v_permlane16_swap_b32 v{d}, v{d+2}")
        A(f"v_permlane16_swap_b32 v{d+1}, v{d+3}")
        A.v(f"buffer_store_dwordx4 {V(d,4)}, v2, {S(R_WS,4)}, s{sT0} offen offset:{512*n} sc1", "ast")
    A.vwait("ast")
    cnt_arrive(CQ1, sAC)
    A("s_waitcnt lgkmcnt(0)")
    cnt_verify(CQ1, sAC, sCNT)
    finish("A")


def role_R():
    CQ0 = 20
    A("L_ep:")
    A("s_waitcnt lgkmcnt(0)")
    load_epoch()
    A("s_waitcnt lgkmcnt(0)")
    make_tag()
    srd(R_WS, P_WS, WS_SIZE)
    cnt_wait(CQ0, str(C_KV), 16, sCNT, probed=False, nap=32)
    cnt_wait(CQ0, str(C_AF), 20, sCNT, probed=False, nap=16)
    A(f"""
v_and_b32 v1, 63, v0
v_lshlrev_b32 v2, 8, v1
v_add_u32 v3, {C_AF}, v2
v_add_u32 v4, {C_WO-32*256}, v2
v_cmp_gt_u32 vcc, 32, v1
v_cndmask_b32 v3, v4, v3, vcc
v_lshlrev_b32 v4, 10, v1
v_add_u32 v4, {C_KV-40*1024}, v4
v_cmp_gt_u32 vcc, 40, v1
v_cndmask_b32 v3, v4, v3, vcc
v_cndmask_b32 v6, 16, 20, vcc
v_mov_b32 v7, s{TAG+1}
v_add_co_u32 v6, vcc, s{TAG}, v6
v_addc_co_u32 v7, vcc, 0, v7, vcc
s_mov_b32 exec_hi, 0xffffff
s_mov_b32 s{sCNT}, 0
L_epl:
v_mov_b32 v4, 0
v_mov_b32 v5, 0
buffer_atomic_add_x2 v[4:5], v3, {S(R_WS,4)}, 0 offen sc0 sc1
s_add_u32 s{sCNT}, s{sCNT}, 1
s_waitcnt vmcnt(0)
v_cmp_ne_u64 vcc, v[4:5], v[6:7]
s_cbranch_vccz L_epd
s_sleep 16
s_cmp_lt_u32 s{sCNT}, {SPIN}
s_cbranch_scc1 L_epl
L_epd:
""")
    A(f"s_atomic_swap_x2 {S(TAG,2)}, {S(P_WS,2)}, {WS_EPOCH}")
    A("s_endpgm")


if "B" in OPT["roles"]:
    role_B()
else:
    A("L_B:\ns_endpgm")
A("L_A:")
if "A" in OPT["roles"]:
    role_A()
else:
    A("s_endpgm")
role_R()
A.lines += TAIL
A("L_codeend:")
lines, nn = pad_hazards(A.lines, verbose=False)
if OPT.get("align", 1):
    lines, cnt_, cost_ = align8(lines)
    print("align:", cnt_, cost_, file=sys.stderr)
hdr = open("gated_mix__ssm_conv_s4d__linear_kernel_hedgehog__prompt.s.ref").read().split("; Override launch")[0]
print(hdr + f"; @launch grid=({ID_END},1,1) block=(256,1,1) lds=81920")
print("\n".join(lines))
print(f""".section .rodata,"a"
.p2align 6
.amdhsa_kernel {KN}
  .amdhsa_next_free_vgpr 256
  .amdhsa_next_free_sgpr 102
  .amdhsa_accum_offset 256
  .amdhsa_group_segment_fixed_size 0
  .amdhsa_kernarg_size 120
  .amdhsa_user_sgpr_count 2
  .amdhsa_user_sgpr_kernarg_segment_ptr 1
  .amdhsa_system_sgpr_workgroup_id_x 1
.end_amdhsa_kernel""")
json.dump(stampnames, open("stamps.json", "w"))
print(f"pad states inserted: {nn}", file=sys.stderr)
```
